```python
import torch

def _softmax(x, axis=-1):
    return torch.softmax(x, dim=axis)
def _gelu(x):
    return torch.nn.functional.gelu(x, approximate="tanh")
def _silu(x):
    return torch.nn.functional.silu(x)
def _sigmoid(x):
    return torch.sigmoid(x)
def _layernorm(x, axis=-1, eps=1e-5):
    m = x.mean(dim=axis, keepdim=True)
    v = x.var(dim=axis, keepdim=True, unbiased=False)
    return (x - m) / torch.sqrt(v + eps)
def _scatter_add(tgt, idx, src, axis=0):
    return tgt.clone().index_add_(axis, idx, src)
def _segment_sum(src, seg, n):
    out = torch.zeros((n,) + src.shape[1:], dtype=src.dtype)
    return out.index_add_(0, seg, src)
def _pad(x, pw):
    flat = tuple(v for pair in reversed(pw) for v in pair)
    return torch.nn.functional.pad(x, flat)

kernel_name = 'recurrent_scan__ssm_conv_s4__dense_activation_squared_relu__prompt'

def setup_inputs():

    _w = (lambda a: (lambda t: t.to(torch.bfloat16) if t.is_floating_point() else t)(torch.as_tensor(a)))
    def _A_setup():
        B, L, D, N = 1, 2048, 512, 128
        A_re = -(lambda _x: torch.exp(torch.as_tensor(_x)))((lambda *s: torch.randn(*s, dtype=torch.bfloat16) * 3.2)(D, N))
        A_im = torch.pi * (lambda *s: torch.randn(*s, dtype=torch.bfloat16) * 0.05)(D, N)
        B_re = (lambda *s: torch.randn(*s, dtype=torch.bfloat16) * 0.2)(D, N)
        B_im = (lambda *s: torch.randn(*s, dtype=torch.bfloat16) * 0.1)(D, N)
        C_re = (lambda *s: torch.randn(*s, dtype=torch.bfloat16) * 0.2)(D, N)
        C_im = (lambda *s: torch.randn(*s, dtype=torch.bfloat16) * 0.2)(D, N)
        log_dt = (lambda *s: torch.randn(*s, dtype=torch.bfloat16) * 0.05)(D) * 0.5 - 4.0
        Dskip = (lambda *s: torch.randn(*s, dtype=torch.bfloat16) * 0.05)(D)
        return {
            "u": _w((lambda *s: torch.randn(*s, dtype=torch.bfloat16) * 0.05)(B, L, D)),
            "A_re": _w(A_re),
            "A_im": _w(A_im),
            "B_re": _w(B_re),
            "B_im": _w(B_im),
            "C_re": _w(C_re),
            "C_im": _w(C_im),
            "log_dt": _w(log_dt),
            "Dskip": _w(Dskip),
        }
    _A_in = _A_setup()

    def _B_setup():
        B, S, D, F = 1, 2048, 512, 1376
        return {
            "x": _w((lambda *s: torch.randn(*s, dtype=torch.bfloat16) * 0.05)(B, S, D)),
            "w1": _w((lambda *s: torch.randn(*s, dtype=torch.bfloat16) * 0.05)(D, F)),
            "b1": _w((lambda *s: torch.randn(*s, dtype=torch.bfloat16) * 0.4)(F)),
            "w2": _w((lambda *s: torch.randn(*s, dtype=torch.bfloat16) * 0.05)(F, D)),
            "b2": _w((lambda *s: torch.randn(*s, dtype=torch.bfloat16) * 1.6)(D)),
        }
    _B_in = _B_setup()

    return {
        "A_u": _A_in["u"],
        "A_A_re": _A_in["A_re"],
        "A_A_im": _A_in["A_im"],
        "A_B_re": _A_in["B_re"],
        "A_B_im": _A_in["B_im"],
        "A_C_re": _A_in["C_re"],
        "A_C_im": _A_in["C_im"],
        "A_log_dt": _A_in["log_dt"],
        "A_Dskip": _A_in["Dskip"],
        "B_x": _B_in["x"],
        "B_w1": _B_in["w1"],
        "B_b1": _B_in["b1"],
        "B_w2": _B_in["w2"],
        "B_b2": _B_in["b2"],
    }

def reference(A_u, A_A_re, A_A_im, A_B_re, A_B_im, A_C_re, A_C_im, A_log_dt, A_Dskip, B_x, B_w1, B_b1, B_w2, B_b2):
    def _A_ref(u, A_re, A_im, B_re, B_im, C_re, C_im, log_dt, Dskip):
        Bsz, L, D = u.shape
        dt = torch.exp(log_dt)[:, None]
        A = A_re + 1j * A_im
        Bc = B_re + 1j * B_im
        Cc = C_re + 1j * C_im
        logdA = dt * A
        dB = dt * Bc
        l = (lambda x, dt: x.to(dt))(torch.arange(L), A_re.dtype)
        P = torch.exp(logdA[:, :, None] * l[None, None, :])
        K = torch.einsum("dn,dnl,dn->dl", Cc, P, dB).real
        L2 = 2 * L
        Kp = _pad(K, ((0, 0), (0, L)))
        up = (lambda x, *d: x.permute(*d))(u, 0, 2, 1)
        up = _pad(up, ((0, 0), (0, 0), (0, L)))
        Kf = (lambda x, axes=(-2,-1): torch.fft.rfft2(x.float(), dim=axes))(Kp[:, None, :], axes=(-2, -1))
        Uf = (lambda x, axes=(-2,-1): torch.fft.rfft2(x.float(), dim=axes))(up[:, :, None, :], axes=(-2, -1))
        Yf = Uf * Kf[None, :, :, :]
        y = (lambda x, s, axes=(-2,-1): torch.fft.irfft2(x, s=s, dim=axes).to(torch.bfloat16))(Yf, (1, L2), axes=(-2, -1))[:, :, 0, :L]
        y = (lambda x, *d: x.permute(*d))(y, 0, 2, 1) + u * Dskip[None, None, :]
        return y

    def _B_ref(x, w1, b1, w2, b2):
        h = torch.einsum("bsd,df->bsf", x, w1) + b1
        zero = torch.zeros_like(h)
        r = torch.where(h > zero, h, zero)
        h = r * r
        out = torch.einsum("bsf,fd->bsd", h, w2) + b2
        return out

    x = A_u
    xn = _layernorm(x, axis=-1)
    s = _A_ref(xn, A_A_re, A_A_im, A_B_re, A_B_im, A_C_re, A_C_im, A_log_dt, A_Dskip)
    g = _silu(_B_ref(xn, B_w1, B_b1, B_w2, B_b2))
    return x + s * g
```

```python
import re

def regs_of(tok):
    tok = tok.strip()
    tok = tok.lstrip('-')
    if tok.startswith('|') and tok.endswith('|'): tok = tok[1:-1]
    if tok.startswith('abs(') and tok.endswith(')'): tok = tok[4:-1]
    m = re.fullmatch(r'([vas])(\d+)', tok)
    if m: return [(m.group(1), int(m.group(2)))]
    m = re.fullmatch(r'([vas])\[(\d+):(\d+)\]', tok)
    if m: return [(m.group(1), i) for i in range(int(m.group(2)), int(m.group(3)) + 1)]
    if tok == 'vcc': return [('s', 'vcc')]
    if tok == 'exec': return [('s', 'exec')]
    if tok == 'm0': return [('s', 'm0')]
    return []

TRANS = ('v_exp_f32', 'v_log_f32', 'v_rcp_f32', 'v_rsq_f32', 'v_sqrt_f32', 'v_sin_f32', 'v_cos_f32')

class Ins:
    __slots__ = ('mn', 'ops', 'mods', 'w', 'r', 'cls', 'passes', 'srcc', 'text', 'states')

def vr(i, n=1): return f"v{i}" if n == 1 else f"v[{i}:{i+n-1}]"
def ar(i, n=1): return f"a{i}" if n == 1 else f"a[{i}:{i+n-1}]"
def sr(i, n=1): return f"s{i}" if n == 1 else f"s[{i}:{i+n-1}]"

class Asm:
    def __init__(self):
        self.lines = []
        self.hist = []
        self.nnop = 0
    def raw(self, text):
        self.lines.append(text)
    def comment(self, t): self.lines.append("    ; " + t)
    def label(self, name, flush=True):
        self.lines.append(name + ":")
        if flush:
            pass
    def _classify(self, mn, ops, mods):
        i = Ins(); i.mn = mn; i.ops = ops; i.mods = mods; i.passes = 0; i.srcc = []; i.states = 1
        R = lambda k: regs_of(ops[k]) if k < len(ops) else []
        allr = lambda ks: [x for k in ks for x in R(k)]
        n = len(ops)
        if mn.startswith('v_mfma'):
            i.cls = 'mfma'; i.w = R(0); i.r = allr([1, 2, 3]); i.srcc = R(3)
            i.passes = 8 if '32x32x16' in mn else 4 if '16x16x32' in mn else 16
        elif mn.startswith('v_cmpx'):
            i.cls = 'valu'; i.w = R(0) + [('s', 'exec')]; i.r = allr(range(1, n))
        elif mn.startswith('v_cmp'):
            i.cls = 'valu'; i.w = R(0); i.r = allr(range(1, n))
        elif mn.startswith('v_readfirstlane') or mn.startswith('v_readlane'):
            i.cls = 'valu'; i.w = R(0); i.r = allr(range(1, n))
        elif mn.startswith('v_permlane') and 'swap' in mn:
            i.cls = 'valu'; i.w = allr([0, 1]); i.r = allr([0, 1])
        elif mn.startswith('v_'):
            i.cls = 'valu'; i.w = R(0); i.r = allr(range(1, n))
            if '_co_' in mn: i.w = allr([0, 1]); i.r = allr(range(2, n))
            if mn.startswith(('v_fmac', 'v_dot2c', 'v_pk_fmac')): i.r = i.r + R(0)
            if 'dpp' in mn or 'row_' in mods or 'quad_perm' in mods: i.r = i.r + R(0)
            if mn.startswith('v_cndmask') and n == 3: i.r = i.r + [('s', 'vcc')]
            if 'd16' in mn: i.r = i.r + R(0)
        elif mn.startswith('buffer_load') or mn.startswith('global_load'):
            i.cls = 'vmem'
            if ' lds' in (' ' + mods) or '_lds_' in mn:
                i.w = []; i.r = allr(range(0, n)) + [('s', 'm0')]; i.cls = 'ldsdma'
            else:
                i.w = R(0); i.r = allr(range(1, n))
        elif mn.startswith('buffer_store') or mn.startswith('global_store') or mn.startswith('buffer_atomic') or mn.startswith('global_atomic'):
            i.cls = 'vstore'; i.w = []; i.r = allr(range(0, n))
        elif mn.startswith('ds_read') or mn.startswith('ds_bpermute') or mn.startswith('ds_swizzle'):
            i.cls = 'ds'; i.w = R(0); i.r = allr(range(1, n))
        elif mn.startswith('ds_'):
            i.cls = 'ds'; i.w = []; i.r = allr(range(0, n))
        elif mn == 's_nop':
            i.cls = 'nop'; i.w = []; i.r = []; i.states = int(ops[0]) + 1
        elif mn.startswith('s_'):
            i.cls = 'salu'
            if mn.startswith(('s_cmp', 's_cbranch', 's_branch', 's_waitcnt', 's_barrier', 's_endpgm', 's_setprio', 's_sleep')):
                i.w = []; i.r = allr(range(0, n))
            else:
                i.w = R(0); i.r = allr(range(1, n))
                if 'saveexec' in mn: i.w = i.w + [('s', 'exec')]
        else:
            raise ValueError("unknown mnemonic " + mn)
        return i
    def _need(self, p, c):
        need = 0
        pw = set(p.w); cr = set(c.r); cw = set(c.w)
        isv = lambda s: {x for x in s if x[0] in 'va'}
        iss = lambda s: {x for x in s if x[0] == 's'}
        cdpp = c.cls == 'valu' and ('dpp' in c.mn or 'row_' in c.mods or 'quad_perm' in c.mods)
        if p.cls == 'valu':
            raw_v = isv(pw) & cr
            raw_s = iss(pw) & cr
            if c.cls == 'mfma' and raw_v: need = max(need, 2)
            if c.cls == 'mfma' and ('s', 'exec') in pw: need = max(need, 4)
            if cdpp and raw_v: need = max(need, 2)
            if cdpp and ('s', 'exec') in pw: need = max(need, 5)
            if c.mn.startswith('v_permlane') and raw_v: need = max(need, 2)
            if c.mn.startswith(('v_readfirstlane', 'v_readlane')) and raw_v: need = max(need, 1)
            if c.mn.startswith(('v_readfirstlane', 'v_readlane', 'v_writelane', 'v_permlane')) and ('s', 'exec') in pw: need = max(need, 4)
            if c.cls in ('vmem', 'ldsdma', 'vstore') and raw_s: need = max(need, 5)
            if c.cls == 'valu' and raw_s: need = max(need, 4 if c.mn.startswith(('v_readlane', 'v_writelane')) else 2)
            if c.cls == 'salu' and raw_s: need = max(need, 1)
            if p.mn.startswith(TRANS) and c.cls in ('valu', 'mfma') and raw_v: need = max(need, 1 if c.cls == 'valu' else 2)
            if p.mn.startswith('v_dot') and (isv(pw) & (cr | cw)):
                same = (c.mn == p.mn)
                if same and not (isv(pw) & set(regs_of(c.ops[1]) + regs_of(c.ops[2]))): pass
                else: need = max(need, 3)
            if ('op_sel' in p.mods or 'sdwa' in p.mn or 'dst_sel' in p.mods) and not p.mn.startswith('v_pk') and c.cls == 'valu' and (isv(pw) & (cr | cw)): need = max(need, 1)
        if p.cls == 'mfma':
            P = p.passes
            tbl_ab = {4: 8, 8: 12, 16: 20}[P]
            if c.cls == 'mfma':
                if pw & set(regs_of(c.ops[1]) + regs_of(c.ops[2])): need = max(need, tbl_ab)
                ov = pw & set(c.srcc)
                if ov:
                    if set(c.srcc) == pw and c.passes == P: pass
                    else: need = max(need, {4: 6, 8: 10, 16: 18}[P])
                elif pw & cw: need = max(need, tbl_ab)
            elif c.cls in ('valu', 'vmem', 'vstore', 'ds', 'ldsdma'):
                if pw & (cr | cw): need = max(need, tbl_ab)
            if c.cls == 'valu' and set(p.srcc) & cw: need = max(need, {4: 3, 8: 7, 16: 15}[P])
        if p.cls == 'vstore' and ('x4' in p.mn or 'x3' in p.mn):
            data = set(regs_of(p.ops[0])) if p.mn.startswith('buffer') else set(regs_of(p.ops[1]))
            if data & cw: need = max(need, 2 if c.cls in ('valu', 'mfma') else 1)
        if p.cls == 'salu' and ('s', 'm0') in pw and c.cls == 'ldsdma': need = max(need, 1)
        return need
    def I(self, mn, *ops, mods=""):
        ops = [str(o) for o in ops]
        c = self._classify(mn, ops, mods)
        dist = 0; pad = 0
        for p in reversed(self.hist[-24:]):
            n = self._need(p, c)
            if n > dist: pad = max(pad, n - dist)
            dist += p.states
            if dist >= 20: break
        while pad > 0:
            k = min(pad, 16)
            self._emit(self._classify('s_nop', [str(k - 1)], ""))
            self.nnop += 1
            pad -= k
        self._emit(c)
    def _emit(self, c):
        t = "    " + c.mn + (" " + ", ".join(c.ops) if c.ops else "") + (" " + c.mods if c.mods else "")
        self.lines.append(t)
        self.hist.append(c)
    def wait(self, vm=None, lgkm=None):
        parts = []
        if vm is not None: parts.append(f"vmcnt({vm})")
        if lgkm is not None: parts.append(f"lgkmcnt({lgkm})")
        self.I("s_waitcnt", " ".join(parts))
    def text(self): return "\n".join(self.lines) + "\n"

def kernel_footer(name, vgpr, accum, sgpr=102):
    return f"""
.section .rodata,"a"
.p2align 6
.amdhsa_kernel {name}
  .amdhsa_next_free_vgpr {vgpr}
  .amdhsa_next_free_sgpr {sgpr}
  .amdhsa_accum_offset {accum}
  .amdhsa_group_segment_fixed_size 0
  .amdhsa_kernarg_size 136
  .amdhsa_user_sgpr_count 2
  .amdhsa_user_sgpr_kernarg_segment_ptr 1
  .amdhsa_system_sgpr_workgroup_id_x 1
.end_amdhsa_kernel
.text
"""
def kernel_header(name):
    return f""".text
.globl {name}
.p2align 8
.type {name},@function
{name}:
"""
```

```python
from asmlib import *
from layout import *
from k_prep import srd

SL = 0
RED = 8448
FIN_LDS = RED + 49152

def gen_fin(name="fin_kernel"):
    A = Asm()
    A.raw(kernel_header(name))
    L = lambda s: f"L_{name}_{s}"
    A.I("s_cmp_ge_u32", "s2", 256)
    A.I("s_cbranch_scc1", L("end"))
    A.I("s_load_dwordx2", "s[4:5]", "s[0:1]", 128)
    A.I("s_load_dwordx2", "s[6:7]", "s[0:1]", 0)
    A.I("s_load_dwordx4", "s[12:15]", "s[0:1]", 104)
    A.I("v_and_b32", "v1", 63, "v0")
    A.I("v_lshrrev_b32", "v2", 6, "v0")
    A.I("v_readfirstlane_b32", "s24", "v2")
    A.I("v_lshlrev_b32", "v2", 4, "v1")
    A.I("s_and_b32", "s25", "s2", 7)
    A.I("s_lshr_b32", "s26", "s2", 3)
    A.I("s_lshl_b32", "s25", "s25", 2)
    A.I("s_lshr_b32", "s27", "s26", 3)
    A.I("s_add_u32", "s25", "s25", "s27")
    A.I("s_and_b32", "s26", "s26", 7)
    A.I("s_mul_i32", "s27", "s24", 22)
    A.I("s_mul_i32", "s28", "s25", 176)
    A.I("s_add_u32", "s28", "s28", "s27")
    A.I("s_lshl_b32", "s28", "s28", 10)
    A.I("s_add_u32", "s28", "s28", hex(HF))
    A.I("s_add_u32", "s29", "s28", 88 * 1024)
    A.I("s_mul_i32", "s30", "s26", 88)
    A.I("s_add_u32", "s30", "s30", "s27")
    A.I("s_lshl_b32", "s30", "s30", 11)
    A.I("s_add_u32", "s30", "s30", hex(W2F))
    A.I("v_lshrrev_b32", "v4", 5, "v1")
    A.I("v_and_b32", "v5", 31, "v1")
    A.I("v_lshlrev_b32", "v3", 12, "v4")
    A.I("v_lshl_add_u32", "v3", "v5", 2, "v3")
    A.I("s_lshl_b32", "s31", "s25", 16)
    A.I("s_lshl_b32", "s32", "s24", 14)
    A.I("s_add_u32", "s31", "s31", "s32")
    A.I("s_lshl_b32", "s33", "s26", 7)
    A.I("s_add_u32", "s31", "s31", "s33")
    A.I("s_add_u32", "s32", "s31", 8192)
    A.I("v_lshl_add_u32", "v6", "v5", 2, "s33")
    A.I("v_lshrrev_b32", "v7", 3, "v1")
    A.I("v_lshlrev_b32", "v7", 12, "v7")
    A.I("v_and_b32", "v17", 7, "v1")
    A.I("v_lshl_add_u32", "v7", "v17", 4, "v7")
    A.I("s_lshl_b32", "s34", "s26", 18)
    A.I("s_lshl_b32", "s35", "s24", 16)
    A.I("s_add_u32", "s34", "s34", "s35")
    A.I("s_lshl_b32", "s35", "s25", 7)
    A.I("s_add_u32", "s34", "s34", "s35")
    A.I("s_add_u32", "s34", "s34", hex(ST))
    A.I("s_add_u32", "s35", "s34", 8 * 4096)
    A.I("s_mul_i32", "s36", "s24", 2080)
    A.wait(lgkm=0)
    srd(A, 8, 4, WS_SIZE)
    srd(A, 16, 6, 2048 * 1024)
    srd(A, 20, 14, 2048 * 1024)
    def fr(k, q):
        b = 16 * k + 4 * q
        return ar(b, 4) if k < 16 else vr(128 + b - 256, 4)
    def issue(k):
        if k and k % 4 == 0:
            A.I("s_add_u32", "s28", "s28", 4096)
            A.I("s_add_u32", "s29", "s29", 4096)
        if k and k % 2 == 0:
            A.I("s_add_u32", "s30", "s30", 4096)
        A.I("buffer_load_dwordx4", fr(k, 0), "v2", "s[8:11]", "s28", mods=f"offen offset:{(k % 4) * 1024}")
        A.I("buffer_load_dwordx4", fr(k, 2), "v2", "s[8:11]", "s30", mods=f"offen offset:{(k % 2) * 2048}")
        A.I("buffer_load_dwordx4", fr(k, 1), "v2", "s[8:11]", "s29", mods=f"offen offset:{(k % 4) * 1024}")
        A.I("buffer_load_dwordx4", fr(k, 3), "v2", "s[8:11]", "s30", mods=f"offen offset:{(k % 2) * 2048 + 1024}")
    PRE = 13
    for k in range(4): issue(k)
    for gp in range(2):
        for i in range(4):
            A.I("buffer_load_dword", vr(8 + 4 * gp + i), "v3", "s[16:19]", "s31" if gp == 0 else "s32", mods=f"offen offset:{i * 1024}")
    A.I("global_load_dword", "v16", "v6", "s[12:13]")
    A.I("s_mov_b32", "m0", "s36")
    A.I("buffer_load_dwordx4", "v7", "s[8:11]", "s34", mods="offen lds")
    A.I("s_add_u32", "m0", "s36", 1040)
    A.I("buffer_load_dwordx4", "v7", "s[8:11]", "s35", mods="offen lds")
    for k in range(4, PRE): issue(k)
    A.I("v_lshrrev_b32", "v17", 2, "v5")
    A.I("v_mul_u32_u24", "v17", 1040, "v17")
    A.I("v_and_b32", "v18", 3, "v5")
    A.I("v_lshl_add_u32", "v17", "v18", 8, "v17")
    A.I("v_lshl_add_u32", "v17", "v4", 3, "v17")
    A.I("s_lshl_b32", "s37", "s24", 5)
    A.I("v_add_u32", "v17", "s37", "v17")
    A.I("s_mul_i32", "s37", "s24", 12288)
    A.I("s_add_u32", "s37", "s37", RED)
    A.I("v_add_u32", "v18", "s37", "v2")
    A.I("s_mov_b32", "s44", "0xffff0000")
    A.I("s_mov_b32", "s46", "0xbfb8aa3b")
    A.I("s_mov_b32", "s47", "0xbfb8aa3b")
    ACC = 64
    issued = PRE
    for k in range(22):
        tot = 4 * issued + 11
        done_needed = 4 * (k + 1) + (11 if k >= 4 else 0)
        A.wait(vm=tot - done_needed)
        for tj in range(2):
            for e in range(2):
                acc = vr(ACC + 32 * tj + 16 * e, 16)
                A.I("v_mfma_f32_32x32x16_bf16", acc, fr(k, tj), fr(k, 2 + e), acc if k else "0")
        if issued < 22:
            issue(issued); issued += 1
    OWN = 32
    for wd in range(4):
        src = [ACC + 32 * (wd >> 1) + 16 * e + 8 * (wd & 1) + 4 * q for e in range(2) for q in range(2)]
        A.I("s_cmp_eq_u32", "s24", wd)
        A.I("s_cbranch_scc1", L(f"own{wd}"))
        A.I("s_sub_u32", "s37", "s24", wd + 1)
        A.I("s_and_b32", "s37", "s37", 3)
        A.I("s_lshl_b32", "s37", "s37", 12)
        A.I("s_add_u32", "s37", "s37", RED + wd * 12288)
        A.I("v_add_u32", "v19", "s37", "v2")
        for q, r in enumerate(src):
            A.I("ds_write_b128", "v19", vr(r, 4), mods=f"offset:{q * 1024}")
        A.I("s_branch", L(f"nxt{wd}"))
        A.label(L(f"own{wd}"))
        if wd == 0: A.I("s_nop", 11)
        for q, r in enumerate(src):
            for i in range(0, 4, 2):
                A.I("v_pk_mov_b32", vr(OWN + 4 * q + i, 2), vr(r + i, 2), vr(r + i, 2), mods="op_sel:[0,1]")
        A.label(L(f"nxt{wd}"))
    XU = 48
    for gp in range(2):
        for i in range(4):
            A.I("v_lshlrev_b32", vr(XU + 4 * gp + i), 16, vr(8 + 4 * gp + i))
            A.I("v_and_b32", vr(XU + 8 + 4 * gp + i), "s44", vr(8 + 4 * gp + i))
    A.I("v_lshlrev_b32", "v20", 16, "v16")
    A.I("v_and_b32", "v22", "s44", "v16")
    A.wait(lgkm=0)
    A.I("s_barrier")
    RD = 128
    for sl in range(3):
        for q in range(4):
            A.I("ds_read_b128", vr(RD + 16 * sl + 4 * q, 4), "v18", mods=f"offset:{sl * 4096 + q * 1024}")
    SV = 24
    for e in range(2):
        for gp in range(2):
            A.I("ds_read_b64", vr(SV + 4 * e + 2 * gp, 2), "v17", mods=f"offset:{128 * e + 16 * gp}")
    for sl in range(3):
        A.wait(lgkm=4 + 4 * (2 - sl))
        for p in range(8):
            A.I("v_pk_add_f32", vr(OWN + 2 * p, 2), vr(OWN + 2 * p, 2), vr(RD + 16 * sl + 2 * p, 2))
    T = 176; SU = 192
    for r in range(16): A.I("v_cvt_pk_bf16_f32", vr(OWN + r), 0, vr(OWN + r))
    for p in range(8):
        A.I("v_pk_add_f32", vr(OWN + 2 * p, 2), vr(OWN + 2 * p, 2), "v[20:21]" if p < 4 else "v[22:23]", mods="op_sel_hi:[1,0]")
    for r in range(16): A.I("v_cvt_pk_bf16_f32", vr(OWN + r), 0, vr(OWN + r))
    for p in range(8): A.I("v_pk_mul_f32", vr(T + 2 * p, 2), vr(OWN + 2 * p, 2), "s[46:47]")
    for r in range(16): A.I("v_exp_f32", vr(T + r), vr(T + r))
    for p in range(8): A.I("v_pk_add_f32", vr(T + 2 * p, 2), vr(T + 2 * p, 2), "1.0", mods="op_sel_hi:[1,0]")
    for r in range(16): A.I("v_rcp_f32", vr(T + r), vr(T + r))
    A.wait(lgkm=0)
    for k in range(8):
        A.I("v_lshlrev_b32", vr(SU + 2 * k), 16, vr(SV + k))
        A.I("v_and_b32", vr(SU + 2 * k + 1), "s44", vr(SV + k))
    for p in range(8): A.I("v_pk_mul_f32", vr(T + 2 * p, 2), vr(T + 2 * p, 2), vr(OWN + 2 * p, 2))
    for r in range(16): A.I("v_cvt_pk_bf16_f32", vr(T + r), 0, vr(T + r))
    for p in range(8): A.I("v_pk_mul_f32", vr(T + 2 * p, 2), vr(T + 2 * p, 2), vr(SU + 2 * p, 2))
    for r in range(16): A.I("v_cvt_pk_bf16_f32", vr(T + r), 0, vr(T + r))
    for p in range(8): A.I("v_pk_add_f32", vr(T + 2 * p, 2), vr(T + 2 * p, 2), vr(XU + 2 * p, 2))
    for gp in range(2):
        for i in range(4):
            r = 4 * gp + i
            A.I("v_cvt_pk_bf16_f32", vr(8 + r), vr(T + r), vr(T + 8 + r))
            A.I("buffer_store_dword", vr(8 + r), "v3", "s[20:23]", "s31" if gp == 0 else "s32", mods=f"offen offset:{i * 1024}")
    A.label(L("end"))
    A.I("s_endpgm")
    A.raw(kernel_footer(name, 512, 256))
    return A.text()

if __name__ == "__main__":
    print(gen_fin())
```

```python
from asmlib import *
from layout import *
from k_prep import srd, DPPM

W1L = 0
KC = 98304
UL = KC + 2 * 16640
KDL = UL + 2 * 4608
B1L = KDL + 2 * 2080
ACCX = B1L + 1024
MID_LDS = ACCX + 16384

PSET = [(0, 3, 5, 6), (1, 2, 4, 7)]

def dma(A, vaddr, soff, m0_expr_sreg, m0_add, imm=0):
    A.I("s_add_u32", "m0", m0_expr_sreg, m0_add)
    A.I("buffer_load_dwordx4", vaddr, "s[8:11]", soff, mods=f"offen offset:{imm} lds" if imm else "offen lds")

def gen_mid(name="mid_kernel"):
    A = Asm()
    A.raw(kernel_header(name))
    L = lambda s: f"L_{name}_{s}"
    A.I("s_cmp_ge_u32", "s2", 256)
    A.I("s_cbranch_scc1", L("end"))
    A.I("s_load_dwordx2", "s[4:5]", "s[0:1]", 128)
    A.I("s_load_dwordx2", "s[6:7]", "s[0:1]", 64)
    A.I("v_and_b32", "v1", 63, "v0")
    A.I("v_lshrrev_b32", "v2", 6, "v0")
    A.I("v_readfirstlane_b32", "s12", "v2")
    A.I("v_lshlrev_b32", "v2", 4, "v1")
    A.I("s_lshr_b32", "s13", "s12", 1)
    A.I("s_and_b32", "s14", "s12", 1)
    A.I("s_lshl_b32", "s15", "s2", 1)
    A.I("s_add_u32", "s15", "s15", "s13")
    A.I("s_and_b32", "s16", "s2", 7)
    A.I("s_lshr_b32", "s17", "s2", 3)
    A.I("s_lshl_b32", "s16", "s16", 1)
    A.I("s_lshr_b32", "s18", "s17", 4)
    A.I("s_add_u32", "s16", "s16", "s18")
    A.I("s_and_b32", "s17", "s17", 15)
    A.I("s_min_u32", "s18", "s17", 14)
    A.I("s_lshl_b32", "s19", "s16", 2)
    A.I("s_add_u32", "s19", "s19", "s12")
    A.I("v_bfe_u32", "v3", "v1", 3, 2)
    A.I("v_lshlrev_b32", "v3", 13, "v3")
    A.I("v_lshrrev_b32", "v4", 5, "v1")
    A.I("v_lshl_add_u32", "v3", "v4", 7, "v3")
    A.I("v_and_b32", "v5", 7, "v1")
    A.I("v_lshl_add_u32", "v3", "v5", 4, "v3")
    A.I("s_lshl_b32", "s20", "s15", 11)
    A.I("s_lshl_b32", "s21", "s14", 10)
    A.I("s_add_u32", "s20", "s20", "s21")
    A.I("s_add_u32", "s20", "s20", hex(KD))
    A.I("s_mul_i32", "s22", "s13", 2080)
    A.I("s_add_u32", "s22", "s22", KDL)
    A.I("s_add_u32", "s23", "s22", "s21")
    A.I("s_lshl_b32", "s24", "s15", 12)
    A.I("s_lshl_b32", "s25", "s14", 11)
    A.I("s_add_u32", "s24", "s24", "s25")
    A.I("s_add_u32", "s24", "s24", hex(XNT))
    A.I("s_mul_i32", "s26", "s13", 4608)
    A.I("s_add_u32", "s26", "s26", UL)
    A.I("s_add_u32", "s27", "s26", "s25")
    A.I("s_mul_i32", "s28", "s18", 384)
    A.I("s_add_u32", "s28", "s28", hex(B1F))
    A.I("s_mul_i32", "s29", "s18", 98304)
    A.I("s_lshl_b32", "s30", "s12", 13)
    A.I("s_add_u32", "s29", "s29", "s30")
    A.I("s_add_u32", "s29", "s29", hex(W1F))
    A.I("s_lshl_b32", "s31", "s19", 15)
    A.I("s_mov_b32", "s32", B1L)
    A.wait(lgkm=0)
    srd(A, 8, 4, WS_SIZE)
    A.I("s_lshl_b32", "s33", "s2", 2)
    A.I("s_load_dword", "s34", "s[6:7]", "s33")
    dma(A, "v2", "s20", "s23", 16)
    dma(A, "v2", "s24", "s27", 512)
    A.I("buffer_load_dwordx4", "v2", "s[8:11]", "s24", mods="offen offset:1024 lds")
    dma(A, "v2", "s28", "s32", 0)
    def wtile(j):
        for hh in range(2):
            A.I("s_add_u32", "s35", "s29", j * 32768 + hh * 4096)
            A.I("s_add_u32", "m0", "s30", W1L + j * 32768 + hh * 4096)
            for i in range(4):
                A.I("buffer_load_dwordx4", "v2", "s[8:11]", "s35", mods=(f"offen offset:{i*1024} lds" if i else "offen lds"))
    wtile(0)
    for ks in range(32):
        if ks == 16: A.I("s_add_u32", "s31", "s31", 4096)
        A.I("buffer_load_dwordx4", ar(4 * ks, 4), "v3", "s[8:11]", "s31", mods=f"offen offset:{(ks % 16) * 256}")
    wtile(1)
    wtile(2)
    for k in range(4): A.I("v_mov_b32", vr(8 + k), 0)
    A.I("v_lshl_add_u32", "v6", "v1", 3, "s26")
    A.I("ds_write_b64", "v6", "v[8:9]")
    A.I("s_mul_i32", "s36", "s13", 16640)
    A.I("s_add_u32", "s36", "s36", KC)
    A.I("v_lshrrev_b32", "v6", 1, "v1")
    A.I("v_mul_u32_u24", "v6", 4160, "v6")
    A.I("v_and_b32", "v7", 1, "v1")
    A.I("v_lshl_add_u32", "v6", "v7", 4, "v6")
    A.I("v_add_u32", "v6", "s36", "v6")
    A.I("v_mov_b32", "v7", "s22")
    A.I("s_mov_b64", "exec", "0xff")
    A.I("ds_write_b128", "v6", "v[8:11]", mods="offset:4096")
    A.I("ds_write_b128", "v7", "v[8:11]")
    A.I("s_mov_b64", "exec", -1)
    A.I("s_add_u32", "s37", "s22", 16)
    A.I("s_sub_u32", "s38", "s37", 34304)
    A.I("s_add_u32", "s39", "s37", 254)
    A.I("s_lshl_b32", "s40", "s14", 11)
    A.I("v_add_u32", "v6", "s40", "v2")
    AD = 16
    for rd in range(2):
        for ii in range(11):
            ip = ii - 3
            A.I("v_sub_u32", vr(40 + ii), 4088 - 1024 * rd - 2 * ip, "v6")
        for ii in range(11):
            A.I("v_add_u32", vr(AD + 11 * rd + ii), "s37", vr(40 + ii))
            if rd == 1 and ii >= 8: A.I("v_max_i32", vr(40 + ii), 0, vr(40 + ii))
            A.I("v_cvt_f32_u32", vr(40 + ii), vr(40 + ii))
        for ii in range(0, 11, 2):
            A.I("v_cvt_pk_bf16_f32", vr(52 + ii // 2), vr(40 + ii), vr(40 + min(ii + 1, 10)))
        for ii in range(11):
            A.I("v_mad_u32_u16", vr(40 + ii), vr(52 + ii // 2), 2, "s38", mods=("op_sel:[1,0,0,0]" if ii & 1 else ""))
        for ii in range(11):
            A.I("v_med3_i32", vr(AD + 11 * rd + ii), vr(40 + ii), vr(AD + 11 * rd + ii), "s39")
    A.I("v_add_u32", "v6", "s36", "v6")
    A.I("v_and_b32", "v7", 15, "v1")
    A.I("v_lshrrev_b32", "v14", 4, "v1")
    A.I("v_and_b32", "v12", 3, "v1")
    A.I("v_mul_u32_u24", "v12", 4160, "v12")
    A.I("v_bfe_u32", "v13", "v1", 2, 2)
    A.I("v_lshlrev_b32", "v13", 3, "v13")
    A.I("v_lshl_add_u32", "v13", "v14", 4, "v13")
    A.I("v_sub_u32", "v12", "v12", "v13")
    A.I("s_add_u32", "s41", "s36", 2 * 2052 - 64 * 63)
    A.I("v_add_u32", "v12", "s41", "v12")
    A.I("v_lshlrev_b32", "v13", 5, "v7")
    A.I("v_lshlrev_b32", "v15", 4, "v14")
    A.I("v_sub_u32", "v13", "v13", "v15")
    A.I("s_add_u32", "s41", "s26", 512 + 16 - 448)
    A.I("v_add_u32", "v13", "s41", "v13")
    A.I("v_lshlrev_b32", "v15", 5, "v7")
    A.I("v_lshl_add_u32", "v15", "v14", 3, "v15")
    A.I("s_add_u32", "s41", "s27", 512)
    A.I("v_add_u32", "v38", "s41", "v15")
    A.wait(vm=57, lgkm=0)
    A.I("s_barrier")
    for rd in range(2):
        for ii in range(11):
            A.I("ds_read_u16", vr(40 + 11 * rd + ii), vr(AD + 11 * rd + ii))
        if rd == 0: pass
    for rd in range(2):
        if rd == 0: A.wait(lgkm=11)
        else: A.wait(lgkm=4)
        e = lambda ip: vr(40 + 11 * rd + ip + 3)
        base = 64 + 16 * rd
        for sg in range(4):
            for dwi in range(4):
                lo = 2 * dwi - sg
                A.I("v_lshl_or_b32", vr(base + 4 * sg + dwi), e(lo + 1), 16, e(lo))
            A.I("ds_write_b128", "v6", vr(base + 4 * sg, 4), mods=f"offset:{sg * 4160 + rd * 1024}")
    A.wait(lgkm=0)
    A.I("s_barrier")
    KF = 128; UB = 96; CA = 64
    A.I("s_cmp_eq_u32", "s14", 1)
    A.I("s_cbranch_scc1", L("conv1"))
    for hw in range(2):
        if hw == 1: A.label(L("conv1"))
        Ps = PSET[hw]
        steps = [(Q, r) for Q in range(8 - min(Ps)) for r in range(8)]
        first = set()
        NB = 8
        def issueU(n):
            Q, r = steps[n]
            q = 8 * Q - r
            A.I("ds_read_b128", vr(UB + 4 * (n % NB), 4), "v13", mods=f"offset:{64 * (q + 7)}")
        def issueK(r):
            for si, P in enumerate(Ps):
                p = 8 * P + r
                reg = KF + 32 * si + 4 * r
                A.I("ds_read_b64", vr(reg, 2), "v12", mods=f"offset:{64 * (63 - p)}")
                A.I("ds_read_b64", vr(reg + 2, 2), "v12", mods=f"offset:{64 * (63 - p) + 8}")
        def mf(n):
            Q, r = steps[n]
            for si, P in enumerate(Ps):
                if P + Q > 7: continue
                acc = vr(CA + 4 * (P + Q), 4)
                c = acc if (P + Q) in first else "0"
                first.add(P + Q)
                A.I("v_mfma_f32_16x16x32_bf16", acc, vr(KF + 32 * si + 4 * r, 4), vr(UB + 4 * (n % NB), 4), c)
        issueU(0); issueK(0)
        for n in range(8):
            A.wait(lgkm=0)
            if n < 7:
                issueU(n + 1); issueK(n + 1)
            else:
                for k in range(8, 8 + NB - 1): issueU(k)
            mf(n)
        nxt = 8 + NB - 1
        for n in range(8, len(steps)):
            out = min(nxt, len(steps)) - n - 1
            A.wait(lgkm=out)
            mf(n)
            if nxt < len(steps):
                issueU(nxt)
            nxt += 1
        oth = range(4, 8) if hw == 0 else range(1, 4)
        A.I("s_lshl_b32", "s41", "s13", 13)
        A.I("s_add_u32", "s41", "s41", ACCX)
        A.I("v_add_u32", "v39", "s41", "v2")
        for Aa in oth:
            A.I("ds_write_b128", "v39", vr(CA + 4 * Aa, 4), mods=f"offset:{Aa * 1024}")
        own = range(0, 4) if hw == 0 else range(4, 8)
        for k in range(4):
            A.I("ds_read_b64", vr(40 + 2 * k, 2), "v38", mods=f"offset:{512 * k}")
        A.I("s_lshl_b32", "s42", "s34", 16)
        A.I("s_and_b32", "s43", "s34", "0xffff0000")
        A.I("s_cmp_eq_u32", "s13", 0)
        A.I("s_cselect_b32", "s42", "s42", "s43")
        A.I("s_mov_b32", "s43", "s42")
        A.I("s_mov_b32", "s44", "0xffff0000")
        A.wait(lgkm=0)
        A.I("s_barrier")
        for k, Aa in enumerate(own):
            if hw == 0 and Aa == 0: continue
            A.I("ds_read_b128", vr(UB + 4 * k, 4), "v39", mods=f"offset:{Aa * 1024}")
        for k in range(4):
            t = 48 + 4 * k
            A.I("v_lshlrev_b32", vr(t), 16, vr(40 + 2 * k))
            A.I("v_and_b32", vr(t + 1), "s44", vr(40 + 2 * k))
            A.I("v_lshlrev_b32", vr(t + 2), 16, vr(41 + 2 * k))
            A.I("v_and_b32", vr(t + 3), "s44", vr(41 + 2 * k))
            A.I("v_pk_mul_f32", vr(t, 2), vr(t, 2), "s[42:43]")
            A.I("v_pk_mul_f32", vr(t + 2, 2), vr(t + 2, 2), "s[42:43]")
            for i in range(4): A.I("v_cvt_pk_bf16_f32", vr(t + i), 0, vr(t + i))
        A.I("s_add_u32", "s45", "s24", hex(ST - XNT))
        A.wait(lgkm=0)
        for k, Aa in enumerate(own):
            t = 48 + 4 * k; a = CA + 4 * Aa
            if not (hw == 0 and Aa == 0):
                A.I("v_pk_add_f32", vr(a, 2), vr(a, 2), vr(UB + 4 * k, 2))
                A.I("v_pk_add_f32", vr(a + 2, 2), vr(a + 2, 2), vr(UB + 4 * k + 2, 2))
            for i in range(4): A.I("v_cvt_pk_bf16_f32", vr(a + i), 0, vr(a + i))
            A.I("v_pk_add_f32", vr(a, 2), vr(a, 2), vr(t, 2))
            A.I("v_pk_add_f32", vr(a + 2, 2), vr(a + 2, 2), vr(t + 2, 2))
            A.I("v_cvt_pk_bf16_f32", vr(a), vr(a), vr(a + 1))
            A.I("v_cvt_pk_bf16_f32", vr(a + 1), vr(a + 2), vr(a + 3))
            A.I("buffer_store_dwordx2", vr(a, 2), "v15", "s[8:11]", "s45", mods=f"offen offset:{512 * k}")
        if hw == 0: A.I("s_branch", L("gemm1"))
    A.label(L("gemm1"))
    A.I("s_cmp_eq_u32", "s17", 15)
    A.I("s_cbranch_scc1", L("end"))
    A.I("v_add_u32", "v6", 65536, "v2")
    A.I("v_lshl_add_u32", "v7", "v4", 6, B1L)
    A.lines.pop(); A.hist.pop()
    A.I("v_lshl_add_u32", "v7", "v4", 6, "s32")
    A.I("s_mul_i32", "s46", "s19", 88)
    A.I("s_mul_i32", "s47", "s17", 6)
    A.I("s_add_u32", "s46", "s46", "s47")
    A.I("s_lshl_b32", "s46", "s46", 10)
    A.I("s_add_u32", "s46", "s46", hex(HF))
    A.wait(vm=4)
    A.I("s_barrier")
    GA = 128; BB = 176; OUT = 40; TMP = 48
    NB = 8
    def issueW(n):
        j, ks = n // 32, n % 32
        off = j * 32768 + ks * 1024
        A.I("ds_read_b128", vr(UB + 4 * (n % NB), 4), "v2" if off < 65536 else "v6", mods=f"offset:{off % 65536}")
    def epi_ops(j):
        ops = []
        a = GA + 16 * j; b = BB + 16 * j
        for k in range(8):
            t = TMP + 2 * (k % 4)
            r = a + 2 * k
            ops.append(("v_cvt_pk_bf16_f32", [vr(r), 0, vr(r)], ""))
            ops.append(("v_cvt_pk_bf16_f32", [vr(r + 1), 0, vr(r + 1)], ""))
            ops.append(("v_pk_add_f32", [vr(r, 2), vr(r, 2), vr(b + 2 * k, 2)], ""))
            ops.append(("v_cvt_pk_bf16_f32", [vr(r), vr(r), vr(r + 1)], ""))
            ops.append(("v_pk_max_i16", [vr(r), vr(r), 0], ""))
            ops.append(("v_lshlrev_b32", [vr(t), 16, vr(r)], ""))
            ops.append(("v_and_b32", [vr(t + 1), "s44", vr(r)], ""))
            ops.append(("v_pk_mul_f32", [vr(t, 2), vr(t, 2), vr(t, 2)], ""))
            ops.append(("v_cvt_pk_bf16_f32", [vr(OUT + k), vr(t), vr(t + 1)], ""))
            if k % 4 == 3:
                off = (2 * j + k // 4) * 1024
                if off >= 4096:
                    ops.append(("s_add_u32", ["s47", "s46", 4096], ""))
                ops.append(("buffer_store_dwordx4", [vr(OUT + k - 3, 4), "v2", "s[8:11]", "s46" if off < 4096 else "s47"], f"offen offset:{off % 4096}"))
        return ops
    for q in range(12):
        A.I("ds_read_b128", vr(BB + 4 * q, 4), "v7", mods=f"offset:{(q // 4) * 128 + (q % 4) * 16}")
    A.wait(lgkm=0)
    for n in range(NB - 1): issueW(n)
    nxt = NB - 1
    pend = []
    for n in range(96):
        j, ks = n // 32, n % 32
        if n == 64:
            A.I("s_cmp_eq_u32", "s17", 14)
            A.I("s_cbranch_scc1", L("g14"))
        if ks == 0 and j > 0: pend = epi_ops(j - 1); delay = 2
        A.wait(lgkm=min(nxt, 96) - n - 1)
        acc = vr(GA + 16 * j, 16)
        A.I("v_mfma_f32_32x32x16_bf16", acc, vr(UB + 4 * (n % NB), 4), ar(4 * ks, 4), acc if ks else "0")
        if nxt < 96: issueW(nxt)
        nxt += 1
        if pend:
            if delay > 0: delay -= 1
            else:
                for _ in range(3):
                    if pend:
                        mn, ops, mods = pend.pop(0); A.I(mn, *ops, mods=mods)
    assert not pend
    for mn, ops, mods in epi_ops(2): A.I(mn, *ops, mods=mods)
    A.I("s_branch", L("end"))
    A.label(L("g14"))
    A.I("s_nop", 15)
    for mn, ops, mods in epi_ops(1): A.I(mn, *ops, mods=mods)
    A.label(L("end"))
    A.I("s_endpgm")
    A.raw(kernel_footer(name, 384, 256))
    return A.text()

if __name__ == "__main__":
    print(gen_mid())
```

```python
from asmlib import *
from layout import *

def srd(A, d, base, nrec):
    A.I("s_mov_b32", sr(d), sr(base))
    A.I("s_mov_b32", sr(d + 1), sr(base + 1))
    A.I("s_mov_b32", sr(d + 2), hex(nrec))
    A.I("s_mov_b32", sr(d + 3), "0x20000")

DPPM = "row_mask:0xf bank_mask:0xf"

def reduce32(A, v, t):
    for m in ("quad_perm:[1,0,3,2]", "quad_perm:[2,3,0,1]", "row_half_mirror", "row_mirror"):
        for x in v:
            A.I("v_add_f32_dpp", vr(x), vr(x), vr(x), mods=f"{m} {DPPM}")
    for x, y in zip(v, t):
        A.I("v_mov_b32", vr(y), vr(x))
    for x, y in zip(v, t):
        A.I("v_permlane16_swap_b32", vr(x), vr(y))
    for x, y in zip(v, t):
        A.I("v_add_f32", vr(x), vr(x), vr(y))

def gen_prep(name="prep_kernel"):
    A = Asm()
    A.raw(kernel_header(name))
    L = lambda s: f"L_{name}_{s}"
    A.I("s_cmp_ge_u32", "s2", 256)
    A.I("s_cbranch_scc1", L("end"))
    A.I("s_load_dwordx16", "s[4:19]", "s[0:1]", 0)
    A.I("s_load_dwordx4", "s[20:23]", "s[0:1]", 80)
    A.I("s_load_dwordx2", "s[24:25]", "s[0:1]", 96)
    A.I("s_load_dwordx2", "s[26:27]", "s[0:1]", 128)
    A.I("v_and_b32", "v1", 63, "v0")
    A.I("v_lshrrev_b32", "v2", 6, "v0")
    A.I("v_readfirstlane_b32", "s28", "v2")
    A.I("s_lshl_b32", "s29", "s2", 2)
    A.I("s_add_u32", "s29", "s29", "s28")
    A.I("s_and_b32", "s30", "s2", 7)
    A.I("s_lshl_b32", "s30", "s30", 5)
    A.I("s_lshr_b32", "s31", "s2", 3)
    A.I("s_add_u32", "s30", "s30", "s31")
    A.I("s_lshr_b32", "s31", "s28", 1)
    A.I("s_lshl_b32", "s32", "s2", 1)
    A.I("s_add_u32", "s32", "s32", "s31")
    A.I("s_and_b32", "s33", "s28", 1)
    A.I("s_lshl_b32", "s33", "s33", 7)
    A.I("s_lshl_b32", "s34", "s32", 8)
    A.I("s_add_u32", "s33", "s33", "s34")
    A.I("v_lshl_add_u32", "v2", "v1", 1, "s33")
    A.I("s_lshl_b32", "s34", "s32", 1)
    A.I("v_mov_b32", "v3", "s34")
    A.I("s_lshl_b32", "s34", "s30", 3)
    A.I("s_lshl_b32", "s35", "s28", 1)
    A.I("s_add_u32", "s34", "s34", "s35")
    A.I("s_lshl_b32", "s34", "s34", 10)
    A.I("v_lshrrev_b32", "v5", 5, "v1")
    A.I("v_and_b32", "v6", 31, "v1")
    A.I("v_lshlrev_b32", "v4", 10, "v5")
    A.I("v_lshl_add_u32", "v4", "v6", 4, "v4")
    A.I("v_add_u32", "v4", "s34", "v4")
    A.wait(lgkm=0)
    P = 48
    for k, sb in enumerate((6, 8, 10, 12, 14, 16)):
        A.I("global_load_ushort", vr(P + k), "v2", sr(sb, 2))
    A.I("global_load_ushort", vr(P + 6), "v3", "s[18:19]")
    A.I("global_load_dwordx4", "v[8:11]", "v4", "s[4:5]")
    A.I("global_load_dwordx4", "v[12:15]", "v4", "s[4:5]", mods="offset:512")
    srd(A, 36, 20, 512 * 2752)
    srd(A, 40, 24, 1376 * 1024)
    srd(A, 44, 26, WS_SIZE)
    srd(A, 48, 22, 2752)
    A.I("s_cmp_ge_u32", "s29", 352)
    A.I("s_cbranch_scc1", L("ld_w2"))
    A.I("s_lshr_b32", "s52", "s29", 5)
    A.I("s_and_b32", "s53", "s29", 31)
    A.I("s_mul_i32", "s54", "s53", 16 * 2752)
    A.I("s_lshl_b32", "s55", "s52", 8)
    A.I("s_add_u32", "s54", "s54", "s55")
    A.I("v_mul_u32_u24", "v7", 8 * 2752, "v5")
    A.I("v_lshl_add_u32", "v7", "v6", 3, "v7")
    A.I("v_lshl_add_u32", "v16", "v6", 3, "s55")
    A.I("v_cmp_gt_u32", "vcc", 2752, "v16")
    A.I("v_mov_b32", "v17", "0x7f000000")
    A.I("v_cndmask_b32", "v7", "v17", "v7", "vcc")
    for i in range(8):
        A.I("buffer_load_dwordx2", vr(16 + 2 * i, 2), "v7", "s[36:39]", "s54", mods="offen")
        if i < 7: A.I("s_add_u32", "s54", "s54", 2752)
    A.I("s_branch", L("ld_done"))
    A.label(L("ld_w2"))
    A.I("s_cmp_ge_u32", "s29", 704)
    A.I("s_cbranch_scc1", L("ld_b1"))
    A.I("s_sub_u32", "s52", "s29", 352)
    A.I("s_and_b32", "s53", "s52", 7)
    A.I("s_lshr_b32", "s52", "s52", 3)
    A.I("s_lshr_b32", "s54", "s52", 2)
    A.I("s_lshl_b32", "s54", "s54", 7)
    A.I("s_and_b32", "s55", "s52", 3)
    A.I("s_add_u32", "s54", "s54", "s55")
    A.I("s_lshl_b32", "s54", "s54", 10)
    A.I("s_lshl_b32", "s55", "s53", 7)
    A.I("s_add_u32", "s54", "s54", "s55")
    A.I("v_lshlrev_b32", "v7", 14, "v5")
    A.I("v_lshl_add_u32", "v7", "v6", 2, "v7")
    for rb in range(2):
        for i in range(8):
            roff = (64 * rb + 32 * (i >> 2) + 4 * (i & 3)) * 1024
            A.I("s_add_u32", "s55", "s54", roff)
            A.I("buffer_load_dword", vr(16 + 8 * rb + i), "v7", "s[40:43]", "s55", mods="offen")
    A.I("s_branch", L("ld_done"))
    A.label(L("ld_b1"))
    A.I("s_cmp_ge_u32", "s29", 748)
    A.I("s_cbranch_scc1", L("ld_done"))
    A.I("s_sub_u32", "s52", "s29", 704)
    A.I("s_lshr_b32", "s54", "s52", 2)
    A.I("s_lshl_b32", "s54", "s54", 7)
    A.I("s_and_b32", "s55", "s52", 3)
    A.I("s_add_u32", "s54", "s54", "s55")
    A.I("s_lshl_b32", "s54", "s54", 1)
    A.I("v_bfe_u32", "v7", "v1", 2, 2)
    A.I("v_lshlrev_b32", "v7", 3, "v7")
    A.I("v_bfe_u32", "v16", "v1", 4, 1)
    A.I("v_lshl_add_u32", "v7", "v16", 2, "v7")
    A.I("v_and_b32", "v16", 3, "v1")
    A.I("v_add_u32", "v7", "v7", "v16")
    A.I("v_lshlrev_b32", "v7", 3, "v7")
    A.I("buffer_load_ushort", "v16", "v7", "s[48:51]", "s54", mods="offen")
    A.label(L("ld_done"))
    A.I("s_mov_b32", "s56", "0x3f803f80")
    A.I("s_mov_b32", "s57", "0x05040100")
    A.I("s_mov_b32", "s58", "0x07060302")
    A.I("s_mov_b32", "s59", "0xffff0000")
    A.I("v_and_b32", "v56", 15, "v1")
    A.I("v_cvt_f32_u32", "v56", "v56")
    A.I("s_mul_i32", "s60", "s28", 2 * 1088)
    A.I("v_mul_u32_u24", "v57", 1088, "v5")
    A.I("v_lshl_add_u32", "v57", "v6", 4, "v57")
    A.I("v_add_u32", "v57", "s60", "v57")
    A.I("v_mov_b32", "v58", 0)
    A.I("v_mov_b32", "v59", 0)
    A.wait(vm=0)
    for k in range(8):
        A.I("v_dot2_f32_bf16", "v58", vr(8 + k), "s56", "v58")
        A.I("v_dot2_f32_bf16", "v59", vr(8 + k), vr(8 + k), "v59")
    reduce32(A, [58, 59], [60, 61])
    A.I("v_mul_f32", "v58", "0x3b000000", "v58")
    A.I("v_mul_f32", "v59", "0x3b000000", "v59")
    A.I("v_fma_f32", "v59", "-v58", "v58", "v59")
    A.I("v_max_f32", "v59", 0, "v59")
    A.I("v_cvt_pk_bf16_f32", "v60", 0, "v58")
    A.I("v_cvt_pk_bf16_f32", "v59", 0, "v59")
    A.I("v_add_f32", "v59", "0x3727c5ac", "v59")
    A.I("v_cvt_pk_bf16_f32", "v59", 0, "v59")
    A.I("v_sqrt_f32", "v59", "v59")
    A.I("v_cvt_pk_bf16_f32", "v59", 0, "v59")
    A.I("v_rcp_f32", "v62", "v59")
    for k in range(8):
        t = 64 + 2 * (k % 4)
        A.I("v_lshlrev_b32", vr(t), 16, vr(8 + k))
        A.I("v_and_b32", vr(t + 1), "s59", vr(8 + k))
        A.I("v_pk_add_f32", vr(t, 2), vr(t, 2), "v[60:61]", mods="op_sel_hi:[1,0] neg_lo:[0,1] neg_hi:[0,1]")
        A.I("v_cvt_pk_bf16_f32", vr(t), 0, vr(t))
        A.I("v_cvt_pk_bf16_f32", vr(t + 1), 0, vr(t + 1))
        A.I("v_pk_mul_f32", vr(t, 2), vr(t, 2), "v[62:63]", mods="op_sel_hi:[1,0]")
        A.I("v_cvt_pk_bf16_f32", vr(8 + k), vr(t), vr(t + 1))
    A.I("ds_write_b128", "v57", "v[8:11]")
    A.I("ds_write_b128", "v57", "v[12:15]", mods="offset:512")
    A.I("v_lshlrev_b32", "v7", 4, "v1")
    A.I("s_cmp_ge_u32", "s29", 352)
    A.I("s_cbranch_scc1", L("pt_w2"))
    for c in range(4):
        for p in range(4):
            A.I("v_perm_b32", vr(32 + 4 * c + p), vr(16 + 2 * (2 * p + 1) + (c >> 1)), vr(16 + 2 * (2 * p) + (c >> 1)), "s57" if (c & 1) == 0 else "s58")
    A.I("s_lshl_b32", "s54", "s53", 10)
    A.I("s_lshl_b32", "s55", "s52", 17)
    A.I("s_add_u32", "s54", "s54", "s55")
    A.I("s_add_u32", "s54", "s54", hex(W1F))
    for c in range(4):
        A.I("buffer_store_dwordx4", vr(32 + 4 * c, 4), "v7", "s[44:47]", "s54", mods="offen")
        if c < 3: A.I("s_add_u32", "s54", "s54", 32768)
    A.I("s_branch", L("pt_done"))
    A.label(L("pt_w2"))
    A.I("s_cmp_ge_u32", "s29", 704)
    A.I("s_cbranch_scc1", L("pt_b1"))
    for rb in range(2):
        for e in range(2):
            for p in range(4):
                A.I("v_perm_b32", vr(32 + 8 * rb + 4 * e + p), vr(16 + 8 * rb + 2 * p + 1), vr(16 + 8 * rb + 2 * p), "s57" if e == 0 else "s58")
    A.I("s_mul_i32", "s54", "s53", 88 * 2048)
    A.I("s_lshl_b32", "s55", "s52", 12)
    A.I("s_add_u32", "s54", "s54", "s55")
    A.I("s_add_u32", "s54", "s54", hex(W2F))
    for q in range(4):
        A.I("buffer_store_dwordx4", vr(32 + 4 * q, 4), "v7", "s[44:47]", "s54", mods=f"offen offset:{q*1024}")
    A.I("s_branch", L("pt_done"))
    A.label(L("pt_b1"))
    A.I("s_cmp_ge_u32", "s29", 748)
    A.I("s_cbranch_scc1", L("pt_done"))
    A.I("v_lshlrev_b32", "v16", 16, "v16")
    A.I("s_lshl_b32", "s54", "s52", 7)
    A.I("s_add_u32", "s54", "s54", hex(B1F))
    A.I("v_lshlrev_b32", "v17", 2, "v1")
    A.I("v_mov_b32", "v18", "0x7f000000")
    A.I("v_cmp_gt_u32", "vcc", 32, "v1")
    A.I("v_cndmask_b32", "v17", "v18", "v17", "vcc")
    A.I("buffer_store_dword", "v16", "v17", "s[44:47]", "s54", mods="offen")
    A.label(L("pt_done"))
    A.I("s_nop", 1)
    A.I("v_and_b32", "v16", 7, "v1")
    A.I("v_mul_u32_u24", "v16", 1088, "v16")
    A.I("v_lshrrev_b32", "v17", 3, "v1")
    A.I("v_lshl_add_u32", "v16", "v17", 4, "v16")
    A.I("s_lshl_b32", "s54", "s28", 8)
    A.I("v_add_u32", "v16", "s54", "v16")
    A.I("v_bfe_u32", "v17", "v1", 2, 2)
    A.I("v_mul_u32_u24", "v17", 1088, "v17")
    A.I("v_lshrrev_b32", "v18", 4, "v1")
    A.I("v_lshl_add_u32", "v17", "v18", 5, "v17")
    A.I("v_and_b32", "v18", 3, "v1")
    A.I("v_lshl_add_u32", "v17", "v18", 3, "v17")
    A.I("v_add_u32", "v17", "s54", "v17")
    A.I("v_lshlrev_b32", "v18", 12, "v1")
    A.wait(lgkm=0)
    A.I("s_barrier")
    A.I("ds_read_b128", "v[8:11]", "v16")
    A.I("ds_read_b128", "v[12:15]", "v16", mods="offset:128")
    A.I("ds_read_b64_tr_b16", "v[20:21]", "v17")
    A.I("ds_read_b64_tr_b16", "v[22:23]", "v17", mods=f"offset:{4*1088}")
    A.I("ds_read_b64_tr_b16", "v[24:25]", "v17", mods="offset:128")
    A.I("ds_read_b64_tr_b16", "v[26:27]", "v17", mods=f"offset:{4*1088+128}")
    A.I("s_lshl_b32", "s54", "s30", 13)
    A.I("s_lshl_b32", "s55", "s28", 11)
    A.I("s_add_u32", "s54", "s54", "s55")
    A.I("s_lshl_b32", "s55", "s28", 19)
    A.I("s_lshl_b32", "s60", "s30", 4)
    A.I("s_add_u32", "s55", "s55", "s60")
    A.I("s_add_u32", "s55", "s55", hex(XNT))
    A.I("s_add_u32", "s60", "s55", 64 * 4096)
    A.wait(lgkm=4)
    A.I("buffer_store_dwordx4", "v[8:11]", "v7", "s[44:47]", "s54", mods="offen")
    A.I("buffer_store_dwordx4", "v[12:15]", "v7", "s[44:47]", "s54", mods="offen offset:1024")
    A.wait(lgkm=2)
    A.I("buffer_store_dwordx4", "v[20:23]", "v18", "s[44:47]", "s55", mods="offen")
    A.wait(lgkm=0)
    A.I("buffer_store_dwordx4", "v[24:27]", "v18", "s[44:47]", "s60", mods="offen")
    gen_kgen(A, P=P, vidx=56)
    KACC = 100
    A.I("s_lshr_b32", "s54", "s28", 1)
    A.I("s_mul_i32", "s54", "s54", 5 * 1024)
    A.I("s_add_u32", "s54", "s54", 16384)
    A.I("v_add_u32", "v16", "s54", "v7")
    A.I("s_and_b32", "s55", "s28", 1)
    A.I("s_cmp_eq_u32", "s55", 0)
    A.I("s_cbranch_scc1", L("k_even"))
    for s in range(5):
        A.I("ds_write_b128", "v16", vr(KACC + 4 * s, 4), mods=f"offset:{s*1024}")
    A.wait(lgkm=0)
    A.I("s_barrier")
    A.I("s_branch", L("end"))
    A.label(L("k_even"))
    A.I("v_and_b32", "v17", 15, "v1")
    A.I("v_lshrrev_b32", "v18", 4, "v1")
    A.I("v_lshlrev_b32", "v19", 5, "v17")
    A.I("v_lshl_add_u32", "v19", "v18", 3, "v19")
    A.I("v_mov_b32", "v21", "0x7f000000")
    A.I("v_cmp_lt_u32", "vcc", 7, "v17")
    A.I("v_cndmask_b32", "v20", "v21", "v19", "vcc")
    A.I("v_cmp_eq_u32", "vcc", 15, "v1")
    A.I("v_mov_b32", "v22", 1280)
    A.I("v_cndmask_b32", "v21", "v21", "v22", "vcc")
    A.I("s_lshl_b32", "s54", "s32", 11)
    A.I("s_add_u32", "s54", "s54", hex(KD))
    A.I("s_barrier")
    for s in range(5):
        A.I("ds_read_b128", vr(24 + 4 * s, 4), "v16", mods=f"offset:{s*1024}")
    for s in range(5):
        A.wait(lgkm=4 - s)
        A.I("v_pk_add_f32", vr(KACC + 4 * s, 2), vr(KACC + 4 * s, 2), vr(24 + 4 * s, 2))
        A.I("v_pk_add_f32", vr(KACC + 4 * s + 2, 2), vr(KACC + 4 * s + 2, 2), vr(24 + 4 * s + 2, 2))
        A.I("v_cvt_pk_bf16_f32", vr(KACC + 4 * s), vr(KACC + 4 * s), vr(KACC + 4 * s + 1))
        A.I("v_cvt_pk_bf16_f32", vr(KACC + 4 * s + 1), vr(KACC + 4 * s + 2), vr(KACC + 4 * s + 3))
        if s < 4:
            A.I("buffer_store_dwordx2", vr(KACC + 4 * s, 2), "v19" if s == 0 else "v20", "s[44:47]", "s54", mods=f"offen offset:{256*s}")
        else:
            A.I("buffer_store_short", vr(KACC + 4 * s + 1), "v21", "s[44:47]", "s54", mods="offen")
    A.label(L("end"))
    A.I("s_endpgm")
    A.raw(kernel_footer(name, 128, 128))
    return A.text()

def gen_kgen(A, P, vidx):
    KACC = 100
    for k in range(7):
        A.I("v_lshlrev_b32", vr(P + k), 16, vr(P + k))
    A.I("s_mov_b32", "s62", hex(LOG2E))
    A.I("s_mov_b32", "s63", "0x32a57060")
    A.I("v_mul_f32", "v8", "s62", vr(P + 6))
    A.I("v_fma_f32", "v9", vr(P + 6), "s62", "-v8")
    A.I("v_fma_f32", "v9", vr(P + 6), "s63", "v9")
    A.I("v_exp_f32", "v8", "v8")
    A.I("v_mul_f32", "v9", "0x3f317218", "v9")
    A.I("v_fma_f32", "v8", "v8", "v9", "v8")
    A.I("v_cvt_pk_bf16_f32", "v8", 0, "v8")
    A.I("v_mul_f32", vr(P + 0), "v8", vr(P + 0))
    A.I("v_mul_f32", vr(P + 1), "v8", vr(P + 1))
    A.I("v_mul_f32", vr(P + 2), "v8", vr(P + 2))
    A.I("v_mul_f32", vr(P + 3), "v8", vr(P + 3))
    A.I("v_mul_f32", vr(P + 0), "s62", vr(P + 0))
    A.I("v_mul_f32", vr(P + 1), hex(INV2PI), vr(P + 1))
    A.I("v_mul_f32", "v9", vr(P + 5), vr(P + 3))
    A.I("v_mul_f32", "v10", vr(P + 5), vr(P + 2))
    A.I("v_fma_f32", vr(P + 2), vr(P + 4), vr(P + 2), "-v9")
    A.I("v_fma_f32", vr(P + 3), vr(P + 4), vr(P + 3), "v10")
    va, vb, vcr, vci = P, P + 1, P + 2, P + 3
    ET = [64 + 4 * s for s in range(5)]
    GT = [84 + 4 * s for s in range(4)]
    E, C, S, T = 8, 10, 12, 14
    R = [16, 20]; Im = [18, 22]
    GR = [24, 28]; GI = [26, 30]
    def bc(n): return f"row_newbcast:{n} {DPPM}"
    NEG2 = "neg_lo:[0,0,1] neg_hi:[0,0,1]"
    for pi in range(8):
        n0, n1 = 2 * pi, 2 * pi + 1
        ks, pos = pi >> 1, 2 * (pi & 1)
        A.I("v_mul_f32_dpp", vr(E), vr(va), vr(vidx), mods=bc(n0))
        A.I("v_mul_f32_dpp", vr(E + 1), vr(va), vr(vidx), mods=bc(n1))
        A.I("v_mul_f32_dpp", vr(S), vr(vb), vr(vidx), mods=bc(n0))
        A.I("v_mul_f32_dpp", vr(S + 1), vr(vb), vr(vidx), mods=bc(n1))
        A.I("v_exp_f32", vr(E), vr(E))
        A.I("v_exp_f32", vr(E + 1), vr(E + 1))
        A.I("v_fract_f32", vr(S), vr(S))
        A.I("v_fract_f32", vr(S + 1), vr(S + 1))
        A.I("v_cos_f32", vr(C), vr(S))
        A.I("v_cos_f32", vr(C + 1), vr(S + 1))
        A.I("v_sin_f32", vr(S), vr(S))
        A.I("v_sin_f32", vr(S + 1), vr(S + 1))
        A.I("v_pk_mul_f32", vr(R[0], 2), vr(E, 2), vr(C, 2))
        A.I("v_pk_mul_f32", vr(Im[0], 2), vr(E, 2), vr(S, 2))
        cur = 0
        g = 0
        for s in range(7):
            r, im = R[cur], Im[cur]
            if s <= 3 or s == 6:
                t = ET[s] if s <= 3 else ET[4]
                A.I("v_cvt_pk_bf16_f32", vr(t + pos), vr(r), vr(r + 1))
                A.I("v_cvt_pk_bf16_f32", vr(t + pos + 1), f"-{vr(im)}", f"-{vr(im + 1)}")
            if s == 4:
                for e, n in ((0, n0), (1, n1)):
                    A.I("v_mul_f32_dpp", vr(GR[0] + e), vr(vcr), vr(r + e), mods=bc(n))
                    A.I("v_mul_f32_dpp", vr(GI[0] + e), vr(vcr), vr(im + e), mods=bc(n))
                    A.I("v_fmac_f32_dpp", vr(GR[0] + e), f"-{vr(vci)}", vr(im + e), mods=bc(n))
                    A.I("v_fmac_f32_dpp", vr(GI[0] + e), vr(vci), vr(r + e), mods=bc(n))
                A.I("v_cvt_pk_bf16_f32", vr(GT[0] + pos), vr(GR[0]), vr(GR[0] + 1))
                A.I("v_cvt_pk_bf16_f32", vr(GT[0] + pos + 1), vr(GI[0]), vr(GI[0] + 1))
            if s >= 4:
                a, b = g, 1 - g
                A.I("v_pk_mul_f32", vr(T, 2), vr(GI[a], 2), vr(im, 2))
                A.I("v_pk_mul_f32", vr(GI[b], 2), vr(GI[a], 2), vr(r, 2))
                A.I("v_pk_fma_f32", vr(GR[b], 2), vr(GR[a], 2), vr(r, 2), vr(T, 2), mods=NEG2)
                A.I("v_pk_fma_f32", vr(GI[b], 2), vr(GR[a], 2), vr(im, 2), vr(GI[b], 2))
                A.I("v_cvt_pk_bf16_f32", vr(GT[s - 3] + pos), vr(GR[b]), vr(GR[b] + 1))
                A.I("v_cvt_pk_bf16_f32", vr(GT[s - 3] + pos + 1), vr(GI[b]), vr(GI[b] + 1))
                g = b
            if s < 6:
                r2, im2 = R[1 - cur], Im[1 - cur]
                A.I("v_pk_mul_f32", vr(T, 2), vr(im, 2), vr(im, 2))
                A.I("v_pk_mul_f32", vr(im2, 2), vr(r, 2), vr(im, 2))
                A.I("v_pk_fma_f32", vr(r2, 2), vr(r, 2), vr(r, 2), vr(T, 2), mods=NEG2)
                A.I("v_pk_add_f32", vr(im2, 2), vr(im2, 2), vr(im2, 2))
                cur = 1 - cur
        if pi & 1:
            for s in range(5):
                acc = vr(KACC + 4 * s, 4)
                A.I("v_mfma_f32_16x16x32_bf16", acc, vr(ET[s], 4), vr(GT[min(s, 3)], 4), acc if ks > 0 else "0")

if __name__ == "__main__":
    print(gen_prep())
```

```python
import sys
from k_prep import gen_prep
from k_mid import gen_mid, MID_LDS
from k_fin import gen_fin, FIN_LDS
ref = open("recurrent_scan__ssm_conv_s4__dense_activation_squared_relu__prompt.s.ref").read()
hdr = "".join(l + "\n" for l in ref.splitlines() if l.startswith(";") and "@launch" not in l and "Override launch" not in l and "grid=ceil" not in l)
out = hdr
out += "; @launch kernel=prep_kernel grid=(256,1,1) block=(256,1,1) lds=26624\n"
out += f"; @launch kernel=mid_kernel grid=(256,1,1) block=(256,1,1) lds={MID_LDS}\n"
out += f"; @launch kernel=fin_kernel grid=(256,1,1) block=(256,1,1) lds={FIN_LDS}\n"
out += '.amdgcn_target "amdgcn-amd-amdhsa--gfx950"\n'
out += gen_prep() + gen_mid() + gen_fin()
dst = sys.argv[1] if len(sys.argv) > 1 else "recurrent_scan__ssm_conv_s4__dense_activation_squared_relu__prompt.s"
open(dst, "w").write(out)
print("wrote", dst, len(out))
```

```python
import sys
from asmlib import *
base = open("recurrent_scan__ssm_conv_s4__dense_activation_squared_relu__prompt.s").read()
for n in (1, 3):
    lines = base.split("\n")
    idx = max(i for i, l in enumerate(lines) if l.startswith("; @launch"))
    extra = ["; @launch kernel=empty_kernel grid=(256,1,1) block=(256,1,1) lds=0"] * n
    lines = lines[:idx + 1] + extra + lines[idx + 1:]
    s = "\n".join(lines) + kernel_header("empty_kernel") + "    s_endpgm\n" + kernel_footer("empty_kernel", 8, 8, 16)
    open(f"var_e{n}.s", "w").write(s)
```

```python
import re

def regs_of(tok):
    tok = tok.strip()
    tok = tok.lstrip('-')
    if tok.startswith('|') and tok.endswith('|'): tok = tok[1:-1]
    if tok.startswith('abs(') and tok.endswith(')'): tok = tok[4:-1]
    m = re.fullmatch(r'([vas])(\d+)', tok)
    if m: return [(m.group(1), int(m.group(2)))]
    m = re.fullmatch(r'([vas])\[(\d+):(\d+)\]', tok)
    if m: return [(m.group(1), i) for i in range(int(m.group(2)), int(m.group(3)) + 1)]
    if tok == 'vcc': return [('s', 'vcc')]
    if tok == 'exec': return [('s', 'exec')]
    if tok == 'm0': return [('s', 'm0')]
    return []

TRANS = ('v_exp_f32', 'v_log_f32', 'v_rcp_f32', 'v_rsq_f32', 'v_sqrt_f32', 'v_sin_f32', 'v_cos_f32')

class Ins:
    __slots__ = ('mn', 'ops', 'mods', 'w', 'r', 'cls', 'passes', 'srcc', 'text', 'states')

def vr(i, n=1): return f"v{i}" if n == 1 else f"v[{i}:{i+n-1}]"
def ar(i, n=1): return f"a{i}" if n == 1 else f"a[{i}:{i+n-1}]"
def sr(i, n=1): return f"s{i}" if n == 1 else f"s[{i}:{i+n-1}]"

class Asm:
    def __init__(self):
        self.lines = []
        self.hist = []
        self.nnop = 0
        self.vmq = []
        self.lq = []
    def raw(self, text):
        self.lines.append(text)
    def comment(self, t): self.lines.append("    ; " + t)
    def label(self, name, flush=True):
        self.lines.append(name + ":")
        if flush:
            pass
    def _classify(self, mn, ops, mods):
        i = Ins(); i.mn = mn; i.ops = ops; i.mods = mods; i.passes = 0; i.srcc = []; i.states = 1
        R = lambda k: regs_of(ops[k]) if k < len(ops) else []
        allr = lambda ks: [x for k in ks for x in R(k)]
        n = len(ops)
        if mn.startswith('v_mfma'):
            i.cls = 'mfma'; i.w = R(0); i.r = allr([1, 2, 3]); i.srcc = R(3)
            i.passes = 8 if '32x32x16' in mn else 4 if '16x16x32' in mn else 16
        elif mn.startswith('v_cmpx'):
            i.cls = 'valu'; i.w = R(0) + [('s', 'exec')]; i.r = allr(range(1, n))
        elif mn.startswith('v_cmp'):
            i.cls = 'valu'; i.w = R(0); i.r = allr(range(1, n))
        elif mn.startswith('v_readfirstlane') or mn.startswith('v_readlane'):
            i.cls = 'valu'; i.w = R(0); i.r = allr(range(1, n))
        elif mn.startswith('v_permlane') and 'swap' in mn:
            i.cls = 'valu'; i.w = allr([0, 1]); i.r = allr([0, 1])
        elif mn.startswith('v_'):
            i.cls = 'valu'; i.w = R(0); i.r = allr(range(1, n))
            if '_co_' in mn: i.w = allr([0, 1]); i.r = allr(range(2, n))
            if mn.startswith(('v_fmac', 'v_dot2c', 'v_pk_fmac')): i.r = i.r + R(0)
            if 'dpp' in mn or 'row_' in mods or 'quad_perm' in mods: i.r = i.r + R(0)
            if mn.startswith('v_cndmask') and n == 3: i.r = i.r + [('s', 'vcc')]
            if 'd16' in mn: i.r = i.r + R(0)
        elif mn.startswith('buffer_load') or mn.startswith('global_load'):
            i.cls = 'vmem'
            if ' lds' in (' ' + mods) or '_lds_' in mn:
                i.w = []; i.r = allr(range(0, n)) + [('s', 'm0')]; i.cls = 'ldsdma'
            else:
                i.w = R(0); i.r = allr(range(1, n))
        elif mn.startswith('buffer_store') or mn.startswith('global_store') or mn.startswith('buffer_atomic') or mn.startswith('global_atomic'):
            i.cls = 'vstore'; i.w = []; i.r = allr(range(0, n))
        elif mn.startswith('ds_read') or mn.startswith('ds_bpermute') or mn.startswith('ds_swizzle'):
            i.cls = 'ds'; i.w = R(0); i.r = allr(range(1, n))
        elif mn.startswith('ds_'):
            i.cls = 'ds'; i.w = []; i.r = allr(range(0, n))
        elif mn == 's_nop':
            i.cls = 'nop'; i.w = []; i.r = []; i.states = int(ops[0]) + 1
        elif mn.startswith('s_'):
            i.cls = 'salu'
            if mn.startswith(('s_cmp', 's_cbranch', 's_branch', 's_waitcnt', 's_barrier', 's_endpgm', 's_setprio', 's_sleep')):
                i.w = []; i.r = allr(range(0, n))
            else:
                i.w = R(0); i.r = allr(range(1, n))
                if 'saveexec' in mn: i.w = i.w + [('s', 'exec')]
        else:
            raise ValueError("unknown mnemonic " + mn)
        return i
    def _need(self, p, c):
        need = 0
        pw = set(p.w); cr = set(c.r); cw = set(c.w)
        isv = lambda s: {x for x in s if x[0] in 'va'}
        iss = lambda s: {x for x in s if x[0] == 's'}
        cdpp = c.cls == 'valu' and ('dpp' in c.mn or 'row_' in c.mods or 'quad_perm' in c.mods)
        if p.cls == 'valu':
            raw_v = isv(pw) & cr
            raw_s = iss(pw) & cr
            if c.cls == 'mfma' and raw_v: need = max(need, 2)
            if c.cls == 'mfma' and ('s', 'exec') in pw: need = max(need, 4)
            if cdpp and raw_v: need = max(need, 2)
            if cdpp and ('s', 'exec') in pw: need = max(need, 5)
            if c.mn.startswith('v_permlane') and raw_v: need = max(need, 2)
            if c.mn.startswith(('v_readfirstlane', 'v_readlane')) and raw_v: need = max(need, 1)
            if c.mn.startswith(('v_readfirstlane', 'v_readlane', 'v_writelane', 'v_permlane')) and ('s', 'exec') in pw: need = max(need, 4)
            if c.cls in ('vmem', 'ldsdma', 'vstore') and raw_s: need = max(need, 5)
            if c.cls == 'valu' and raw_s: need = max(need, 4 if c.mn.startswith(('v_readlane', 'v_writelane')) else 2)
            if c.cls == 'salu' and raw_s: need = max(need, 1)
            if p.mn.startswith(TRANS) and c.cls in ('valu', 'mfma') and raw_v: need = max(need, 1 if c.cls == 'valu' else 2)
            if p.mn.startswith('v_dot') and (isv(pw) & (cr | cw)):
                same = (c.mn == p.mn)
                if same and not (isv(pw) & set(regs_of(c.ops[1]) + regs_of(c.ops[2]))): pass
                else: need = max(need, 3)
            if ('op_sel' in p.mods or 'sdwa' in p.mn or 'dst_sel' in p.mods) and not p.mn.startswith('v_pk') and c.cls == 'valu' and (isv(pw) & (cr | cw)): need = max(need, 1)
        if p.cls == 'mfma':
            P = p.passes
            tbl_ab = {4: 8, 8: 12, 16: 20}[P]
            if c.cls == 'mfma':
                if pw & set(regs_of(c.ops[1]) + regs_of(c.ops[2])): need = max(need, tbl_ab)
                ov = pw & set(c.srcc)
                if ov:
                    if set(c.srcc) == pw and c.passes == P: pass
                    else: need = max(need, {4: 6, 8: 10, 16: 18}[P])
                elif pw & cw: need = max(need, tbl_ab)
            elif c.cls in ('valu', 'vmem', 'vstore', 'ds', 'ldsdma'):
                if pw & (cr | cw): need = max(need, tbl_ab)
            if c.cls == 'valu' and set(p.srcc) & cw: need = max(need, {4: 3, 8: 7, 16: 15}[P])
        if p.cls == 'vstore' and ('x4' in p.mn or 'x3' in p.mn):
            data = set(regs_of(p.ops[0])) if p.mn.startswith('buffer') else set(regs_of(p.ops[1]))
            if data & cw: need = max(need, 2 if c.cls in ('valu', 'mfma') else 1)
        if p.cls == 'salu' and ('s', 'm0') in pw and c.cls == 'ldsdma': need = max(need, 1)
        return need
    def I(self, mn, *ops, mods="", tag=None):
        ops = [str(o) for o in ops]
        c = self._classify(mn, ops, mods)
        if c.cls in ('vmem', 'vstore', 'ldsdma'): self.vmq.append(tag)
        if c.cls == 'ds': self.lq.append(tag)
        dist = 0; pad = 0
        for p in reversed(self.hist[-24:]):
            n = self._need(p, c)
            if n > dist: pad = max(pad, n - dist)
            dist += p.states
            if dist >= 20: break
        while pad > 0:
            k = min(pad, 16)
            self._emit(self._classify('s_nop', [str(k - 1)], ""))
            self.nnop += 1
            pad -= k
        self._emit(c)
    def _emit(self, c):
        t = "    " + c.mn + (" " + ", ".join(c.ops) if c.ops else "") + (" " + c.mods if c.mods else "")
        self.lines.append(t)
        self.hist.append(c)
    def wait(self, vm=None, lgkm=None):
        parts = []
        if vm is not None: parts.append(f"vmcnt({vm})")
        if lgkm is not None: parts.append(f"lgkmcnt({lgkm})")
        self.I("s_waitcnt", " ".join(parts))
    def _after(self, q, tag):
        idx = [i for i, t in enumerate(q) if t == tag]
        assert idx, f"tag {tag} not found"
        return len(q) - 1 - idx[-1]
    def wait_vm(self, tag, lgkm=None):
        n = self._after(self.vmq, tag)
        if n >= 63:
            if lgkm is not None: self.wait(lgkm=lgkm)
            return
        self.wait(vm=n, lgkm=lgkm)
    def wait_l(self, tag):
        n = self._after(self.lq, tag)
        self.wait(lgkm=min(n, 15))
    def text(self): return "\n".join(self.lines) + "\n"

def kernel_footer(name, vgpr, accum, sgpr=102):
    return f"""
.section .rodata,"a"
.p2align 6
.amdhsa_kernel {name}
  .amdhsa_next_free_vgpr {vgpr}
  .amdhsa_next_free_sgpr {sgpr}
  .amdhsa_accum_offset {accum}
  .amdhsa_group_segment_fixed_size 0
  .amdhsa_kernarg_size 136
  .amdhsa_user_sgpr_count 2
  .amdhsa_user_sgpr_kernarg_segment_ptr 1
  .amdhsa_system_sgpr_workgroup_id_x 1
.end_amdhsa_kernel
.text
"""
def kernel_header(name):
    return f""".text
.globl {name}
.p2align 8
.type {name},@function
{name}:
"""

STAMPS = [False]
STAMP_OFF = 0x1400000
def stamp_at(A, slot, tmp=84):
    if not STAMPS[0]: return
    A.I("s_memrealtime", sr(tmp + 2 * slot, 2))
    if slot == 0: A.I("s_memtime", "s[80:81]")
def stamp_flush(A, kidx, wsreg, nslots, tmp=84, V0="v124", V1="v125", V2="v126", V01="v[124:125]"):
    if not STAMPS[0]: return
    A.wait(vm=0, lgkm=0)
    A.I("s_memrealtime", sr(tmp + 2 * (nslots - 1), 2))
    A.I("s_memtime", "s[82:83]")
    A.I("s_lshl_b32", "s98", "s2", 8)
    A.I("s_add_u32", "s98", "s98", hex(STAMP_OFF + kidx * 0x40000))
    A.I("v_and_b32", V2, "0x3c0", "v0")
    A.I("v_add_u32", V2, "s98", V2)
    A.I("v_and_b32", V1, 63, "v0")
    A.I("v_cmp_eq_u32", "vcc", 0, V1)
    A.wait(lgkm=0)
    A.I("s_and_saveexec_b64", "s[100:101]", "vcc")
    for k in range(nslots):
        A.I("v_mov_b32", V0, sr(tmp + 2 * k))
        A.I("v_mov_b32", V1, sr(tmp + 2 * k + 1))
        A.I("global_store_dwordx2", V2, V01, wsreg, mods=f"offset:{8 * k}")
    A.I("s_sub_u32", "s82", "s82", "s80")
    A.I("v_mov_b32", V0, "s82")
    A.I("v_mov_b32", V1, 0)
    A.I("global_store_dwordx2", V2, V01, wsreg, mods="offset:56")
```

```python
from asmlib import *
from layout import *

def srd(A, d, base, nrec):
    A.I("s_mov_b32", sr(d), sr(base))
    A.I("s_mov_b32", sr(d + 1), sr(base + 1))
    A.I("s_mov_b32", sr(d + 2), hex(nrec))
    A.I("s_mov_b32", sr(d + 3), "0x20000")

DPPM = "row_mask:0xf bank_mask:0xf"

def reduce32(A, v, t):
    for m in ("quad_perm:[1,0,3,2]", "quad_perm:[2,3,0,1]", "row_half_mirror", "row_mirror"):
        for x in v:
            A.I("v_add_f32_dpp", vr(x), vr(x), vr(x), mods=f"{m} {DPPM}")
    for x, y in zip(v, t):
        A.I("v_mov_b32", vr(y), vr(x))
    for x, y in zip(v, t):
        A.I("v_permlane16_swap_b32", vr(x), vr(y))
    for x, y in zip(v, t):
        A.I("v_add_f32", vr(x), vr(x), vr(y))

NST = 4
def gen_prep(name="prep_kernel"):
    A = Asm()
    A.raw(kernel_header(name))
    L = lambda s: f"L_{name}_{s}"
    stamp_at(A, 0)
    A.I("s_cmp_ge_u32", "s2", 256)
    A.I("s_cbranch_scc1", L("exit"))
    A.I("s_load_dwordx16", "s[4:19]", "s[0:1]", 0)
    A.I("s_load_dwordx4", "s[20:23]", "s[0:1]", 80)
    A.I("s_load_dwordx2", "s[24:25]", "s[0:1]", 96)
    A.I("s_load_dwordx2", "s[26:27]", "s[0:1]", 128)
    A.I("v_and_b32", "v1", 63, "v0")
    A.I("v_lshrrev_b32", "v2", 6, "v0")
    A.I("v_readfirstlane_b32", "s28", "v2")
    A.I("s_lshl_b32", "s29", "s2", 2)
    A.I("s_add_u32", "s29", "s29", "s28")
    A.I("s_and_b32", "s30", "s2", 7)
    A.I("s_lshl_b32", "s30", "s30", 5)
    A.I("s_lshr_b32", "s31", "s2", 3)
    A.I("s_add_u32", "s30", "s30", "s31")
    A.I("s_lshr_b32", "s31", "s28", 1)
    A.I("s_lshl_b32", "s32", "s2", 1)
    A.I("s_add_u32", "s32", "s32", "s31")
    A.I("s_and_b32", "s33", "s28", 1)
    A.I("s_lshl_b32", "s33", "s33", 7)
    A.I("s_lshl_b32", "s34", "s32", 8)
    A.I("s_add_u32", "s33", "s33", "s34")
    A.I("v_lshl_add_u32", "v2", "v1", 1, "s33")
    A.I("s_lshl_b32", "s34", "s32", 1)
    A.I("v_mov_b32", "v3", "s34")
    A.I("s_lshl_b32", "s34", "s30", 3)
    A.I("s_lshl_b32", "s35", "s28", 1)
    A.I("s_add_u32", "s34", "s34", "s35")
    A.I("s_lshl_b32", "s34", "s34", 10)
    A.I("v_lshrrev_b32", "v5", 5, "v1")
    A.I("v_and_b32", "v6", 31, "v1")
    A.I("v_lshlrev_b32", "v4", 10, "v5")
    A.I("v_lshl_add_u32", "v4", "v6", 4, "v4")
    A.I("v_add_u32", "v4", "s34", "v4")
    A.wait(lgkm=0)
    P = 48
    for k, sb in enumerate((6, 8, 10, 12, 14, 16)):
        A.I("global_load_ushort", vr(P + k), "v2", sr(sb, 2))
    A.I("global_load_ushort", vr(P + 6), "v3", "s[18:19]")
    A.I("global_load_dwordx4", "v[8:11]", "v4", "s[4:5]")
    A.I("global_load_dwordx4", "v[12:15]", "v4", "s[4:5]", mods="offset:512")
    srd(A, 36, 20, 512 * 2752)
    srd(A, 40, 24, 1376 * 1024)
    srd(A, 44, 26, WS_SIZE)
    srd(A, 48, 22, 2752)
    A.I("s_cmp_ge_u32", "s29", 352)
    A.I("s_cbranch_scc1", L("ld_w2"))
    A.I("s_lshr_b32", "s52", "s29", 5)
    A.I("s_and_b32", "s53", "s29", 31)
    A.I("s_mul_i32", "s54", "s53", 16 * 2752)
    A.I("s_lshl_b32", "s55", "s52", 8)
    A.I("s_add_u32", "s54", "s54", "s55")
    A.I("v_mul_u32_u24", "v7", 8 * 2752, "v5")
    A.I("v_lshl_add_u32", "v7", "v6", 3, "v7")
    A.I("v_lshl_add_u32", "v16", "v6", 3, "s55")
    A.I("v_cmp_gt_u32", "vcc", 2752, "v16")
    A.I("v_mov_b32", "v17", "0x7f000000")
    A.I("v_cndmask_b32", "v7", "v17", "v7", "vcc")
    for i in range(8):
        A.I("buffer_load_dwordx2", vr(16 + 2 * i, 2), "v7", "s[36:39]", "s54", mods="offen")
        if i < 7: A.I("s_add_u32", "s54", "s54", 2752)
    A.I("s_branch", L("ld_done"))
    A.label(L("ld_w2"))
    A.I("s_cmp_ge_u32", "s29", 704)
    A.I("s_cbranch_scc1", L("ld_b1"))
    A.I("s_sub_u32", "s52", "s29", 352)
    A.I("s_and_b32", "s53", "s52", 7)
    A.I("s_lshr_b32", "s52", "s52", 3)
    A.I("s_lshr_b32", "s54", "s52", 2)
    A.I("s_lshl_b32", "s54", "s54", 7)
    A.I("s_and_b32", "s55", "s52", 3)
    A.I("s_add_u32", "s54", "s54", "s55")
    A.I("s_lshl_b32", "s54", "s54", 10)
    A.I("s_lshl_b32", "s55", "s53", 7)
    A.I("s_add_u32", "s54", "s54", "s55")
    A.I("v_lshlrev_b32", "v7", 14, "v5")
    A.I("v_lshl_add_u32", "v7", "v6", 2, "v7")
    for rb in range(2):
        for i in range(8):
            roff = (64 * rb + 32 * (i >> 2) + 4 * (i & 3)) * 1024
            A.I("s_add_u32", "s55", "s54", roff)
            A.I("buffer_load_dword", vr(16 + 8 * rb + i), "v7", "s[40:43]", "s55", mods="offen")
    A.I("s_branch", L("ld_done"))
    A.label(L("ld_b1"))
    A.I("s_cmp_ge_u32", "s29", 748)
    A.I("s_cbranch_scc1", L("ld_done"))
    A.I("s_sub_u32", "s52", "s29", 704)
    A.I("s_lshr_b32", "s54", "s52", 2)
    A.I("s_lshl_b32", "s54", "s54", 7)
    A.I("s_and_b32", "s55", "s52", 3)
    A.I("s_add_u32", "s54", "s54", "s55")
    A.I("s_lshl_b32", "s54", "s54", 1)
    A.I("v_bfe_u32", "v7", "v1", 2, 2)
    A.I("v_lshlrev_b32", "v7", 3, "v7")
    A.I("v_bfe_u32", "v16", "v1", 4, 1)
    A.I("v_lshl_add_u32", "v7", "v16", 2, "v7")
    A.I("v_and_b32", "v16", 3, "v1")
    A.I("v_add_u32", "v7", "v7", "v16")
    A.I("v_lshlrev_b32", "v7", 3, "v7")
    A.I("buffer_load_ushort", "v16", "v7", "s[48:51]", "s54", mods="offen")
    A.label(L("ld_done"))
    A.I("s_mov_b32", "s56", "0x3f803f80")
    A.I("s_mov_b32", "s57", "0x05040100")
    A.I("s_mov_b32", "s58", "0x07060302")
    A.I("s_mov_b32", "s59", "0xffff0000")
    A.I("v_and_b32", "v56", 15, "v1")
    A.I("v_cvt_f32_u32", "v56", "v56")
    A.I("s_mul_i32", "s60", "s28", 2 * 1088)
    A.I("v_mul_u32_u24", "v57", 1088, "v5")
    A.I("v_lshl_add_u32", "v57", "v6", 4, "v57")
    A.I("v_add_u32", "v57", "s60", "v57")
    A.I("v_mov_b32", "v58", 0)
    A.I("v_mov_b32", "v59", 0)
    A.wait(vm=0)
    stamp_at(A, 1)
    for k in range(8):
        A.I("v_dot2_f32_bf16", "v58", vr(8 + k), "s56", "v58")
        A.I("v_dot2_f32_bf16", "v59", vr(8 + k), vr(8 + k), "v59")
    reduce32(A, [58, 59], [60, 61])
    A.I("v_mul_f32", "v58", "0x3b000000", "v58")
    A.I("v_mul_f32", "v59", "0x3b000000", "v59")
    A.I("v_fma_f32", "v59", "-v58", "v58", "v59")
    A.I("v_max_f32", "v59", 0, "v59")
    A.I("v_cvt_pk_bf16_f32", "v60", 0, "v58")
    A.I("v_cvt_pk_bf16_f32", "v59", 0, "v59")
    A.I("v_add_f32", "v59", "0x3727c5ac", "v59")
    A.I("v_cvt_pk_bf16_f32", "v59", 0, "v59")
    A.I("v_sqrt_f32", "v59", "v59")
    A.I("v_cvt_pk_bf16_f32", "v59", 0, "v59")
    A.I("v_rcp_f32", "v62", "v59")
    for k in range(8):
        t = 64 + 2 * (k % 4)
        A.I("v_lshlrev_b32", vr(t), 16, vr(8 + k))
        A.I("v_and_b32", vr(t + 1), "s59", vr(8 + k))
        A.I("v_pk_add_f32", vr(t, 2), vr(t, 2), "v[60:61]", mods="op_sel_hi:[1,0] neg_lo:[0,1] neg_hi:[0,1]")
        A.I("v_cvt_pk_bf16_f32", vr(t), 0, vr(t))
        A.I("v_cvt_pk_bf16_f32", vr(t + 1), 0, vr(t + 1))
        A.I("v_pk_mul_f32", vr(t, 2), vr(t, 2), "v[62:63]", mods="op_sel_hi:[1,0]")
        A.I("v_cvt_pk_bf16_f32", vr(8 + k), vr(t), vr(t + 1))
    A.I("ds_write_b128", "v57", "v[8:11]")
    A.I("ds_write_b128", "v57", "v[12:15]", mods="offset:512")
    A.I("v_lshlrev_b32", "v7", 4, "v1")
    A.I("s_cmp_ge_u32", "s29", 352)
    A.I("s_cbranch_scc1", L("pt_w2"))
    for c in range(4):
        for p in range(4):
            A.I("v_perm_b32", vr(32 + 4 * c + p), vr(16 + 2 * (2 * p + 1) + (c >> 1)), vr(16 + 2 * (2 * p) + (c >> 1)), "s57" if (c & 1) == 0 else "s58")
    A.I("s_lshl_b32", "s54", "s53", 10)
    A.I("s_lshl_b32", "s55", "s52", 17)
    A.I("s_add_u32", "s54", "s54", "s55")
    A.I("s_add_u32", "s54", "s54", hex(W1F))
    for c in range(4):
        A.I("buffer_store_dwordx4", vr(32 + 4 * c, 4), "v7", "s[44:47]", "s54", mods="offen")
        if c < 3: A.I("s_add_u32", "s54", "s54", 32768)
    A.I("s_branch", L("pt_done"))
    A.label(L("pt_w2"))
    A.I("s_cmp_ge_u32", "s29", 704)
    A.I("s_cbranch_scc1", L("pt_b1"))
    for rb in range(2):
        for e in range(2):
            for p in range(4):
                A.I("v_perm_b32", vr(32 + 8 * rb + 4 * e + p), vr(16 + 8 * rb + 2 * p + 1), vr(16 + 8 * rb + 2 * p), "s57" if e == 0 else "s58")
    A.I("s_mul_i32", "s54", "s53", 88 * 2048)
    A.I("s_lshl_b32", "s55", "s52", 12)
    A.I("s_add_u32", "s54", "s54", "s55")
    A.I("s_add_u32", "s54", "s54", hex(W2F))
    for q in range(4):
        A.I("buffer_store_dwordx4", vr(32 + 4 * q, 4), "v7", "s[44:47]", "s54", mods=f"offen offset:{q*1024}")
    A.I("s_branch", L("pt_done"))
    A.label(L("pt_b1"))
    A.I("s_cmp_ge_u32", "s29", 748)
    A.I("s_cbranch_scc1", L("pt_done"))
    A.I("v_lshlrev_b32", "v16", 16, "v16")
    A.I("s_lshl_b32", "s54", "s52", 7)
    A.I("s_add_u32", "s54", "s54", hex(B1F))
    A.I("v_lshlrev_b32", "v17", 2, "v1")
    A.I("v_mov_b32", "v18", "0x7f000000")
    A.I("v_cmp_gt_u32", "vcc", 32, "v1")
    A.I("v_cndmask_b32", "v17", "v18", "v17", "vcc")
    A.I("buffer_store_dword", "v16", "v17", "s[44:47]", "s54", mods="offen")
    A.label(L("pt_done"))
    A.I("s_nop", 1)
    A.I("v_and_b32", "v16", 7, "v1")
    A.I("v_mul_u32_u24", "v16", 1088, "v16")
    A.I("v_lshrrev_b32", "v17", 3, "v1")
    A.I("v_lshl_add_u32", "v16", "v17", 4, "v16")
    A.I("s_lshl_b32", "s54", "s28", 8)
    A.I("v_add_u32", "v16", "s54", "v16")
    A.I("v_bfe_u32", "v17", "v1", 2, 2)
    A.I("v_mul_u32_u24", "v17", 1088, "v17")
    A.I("v_lshrrev_b32", "v18", 4, "v1")
    A.I("v_lshl_add_u32", "v17", "v18", 5, "v17")
    A.I("v_and_b32", "v18", 3, "v1")
    A.I("v_lshl_add_u32", "v17", "v18", 3, "v17")
    A.I("v_add_u32", "v17", "s54", "v17")
    A.I("v_lshlrev_b32", "v18", 12, "v1")
    A.wait(lgkm=0)
    A.I("s_barrier")
    A.I("ds_read_b128", "v[8:11]", "v16")
    A.I("ds_read_b128", "v[12:15]", "v16", mods="offset:128")
    A.I("ds_read_b64_tr_b16", "v[20:21]", "v17")
    A.I("ds_read_b64_tr_b16", "v[22:23]", "v17", mods=f"offset:{4*1088}")
    A.I("ds_read_b64_tr_b16", "v[24:25]", "v17", mods="offset:128")
    A.I("ds_read_b64_tr_b16", "v[26:27]", "v17", mods=f"offset:{4*1088+128}")
    A.I("s_lshl_b32", "s54", "s30", 13)
    A.I("s_lshl_b32", "s55", "s28", 11)
    A.I("s_add_u32", "s54", "s54", "s55")
    A.I("s_lshl_b32", "s55", "s28", 19)
    A.I("s_lshl_b32", "s60", "s30", 4)
    A.I("s_add_u32", "s55", "s55", "s60")
    A.I("s_add_u32", "s55", "s55", hex(XNT))
    A.I("s_add_u32", "s60", "s55", 64 * 4096)
    A.wait(lgkm=4)
    A.I("buffer_store_dwordx4", "v[8:11]", "v7", "s[44:47]", "s54", mods="offen")
    A.I("buffer_store_dwordx4", "v[12:15]", "v7", "s[44:47]", "s54", mods="offen offset:1024")
    A.wait(lgkm=2)
    A.I("buffer_store_dwordx4", "v[20:23]", "v18", "s[44:47]", "s55", mods="offen")
    A.wait(lgkm=0)
    A.I("buffer_store_dwordx4", "v[24:27]", "v18", "s[44:47]", "s60", mods="offen")
    stamp_at(A, 2)
    gen_kgen(A, P=P, vidx=56)
    KACC = 100
    A.I("s_lshr_b32", "s54", "s28", 1)
    A.I("s_mul_i32", "s54", "s54", 5 * 1024)
    A.I("s_add_u32", "s54", "s54", 16384)
    A.I("v_add_u32", "v16", "s54", "v7")
    A.I("s_and_b32", "s55", "s28", 1)
    A.I("s_cmp_eq_u32", "s55", 0)
    A.I("s_cbranch_scc1", L("k_even"))
    for s in range(5):
        A.I("ds_write_b128", "v16", vr(KACC + 4 * s, 4), mods=f"offset:{s*1024}")
    A.wait(lgkm=0)
    A.I("s_barrier")
    A.I("s_branch", L("end"))
    A.label(L("k_even"))
    A.I("v_and_b32", "v17", 15, "v1")
    A.I("v_lshrrev_b32", "v18", 4, "v1")
    A.I("v_lshlrev_b32", "v19", 5, "v17")
    A.I("v_lshl_add_u32", "v19", "v18", 3, "v19")
    A.I("v_mov_b32", "v21", "0x7f000000")
    A.I("v_cmp_lt_u32", "vcc", 7, "v17")
    A.I("v_cndmask_b32", "v20", "v21", "v19", "vcc")
    A.I("v_cmp_eq_u32", "vcc", 15, "v1")
    A.I("v_mov_b32", "v22", 1280)
    A.I("v_cndmask_b32", "v21", "v21", "v22", "vcc")
    A.I("s_lshl_b32", "s54", "s32", 11)
    A.I("s_add_u32", "s54", "s54", hex(KD))
    A.I("s_barrier")
    for s in range(5):
        A.I("ds_read_b128", vr(24 + 4 * s, 4), "v16", mods=f"offset:{s*1024}")
    for s in range(5):
        A.wait(lgkm=4 - s)
        A.I("v_pk_add_f32", vr(KACC + 4 * s, 2), vr(KACC + 4 * s, 2), vr(24 + 4 * s, 2))
        A.I("v_pk_add_f32", vr(KACC + 4 * s + 2, 2), vr(KACC + 4 * s + 2, 2), vr(24 + 4 * s + 2, 2))
        A.I("v_cvt_pk_bf16_f32", vr(KACC + 4 * s), vr(KACC + 4 * s), vr(KACC + 4 * s + 1))
        A.I("v_cvt_pk_bf16_f32", vr(KACC + 4 * s + 1), vr(KACC + 4 * s + 2), vr(KACC + 4 * s + 3))
        if s < 4:
            A.I("buffer_store_dwordx2", vr(KACC + 4 * s, 2), "v19" if s == 0 else "v20", "s[44:47]", "s54", mods=f"offen offset:{256*s}")
        else:
            A.I("buffer_store_short", vr(KACC + 4 * s + 1), "v21", "s[44:47]", "s54", mods="offen")
    A.label(L("end"))
    stamp_flush(A, 0, "s[26:27]", NST)
    A.label(L("exit"))
    A.I("s_endpgm")
    A.raw(kernel_footer(name, 128, 128))
    return A.text()

def gen_kgen_pair_setup(A, P):
    for k in range(7):
        A.I("v_lshlrev_b32", vr(P + k), 16, vr(P + k))
    A.I("s_mov_b32", "s62", hex(LOG2E))
    A.I("s_mov_b32", "s63", "0x32a57060")
    A.I("v_mul_f32", "v8", "s62", vr(P + 6))
    A.I("v_fma_f32", "v9", vr(P + 6), "s62", "-v8")
    A.I("v_fma_f32", "v9", vr(P + 6), "s63", "v9")
    A.I("v_exp_f32", "v8", "v8")
    A.I("v_mul_f32", "v9", "0x3f317218", "v9")
    A.I("v_fma_f32", "v8", "v8", "v9", "v8")
    A.I("v_cvt_pk_bf16_f32", "v8", 0, "v8")
    A.I("v_mul_f32", vr(P + 0), "v8", vr(P + 0))
    A.I("v_mul_f32", vr(P + 1), "v8", vr(P + 1))
    A.I("v_mul_f32", vr(P + 2), "v8", vr(P + 2))
    A.I("v_mul_f32", vr(P + 3), "v8", vr(P + 3))
    A.I("v_mul_f32", vr(P + 0), "s62", vr(P + 0))
    A.I("v_mul_f32", vr(P + 1), hex(INV2PI), vr(P + 1))
    A.I("v_mul_f32", "v9", vr(P + 5), vr(P + 3))
    A.I("v_mul_f32", "v10", vr(P + 5), vr(P + 2))
    A.I("v_fma_f32", vr(P + 2), vr(P + 4), vr(P + 2), "-v9")
    A.I("v_fma_f32", vr(P + 3), vr(P + 4), vr(P + 3), "v10")

def gen_kgen_pair(A, P, vidx, pi):
    KACC = 100
    va, vb, vcr, vci = P, P + 1, P + 2, P + 3
    ET = [64 + 4 * s for s in range(5)]
    GT = [84 + 4 * s for s in range(4)]
    E, C, S, T = 8, 10, 12, 14
    R = [16, 20]; Im = [18, 22]
    GR = [24, 28]; GI = [26, 30]
    def bc(n): return f"row_newbcast:{n} {DPPM}"
    NEG2 = "neg_lo:[0,0,1] neg_hi:[0,0,1]"
    n0, n1 = 2 * pi, 2 * pi + 1
    ks, pos = pi >> 1, 2 * (pi & 1)
    A.I("v_mul_f32_dpp", vr(E), vr(va), vr(vidx), mods=bc(n0))
    A.I("v_mul_f32_dpp", vr(E + 1), vr(va), vr(vidx), mods=bc(n1))
    A.I("v_mul_f32_dpp", vr(S), vr(vb), vr(vidx), mods=bc(n0))
    A.I("v_mul_f32_dpp", vr(S + 1), vr(vb), vr(vidx), mods=bc(n1))
    A.I("v_exp_f32", vr(E), vr(E))
    A.I("v_exp_f32", vr(E + 1), vr(E + 1))
    A.I("v_fract_f32", vr(S), vr(S))
    A.I("v_fract_f32", vr(S + 1), vr(S + 1))
    A.I("v_cos_f32", vr(C), vr(S))
    A.I("v_cos_f32", vr(C + 1), vr(S + 1))
    A.I("v_sin_f32", vr(S), vr(S))
    A.I("v_sin_f32", vr(S + 1), vr(S + 1))
    A.I("v_pk_mul_f32", vr(R[0], 2), vr(E, 2), vr(C, 2))
    A.I("v_pk_mul_f32", vr(Im[0], 2), vr(E, 2), vr(S, 2))
    cur = 0
    g = 0
    for s in range(7):
        r, im = R[cur], Im[cur]
        if s <= 3 or s == 6:
            t = ET[s] if s <= 3 else ET[4]
            A.I("v_cvt_pk_bf16_f32", vr(t + pos), vr(r), vr(r + 1))
            A.I("v_cvt_pk_bf16_f32", vr(t + pos + 1), f"-{vr(im)}", f"-{vr(im + 1)}")
        if s == 4:
            for e, n in ((0, n0), (1, n1)):
                A.I("v_mul_f32_dpp", vr(GR[0] + e), vr(vcr), vr(r + e), mods=bc(n))
                A.I("v_mul_f32_dpp", vr(GI[0] + e), vr(vcr), vr(im + e), mods=bc(n))
                A.I("v_fmac_f32_dpp", vr(GR[0] + e), f"-{vr(vci)}", vr(im + e), mods=bc(n))
                A.I("v_fmac_f32_dpp", vr(GI[0] + e), vr(vci), vr(r + e), mods=bc(n))
            A.I("v_cvt_pk_bf16_f32", vr(GT[0] + pos), vr(GR[0]), vr(GR[0] + 1))
            A.I("v_cvt_pk_bf16_f32", vr(GT[0] + pos + 1), vr(GI[0]), vr(GI[0] + 1))
        if s >= 4:
            a, b = g, 1 - g
            A.I("v_pk_mul_f32", vr(T, 2), vr(GI[a], 2), vr(im, 2))
            A.I("v_pk_mul_f32", vr(GI[b], 2), vr(GI[a], 2), vr(r, 2))
            A.I("v_pk_fma_f32", vr(GR[b], 2), vr(GR[a], 2), vr(r, 2), vr(T, 2), mods=NEG2)
            A.I("v_pk_fma_f32", vr(GI[b], 2), vr(GR[a], 2), vr(im, 2), vr(GI[b], 2))
            A.I("v_cvt_pk_bf16_f32", vr(GT[s - 3] + pos), vr(GR[b]), vr(GR[b] + 1))
            A.I("v_cvt_pk_bf16_f32", vr(GT[s - 3] + pos + 1), vr(GI[b]), vr(GI[b] + 1))
            g = b
        if s < 6:
            r2, im2 = R[1 - cur], Im[1 - cur]
            A.I("v_pk_mul_f32", vr(T, 2), vr(im, 2), vr(im, 2))
            A.I("v_pk_mul_f32", vr(im2, 2), vr(r, 2), vr(im, 2))
            A.I("v_pk_fma_f32", vr(r2, 2), vr(r, 2), vr(r, 2), vr(T, 2), mods=NEG2)
            A.I("v_pk_add_f32", vr(im2, 2), vr(im2, 2), vr(im2, 2))
            cur = 1 - cur
    if pi & 1:
        for s in range(5):
            acc = vr(KACC + 4 * s, 4)
            A.I("v_mfma_f32_16x16x32_bf16", acc, vr(ET[s], 4), vr(GT[min(s, 3)], 4), acc if ks > 0 else "0")


def gen_kgen(A, P, vidx):
    gen_kgen_pair_setup(A, P)
    for pi in range(8): gen_kgen_pair(A, P, vidx, pi)

if __name__ == "__main__":
    print(gen_prep())
```

```python
from asmlib import *
from layout1 import *
from k_prep import srd, DPPM, reduce32, gen_kgen_pair_setup, gen_kgen_pair
KC = 0
UL = 33280
KDT = UL + 9216
ACCX = KDT + 2 * 5632
PSET = [(0, 3, 5, 6), (1, 2, 4, 7)]

def spin_check(A, L, name, vflag, vtag, reissue, cnt="s70"):
    A.I("s_mov_b32", cnt, SPIN_LIMIT)
    A.label(L(name))
    A.wait(vm=0)
    A.I("v_cmp_ne_u32", "vcc", vflag, vtag)
    A.I("v_cmp_eq_u32", "s[72:73]", 0, vtag)
    A.I("s_or_b64", "vcc", "vcc", "s[72:73]")
    A.I("s_cbranch_vccz", L(name + "_ok"))
    A.I("s_sub_u32", cnt, cnt, 1)
    A.I("s_cbranch_scc1", L(name + "_ok"))
    reissue()
    A.I("s_branch", L(name))
    A.label(L(name + "_ok"))

def code_prefetch(A, start_label, nbytes, vtmp, vdst, L):
    A.I("s_getpc_b64", "s[74:75]")
    A.I("v_lshlrev_b32", vtmp, 7, "v0")
    assert nbytes <= 32768
    A.I("v_cmp_gt_u32", "vcc", nbytes - 256, vtmp)
    A.I("v_cndmask_b32", vtmp, 0, vtmp, "vcc")
    A.I("global_load_dword", vdst, vtmp, "s[74:75]")

def gen_K(A, L, ksize):
    A.label(L("K"))
    A.I("s_load_dwordx16", "s[4:19]", "s[0:1]", 0)
    A.I("s_load_dwordx2", "s[20:21]", "s[0:1]", 64)
    A.I("s_load_dwordx4", "s[24:27]", "s[0:1]", 120)
    code_prefetch(A, L("K"), ksize, "v2", "v3", L)
    A.I("s_and_b32", "s3", "s2", 255)
    A.I("v_and_b32", "v1", 63, "v0")
    A.I("v_lshrrev_b32", "v2", 6, "v0")
    A.I("v_readfirstlane_b32", "s28", "v2")
    A.I("s_and_b32", "s29", "s3", 7)
    A.I("s_lshl_b32", "s29", "s29", 5)
    A.I("s_lshr_b32", "s30", "s3", 3)
    A.I("s_add_u32", "s29", "s29", "s30")
    A.I("s_lshr_b32", "s30", "s28", 1)
    A.I("s_and_b32", "s31", "s28", 1)
    A.I("s_lshl_b32", "s32", "s29", 1)
    A.I("s_add_u32", "s32", "s32", "s30")
    A.I("s_lshl_b32", "s33", "s31", 7)
    A.I("s_lshl_b32", "s34", "s32", 8)
    A.I("s_add_u32", "s33", "s33", "s34")
    A.I("v_lshl_add_u32", "v2", "v1", 1, "s33")
    A.I("s_lshl_b32", "s34", "s32", 1)
    A.I("v_mov_b32", "v7", "s34")
    A.I("s_lshl_b32", "s34", "s3", 3)
    A.I("s_lshl_b32", "s35", "s28", 1)
    A.I("s_add_u32", "s34", "s34", "s35")
    A.I("s_lshl_b32", "s34", "s34", 10)
    A.I("v_lshrrev_b32", "v5", 5, "v1")
    A.I("v_and_b32", "v6", 31, "v1")
    A.I("v_lshlrev_b32", "v4", 10, "v5")
    A.I("v_lshl_add_u32", "v4", "v6", 4, "v4")
    A.I("v_add_u32", "v4", "s34", "v4")
    A.wait(lgkm=0)
    P = 48
    A.I("global_load_dwordx4", "v[8:11]", "v4", "s[4:5]", tag="x")
    A.I("global_load_dwordx4", "v[12:15]", "v4", "s[4:5]", mods="offset:512", tag="x")
    for k, sb in enumerate((6, 8, 10, 12, 14, 16)):
        A.I("global_load_ushort", vr(P + k), "v2", sr(sb, 2))
    A.I("global_load_ushort", vr(P + 6), "v7", "s[18:19]", tag="par")
    A.I("s_lshl_b32", "s33", "s29", 2)
    A.I("s_load_dword", "s36", "s[20:21]", "s33")
    srd(A, 44, 26, WS_SIZE)
    A.I("s_mov_b32", "s56", "0x3f803f80")
    A.I("s_mov_b32", "s59", "0xffff0000")
    A.I("v_and_b32", "v56", 15, "v1")
    A.I("v_cvt_f32_u32", "v56", "v56")
    A.I("s_mul_i32", "s60", "s28", 2 * 1088)
    A.I("v_mul_u32_u24", "v57", 1088, "v5")
    A.I("v_lshl_add_u32", "v57", "v6", 4, "v57")
    A.I("v_add_u32", "v57", "s60", "v57")
    A.I("v_mov_b32", "v58", 0)
    A.I("v_mov_b32", "v59", 0)
    A.I("v_lshlrev_b32", "v7", 4, "v1")
    A.I("v_and_b32", "v16", 7, "v1")
    A.I("v_mul_u32_u24", "v16", 1088, "v16")
    A.I("v_lshrrev_b32", "v17", 3, "v1")
    A.I("v_lshl_add_u32", "v16", "v17", 4, "v16")
    A.I("s_lshl_b32", "s54", "s28", 8)
    A.I("v_add_u32", "v16", "s54", "v16")
    A.I("v_bfe_u32", "v17", "v1", 2, 2)
    A.I("v_mul_u32_u24", "v17", 1088, "v17")
    A.I("v_lshrrev_b32", "v18", 4, "v1")
    A.I("v_lshl_add_u32", "v17", "v18", 5, "v17")
    A.I("v_and_b32", "v18", 3, "v1")
    A.I("v_lshl_add_u32", "v17", "v18", 3, "v17")
    A.I("v_add_u32", "v17", "s54", "v17")
    A.I("s_lshl_b32", "s54", "s3", 13)
    A.I("s_lshl_b32", "s55", "s28", 11)
    A.I("s_add_u32", "s54", "s54", "s55")
    A.I("s_add_u32", "s55", "s54", hex(XNT))
    A.I("v_mov_b32", "v122", 0)
    A.I("s_mul_i32", "s37", "s30", 5632)
    A.I("s_add_u32", "s37", "s37", KDT + 16)
    A.I("s_sub_u32", "s38", "s37", 69120)
    A.I("s_add_u32", "s39", "s37", 508)
    A.I("s_lshl_b32", "s40", "s31", 12)
    A.I("v_lshl_add_u32", "v20", "v1", 5, "s40")
    AD = 200
    for rd in range(2):
        for ii in range(11):
            A.I("v_sub_u32", vr(24 + ii), 8176 - 2048 * rd - 4 * (ii - 3), "v20")
        for ii in range(11):
            A.I("v_add_u32", vr(AD + 11 * rd + ii), "s37", vr(24 + ii))
            if rd == 1 and ii >= 8: A.I("v_max_i32", vr(24 + ii), 0, vr(24 + ii))
            A.I("v_cvt_f32_u32", vr(24 + ii), vr(24 + ii))
        for ii in range(0, 11, 2):
            A.I("v_cvt_pk_bf16_f32", vr(36 + ii // 2), vr(24 + ii), vr(24 + min(ii + 1, 10)))
        for ii in range(11):
            A.I("v_mad_u32_u16", vr(24 + ii), vr(36 + ii // 2), 4, "s38", mods=("op_sel:[1,0,0,0]" if ii & 1 else ""))
        for ii in range(11):
            A.I("v_med3_i32", vr(AD + 11 * rd + ii), vr(24 + ii), vr(AD + 11 * rd + ii), "s39")
    A.wait_vm("x")
    stamp_at(A, 1)
    for k in range(8):
        A.I("v_dot2_f32_bf16", "v58", vr(8 + k), "s56", "v58")
        A.I("v_dot2_f32_bf16", "v59", vr(8 + k), vr(8 + k), "v59")
    A.I("global_load_dword", "v123", "v122", "s[24:25]", mods="sc1")
    reduce32(A, [58, 59], [60, 61])
    A.I("v_mul_f32", "v58", "0x3b000000", "v58")
    A.I("v_mul_f32", "v59", "0x3b000000", "v59")
    A.I("v_fma_f32", "v59", "-v58", "v58", "v59")
    A.I("v_max_f32", "v59", 0, "v59")
    A.I("v_cvt_pk_bf16_f32", "v60", 0, "v58")
    A.I("v_cvt_pk_bf16_f32", "v59", 0, "v59")
    A.I("v_add_f32", "v59", "0x3727c5ac", "v59")
    A.I("v_cvt_pk_bf16_f32", "v59", 0, "v59")
    A.I("v_sqrt_f32", "v59", "v59")
    A.I("v_cvt_pk_bf16_f32", "v59", 0, "v59")
    A.I("v_rcp_f32", "v62", "v59")
    for k in range(8):
        t = 64 + 2 * (k % 4)
        A.I("v_lshlrev_b32", vr(t), 16, vr(8 + k))
        A.I("v_and_b32", vr(t + 1), "s59", vr(8 + k))
        A.I("v_pk_add_f32", vr(t, 2), vr(t, 2), "v[60:61]", mods="op_sel_hi:[1,0] neg_lo:[0,1] neg_hi:[0,1]")
        A.I("v_cvt_pk_bf16_f32", vr(t), 0, vr(t))
        A.I("v_cvt_pk_bf16_f32", vr(t + 1), 0, vr(t + 1))
        A.I("v_pk_mul_f32", vr(t, 2), vr(t, 2), "v[62:63]", mods="op_sel_hi:[1,0]")
        A.I("v_cvt_pk_bf16_f32", vr(8 + k), vr(t), vr(t + 1))
        if k == 3: A.I("ds_write_b128", "v57", "v[8:11]")
    A.I("ds_write_b128", "v57", "v[12:15]", mods="offset:512")
    A.wait(lgkm=0)
    A.I("s_barrier")
    A.I("ds_read_b128", "v[8:11]", "v16")
    A.I("ds_read_b128", "v[12:15]", "v16", mods="offset:128")
    A.I("ds_read_b64_tr_b16", "v[24:25]", "v17")
    A.I("ds_read_b64_tr_b16", "v[26:27]", "v17", mods=f"offset:{4*1088}")
    A.I("ds_read_b64_tr_b16", "v[28:29]", "v17", mods="offset:128")
    A.I("ds_read_b64_tr_b16", "v[30:31]", "v17", mods=f"offset:{4*1088+128}")
    A.wait(lgkm=4)
    A.I("buffer_store_dwordx4", "v[8:11]", "v7", "s[44:47]", "s54", mods="offen sc1")
    A.I("buffer_store_dwordx4", "v[12:15]", "v7", "s[44:47]", "s54", mods="offen offset:1024 sc1")
    A.wait(lgkm=2)
    A.I("buffer_store_dwordx4", "v[24:27]", "v7", "s[44:47]", "s55", mods="offen sc1")
    A.wait(lgkm=0)
    A.I("buffer_store_dwordx4", "v[28:31]", "v7", "s[44:47]", "s55", mods="offen offset:1024 sc1")
    A.wait_vm("par")
    gen_kgen_pair_setup(A, P)
    gen_kgen_pair(A, P, 56, 0)
    A.wait(vm=0)
    A.I("s_barrier")
    A.I("s_cmp_lg_u32", "s28", 0)
    A.I("s_cbranch_scc1", L("K_f1done"))
    A.I("s_mov_b32", "s70", SPIN_LIMIT)
    A.label(L("K_tag"))
    A.I("v_readfirstlane_b32", "s71", "v123")
    A.I("s_cmp_lg_u32", "s71", 0)
    A.I("s_cbranch_scc1", L("K_tagok"))
    A.I("s_sub_u32", "s70", "s70", 1)
    A.I("s_cbranch_scc1", L("K_tagok"))
    A.I("global_load_dword", "v123", "v122", "s[24:25]", mods="sc1")
    A.wait(vm=0)
    A.I("s_branch", L("K_tag"))
    A.label(L("K_tagok"))
    A.I("s_lshl_b32", "s71", "s3", 2)
    A.I("s_add_u32", "s71", "s71", hex(F1))
    A.I("s_mov_b64", "exec", 1)
    A.I("buffer_store_dword", "v123", "v122", "s[44:47]", "s71", mods="offen sc1")
    A.I("s_mov_b64", "exec", -1)
    A.label(L("K_f1done"))
    stamp_at(A, 2)
    A.I("s_lshl_b32", "s71", "s28", 8)
    A.I("v_lshl_add_u32", "v120", "v1", 2, "s71")
    def poll_issue():
        A.I("global_load_dword", "v123", "v122", "s[24:25]", mods="sc1")
        A.I("buffer_load_dword", "v121", "v120", "s[44:47]", "s41", mods="offen sc1")
    A.I("s_mov_b32", "s41", hex(F1))
    for pi in range(1, 8):
        if pi == 4: poll_issue()
        if pi == 6:
            spin_check(A, L, "K_p1", "v121", "v123", poll_issue)
            A.I("v_readfirstlane_b32", "s51", "v123")
            A.I("v_lshrrev_b32", "v120", 1, "v1")
            A.I("v_lshlrev_b32", "v120", 13, "v120")
            A.I("v_and_b32", "v121", 1, "v1")
            A.I("v_lshl_add_u32", "v120", "v121", 4, "v120")
            A.I("s_lshl_b32", "s41", "s28", 19)
            A.I("s_lshl_b32", "s42", "s29", 5)
            A.I("s_add_u32", "s41", "s41", "s42")
            A.I("s_add_u32", "s41", "s41", hex(XNT))
            A.I("s_add_u32", "s42", "s41", 32 * 8192)
            A.I("buffer_load_dwordx4", "v[124:127]", "v120", "s[44:47]", "s41", mods="offen sc1")
            A.I("buffer_load_dwordx4", "v[128:131]", "v120", "s[44:47]", "s42", mods="offen sc1")
        gen_kgen_pair(A, P, 56, pi)
    stamp_at(A, 3)
    KACC = 100
    A.I("s_mul_i32", "s42", "s31", 2816)
    A.I("s_add_u32", "s42", "s42", "s37")
    A.I("v_and_b32", "v8", 15, "v1")
    A.I("v_lshrrev_b32", "v14", 4, "v1")
    A.I("v_lshlrev_b32", "v9", 6, "v8")
    A.I("v_lshl_add_u32", "v9", "v14", 4, "v9")
    A.I("v_add_u32", "v9", "s42", "v9")
    for k in range(4): A.I("v_mov_b32", vr(24 + k), 0)
    A.I("s_mul_i32", "s43", "s30", 4608)
    A.I("s_add_u32", "s43", "s43", UL)
    A.I("v_lshl_add_u32", "v10", "v1", 3, "s43")
    A.I("ds_write_b64", "v10", "v[24:25]")
    A.I("s_mul_i32", "s48", "s30", 16640)
    A.I("v_lshrrev_b32", "v10", 1, "v1")
    A.I("v_mul_u32_u24", "v11", 4160, "v10")
    A.I("v_lshl_add_u32", "v11", "v121", 4, "v11")
    A.I("v_add_u32", "v11", "s48", "v11")
    A.I("v_mov_b32", "v12", "s42")
    A.I("v_mul_u32_u24", "v13", 4608, "v121")
    A.I("v_lshl_add_u32", "v10", "v10", 4, "v13")
    A.I("s_lshl_b32", "s49", "s28", 10)
    A.I("s_add_u32", "s49", "s49", UL + 512)
    A.I("v_add_u32", "v10", "s49", "v10")
    A.I("ds_write_b128", "v9", vr(KACC, 4))
    A.I("s_mov_b32", "exec_lo", "0xff00ff00")
    A.I("s_mov_b32", "exec_hi", "0xff00ff00")
    for s in range(1, 4):
        A.I("ds_write_b128", "v9", vr(KACC + 4 * s, 4), mods=f"offset:{512 * s}")
    A.I("s_mov_b64", "exec", "0x8000")
    A.I("ds_write_b32", "v12", vr(KACC + 18), mods=f"offset:{2560}")
    A.I("s_mov_b64", "exec", "0xff")
    A.I("ds_write_b128", "v11", "v[24:27]", mods="offset:4096")
    A.I("v_subrev_u32", "v12", 16, "v12")
    A.I("ds_write_b128", "v12", "v[24:27]")
    A.I("s_mov_b64", "exec", -1)
    A.wait(vm=0)
    A.I("ds_write_b128", "v10", "v[124:127]")
    A.I("ds_write_b128", "v10", "v[128:131]", mods="offset:512")
    A.I("s_lshl_b32", "s49", "s31", 11)
    A.I("s_add_u32", "s50", "s49", "s48")
    A.I("v_add_u32", "v6", "s50", "v7")
    A.I("v_and_b32", "v12", 3, "v1")
    A.I("v_mul_u32_u24", "v12", 4160, "v12")
    A.I("v_bfe_u32", "v13", "v1", 2, 2)
    A.I("v_lshlrev_b32", "v13", 3, "v13")
    A.I("v_lshl_add_u32", "v13", "v14", 4, "v13")
    A.I("v_sub_u32", "v12", "v12", "v13")
    A.I("s_add_u32", "s50", "s48", 2 * 2052 - 64 * 63)
    A.I("v_add_u32", "v12", "s50", "v12")
    A.I("v_lshlrev_b32", "v13", 5, "v8")
    A.I("v_lshlrev_b32", "v15", 4, "v14")
    A.I("v_sub_u32", "v13", "v13", "v15")
    A.I("s_add_u32", "s50", "s43", 512 + 16 - 448)
    A.I("v_add_u32", "v13", "s50", "v13")
    A.I("v_lshlrev_b32", "v15", 5, "v8")
    A.I("v_lshl_add_u32", "v15", "v14", 3, "v15")
    A.I("s_add_u32", "s50", "s43", "s49")
    A.I("s_add_u32", "s50", "s50", 512)
    A.I("v_add_u32", "v38", "s50", "v15")
    A.wait(lgkm=0)
    A.I("s_barrier")
    for rd in range(2):
        for ii in range(11):
            A.I("ds_read2st64_b32", vr(128 + 22 * rd + 2 * ii, 2), vr(AD + 11 * rd + ii), mods="offset0:0 offset1:11", tag=f"e{rd}")
    for rd in range(2):
        A.wait_l(f"e{rd}")
        for ii in range(11):
            r = 128 + 22 * rd + 2 * ii
            A.I("v_add_f32", vr(r), vr(r), vr(r + 1))
        e = lambda ip: vr(128 + 22 * rd + 2 * (ip + 3))
        base = 64 + 16 * rd
        for sg in range(4):
            for dwi in range(4):
                lo = 2 * dwi - sg
                A.I("v_cvt_pk_bf16_f32", vr(base + 4 * sg + dwi), e(lo), e(lo + 1))
            A.I("ds_write_b128", "v6", vr(base + 4 * sg, 4), mods=f"offset:{sg * 4160 + rd * 1024}")
    A.wait(lgkm=0)
    A.I("s_barrier")
    stamp_at(A, 4)
    KF = 128; UB = 96; CA = 64
    A.I("s_cmp_eq_u32", "s31", 1)
    A.I("s_cbranch_scc1", L("conv1"))
    for hw in range(2):
        if hw == 1: A.label(L("conv1"))
        Ps = PSET[hw]
        steps = [(Q, r) for Q in range(8 - min(Ps)) for r in range(8)]
        first = set()
        NB = 8
        def issueU(n):
            Q, r = steps[n]
            q = 8 * Q - r
            A.I("ds_read_b128", vr(UB + 4 * (n % NB), 4), "v13", mods=f"offset:{64 * (q + 7)}", tag=f"U{n}")
        def issueK(r):
            for si, P_ in enumerate(Ps):
                p = 8 * P_ + r
                reg = KF + 32 * si + 4 * r
                A.I("ds_read_b64", vr(reg, 2), "v12", mods=f"offset:{64 * (63 - p)}")
                A.I("ds_read_b64", vr(reg + 2, 2), "v12", mods=f"offset:{64 * (63 - p) + 8}", tag=f"K{r}")
        def mf(n):
            Q, r = steps[n]
            for si, P_ in enumerate(Ps):
                if P_ + Q > 7: continue
                acc = vr(CA + 4 * (P_ + Q), 4)
                c = acc if (P_ + Q) in first else "0"
                first.add(P_ + Q)
                A.I("v_mfma_f32_16x16x32_bf16", acc, vr(KF + 32 * si + 4 * r, 4), vr(UB + 4 * (n % NB), 4), c)
        issueU(0); issueK(0)
        for n in range(8):
            if n < 7:
                issueU(n + 1); issueK(n + 1)
                A.wait_l(f"K{n}")
            else:
                for k in range(8, 8 + NB - 2): issueU(k)
                A.wait_l(f"K{n}")
            mf(n)
        nxt = 8 + NB - 2
        issueU(nxt); nxt += 1
        for n in range(8, len(steps)):
            A.wait_l(f"U{n}")
            mf(n)
            if nxt < len(steps): issueU(nxt)
            nxt += 1
        oth = range(4, 8) if hw == 0 else range(1, 4)
        A.I("s_lshl_b32", "s41", "s30", 13)
        A.I("s_add_u32", "s41", "s41", ACCX)
        A.I("v_add_u32", "v39", "s41", "v7")
        for k in range(4):
            A.I("ds_read_b64", vr(40 + 2 * k, 2), "v38", mods=f"offset:{512 * k}")
        for Aa in oth:
            A.I("ds_write_b128", "v39", vr(CA + 4 * Aa, 4), mods=f"offset:{Aa * 1024}")
        own = range(0, 4) if hw == 0 else range(4, 8)
        A.I("s_lshl_b32", "s42", "s36", 16)
        A.I("s_and_b32", "s43", "s36", "0xffff0000")
        A.I("s_cmp_eq_u32", "s30", 0)
        A.I("s_cselect_b32", "s42", "s42", "s43")
        A.I("s_mov_b32", "s43", "s42")
        A.I("s_lshl_b32", "s48", "s32", 12)
        A.I("s_add_u32", "s48", "s48", "s49")
        A.I("s_add_u32", "s48", "s48", hex(ST))
        A.wait(lgkm=0)
        A.I("s_barrier")
        for k, Aa in enumerate(own):
            if hw == 0 and Aa == 0: continue
            A.I("ds_read_b128", vr(UB + 4 * k, 4), "v39", mods=f"offset:{Aa * 1024}", tag=f"X{k}")
        for k, Aa in enumerate(own):
            t = 48 + 4 * k; a = CA + 4 * Aa
            A.I("v_lshlrev_b32", vr(t), 16, vr(40 + 2 * k))
            A.I("v_and_b32", vr(t + 1), "s59", vr(40 + 2 * k))
            A.I("v_lshlrev_b32", vr(t + 2), 16, vr(41 + 2 * k))
            A.I("v_and_b32", vr(t + 3), "s59", vr(41 + 2 * k))
            A.I("v_pk_fma_f32", vr(a, 2), vr(t, 2), "s[42:43]", vr(a, 2))
            A.I("v_pk_fma_f32", vr(a + 2, 2), vr(t + 2, 2), "s[42:43]", vr(a + 2, 2))
        for k, Aa in enumerate(own):
            a = CA + 4 * Aa
            if not (hw == 0 and Aa == 0):
                A.wait_l(f"X{k}")
                A.I("v_pk_add_f32", vr(a, 2), vr(a, 2), vr(UB + 4 * k, 2))
                A.I("v_pk_add_f32", vr(a + 2, 2), vr(a + 2, 2), vr(UB + 4 * k + 2, 2))
            A.I("v_cvt_pk_bf16_f32", vr(a), vr(a), vr(a + 1))
            A.I("v_cvt_pk_bf16_f32", vr(a + 1), vr(a + 2), vr(a + 3))
            A.I("buffer_store_dwordx2", vr(a, 2), "v15", "s[44:47]", "s48", mods=f"offen offset:{512 * k} sc1")
        if hw == 0: A.I("s_branch", L("K_pub"))
    A.label(L("K_pub"))
    stamp_at(A, 5)
    A.wait(vm=0)
    A.I("s_barrier")
    A.I("s_cmp_lg_u32", "s28", 0)
    A.I("s_cbranch_scc1", L("K_end"))
    A.I("s_lshl_b32", "s71", "s29", 2)
    A.I("s_add_u32", "s71", "s71", hex(F3))
    A.I("v_mov_b32", "v8", "s51")
    A.I("v_mov_b32", "v9", 0)
    A.I("s_mov_b64", "exec", 1)
    A.I("buffer_store_dword", "v8", "v9", "s[44:47]", "s71", mods="offen sc1")
    A.I("s_mov_b64", "exec", -1)
    A.label(L("K_end"))
    stamp_flush(A, 0, "s[26:27]", 7)
    A.I("s_endpgm")
```

```python
from asmlib import *
from layout1 import *
from k_prep import srd
from t1_k import spin_check, code_prefetch

def B(b): return 16 + 4 * b

def gen_M(A, L, msize):
    A.label(L("M"))
    A.I("s_memrealtime", "s[76:77]")
    A.I("s_load_dwordx2", "s[4:5]", "s[0:1]", 0)
    A.I("s_load_dwordx8", "s[8:15]", "s[0:1]", 80)
    A.I("s_load_dwordx4", "s[16:19]", "s[0:1]", 112)
    A.I("s_load_dwordx2", "s[20:21]", "s[0:1]", 128)
    code_prefetch(A, L("M"), msize, "v2", "v3", L)
    A.I("v_and_b32", "v1", 63, "v0")
    A.I("v_lshrrev_b32", "v2", 6, "v0")
    A.I("v_readfirstlane_b32", "s22", "v2")
    A.I("s_and_b32", "s3", "s2", 255)
    A.I("s_and_b32", "s23", "s3", 7)
    A.I("s_lshr_b32", "s48", "s3", 3)
    A.I("s_lshr_b32", "s49", "s23", 1)
    A.I("s_lshl_b32", "s49", "s49", 2)
    A.I("s_lshr_b32", "s50", "s48", 3)
    A.I("s_add_u32", "s49", "s49", "s50")
    A.I("s_lshl_b32", "s51", "s23", 2)
    A.I("s_add_u32", "s51", "s51", "s50")
    A.I("s_and_b32", "s52", "s48", 7)
    A.I("s_and_b32", "s50", "s23", 1)
    A.I("s_lshl_b32", "s50", "s50", 3)
    A.I("s_add_u32", "s50", "s50", "s52")
    A.I("s_lshl_b32", "s53", "s49", 2)
    A.I("s_add_u32", "s53", "s53", "s22")
    A.I("v_lshlrev_b32", "v2", 4, "v1")
    A.I("v_lshrrev_b32", "v4", 5, "v1")
    A.I("v_and_b32", "v5", 31, "v1")
    A.I("s_mov_b32", "s54", 43691)
    for n in range(3):
        A.I("v_add_u32", "v9", 64 * n, "v1")
        A.I("v_mul_u32_u24", "v10", "s54", "v9")
        A.I("v_lshrrev_b32", "v10", 19, "v10")
        A.I("v_mul_u32_u24", "v11", 12, "v10")
        A.I("v_sub_u32", "v9", "v9", "v11")
        A.I("v_mul_u32_u24", "v10", 2752, "v10")
        A.I("v_lshl_add_u32", vr(6 + n), "v9", 4, "v10")
    A.I("v_lshlrev_b32", "v9", 12, "v4")
    A.I("v_lshl_add_u32", "v9", "v5", 2, "v9")
    A.I("v_mov_b32", "v10", 0)
    A.I("s_mul_i32", "s55", "s50", 192)
    A.I("s_mul_i32", "s56", "s22", 16 * 2752)
    A.I("s_add_u32", "s56", "s56", "s55")
    A.I("s_mul_i32", "s57", "s22", 3072)
    A.I("s_mul_i32", "s58", "s22", 22)
    A.I("s_cmp_eq_u32", "s22", 3)
    A.I("s_cselect_b32", "s59", 1, 0)
    A.I("s_sub_u32", "s58", "s58", "s59")
    A.I("s_lshl_b32", "s59", "s58", 14)
    A.I("s_lshl_b32", "s60", "s52", 7)
    A.I("s_add_u32", "s59", "s59", "s60")
    A.wait(lgkm=0)
    A.I("s_or_b32", "s76", "s76", 1)
    A.I("s_or_b32", "s61", "s3", "s22")
    A.I("s_cmp_lg_u32", "s61", 0)
    A.I("s_cbranch_scc1", L("M_notag"))
    A.I("v_mov_b32", "v11", "s76")
    A.I("s_mov_b64", "exec", 1)
    A.I("global_store_dword", "v10", "v11", "s[18:19]", mods="sc1")
    A.I("s_mov_b64", "exec", -1)
    A.label(L("M_notag"))
    srd(A, 24, 20, WS_SIZE)
    srd(A, 28, 8, 512 * 2752)
    srd(A, 32, 12, 1376 * 1024)
    srd(A, 36, 10, 2752)
    srd(A, 40, 4, 2048 * 1024)
    srd(A, 44, 16, 2048 * 1024)
    A.I("s_mov_b32", "s62", "0x05040100")
    A.I("s_mov_b32", "s63", "0x07060302")
    A.I("s_mov_b32", "s64", "0xffff0000")
    def w1dma(kq, ldsoff):
        for n in range(3):
            A.I("s_add_u32", "m0", "s57", ldsoff + n * 1024)
            A.I("buffer_load_dwordx4", vr(6 + n), "s[28:31]", "s56", mods="offen lds", tag="w1")
        A.I("s_add_u32", "s56", "s56", 64 * 2752)
    def w2load(u, X, Y):
        A.I("s_add_u32", "s65", "s59", 8192)
        for i in range(8):
            dst = (X if i % 2 == 0 else Y) + i // 2
            A.I("buffer_load_dword", vr(dst), "v9", "s[32:35]", "s59" if i < 4 else "s65", mods=f"offen offset:{(i & 3) * 1024}", tag=f"w2_{u}")
        A.I("s_add_u32", "s59", "s59", 16384)
    def w2perm(u, X, Y, D0):
        A.wait_vm(f"w2_{u}")
        for p in range(4):
            A.I("v_perm_b32", vr(D0 + p), vr(Y + p), vr(X + p), "s62")
            A.I("v_perm_b32", vr(X + p), vr(Y + p), vr(X + p), "s63")
    A.I("s_cmp_eq_u32", "s50", 15)
    A.I("s_cbranch_scc1", L("M_now1"))
    for kq in range(6): w1dma(kq, kq * 12288)
    A.I("v_lshlrev_b32", "v11", 3, "v4")
    for t in range(3):
        for g in range(4):
            A.I("buffer_load_dwordx2", vr(84 + 8 * t + 2 * g, 2), "v11", "s[36:39]", "s55", mods=f"offen offset:{t * 64 + g * 16}", tag="b1")
    A.label(L("M_now1"))
    NE = 8
    for u in range(4): w2load(u, B(2 * u + 1), B(2 * u + 2))
    A.I("v_bfe_u32", "v12", "v1", 3, 2)
    A.I("v_lshlrev_b32", "v12", 13, "v12")
    A.I("v_lshl_add_u32", "v12", "v4", 7, "v12")
    A.I("v_and_b32", "v13", 7, "v1")
    A.I("v_lshl_add_u32", "v12", "v13", 4, "v12")
    A.I("v_bfe_u32", "v13", "v1", 2, 2)
    A.I("v_lshl_add_u32", "v13", "v4", 3, "v13")
    A.I("v_mul_u32_u24", "v13", 192, "v13")
    A.I("v_bfe_u32", "v14", "v1", 4, 1)
    A.I("v_lshl_add_u32", "v13", "v14", 5, "v13")
    A.I("v_and_b32", "v14", 3, "v1")
    A.I("v_lshl_add_u32", "v13", "v14", 3, "v13")
    A.I("v_add_u32", "v15", 49152, "v13")
    A.I("v_lshlrev_b32", "v14", 2, "v14")
    A.I("s_lshl_b32", "s66", "s53", 4)
    A.I("s_add_u32", "s66", "s66", hex(F1))
    A.I("s_lshl_b32", "s67", "s53", 15)
    ACC1 = 116
    for u in range(NE):
        if u + 4 < NE: w2load(u + 4, B(2 * u + 9), B(2 * u + 10))
        if u == 0:
            A.wait_vm("w2_0")
            for t in range(3):
                for g in range(4):
                    r = 84 + 8 * t + 2 * g; a = ACC1 + 16 * t + 4 * g
                    A.I("v_lshlrev_b32", vr(a), 16, vr(r))
                    A.I("v_and_b32", vr(a + 1), "s64", vr(r))
                    A.I("v_lshlrev_b32", vr(a + 2), 16, vr(r + 1))
                    A.I("v_and_b32", vr(a + 3), "s64", vr(r + 1))
        if u == NE - 1:
            pass
        w2perm(u, B(2 * u + 1), B(2 * u + 2), B(2 * u))
    A.I("s_cmp_eq_u32", "s50", 15)
    A.I("s_cbranch_scc1", L("M_late"))
    def poll1():
        A.I("global_load_dword", "v252", "v10", "s[18:19]", mods="sc1")
        A.I("buffer_load_dword", "v253", "v14", "s[24:27]", "s66", mods="offen sc1")
    poll1()
    A.I("s_barrier")
    stamp_at(A, 1)
    XR = 164; WB = 228
    def issueW(n):
        ks, t = n // 3, n % 3
        slot = ks if ks < 24 else ks - 24
        off = slot * 3072 + t * 64
        base = "v13" if off + 768 < 49152 + 0 and slot < 16 else "v15"
        o = off if base == "v13" else off - 49152
        r = WB + 4 * (n % 6)
        A.I("ds_read_b64_tr_b16", vr(r, 2), base, mods=f"offset:{o}")
        A.I("ds_read_b64_tr_b16", vr(r + 2, 2), base, mods=f"offset:{o + 768}", tag=f"W{n}")
    for n in range(5): issueW(n)
    spin_check(A, L, "M_p1", "v253", "v252", poll1)
    stamp_at(A, 2)
    def issueX(ks):
        if ks == 16: A.I("s_add_u32", "s67", "s67", 4096)
        A.I("buffer_load_dwordx4", vr(XR + 4 * (ks % 16), 4), "v12", "s[24:27]", "s67", mods=f"offen offset:{(ks % 16) * 256} sc1", tag=f"x{ks}")
    for ks in range(16): issueX(ks)
    A.I("s_mul_i32", "s68", "s53", 86)
    A.I("s_mul_i32", "s69", "s50", 6)
    A.I("s_add_u32", "s68", "s68", "s69")
    A.I("s_lshl_b32", "s68", "s68", 10)
    A.I("s_add_u32", "s68", "s68", hex(HF))
    A.I("s_add_u32", "s69", "s68", 4096)
    def epi_ops(t):
        ops = []
        a = ACC1 + 16 * t
        for k in range(8):
            r = a + 2 * k
            ops.append(("v_max_f32", [vr(r), 0, vr(r)], ""))
            ops.append(("v_max_f32", [vr(r + 1), 0, vr(r + 1)], ""))
            ops.append(("v_pk_mul_f32", [vr(r, 2), vr(r, 2), vr(r, 2)], ""))
            ops.append(("v_cvt_pk_bf16_f32", [vr(a + k), vr(r), vr(r + 1)], ""))
            if k % 4 == 3:
                off = (2 * t + k // 4) * 1024
                ops.append(("buffer_store_dwordx4", [vr(a + k - 3, 4), "v2", "s[24:27]", "s68" if off < 4096 else "s69"], f"offen offset:{off % 4096} sc1"))
        return ops
    nW = 5
    order = [(ks, t) for ks in range(30) for t in range(3)] + [(ks, t) for t in range(3) for ks in (30, 31)]
    seq = [ks * 3 + t for ks, t in order]
    lastx = -1
    for idx, (ks, t) in enumerate(order):
        if t == 0 and ks == 8 and idx == 24:
            A.I("s_barrier")
            w1dma(6, 0); w1dma(7, 12288)
        if t == 0 and ks == 21:
            A.wait_vm("w1")
            A.I("s_barrier")
        if ks > lastx:
            A.wait_vm(f"x{ks}")
            lastx = ks
        n = seq[idx]
        A.wait_l(f"W{n}")
        acc = vr(ACC1 + 16 * t, 16)
        A.I("v_mfma_f32_32x32x16_bf16", acc, vr(WB + 4 * (idx % 6), 4), vr(XR + 4 * (ks % 16), 4), acc)
        if nW < 96:
            m = seq[nW]
            ks2_, t2_ = m // 3, m % 3
            slot = ks2_ if ks2_ < 24 else ks2_ - 24
            off = slot * 3072 + t2_ * 64
            base = "v13" if slot < 16 else "v15"
            o = off if base == "v13" else off - 49152
            r = WB + 4 * (nW % 6)
            A.I("ds_read_b64_tr_b16", vr(r, 2), base, mods=f"offset:{o}")
            A.I("ds_read_b64_tr_b16", vr(r + 2, 2), base, mods=f"offset:{o + 768}", tag=f"W{m}")
            nW += 1
        if t == 2 and ks + 16 < 32 and ks < 30: issueX(ks + 16)
    stamp_at(A, 3)
    for mn, ops, mods in epi_ops(0): A.I(mn, *ops, mods=mods, tag="hf")
    A.I("s_cmp_eq_u32", "s50", 14)
    A.I("s_cbranch_scc1", L("M_late"))
    for t in (1, 2):
        for mn, ops, mods in epi_ops(t): A.I(mn, *ops, mods=mods, tag="hf")
    A.label(L("M_late"))
    T = lambda b: 164 + 4 * b
    for u in range(8, 12): w2load(u, B(2 * u + 1), B(2 * u + 2))
    for u in range(12, 15): w2load(u, T(2 * (u - 12) + 1), T(2 * (u - 12) + 2))
    A.I("s_cmp_eq_u32", "s50", 15)
    A.I("s_cbranch_scc1", L("M_nf2"))
    A.wait_vm("hf")
    A.I("s_barrier")
    A.I("s_cmp_lg_u32", "s22", 0)
    A.I("s_cbranch_scc1", L("M_nf2"))
    A.I("s_lshl_b32", "s71", "s49", 7)
    A.I("s_lshl_b32", "s72", "s50", 2)
    A.I("s_add_u32", "s71", "s71", "s72")
    A.I("s_add_u32", "s71", "s71", hex(F2))
    A.I("s_mov_b64", "exec", 1)
    A.I("buffer_store_dword", "v252", "v10", "s[24:27]", "s71", mods="offen sc1")
    A.vmq.pop()
    A.I("s_mov_b64", "exec", -1)
    A.label(L("M_nf2"))
    stamp_at(A, 4)
    A.I("s_mul_i32", "s71", "s22", 20480)
    A.I("v_add_u32", "v11", "s71", "v2")
    nl = 15
    for u in range(8, 22):
        if nl < 22:
            w2load(nl, T(2 * (nl - 12) + 1), T(2 * (nl - 12) + 2)); nl += 1
        if u < 12:
            w2perm(u, B(2 * u + 1), B(2 * u + 2), B(2 * u))
        else:
            q = u - 12
            w2perm(u, T(2 * q + 1), T(2 * q + 2), T(2 * q))
            A.I("ds_write_b128", "v11", vr(T(2 * q), 4), mods=f"offset:{q * 2048}")
            A.I("ds_write_b128", "v11", vr(T(2 * q + 1), 4), mods=f"offset:{q * 2048 + 1024}")
    A.I("v_min_u32", "v14", 14, "v1")
    A.I("v_lshlrev_b32", "v14", 2, "v14")
    A.I("s_lshr_b32", "s66", "s51", 1)
    A.I("s_lshl_b32", "s66", "s66", 7)
    A.I("s_add_u32", "s66", "s66", hex(F2))
    poll1()
    A.I("s_lshl_b32", "s54", "s51", 16)
    A.I("s_lshl_b32", "s55", "s22", 14)
    A.I("s_add_u32", "s54", "s54", "s55")
    A.I("s_add_u32", "s54", "s54", "s60")
    A.I("s_add_u32", "s55", "s54", 8192)
    A.I("s_mul_i32", "s56", "s51", 172)
    A.I("s_add_u32", "s56", "s56", "s58")
    A.I("s_lshl_b32", "s56", "s56", 10)
    A.I("s_add_u32", "s56", "s56", hex(HF))
    A.I("s_add_u32", "s57", "s56", 86 * 1024)
    A.wait(lgkm=0)
    spin_check(A, L, "M_p2", "v253", "v252", poll1)
    stamp_at(A, 5)
    ACC = 116; HR = 180; NH = 8
    def issueH(k):
        if k and k % 4 == 0:
            A.I("s_add_u32", "s56", "s56", 4096)
            A.I("s_add_u32", "s57", "s57", 4096)
        r = HR + 8 * (k % NH)
        A.I("buffer_load_dwordx4", vr(r, 4), "v2", "s[24:27]", "s56", mods=f"offen offset:{(k % 4) * 1024} sc1")
        A.I("buffer_load_dwordx4", vr(r + 4, 4), "v2", "s[24:27]", "s57", mods=f"offen offset:{(k % 4) * 1024} sc1", tag=f"h{k}")
    for k in range(NH): issueH(k)
    for gp in range(2):
        for i in range(4):
            A.I("buffer_load_dword", vr(244 + 4 * gp + i), "v9", "s[40:43]", "s54" if gp == 0 else "s55", mods=f"offen offset:{i * 1024}")
    A.I("v_lshl_add_u32", "v6", "v5", 2, "s60")
    A.I("global_load_dword", "v254", "v6", "s[14:15]")
    A.I("v_lshlrev_b32", "v14", 2, "v5")
    A.I("s_add_u32", "s66", "s60", hex(F3))
    A.I("v_lshrrev_b32", "v7", 3, "v1")
    A.I("v_lshlrev_b32", "v7", 12, "v7")
    A.I("v_and_b32", "v8", 7, "v1")
    A.I("v_lshl_add_u32", "v7", "v8", 4, "v7")
    A.I("s_lshl_b32", "s67", "s52", 18)
    A.I("s_lshl_b32", "s68", "s22", 16)
    A.I("s_add_u32", "s67", "s67", "s68")
    A.I("s_lshl_b32", "s68", "s51", 7)
    A.I("s_add_u32", "s67", "s67", "s68")
    A.I("s_add_u32", "s67", "s67", hex(ST))
    A.I("s_add_u32", "s68", "s67", 8 * 4096)
    for k in range(22):
        if k == 21:
            A.I("s_cmp_ge_u32", "s22", 2)
            A.I("s_cbranch_scc1", L("M_skip21"))
        A.wait_vm(f"h{k}")
        wb = k if k < 12 else k - 12
        if k >= 12: A.wait_l(f"S{k}")
        for tj in range(2):
            for e in range(2):
                acc = vr(ACC + 32 * tj + 16 * e, 16)
                A.I("v_mfma_f32_32x32x16_bf16", acc, vr(HR + 8 * (k % NH) + 4 * tj, 4), vr(B(2 * wb + e), 4), acc if k else "0")
        if k + NH < 22: issueH(k + NH)
        if k < 10:
            A.I("ds_read_b128", vr(B(2 * k), 4), "v11", mods=f"offset:{k * 2048}")
            A.I("ds_read_b128", vr(B(2 * k + 1), 4), "v11", mods=f"offset:{k * 2048 + 1024}", tag=f"S{k + 12}")
        if k == 14:
            A.I("buffer_load_dword", "v253", "v14", "s[24:27]", "s66", mods="offen sc1", tag="f3")
    A.label(L("M_skip21"))
    def poll3():
        A.I("buffer_load_dword", "v253", "v14", "s[24:27]", "s66", mods="offen sc1")
    spin_check(A, L, "M_p3", "v253", "v252", poll3)
    A.I("buffer_load_dwordx4", "v[180:183]", "v7", "s[24:27]", "s67", mods="offen sc1")
    A.I("buffer_load_dwordx4", "v[184:187]", "v7", "s[24:27]", "s68", mods="offen sc1")
    OWN = 16
    for wd in range(4):
        src = [ACC + 32 * (wd >> 1) + 16 * e + 8 * (wd & 1) + 4 * q for e in range(2) for q in range(2)]
        A.I("s_cmp_eq_u32", "s22", wd)
        A.I("s_cbranch_scc1", L(f"own{wd}"))
        A.I("s_sub_u32", "s71", wd + 3, "s22")
        A.I("s_and_b32", "s71", "s71", 3)
        A.I("s_lshl_b32", "s71", "s71", 12)
        A.I("v_add_u32", "v8", "s71", "v11")
        for q, r in enumerate(src):
            A.I("ds_write_b128", "v8", vr(r, 4), mods=f"offset:{q * 1024}")
        A.I("s_branch", L(f"nxt{wd}"))
        A.label(L(f"own{wd}"))
        if wd == 0: A.I("s_nop", 3)
        for q, r in enumerate(src):
            for i in range(0, 4, 2):
                A.I("v_pk_mov_b32", vr(OWN + 4 * q + i, 2), vr(r + i, 2), vr(r + i, 2), mods="op_sel:[0,1]")
        A.label(L(f"nxt{wd}"))
    XU = 32
    for gp in range(2):
        for i in range(4):
            A.I("v_lshlrev_b32", vr(XU + 4 * gp + i), 16, vr(244 + 4 * gp + i))
            A.I("v_and_b32", vr(XU + 8 + 4 * gp + i), "s64", vr(244 + 4 * gp + i))
    A.I("v_lshlrev_b32", "v48", 16, "v254")
    A.I("v_and_b32", "v50", "s64", "v254")
    for sl in range(3):
        A.I("s_add_u32", "s71", "s22", 1 + sl)
        A.I("s_and_b32", "s71", "s71", 3)
        A.I("s_mul_i32", "s71", "s71", 20480)
        A.I("s_add_u32", "s71", "s71", (2 - sl) * 4096)
        A.I("v_add_u32", vr(52 + sl), "s71", "v2")
    A.I("s_lshl_b32", "s71", "s22", 5)
    A.I("v_add_u32", "v55", "s71", "v11")
    A.I("v_lshrrev_b32", "v56", 3, "v5")
    A.I("v_mul_u32_u24", "v56", 20512, "v56")
    A.I("v_bfe_u32", "v57", "v5", 2, 1)
    A.I("v_mul_u32_u24", "v57", 1040, "v57")
    A.I("v_add_u32", "v56", "v56", "v57")
    A.I("v_and_b32", "v57", 3, "v5")
    A.I("v_lshl_add_u32", "v56", "v57", 8, "v56")
    A.I("v_lshl_add_u32", "v56", "v4", 3, "v56")
    A.I("v_add_u32", "v56", "s71", "v56")
    A.I("s_mov_b32", "s72", "0xbfb8aa3b")
    A.I("s_mov_b32", "s73", "0xbfb8aa3b")
    A.wait(vm=0)
    A.I("ds_write_b128", "v55", "v[180:183]", mods="offset:12288")
    A.I("ds_write_b128", "v55", "v[184:187]", mods=f"offset:{12288 + 1040}")
    A.wait(lgkm=0)
    A.I("s_barrier")
    RD = 64
    for sl in range(3):
        for q in range(4):
            A.I("ds_read_b128", vr(RD + 16 * sl + 4 * q, 4), vr(52 + sl), mods=f"offset:{q * 1024}", tag=f"R{sl}")
    SV = 112
    for e in range(2):
        for gp in range(2):
            A.I("ds_read_b64", vr(SV + 4 * e + 2 * gp, 2), "v56", mods=f"offset:{12288 + 128 * e + 16 * gp}")
    for p in range(8):
        A.I("v_pk_add_f32", vr(OWN + 2 * p, 2), vr(OWN + 2 * p, 2), "v[48:49]" if p < 4 else "v[50:51]", mods="op_sel_hi:[1,0]")
    for sl in range(3):
        A.wait_l(f"R{sl}")
        for p in range(8):
            A.I("v_pk_add_f32", vr(OWN + 2 * p, 2), vr(OWN + 2 * p, 2), vr(RD + 16 * sl + 2 * p, 2))
    T_ = 128; SU = 144
    for p in range(8): A.I("v_pk_mul_f32", vr(T_ + 2 * p, 2), vr(OWN + 2 * p, 2), "s[72:73]")
    for r in range(16): A.I("v_exp_f32", vr(T_ + r), vr(T_ + r))
    A.wait(lgkm=0)
    for k in range(8):
        A.I("v_lshlrev_b32", vr(SU + 2 * k), 16, vr(SV + k))
        A.I("v_and_b32", vr(SU + 2 * k + 1), "s64", vr(SV + k))
    for p in range(8): A.I("v_pk_add_f32", vr(T_ + 2 * p, 2), vr(T_ + 2 * p, 2), "1.0", mods="op_sel_hi:[1,0]")
    for p in range(8): A.I("v_pk_mul_f32", vr(SU + 2 * p, 2), vr(SU + 2 * p, 2), vr(OWN + 2 * p, 2))
    for r in range(16): A.I("v_rcp_f32", vr(T_ + r), vr(T_ + r))
    for p in range(8): A.I("v_pk_fma_f32", vr(T_ + 2 * p, 2), vr(T_ + 2 * p, 2), vr(SU + 2 * p, 2), vr(XU + 2 * p, 2))
    for gp in range(2):
        for i in range(4):
            r = 4 * gp + i
            A.I("v_cvt_pk_bf16_f32", vr(64 + r), vr(T_ + r), vr(T_ + 8 + r))
            A.I("buffer_store_dword", vr(64 + r), "v9", "s[44:47]", "s54" if gp == 0 else "s55", mods=f"offen offset:{i * 1024}")
    stamp_flush(A, 0, "s[20:21]", 7)
    A.I("s_endpgm")
```

```python
import re

def regs_of(tok):
    tok = tok.strip()
    tok = tok.lstrip('-')
    if tok.startswith('|') and tok.endswith('|'): tok = tok[1:-1]
    if tok.startswith('abs(') and tok.endswith(')'): tok = tok[4:-1]
    m = re.fullmatch(r'([vas])(\d+)', tok)
    if m: return [(m.group(1), int(m.group(2)))]
    m = re.fullmatch(r'([vas])\[(\d+):(\d+)\]', tok)
    if m: return [(m.group(1), i) for i in range(int(m.group(2)), int(m.group(3)) + 1)]
    if tok == 'vcc': return [('s', 'vcc')]
    if tok == 'exec': return [('s', 'exec')]
    if tok == 'm0': return [('s', 'm0')]
    return []

TRANS = ('v_exp_f32', 'v_log_f32', 'v_rcp_f32', 'v_rsq_f32', 'v_sqrt_f32', 'v_sin_f32', 'v_cos_f32')

class Ins:
    __slots__ = ('mn', 'ops', 'mods', 'w', 'r', 'cls', 'passes', 'srcc', 'text', 'states')

def vr(i, n=1): return f"v{i}" if n == 1 else f"v[{i}:{i+n-1}]"
def ar(i, n=1): return f"a{i}" if n == 1 else f"a[{i}:{i+n-1}]"
def sr(i, n=1): return f"s{i}" if n == 1 else f"s[{i}:{i+n-1}]"

class Asm:
    def __init__(self):
        self.lines = []
        self.hist = []
        self.nnop = 0
        self.vmq = []
        self.lq = []
    def raw(self, text):
        self.lines.append(text)
    def comment(self, t): self.lines.append("    ; " + t)
    def label(self, name, flush=True):
        self.lines.append(name + ":")
        if flush:
            pass
    def _classify(self, mn, ops, mods):
        i = Ins(); i.mn = mn; i.ops = ops; i.mods = mods; i.passes = 0; i.srcc = []; i.states = 1
        R = lambda k: regs_of(ops[k]) if k < len(ops) else []
        allr = lambda ks: [x for k in ks for x in R(k)]
        n = len(ops)
        if mn.startswith('v_mfma'):
            i.cls = 'mfma'; i.w = R(0); i.r = allr([1, 2, 3]); i.srcc = R(3)
            i.passes = 8 if '32x32x16' in mn else 4 if '16x16x32' in mn else 16
        elif mn.startswith('v_cmpx'):
            i.cls = 'valu'; i.w = R(0) + [('s', 'exec')]; i.r = allr(range(1, n))
        elif mn.startswith('v_cmp'):
            i.cls = 'valu'; i.w = R(0); i.r = allr(range(1, n))
        elif mn.startswith('v_readfirstlane') or mn.startswith('v_readlane'):
            i.cls = 'valu'; i.w = R(0); i.r = allr(range(1, n))
        elif mn.startswith('v_permlane') and 'swap' in mn:
            i.cls = 'valu'; i.w = allr([0, 1]); i.r = allr([0, 1])
        elif mn.startswith('v_'):
            i.cls = 'valu'; i.w = R(0); i.r = allr(range(1, n))
            if '_co_' in mn: i.w = allr([0, 1]); i.r = allr(range(2, n))
            if mn.startswith(('v_fmac', 'v_dot2c', 'v_pk_fmac')): i.r = i.r + R(0)
            if 'dpp' in mn or 'row_' in mods or 'quad_perm' in mods: i.r = i.r + R(0)
            if mn.startswith('v_cndmask') and n == 3: i.r = i.r + [('s', 'vcc')]
            if 'd16' in mn: i.r = i.r + R(0)
        elif mn.startswith('buffer_load') or mn.startswith('global_load'):
            i.cls = 'vmem'
            if ' lds' in (' ' + mods) or '_lds_' in mn:
                i.w = []; i.r = allr(range(0, n)) + [('s', 'm0')]; i.cls = 'ldsdma'
            else:
                i.w = R(0); i.r = allr(range(1, n))
        elif mn.startswith('buffer_store') or mn.startswith('global_store') or mn.startswith('buffer_atomic') or mn.startswith('global_atomic'):
            i.cls = 'vstore'; i.w = []; i.r = allr(range(0, n))
        elif mn.startswith('ds_read') or mn.startswith('ds_bpermute') or mn.startswith('ds_swizzle'):
            i.cls = 'ds'; i.w = R(0); i.r = allr(range(1, n))
        elif mn.startswith('ds_'):
            i.cls = 'ds'; i.w = []; i.r = allr(range(0, n))
        elif mn == 's_nop':
            i.cls = 'nop'; i.w = []; i.r = []; i.states = int(ops[0]) + 1
        elif mn.startswith('s_'):
            i.cls = 'salu'
            if mn.startswith(('s_cmp', 's_cbranch', 's_branch', 's_waitcnt', 's_barrier', 's_endpgm', 's_setprio', 's_sleep')):
                i.w = []; i.r = allr(range(0, n))
            else:
                i.w = R(0); i.r = allr(range(1, n))
                if 'saveexec' in mn: i.w = i.w + [('s', 'exec')]
        else:
            raise ValueError("unknown mnemonic " + mn)
        return i
    def _need(self, p, c):
        need = 0
        pw = set(p.w); cr = set(c.r); cw = set(c.w)
        isv = lambda s: {x for x in s if x[0] in 'va'}
        iss = lambda s: {x for x in s if x[0] == 's'}
        cdpp = c.cls == 'valu' and ('dpp' in c.mn or 'row_' in c.mods or 'quad_perm' in c.mods)
        if p.cls == 'valu':
            raw_v = isv(pw) & cr
            raw_s = iss(pw) & cr
            if c.cls == 'mfma' and raw_v: need = max(need, 2)
            if c.cls == 'mfma' and ('s', 'exec') in pw: need = max(need, 4)
            if cdpp and raw_v: need = max(need, 2)
            if cdpp and ('s', 'exec') in pw: need = max(need, 5)
            if c.mn.startswith('v_permlane') and raw_v: need = max(need, 2)
            if c.mn.startswith(('v_readfirstlane', 'v_readlane')) and raw_v: need = max(need, 1)
            if c.mn.startswith(('v_readfirstlane', 'v_readlane', 'v_writelane', 'v_permlane')) and ('s', 'exec') in pw: need = max(need, 4)
            if c.cls in ('vmem', 'ldsdma', 'vstore') and raw_s: need = max(need, 5)
            if c.cls == 'valu' and raw_s: need = max(need, 4 if c.mn.startswith(('v_readlane', 'v_writelane')) else 2)
            if c.cls == 'salu' and raw_s: need = max(need, 1)
            if p.mn.startswith(TRANS) and c.cls in ('valu', 'mfma') and raw_v: need = max(need, 1 if c.cls == 'valu' else 2)
            if p.mn.startswith('v_dot') and (isv(pw) & (cr | cw)):
                same = (c.mn == p.mn)
                if same and not (isv(pw) & set(regs_of(c.ops[1]) + regs_of(c.ops[2]))): pass
                else: need = max(need, 3)
            if ('op_sel' in p.mods or 'sdwa' in p.mn or 'dst_sel' in p.mods) and not p.mn.startswith('v_pk') and c.cls == 'valu' and (isv(pw) & (cr | cw)): need = max(need, 1)
        if p.cls == 'mfma':
            P = p.passes
            tbl_ab = {4: 8, 8: 12, 16: 20}[P]
            if c.cls == 'mfma':
                if pw & set(regs_of(c.ops[1]) + regs_of(c.ops[2])): need = max(need, tbl_ab)
                ov = pw & set(c.srcc)
                if ov:
                    if set(c.srcc) == pw and c.passes == P: pass
                    else: need = max(need, {4: 6, 8: 10, 16: 18}[P])
                elif pw & cw: need = max(need, tbl_ab)
            elif c.cls in ('valu', 'vmem', 'vstore', 'ds', 'ldsdma'):
                if pw & (cr | cw): need = max(need, tbl_ab)
            if c.cls == 'valu' and set(p.srcc) & cw: need = max(need, {4: 3, 8: 7, 16: 15}[P])
        if p.cls == 'vstore' and ('x4' in p.mn or 'x3' in p.mn):
            data = set(regs_of(p.ops[0])) if p.mn.startswith('buffer') else set(regs_of(p.ops[1]))
            if data & cw: need = max(need, 2 if c.cls in ('valu', 'mfma') else 1)
        if p.cls == 'salu' and ('s', 'm0') in pw and c.cls == 'ldsdma': need = max(need, 1)
        return need
    def I(self, mn, *ops, mods="", tag=None):
        ops = [str(o) for o in ops]
        c = self._classify(mn, ops, mods)
        if c.cls in ('vmem', 'vstore', 'ldsdma'): self.vmq.append(tag)
        if c.cls == 'ds': self.lq.append(tag)
        dist = 0; pad = 0
        for p in reversed(self.hist[-24:]):
            n = self._need(p, c)
            if n > dist: pad = max(pad, n - dist)
            dist += p.states
            if dist >= 20: break
        while pad > 0:
            k = min(pad, 16)
            self._emit(self._classify('s_nop', [str(k - 1)], ""))
            self.nnop += 1
            pad -= k
        self._emit(c)
    def _emit(self, c):
        t = "    " + c.mn + (" " + ", ".join(c.ops) if c.ops else "") + (" " + c.mods if c.mods else "")
        self.lines.append(t)
        self.hist.append(c)
    def wait(self, vm=None, lgkm=None):
        parts = []
        if vm is not None: parts.append(f"vmcnt({vm})")
        if lgkm is not None: parts.append(f"lgkmcnt({lgkm})")
        self.I("s_waitcnt", " ".join(parts))
    def _after(self, q, tag):
        idx = [i for i, t in enumerate(q) if t == tag]
        assert idx, f"tag {tag} not found"
        return len(q) - 1 - idx[-1]
    def wait_vm(self, tag, lgkm=None):
        n = self._after(self.vmq, tag)
        if n >= 63:
            if lgkm is not None: self.wait(lgkm=lgkm)
            return
        self.wait(vm=n, lgkm=lgkm)
    def wait_l(self, tag):
        n = self._after(self.lq, tag)
        self.wait(lgkm=min(n, 15))
    def text(self): return "\n".join(self.lines) + "\n"

def kernel_footer(name, vgpr, accum, sgpr=102):
    return f"""
.section .rodata,"a"
.p2align 6
.amdhsa_kernel {name}
  .amdhsa_next_free_vgpr {vgpr}
  .amdhsa_next_free_sgpr {sgpr}
  .amdhsa_accum_offset {accum}
  .amdhsa_group_segment_fixed_size 0
  .amdhsa_kernarg_size 136
  .amdhsa_user_sgpr_count 2
  .amdhsa_user_sgpr_kernarg_segment_ptr 1
  .amdhsa_system_sgpr_workgroup_id_x 1
.end_amdhsa_kernel
.text
"""
def kernel_header(name):
    return f""".text
.globl {name}
.p2align 8
.type {name},@function
{name}:
"""

STAMPS = [False]
STAMP_OFF = 0x1400000
def stamp_at(A, slot, tmp=84):
    if not STAMPS[0]: return
    A.I("s_memrealtime", sr(tmp + 2 * slot, 2))
    if slot == 0: A.I("s_memtime", "s[80:81]")
def stamp_flush(A, kidx, wsreg, nslots, tmp=84, V0="v124", V1="v125", V2="v126", V01="v[124:125]"):
    if not STAMPS[0]: return
    A.wait(vm=0, lgkm=0)
    A.I("s_memrealtime", sr(tmp + 2 * (nslots - 1), 2))
    A.I("s_memtime", "s[82:83]")
    A.I("s_lshl_b32", "s98", "s2", 8)
    A.I("s_add_u32", "s98", "s98", hex(STAMP_OFF + kidx * 0x40000))
    A.I("v_and_b32", V2, "0x3c0", "v0")
    A.I("v_add_u32", V2, "s98", V2)
    A.I("v_and_b32", V1, 63, "v0")
    A.I("v_cmp_eq_u32", "vcc", 0, V1)
    A.wait(lgkm=0)
    A.I("s_and_saveexec_b64", "s[100:101]", "vcc")
    for k in range(nslots):
        A.I("v_mov_b32", V0, sr(tmp + 2 * k))
        A.I("v_mov_b32", V1, sr(tmp + 2 * k + 1))
        A.I("global_store_dwordx2", V2, V01, wsreg, mods=f"offset:{8 * k}")
    A.I("s_sub_u32", "s82", "s82", "s80")
    A.I("v_mov_b32", V0, "s82")
    A.I("v_mov_b32", V1, 0)
    A.I("global_store_dwordx2", V2, V01, wsreg, mods="offset:56")

import os
STAMPMAP = {}
for kv in os.environ.get("STAMPSET", "").split(","):
    if "=" in kv:
        k, v = kv.split("="); STAMPMAP[k] = int(v)
OPTS = set(os.environ.get("OPTS", "").split(","))
def stampn(A, name):
    if name in STAMPMAP: stamp_at(A, STAMPMAP[name])
```

```python
XNF = 0x000000
XNT = 0x200000
HF  = 0x400000
ST  = 0xA00000
W2F = 0xD00000
F1  = 0xC00000
F1B = 0xC30000
STAT = 0xC48000
F2  = 0xC10000
F3  = 0xC20000
WS_SIZE = 0xF00000
LOG2E = 0x3fb8aa3b
INV2PI = 0x3e22f983
SPIN_LIMIT = 0x40000
```

```python
from asmlib import *
from layout1 import *
from k_prep import srd, DPPM, reduce32, gen_kgen_pair_setup, gen_kgen_pair
KC = 0
UL = 33280
KDT = UL + 9216
ACCX = KDT + 2 * 5632
PSET = [(0, 3, 5, 6), (1, 2, 4, 7)]

def spin_check(A, L, name, vflag, vtag, reissue, cnt="s70", first=False, wait_tag=None):
    if first: reissue()
    A.I("s_mov_b32", cnt, SPIN_LIMIT)
    if wait_tag: A.wait_vm(wait_tag)
    else: A.wait(vm=0)
    A.label(L(name))
    A.I("v_cmp_ne_u32", "vcc", vflag, vtag)
    A.I("s_cbranch_vccz", L(name + "_ok"))
    A.I("s_sub_u32", cnt, cnt, 1)
    A.I("s_cbranch_scc1", L(name + "_ok"))
    A.I("s_sleep", 2)
    reissue(); A.vmq.pop()
    A.wait(vm=0)
    A.I("s_branch", L(name))
    A.label(L(name + "_ok"))

def get_tag(A, L, name, vtag, vzero, dbg, cnt="s70"):
    A.I("s_mov_b32", cnt, SPIN_LIMIT)
    A.label(L(name))
    A.I("v_cmp_eq_u32", "vcc", 0, vtag)
    A.I("s_cbranch_vccz", L(name + "_ok"))
    A.I("s_sub_u32", cnt, cnt, 1)
    A.I("s_cbranch_scc1", L(name + "_ok"))
    A.I("s_sleep", 2)
    A.I("global_load_dword", vtag, vzero, dbg, mods="sc1"); A.vmq.pop()
    A.wait(vm=0)
    A.I("s_branch", L(name))
    A.label(L(name + "_ok"))

def code_prefetch(A, start_label, nbytes, vtmp, vdst, L):
    A.I("s_getpc_b64", "s[74:75]")
    A.I("v_lshlrev_b32", vtmp, 7, "v0")
    assert nbytes <= 32768
    A.I("v_cmp_gt_u32", "vcc", nbytes - 256, vtmp)
    A.I("v_cndmask_b32", vtmp, 0, vtmp, "vcc")
    A.I("global_load_dword", vdst, vtmp, "s[74:75]")

def gen_K(A, L, ksize):
    A.label(L("K"))
    A.I("s_setprio", 3)
    A.I("s_memrealtime", "s[76:77]")
    A.I("s_load_dwordx16", "s[4:19]", "s[0:1]", 0)
    A.I("s_load_dwordx2", "s[20:21]", "s[0:1]", 64)
    A.I("s_load_dwordx4", "s[24:27]", "s[0:1]", 120)
    A.I("s_load_dwordx2", "s[22:23]", "s[0:1]", 96)
    code_prefetch(A, L("K"), ksize, "v2", "v3", L)
    A.I("s_and_b32", "s3", "s2", 255)
    A.I("v_and_b32", "v1", 63, "v0")
    A.I("v_lshrrev_b32", "v2", 6, "v0")
    A.I("v_readfirstlane_b32", "s28", "v2")
    A.I("s_and_b32", "s29", "s3", 7)
    A.I("s_lshl_b32", "s29", "s29", 5)
    A.I("s_lshr_b32", "s30", "s3", 3)
    A.I("s_add_u32", "s29", "s29", "s30")
    A.I("s_lshr_b32", "s30", "s28", 1)
    A.I("s_and_b32", "s31", "s28", 1)
    A.I("s_lshl_b32", "s32", "s29", 1)
    A.I("s_add_u32", "s32", "s32", "s30")
    A.I("s_lshl_b32", "s33", "s31", 7)
    A.I("s_lshl_b32", "s34", "s32", 8)
    A.I("s_add_u32", "s33", "s33", "s34")
    A.I("v_lshl_add_u32", "v2", "v1", 1, "s33")
    A.I("s_lshl_b32", "s34", "s32", 1)
    A.I("v_mov_b32", "v7", "s34")
    A.I("s_lshl_b32", "s34", "s3", 3)
    A.I("s_lshl_b32", "s35", "s28", 1)
    A.I("s_add_u32", "s34", "s34", "s35")
    A.I("s_lshl_b32", "s34", "s34", 10)
    A.I("v_lshrrev_b32", "v5", 5, "v1")
    A.I("v_and_b32", "v6", 31, "v1")
    A.I("v_lshlrev_b32", "v4", 10, "v5")
    A.I("v_lshl_add_u32", "v4", "v6", 4, "v4")
    A.I("v_add_u32", "v4", "s34", "v4")
    A.I("v_mov_b32", "v122", 0)
    A.wait(lgkm=0)
    P = 48
    A.I("global_load_dwordx4", "v[8:11]", "v4", "s[4:5]", tag="x")
    A.I("global_load_dwordx4", "v[12:15]", "v4", "s[4:5]", mods="offset:512", tag="x")
    A.I("s_or_b32", "s76", "s76", 1)
    A.I("s_or_b32", "s61", "s3", "s28")
    A.I("s_cmp_lg_u32", "s61", 0)
    A.I("s_cbranch_scc1", L("K_notag"))
    A.I("v_mov_b32", "v123", "s76")
    A.I("s_mov_b64", "exec", 1)
    A.I("global_store_dword", "v122", "v123", "s[24:25]", mods="sc1"); A.vmq.pop()
    A.I("s_mov_b64", "exec", -1)
    A.label(L("K_notag"))
    for k, sb in enumerate((6, 8, 10, 12, 14, 16)):
        A.I("global_load_ushort", vr(P + k), "v2", sr(sb, 2))
    A.I("global_load_ushort", vr(P + 6), "v7", "s[18:19]", tag="par")
    srd(A, 64, 22, 1376 * 1024)
    A.I("s_lshl_b32", "s52", "s3", 2)
    A.I("s_add_u32", "s52", "s52", "s28")
    A.I("s_and_b32", "s53", "s52", 7)
    A.I("s_lshr_b32", "s52", "s52", 3)
    A.I("s_lshl_b32", "s57", "s52", 14)
    A.I("s_lshl_b32", "s58", "s53", 7)
    A.I("s_add_u32", "s57", "s57", "s58")
    A.I("s_add_u32", "s58", "s57", 8192)
    A.I("v_lshlrev_b32", "v136", 12, "v5")
    A.I("v_lshl_add_u32", "v136", "v6", 2, "v136")
    for i in range(8):
        A.I("buffer_load_dword", vr((140 if i % 2 == 0 else 144) + i // 2), "v136", "s[64:67]", "s57" if i < 4 else "s58", mods=f"offen offset:{(i & 3) * 1024}", tag="w2")
    A.I("s_mul_i32", "s57", "s53", 87)
    A.I("s_add_u32", "s57", "s57", "s52")
    A.I("s_lshl_b32", "s57", "s57", 11)
    A.I("s_add_u32", "s57", "s57", hex(W2F))
    A.I("s_cmp_ge_u32", "s52", 86)
    A.I("s_cselect_b32", "s57", "0x7f000000", "s57")
    A.I("s_mov_b32", "s68", "0x05040100")
    A.I("s_mov_b32", "s69", "0x07060302")
    A.I("s_lshl_b32", "s33", "s29", 2)
    A.I("s_load_dword", "s36", "s[20:21]", "s33")
    srd(A, 44, 26, WS_SIZE)
    A.I("s_mov_b32", "s56", "0x3f803f80")
    A.I("s_mov_b32", "s59", "0xffff0000")
    A.I("v_and_b32", "v56", 15, "v1")
    A.I("v_cvt_f32_u32", "v56", "v56")
    A.I("s_mul_i32", "s60", "s28", 2 * 1088)
    A.I("v_mul_u32_u24", "v57", 1088, "v5")
    A.I("v_lshl_add_u32", "v57", "v6", 4, "v57")
    A.I("v_add_u32", "v57", "s60", "v57")
    A.I("v_mov_b32", "v58", 0)
    A.I("v_mov_b32", "v59", 0)
    A.I("v_lshlrev_b32", "v7", 4, "v1")
    A.I("v_and_b32", "v16", 7, "v1")
    A.I("v_mul_u32_u24", "v16", 1088, "v16")
    A.I("v_lshrrev_b32", "v17", 3, "v1")
    A.I("v_lshl_add_u32", "v16", "v17", 4, "v16")
    A.I("s_lshl_b32", "s54", "s28", 8)
    A.I("v_add_u32", "v16", "s54", "v16")
    A.I("v_bfe_u32", "v17", "v1", 2, 2)
    A.I("v_mul_u32_u24", "v17", 1088, "v17")
    A.I("v_lshrrev_b32", "v18", 4, "v1")
    A.I("v_lshl_add_u32", "v17", "v18", 5, "v17")
    A.I("v_and_b32", "v18", 3, "v1")
    A.I("v_lshl_add_u32", "v17", "v18", 3, "v17")
    A.I("v_add_u32", "v17", "s54", "v17")
    A.I("s_lshl_b32", "s54", "s3", 13)
    A.I("s_lshl_b32", "s55", "s28", 11)
    A.I("s_add_u32", "s54", "s54", "s55")
    A.I("s_add_u32", "s55", "s54", hex(XNT))
    A.I("s_mul_i32", "s37", "s30", 5632)
    A.I("s_add_u32", "s37", "s37", KDT + 16)
    A.I("s_sub_u32", "s38", "s37", 69120)
    A.I("s_add_u32", "s39", "s37", 508)
    A.I("s_lshl_b32", "s40", "s31", 12)
    A.I("v_lshl_add_u32", "v20", "v1", 5, "s40")
    AD = 200
    for rd in range(2):
        for ii in range(11):
            A.I("v_sub_u32", vr(24 + ii), 8176 - 2048 * rd - 4 * (ii - 3), "v20")
        for ii in range(11):
            A.I("v_add_u32", vr(AD + 11 * rd + ii), "s37", vr(24 + ii))
            if rd == 1 and ii >= 8: A.I("v_max_i32", vr(24 + ii), 0, vr(24 + ii))
            A.I("v_cvt_f32_u32", vr(24 + ii), vr(24 + ii))
        for ii in range(0, 11, 2):
            A.I("v_cvt_pk_bf16_f32", vr(36 + ii // 2), vr(24 + ii), vr(24 + min(ii + 1, 10)))
        for ii in range(11):
            A.I("v_mad_u32_u16", vr(24 + ii), vr(36 + ii // 2), 4, "s38", mods=("op_sel:[1,0,0,0]" if ii & 1 else ""))
        for ii in range(11):
            A.I("v_med3_i32", vr(AD + 11 * rd + ii), vr(24 + ii), vr(AD + 11 * rd + ii), "s39")
    A.wait_vm("x")
    stampn(A, "k_x")
    for k in range(8):
        A.I("v_dot2_f32_bf16", "v58", vr(8 + k), "s56", "v58")
        A.I("v_dot2_f32_bf16", "v59", vr(8 + k), vr(8 + k), "v59")
    A.I("global_load_dword", "v123", "v122", "s[24:25]", mods="sc1")
    reduce32(A, [58, 59], [60, 61])
    A.I("v_mul_f32", "v58", "0x3b000000", "v58")
    A.I("v_mul_f32", "v59", "0x3b000000", "v59")
    A.I("v_fma_f32", "v59", "-v58", "v58", "v59")
    A.I("v_max_f32", "v59", 0, "v59")
    A.I("v_cvt_pk_bf16_f32", "v60", 0, "v58")
    A.I("v_cvt_pk_bf16_f32", "v59", 0, "v59")
    A.I("v_add_f32", "v59", "0x3727c5ac", "v59")
    A.I("v_cvt_pk_bf16_f32", "v59", 0, "v59")
    A.I("v_sqrt_f32", "v59", "v59")
    A.I("v_cvt_pk_bf16_f32", "v59", 0, "v59")
    A.I("v_rcp_f32", "v62", "v59")
    for k in range(8):
        t = 64 + 2 * (k % 4)
        A.I("v_lshlrev_b32", vr(t), 16, vr(8 + k))
        A.I("v_and_b32", vr(t + 1), "s59", vr(8 + k))
        A.I("v_pk_add_f32", vr(t, 2), vr(t, 2), "v[60:61]", mods="op_sel_hi:[1,0] neg_lo:[0,1] neg_hi:[0,1]")
        A.I("v_cvt_pk_bf16_f32", vr(t), 0, vr(t))
        A.I("v_cvt_pk_bf16_f32", vr(t + 1), 0, vr(t + 1))
        A.I("v_pk_mul_f32", vr(t, 2), vr(t, 2), "v[62:63]", mods="op_sel_hi:[1,0]")
        A.I("v_cvt_pk_bf16_f32", vr(8 + k), vr(t), vr(t + 1))
        if k == 3: A.I("ds_write_b128", "v57", "v[8:11]")
    A.I("ds_write_b128", "v57", "v[12:15]", mods="offset:512")
    A.wait(lgkm=0)
    A.I("s_barrier")
    A.I("ds_read_b128", "v[8:11]", "v16")
    A.I("ds_read_b128", "v[12:15]", "v16", mods="offset:128")
    A.I("ds_read_b64_tr_b16", "v[24:25]", "v17")
    A.I("ds_read_b64_tr_b16", "v[26:27]", "v17", mods=f"offset:{4*1088}")
    A.I("ds_read_b64_tr_b16", "v[28:29]", "v17", mods="offset:128")
    A.I("ds_read_b64_tr_b16", "v[30:31]", "v17", mods=f"offset:{4*1088+128}")
    A.wait(lgkm=4)
    A.I("buffer_store_dwordx4", "v[8:11]", "v7", "s[44:47]", "s54", mods="offen sc1")
    A.I("buffer_store_dwordx4", "v[12:15]", "v7", "s[44:47]", "s54", mods="offen offset:1024 sc1")
    A.wait(lgkm=2)
    A.I("buffer_store_dwordx4", "v[24:27]", "v7", "s[44:47]", "s55", mods="offen sc1")
    A.wait(lgkm=0)
    A.I("buffer_store_dwordx4", "v[28:31]", "v7", "s[44:47]", "s55", mods="offen offset:1024 sc1")
    stampn(A, "k_st")
    A.wait(vm=0)
    stampn(A, "k_dr")
    A.I("s_barrier")
    get_tag(A, L, "K_tag", "v123", "v122", "s[24:25]")
    A.I("s_cmp_lg_u32", "s28", 0)
    A.I("s_cbranch_scc1", L("K_f1done"))
    A.I("s_lshl_b32", "s71", "s3", 7)
    A.I("s_add_u32", "s71", "s71", hex(F1))
    A.I("s_mov_b64", "exec", 1)
    A.I("buffer_store_dword", "v123", "v122", "s[44:47]", "s71", mods="offen sc1")
    A.I("s_mov_b64", "exec", -1)
    A.label(L("K_f1done"))
    stampn(A, "k_f1")
    A.I("s_setprio", 0)
    for p in range(4):
        A.I("v_perm_b32", vr(136 + p), vr(144 + p), vr(140 + p), "s68")
        A.I("v_perm_b32", vr(140 + p), vr(144 + p), vr(140 + p), "s69")
    A.I("buffer_store_dwordx4", "v[136:139]", "v7", "s[44:47]", "s57", mods="offen sc1")
    A.I("buffer_store_dwordx4", "v[140:143]", "v7", "s[44:47]", "s57", mods="offen offset:1024 sc1")
    gen_kgen_pair_setup(A, P)
    gen_kgen_pair(A, P, 56, 0)
    A.I("s_lshl_b32", "s71", "s28", 13)
    A.I("v_lshl_add_u32", "v120", "v1", 7, "s71")
    def poll_issue():
        A.I("buffer_load_dword", "v121", "v120", "s[44:47]", "s41", mods="offen sc1")
    A.I("s_mov_b32", "s41", hex(F1))
    for pi in range(1, 8):
        if pi == 2:
            A.wait(vm=0)
            A.I("s_barrier")
            A.I("s_cmp_lg_u32", "s28", 0)
            A.I("s_cbranch_scc1", L("K_f1b"))
            A.I("s_lshl_b32", "s71", "s3", 7)
            A.I("s_add_u32", "s71", "s71", hex(F1B))
            A.I("s_mov_b64", "exec", 1)
            A.I("buffer_store_dword", "v123", "v122", "s[44:47]", "s71", mods="offen sc1")
            A.I("s_mov_b64", "exec", -1)
            A.label(L("K_f1b"))
            if "kstop" in OPTS: A.I("s_branch", L("K_pub"))
            poll_issue()
        if pi == 4:
            spin_check(A, L, "K_p1", "v121", "v123", poll_issue)
            A.I("v_readfirstlane_b32", "s51", "v123")
            A.I("v_lshrrev_b32", "v120", 1, "v1")
            A.I("v_lshlrev_b32", "v120", 13, "v120")
            A.I("v_and_b32", "v121", 1, "v1")
            A.I("v_lshl_add_u32", "v120", "v121", 4, "v120")
            A.I("s_lshl_b32", "s41", "s28", 19)
            A.I("s_lshl_b32", "s42", "s29", 5)
            A.I("s_add_u32", "s41", "s41", "s42")
            A.I("s_add_u32", "s41", "s41", hex(XNT))
            A.I("s_add_u32", "s42", "s41", 32 * 8192)
            A.I("buffer_load_dwordx4", "v[124:127]", "v120", "s[44:47]", "s41", mods="offen sc1")
            A.I("buffer_load_dwordx4", "v[128:131]", "v120", "s[44:47]", "s42", mods="offen sc1")
        gen_kgen_pair(A, P, 56, pi)
    stampn(A, "k_kgen")
    KACC = 100
    A.I("s_mul_i32", "s42", "s31", 2816)
    A.I("s_add_u32", "s42", "s42", "s37")
    A.I("v_and_b32", "v8", 15, "v1")
    A.I("v_lshrrev_b32", "v14", 4, "v1")
    A.I("v_lshlrev_b32", "v9", 6, "v8")
    A.I("v_lshl_add_u32", "v9", "v14", 4, "v9")
    A.I("v_add_u32", "v9", "s42", "v9")
    for k in range(4): A.I("v_mov_b32", vr(24 + k), 0)
    A.I("s_mul_i32", "s43", "s30", 4608)
    A.I("s_add_u32", "s43", "s43", UL)
    A.I("v_lshl_add_u32", "v10", "v1", 3, "s43")
    A.I("ds_write_b64", "v10", "v[24:25]")
    A.I("s_mul_i32", "s48", "s30", 16640)
    A.I("v_lshrrev_b32", "v10", 1, "v1")
    A.I("v_mul_u32_u24", "v11", 4160, "v10")
    A.I("v_lshl_add_u32", "v11", "v121", 4, "v11")
    A.I("v_add_u32", "v11", "s48", "v11")
    A.I("v_mov_b32", "v12", "s42")
    A.I("v_mul_u32_u24", "v13", 4608, "v121")
    A.I("v_lshl_add_u32", "v10", "v10", 4, "v13")
    A.I("s_lshl_b32", "s49", "s28", 10)
    A.I("s_add_u32", "s49", "s49", UL + 512)
    A.I("v_add_u32", "v10", "s49", "v10")
    A.I("ds_write_b128", "v9", vr(KACC, 4))
    A.I("s_mov_b32", "exec_lo", "0xff00ff00")
    A.I("s_mov_b32", "exec_hi", "0xff00ff00")
    for s in range(1, 4):
        A.I("ds_write_b128", "v9", vr(KACC + 4 * s, 4), mods=f"offset:{512 * s}")
    A.I("s_mov_b64", "exec", "0x8000")
    A.I("ds_write_b32", "v12", vr(KACC + 18), mods=f"offset:{2560}")
    A.I("s_mov_b64", "exec", "0xff")
    A.I("ds_write_b128", "v11", "v[24:27]", mods="offset:4096")
    A.I("v_subrev_u32", "v12", 16, "v12")
    A.I("ds_write_b128", "v12", "v[24:27]")
    A.I("s_mov_b64", "exec", -1)
    stampn(A, "k_uw")
    A.wait(vm=0)
    stampn(A, "k_u")
    A.I("ds_write_b128", "v10", "v[124:127]")
    A.I("ds_write_b128", "v10", "v[128:131]", mods="offset:512")
    A.I("s_lshl_b32", "s49", "s31", 11)
    A.I("s_add_u32", "s50", "s49", "s48")
    A.I("v_add_u32", "v6", "s50", "v7")
    A.I("v_and_b32", "v12", 3, "v1")
    A.I("v_mul_u32_u24", "v12", 4160, "v12")
    A.I("v_bfe_u32", "v13", "v1", 2, 2)
    A.I("v_lshlrev_b32", "v13", 3, "v13")
    A.I("v_lshl_add_u32", "v13", "v14", 4, "v13")
    A.I("v_sub_u32", "v12", "v12", "v13")
    A.I("s_add_u32", "s50", "s48", 2 * 2052 - 64 * 63)
    A.I("v_add_u32", "v12", "s50", "v12")
    A.I("v_lshlrev_b32", "v13", 5, "v8")
    A.I("v_lshlrev_b32", "v15", 4, "v14")
    A.I("v_sub_u32", "v13", "v13", "v15")
    A.I("s_add_u32", "s50", "s43", 512 + 16 - 448)
    A.I("v_add_u32", "v13", "s50", "v13")
    A.I("v_lshlrev_b32", "v15", 5, "v8")
    A.I("v_lshl_add_u32", "v15", "v14", 3, "v15")
    A.I("s_add_u32", "s50", "s43", "s49")
    A.I("s_add_u32", "s50", "s50", 512)
    A.I("v_add_u32", "v38", "s50", "v15")
    A.wait(lgkm=0)
    A.I("s_barrier")
    for rd in range(2):
        for ii in range(11):
            A.I("ds_read2st64_b32", vr(128 + 22 * rd + 2 * ii, 2), vr(AD + 11 * rd + ii), mods="offset0:0 offset1:11", tag=f"e{rd}")
    for rd in range(2):
        A.wait_l(f"e{rd}")
        for ii in range(11):
            r = 128 + 22 * rd + 2 * ii
            A.I("v_add_f32", vr(r), vr(r), vr(r + 1))
        e = lambda ip: vr(128 + 22 * rd + 2 * (ip + 3))
        base = 64 + 16 * rd
        for sg in range(4):
            for dwi in range(4):
                lo = 2 * dwi - sg
                A.I("v_cvt_pk_bf16_f32", vr(base + 4 * sg + dwi), e(lo), e(lo + 1))
            A.I("ds_write_b128", "v6", vr(base + 4 * sg, 4), mods=f"offset:{sg * 4160 + rd * 1024}")
    A.wait(lgkm=0)
    A.I("s_barrier")
    stampn(A, "k_exp")
    KF = 128; UB = 96; CA = 64
    A.I("s_cmp_eq_u32", "s31", 1)
    A.I("s_cbranch_scc1", L("conv1"))
    for hw in range(2):
        if hw == 1: A.label(L("conv1"))
        Ps = PSET[hw]
        steps = [(Q, r) for Q in range(8 - min(Ps)) for r in range(8)]
        first = set()
        NB = 8
        def issueU(n):
            Q, r = steps[n]
            q = 8 * Q - r
            A.I("ds_read_b128", vr(UB + 4 * (n % NB), 4), "v13", mods=f"offset:{64 * (q + 7)}", tag=f"U{n}")
        def issueK(r):
            for si, P_ in enumerate(Ps):
                p = 8 * P_ + r
                reg = KF + 32 * si + 4 * r
                A.I("ds_read_b64", vr(reg, 2), "v12", mods=f"offset:{64 * (63 - p)}")
                A.I("ds_read_b64", vr(reg + 2, 2), "v12", mods=f"offset:{64 * (63 - p) + 8}", tag=f"K{r}")
        def mf(n):
            Q, r = steps[n]
            for si, P_ in enumerate(Ps):
                if P_ + Q > 7: continue
                acc = vr(CA + 4 * (P_ + Q), 4)
                c = acc if (P_ + Q) in first else "0"
                first.add(P_ + Q)
                A.I("v_mfma_f32_16x16x32_bf16", acc, vr(KF + 32 * si + 4 * r, 4), vr(UB + 4 * (n % NB), 4), c)
        issueU(0); issueK(0)
        for n in range(8):
            if n < 7:
                issueU(n + 1); issueK(n + 1)
                A.wait_l(f"K{n}")
            else:
                for k in range(8, 8 + NB - 2): issueU(k)
                A.wait_l(f"K{n}")
            mf(n)
        nxt = 8 + NB - 2
        issueU(nxt); nxt += 1
        for n in range(8, len(steps)):
            A.wait_l(f"U{n}")
            mf(n)
            if nxt < len(steps): issueU(nxt)
            nxt += 1
        oth = range(4, 8) if hw == 0 else range(1, 4)
        A.I("s_lshl_b32", "s41", "s30", 13)
        A.I("s_add_u32", "s41", "s41", ACCX)
        A.I("v_add_u32", "v39", "s41", "v7")
        for k in range(4):
            A.I("ds_read_b64", vr(40 + 2 * k, 2), "v38", mods=f"offset:{512 * k}")
        for Aa in oth:
            A.I("ds_write_b128", "v39", vr(CA + 4 * Aa, 4), mods=f"offset:{Aa * 1024}")
        own = range(0, 4) if hw == 0 else range(4, 8)
        A.I("s_lshl_b32", "s42", "s36", 16)
        A.I("s_and_b32", "s43", "s36", "0xffff0000")
        A.I("s_cmp_eq_u32", "s30", 0)
        A.I("s_cselect_b32", "s42", "s42", "s43")
        A.I("s_mov_b32", "s43", "s42")
        A.I("s_lshl_b32", "s48", "s32", 12)
        A.I("s_add_u32", "s48", "s48", "s49")
        A.I("s_add_u32", "s48", "s48", hex(ST))
        A.wait(lgkm=0)
        A.I("s_barrier")
        for k, Aa in enumerate(own):
            if hw == 0 and Aa == 0: continue
            A.I("ds_read_b128", vr(UB + 4 * k, 4), "v39", mods=f"offset:{Aa * 1024}", tag=f"X{k}")
        for k, Aa in enumerate(own):
            t = 48 + 4 * k; a = CA + 4 * Aa
            A.I("v_lshlrev_b32", vr(t), 16, vr(40 + 2 * k))
            A.I("v_and_b32", vr(t + 1), "s59", vr(40 + 2 * k))
            A.I("v_lshlrev_b32", vr(t + 2), 16, vr(41 + 2 * k))
            A.I("v_and_b32", vr(t + 3), "s59", vr(41 + 2 * k))
            A.I("v_pk_fma_f32", vr(a, 2), vr(t, 2), "s[42:43]", vr(a, 2))
            A.I("v_pk_fma_f32", vr(a + 2, 2), vr(t + 2, 2), "s[42:43]", vr(a + 2, 2))
        for k, Aa in enumerate(own):
            a = CA + 4 * Aa
            if not (hw == 0 and Aa == 0):
                A.wait_l(f"X{k}")
                A.I("v_pk_add_f32", vr(a, 2), vr(a, 2), vr(UB + 4 * k, 2))
                A.I("v_pk_add_f32", vr(a + 2, 2), vr(a + 2, 2), vr(UB + 4 * k + 2, 2))
            A.I("v_cvt_pk_bf16_f32", vr(a), vr(a), vr(a + 1))
            A.I("v_cvt_pk_bf16_f32", vr(a + 1), vr(a + 2), vr(a + 3))
            A.I("buffer_store_dwordx2", vr(a, 2), "v15", "s[44:47]", "s48", mods=f"offen offset:{512 * k} sc1")
        if hw == 0: A.I("s_branch", L("K_pub"))
    A.label(L("K_pub"))
    stampn(A, "k_conv")
    A.wait(vm=0)
    A.I("s_barrier")
    A.I("s_cmp_lg_u32", "s28", 0)
    A.I("s_cbranch_scc1", L("K_end"))
    A.I("s_lshl_b32", "s71", "s29", 7)
    A.I("s_add_u32", "s71", "s71", hex(F3))
    if "kstop" in OPTS: A.I("v_readfirstlane_b32", "s51", "v123")
    A.I("v_mov_b32", "v8", "s51")
    A.I("v_mov_b32", "v9", 0)
    A.I("s_mov_b64", "exec", 1)
    A.I("buffer_store_dword", "v8", "v9", "s[44:47]", "s71", mods="offen sc1")
    A.I("s_mov_b64", "exec", -1)
    A.label(L("K_end"))
    stamp_flush(A, 0, "s[26:27]", 7)
    A.I("s_endpgm")
```

```python
from asmlib import *
from layout1 import *
from k_prep import srd
from t1_k import spin_check, code_prefetch, get_tag

def B(b): return 16 + 4 * b

def gen_M(A, L, msize):
    A.label(L("M"))
    A.I("s_setprio", 2)
    A.I("s_load_dwordx2", "s[4:5]", "s[0:1]", 0)
    A.I("s_load_dwordx8", "s[8:15]", "s[0:1]", 80)
    A.I("s_load_dwordx4", "s[16:19]", "s[0:1]", 112)
    A.I("s_load_dwordx2", "s[20:21]", "s[0:1]", 128)
    code_prefetch(A, L("M"), msize, "v2", "v3", L)
    A.I("v_and_b32", "v1", 63, "v0")
    A.I("v_lshrrev_b32", "v2", 6, "v0")
    A.I("v_readfirstlane_b32", "s22", "v2")
    A.I("s_and_b32", "s3", "s2", 255)
    A.I("s_and_b32", "s23", "s3", 7)
    A.I("s_lshr_b32", "s48", "s3", 3)
    A.I("s_lshr_b32", "s49", "s23", 1)
    A.I("s_lshl_b32", "s49", "s49", 2)
    A.I("s_lshr_b32", "s50", "s48", 3)
    A.I("s_add_u32", "s49", "s49", "s50")
    A.I("s_lshl_b32", "s51", "s23", 2)
    A.I("s_add_u32", "s51", "s51", "s50")
    A.I("s_and_b32", "s52", "s48", 7)
    A.I("s_and_b32", "s50", "s23", 1)
    A.I("s_lshl_b32", "s50", "s50", 3)
    A.I("s_add_u32", "s50", "s50", "s52")
    A.I("s_lshl_b32", "s53", "s49", 2)
    A.I("s_add_u32", "s53", "s53", "s22")
    A.I("v_lshlrev_b32", "v2", 4, "v1")
    A.I("v_lshrrev_b32", "v4", 5, "v1")
    A.I("v_and_b32", "v5", 31, "v1")
    A.I("s_mov_b32", "s54", 43691)
    for n in range(3):
        A.I("v_add_u32", "v9", 64 * n, "v1")
        A.I("v_mul_u32_u24", "v10", "s54", "v9")
        A.I("v_lshrrev_b32", "v10", 19, "v10")
        A.I("v_mul_u32_u24", "v11", 12, "v10")
        A.I("v_sub_u32", "v9", "v9", "v11")
        A.I("v_mul_u32_u24", "v10", 2752, "v10")
        A.I("v_lshl_add_u32", vr(6 + n), "v9", 4, "v10")
    A.I("v_lshlrev_b32", "v9", 12, "v4")
    A.I("v_lshl_add_u32", "v9", "v5", 2, "v9")
    A.I("v_mov_b32", "v10", 0)
    A.I("s_mul_i32", "s55", "s50", 192)
    A.I("s_mul_i32", "s56", "s22", 16 * 2752)
    A.I("s_add_u32", "s56", "s56", "s55")
    A.I("s_mul_i32", "s57", "s22", 3072)
    A.I("s_mul_i32", "s58", "s22", 22)
    A.I("s_cmp_eq_u32", "s22", 3)
    A.I("s_cselect_b32", "s59", 1, 0)
    A.I("s_sub_u32", "s58", "s58", "s59")
    A.I("s_mul_i32", "s59", "s52", 87)
    A.I("s_add_u32", "s59", "s59", "s58")
    A.I("s_lshl_b32", "s59", "s59", 11)
    A.I("s_add_u32", "s59", "s59", hex(W2F))
    A.I("s_lshl_b32", "s60", "s52", 7)
    A.wait(lgkm=0)
    srd(A, 24, 20, WS_SIZE)
    srd(A, 28, 8, 512 * 2752)
    srd(A, 36, 10, 2752)
    srd(A, 40, 4, 2048 * 1024)
    srd(A, 44, 16, 2048 * 1024)
    A.I("s_mov_b32", "s62", "0x05040100")
    A.I("s_mov_b32", "s63", "0x07060302")
    A.I("s_mov_b32", "s64", "0xffff0000")
    def w1dma(kq, ldsoff):
        for n in range(3):
            A.I("s_add_u32", "m0", "s57", ldsoff + n * 1024)
            A.I("buffer_load_dwordx4", vr(6 + n), "s[28:31]", "s56", mods="offen lds", tag="w1")
        A.I("s_add_u32", "s56", "s56", 64 * 2752)
    def w2reg(u):
        if u and u % 2 == 0: A.I("s_add_u32", "s59", "s59", 4096)
        for e in range(2):
            A.I("buffer_load_dwordx4", vr(B(2 * u + e), 4), "v2", "s[24:27]", "s59", mods=f"offen offset:{(u % 2) * 2048 + e * 1024} sc1", tag=f"w2_{u}")
    A.I("s_cmp_eq_u32", "s50", 15)
    A.I("s_cbranch_scc1", L("M_now1"))
    for kq in range(6): w1dma(kq, kq * 12288)
    A.I("v_lshlrev_b32", "v11", 3, "v4")
    for t in range(3):
        for g in range(4):
            A.I("buffer_load_dwordx2", vr(84 + 8 * t + 2 * g, 2), "v11", "s[36:39]", "s55", mods=f"offen offset:{t * 64 + g * 16}", tag="b1")
    A.label(L("M_now1"))
    A.I("v_bfe_u32", "v12", "v1", 3, 2)
    A.I("v_lshlrev_b32", "v12", 13, "v12")
    A.I("v_lshl_add_u32", "v12", "v4", 7, "v12")
    A.I("v_and_b32", "v13", 7, "v1")
    A.I("v_lshl_add_u32", "v12", "v13", 4, "v12")
    A.I("v_bfe_u32", "v13", "v1", 2, 2)
    A.I("v_lshl_add_u32", "v13", "v4", 3, "v13")
    A.I("v_mul_u32_u24", "v13", 192, "v13")
    A.I("v_bfe_u32", "v14", "v1", 4, 1)
    A.I("v_lshl_add_u32", "v13", "v14", 5, "v13")
    A.I("v_and_b32", "v14", 3, "v1")
    A.I("v_lshl_add_u32", "v13", "v14", 3, "v13")
    A.I("v_add_u32", "v15", 49152, "v13")
    A.I("v_lshlrev_b32", "v14", 7, "v14")
    A.I("s_lshl_b32", "s66", "s53", 9)
    A.I("s_add_u32", "s66", "s66", hex(F1))
    A.I("s_lshl_b32", "s67", "s53", 15)
    ACC1 = 116
    A.I("v_min_u32", "v255", 20, "v1")
    A.I("v_lshlrev_b32", "v255", 8, "v255")
    A.I("s_lshl_b32", "s65", "s58", 1)
    A.I("s_lshr_b32", "s71", "s52", 2)
    A.I("s_add_u32", "s65", "s65", "s71")
    A.I("s_lshl_b32", "s65", "s65", 7)
    A.I("s_add_u32", "s65", "s65", hex(F1B))
    A.I("s_cmp_lt_u32", "s22", 2)
    A.I("s_cbranch_scc0", L("M_c21"))
    A.I("v_min_u32", "v255", 21, "v1")
    A.I("v_lshlrev_b32", "v255", 8, "v255")
    A.label(L("M_c21"))
    A.I("global_load_dword", "v252", "v10", "s[18:19]", mods="sc1")
    A.wait(vm=0)
    get_tag(A, L, "M_tag", "v252", "v10", "s[18:19]")
    A.I("s_cmp_eq_u32", "s50", 15)
    A.I("s_cbranch_scc1", L("M_g15"))
    A.I("buffer_load_dword", "v253", "v14", "s[24:27]", "s66", mods="offen sc1")
    for t in range(3):
        for g in range(4):
            r = 84 + 8 * t + 2 * g; a = ACC1 + 16 * t + 4 * g
            A.I("v_lshlrev_b32", vr(a), 16, vr(r))
            A.I("v_and_b32", vr(a + 1), "s64", vr(r))
            A.I("v_lshlrev_b32", vr(a + 2), 16, vr(r + 1))
            A.I("v_and_b32", vr(a + 3), "s64", vr(r + 1))
    def poll1():
        A.I("buffer_load_dword", "v253", "v14", "s[24:27]", "s66", mods="offen sc1")
    A.I("s_barrier")
    stampn(A, "m_w1")
    XR = 164; WB = 228
    def issueW(n):
        ks, t = n // 3, n % 3
        slot = ks if ks < 24 else ks - 24
        off = slot * 3072 + t * 64
        base = "v13" if off + 768 < 49152 + 0 and slot < 16 else "v15"
        o = off if base == "v13" else off - 49152
        r = WB + 4 * (n % 6)
        A.I("ds_read_b64_tr_b16", vr(r, 2), base, mods=f"offset:{o}")
        A.I("ds_read_b64_tr_b16", vr(r + 2, 2), base, mods=f"offset:{o + 768}", tag=f"W{n}")
    for n in range(5): issueW(n)
    spin_check(A, L, "M_p1", "v253", "v252", poll1)
    stampn(A, "m_f1")
    def issueX(ks):
        if ks == 16: A.I("s_add_u32", "s67", "s67", 4096)
        A.I("buffer_load_dwordx4", vr(XR + 4 * (ks % 16), 4), "v12", "s[24:27]", "s67", mods=f"offen offset:{(ks % 16) * 256} sc1", tag=f"x{ks}")
    A.I("s_lshl_b32", "s71", "s52", 12)
    A.I("s_add_u32", "s71", "s71", "s67")
    A.I("v_lshlrev_b32", "v253", 7, "v5")
    A.I("buffer_load_dword", "v253", "v253", "s[24:27]", "s71", mods="offen sc1")
    for ks in range(16): issueX(ks)
    def w2touch():
        A.I("s_and_b32", "s71", "s51", 3)
        A.I("s_mul_i32", "s71", "s71", 11264)
        A.I("s_add_u32", "s71", "s71", "s59")
        A.I("v_min_u32", "v254", 43, "v1")
        A.I("v_lshlrev_b32", "v254", 8, "v254")
        A.I("buffer_load_dword", "v253", "v254", "s[24:27]", "s71", mods="offen sc1")
        A.I("buffer_load_dword", "v253", "v254", "s[24:27]", "s71", mods="offen offset:128 sc1")
    def pollall():
        A.I("buffer_load_dword", "v254", "v255", "s[24:27]", "s65", mods="offen sc1", tag="pall")
    A.I("s_mul_i32", "s68", "s53", 86)
    A.I("s_mul_i32", "s69", "s50", 6)
    A.I("s_add_u32", "s68", "s68", "s69")
    A.I("s_lshl_b32", "s68", "s68", 10)
    A.I("s_add_u32", "s68", "s68", hex(HF))
    A.I("s_add_u32", "s69", "s68", 4096)
    def epi_ops(t):
        ops = []
        a = ACC1 + 16 * t
        for k in range(8):
            r = a + 2 * k
            ops.append(("v_max_f32", [vr(r), 0, vr(r)], ""))
            ops.append(("v_max_f32", [vr(r + 1), 0, vr(r + 1)], ""))
            ops.append(("v_pk_mul_f32", [vr(r, 2), vr(r, 2), vr(r, 2)], ""))
            ops.append(("v_cvt_pk_bf16_f32", [vr(a + k), vr(r), vr(r + 1)], ""))
            if k % 4 == 3:
                off = (2 * t + k // 4) * 1024
                ops.append(("buffer_store_dwordx4", [vr(a + k - 3, 4), "v2", "s[24:27]", "s68" if off < 4096 else "s69"], f"offen offset:{off % 4096} sc1"))
        return ops
    nW = 5
    order = [(ks, t) for ks in range(30) for t in range(3)] + [(ks, t) for t in range(3) for ks in (30, 31)]
    seq = [ks * 3 + t for ks, t in order]
    lastx = -1
    for idx, (ks, t) in enumerate(order):
        if t == 0 and ks == 8 and idx == 24:
            A.I("s_barrier")
            w1dma(6, 0); w1dma(7, 12288)
        if t == 0 and ks == 21:
            A.wait_vm("w1")
            A.I("s_barrier")
        if ks > lastx:
            A.wait_vm(f"x{ks}")
            lastx = ks
        if t == 0 and idx < 90: stampn(A, f"m_ks{ks}")
        n = seq[idx]
        A.wait_l(f"W{n}")
        acc = vr(ACC1 + 16 * t, 16)
        A.I("v_mfma_f32_32x32x16_bf16", acc, vr(WB + 4 * (idx % 6), 4), vr(XR + 4 * (ks % 16), 4), acc)
        if nW < 96:
            m = seq[nW]
            ks2_, t2_ = m // 3, m % 3
            slot = ks2_ if ks2_ < 24 else ks2_ - 24
            off = slot * 3072 + t2_ * 64
            base = "v13" if slot < 16 else "v15"
            o = off if base == "v13" else off - 49152
            r = WB + 4 * (nW % 6)
            A.I("ds_read_b64_tr_b16", vr(r, 2), base, mods=f"offset:{o}")
            A.I("ds_read_b64_tr_b16", vr(r + 2, 2), base, mods=f"offset:{o + 768}", tag=f"W{m}")
            nW += 1
        if t == 2 and ks + 16 < 32 and ks < 30: issueX(ks + 16)
        if t == 2 and ks == 4: pollall()
        if t == 2 and ks == 16:
            spin_check(A, L, "M_pa", "v254", "v252", pollall, wait_tag="pall")
            w2touch()
        if t == 2 and 16 <= ks < 28: w2reg(ks - 16)
    stampn(A, "m_g1")
    for mn, ops, mods in epi_ops(0): A.I(mn, *ops, mods=mods, tag="hf")
    A.I("s_cmp_eq_u32", "s50", 14)
    A.I("s_cbranch_scc1", L("M_late"))
    for t in (1, 2):
        for mn, ops, mods in epi_ops(t): A.I(mn, *ops, mods=mods, tag="hf")
    A.label(L("M_late"))
    stampn(A, "m_epi")
    A.wait_vm("hf")
    A.I("s_barrier")
    A.I("s_cmp_lg_u32", "s22", 0)
    A.I("s_cbranch_scc1", L("M_nf2"))
    A.I("s_lshl_b32", "s71", "s49", 11)
    A.I("s_lshl_b32", "s72", "s50", 7)
    A.I("s_add_u32", "s71", "s71", "s72")
    A.I("s_add_u32", "s71", "s71", hex(F2))
    A.I("s_mov_b64", "exec", 1)
    A.I("buffer_store_dword", "v252", "v10", "s[24:27]", "s71", mods="offen sc1")
    A.vmq.pop()
    A.I("s_mov_b64", "exec", -1)
    A.I("s_branch", L("M_nf2"))
    A.label(L("M_g15"))
    spin_check(A, L, "M_g15a", "v254", "v252", pollall, first=True)
    w2touch()
    for u in range(12): w2reg(u)
    A.label(L("M_nf2"))
    stampn(A, "m_f2pub")
    A.I("s_mul_i32", "s71", "s22", 20480)
    A.I("v_add_u32", "v11", "s71", "v2")
    for u in range(12, 22):
        if u % 2 == 0:
            A.I("s_add_u32", "s59", "s59", 4096)
            A.I("s_add_u32", "m0", "s71", (u - 12) * 2048)
        for e in range(2):
            o = (u % 2) * 2048 + e * 1024
            A.I("buffer_load_dwordx4", "v2", "s[24:27]", "s59", mods=(f"offen offset:{o} sc1 lds" if o else "offen sc1 lds"))
    A.I("v_min_u32", "v14", 14, "v1")
    A.I("v_lshlrev_b32", "v14", 7, "v14")
    A.I("s_lshr_b32", "s66", "s51", 1)
    A.I("s_lshl_b32", "s66", "s66", 11)
    A.I("s_add_u32", "s66", "s66", hex(F2))
    poll1()
    A.I("s_lshl_b32", "s54", "s51", 16)
    A.I("s_lshl_b32", "s55", "s22", 14)
    A.I("s_add_u32", "s54", "s54", "s55")
    A.I("s_add_u32", "s54", "s54", "s60")
    A.I("s_add_u32", "s55", "s54", 8192)
    A.I("s_mul_i32", "s56", "s51", 172)
    A.I("s_add_u32", "s56", "s56", "s58")
    A.I("s_lshl_b32", "s56", "s56", 10)
    A.I("s_add_u32", "s56", "s56", hex(HF))
    A.I("s_add_u32", "s57", "s56", 86 * 1024)
    spin_check(A, L, "M_p2", "v253", "v252", poll1)
    stampn(A, "m_f2")
    ACC = 116; HR = 180; NH = 8
    def issueH(k):
        if k and k % 4 == 0:
            A.I("s_add_u32", "s56", "s56", 4096)
            A.I("s_add_u32", "s57", "s57", 4096)
        r = HR + 8 * (k % NH)
        A.I("buffer_load_dwordx4", vr(r, 4), "v2", "s[24:27]", "s56", mods=f"offen offset:{(k % 4) * 1024} sc1")
        A.I("buffer_load_dwordx4", vr(r + 4, 4), "v2", "s[24:27]", "s57", mods=f"offen offset:{(k % 4) * 1024} sc1", tag=f"h{k}")
    A.I("v_min_u32", "v253", 21, "v5")
    A.I("v_lshlrev_b32", "v253", 7, "v253")
    A.I("v_mul_u32_u24", "v254", 86 * 1024, "v4")
    A.I("v_add_u32", "v253", "v253", "v254")
    A.I("s_mul_i32", "s71", "s52", 2816)
    A.I("s_add_u32", "s71", "s71", "s56")
    A.I("buffer_load_dword", "v253", "v253", "s[24:27]", "s71", mods="offen sc1")
    for k in range(NH): issueH(k)
    for gp in range(2):
        for i in range(4):
            A.I("buffer_load_dword", vr(244 + 4 * gp + i), "v9", "s[40:43]", "s54" if gp == 0 else "s55", mods=f"offen offset:{i * 1024}")
    A.I("v_lshl_add_u32", "v6", "v5", 2, "s60")
    A.I("global_load_dword", "v254", "v6", "s[14:15]")
    A.I("v_and_b32", "v14", 7, "v1")
    A.I("v_lshlrev_b32", "v14", 7, "v14")
    A.I("s_lshl_b32", "s66", "s52", 12)
    A.I("s_lshl_b32", "s71", "s22", 10)
    A.I("s_add_u32", "s66", "s66", "s71")
    A.I("s_add_u32", "s66", "s66", hex(F3))
    A.I("v_lshrrev_b32", "v7", 3, "v1")
    A.I("v_lshlrev_b32", "v7", 12, "v7")
    A.I("v_and_b32", "v8", 7, "v1")
    A.I("v_lshl_add_u32", "v7", "v8", 4, "v7")
    A.I("s_lshl_b32", "s67", "s52", 18)
    A.I("s_lshl_b32", "s68", "s22", 16)
    A.I("s_add_u32", "s67", "s67", "s68")
    A.I("s_lshl_b32", "s68", "s51", 7)
    A.I("s_add_u32", "s67", "s67", "s68")
    A.I("s_add_u32", "s67", "s67", hex(ST))
    A.I("s_add_u32", "s68", "s67", 8 * 4096)
    for k in range(22):
        if k == 21:
            A.I("s_cmp_ge_u32", "s22", 2)
            A.I("s_cbranch_scc1", L("M_skip21"))
        A.wait_vm(f"h{k}")
        stampn(A, f"m_k{k}")
        wb = k if k < 12 else k - 12
        if k >= 12: A.wait_l(f"S{k}")
        for tj in range(2):
            for e in range(2):
                acc = vr(ACC + 32 * tj + 16 * e, 16)
                A.I("v_mfma_f32_32x32x16_bf16", acc, vr(HR + 8 * (k % NH) + 4 * tj, 4), vr(B(2 * wb + e), 4), acc if k else "0")
        if k + NH < 22: issueH(k + NH)
        if k < 10:
            A.I("ds_read_b128", vr(B(2 * k), 4), "v11", mods=f"offset:{k * 2048}")
            A.I("ds_read_b128", vr(B(2 * k + 1), 4), "v11", mods=f"offset:{k * 2048 + 1024}", tag=f"S{k + 12}")
        if k == 14:
            A.I("buffer_load_dword", "v253", "v14", "s[24:27]", "s66", mods="offen sc1", tag="f3")
    A.label(L("M_skip21"))
    stampn(A, "m_g2")
    def poll3():
        A.I("buffer_load_dword", "v253", "v14", "s[24:27]", "s66", mods="offen sc1")
    spin_check(A, L, "M_p3", "v253", "v252", poll3)
    A.I("buffer_load_dwordx4", "v[180:183]", "v7", "s[24:27]", "s67", mods="offen sc1")
    A.I("buffer_load_dwordx4", "v[184:187]", "v7", "s[24:27]", "s68", mods="offen sc1")
    stampn(A, "m_f3")
    OWN = 16
    for wd in range(4):
        src = [ACC + 32 * (wd >> 1) + 16 * e + 8 * (wd & 1) + 4 * q for e in range(2) for q in range(2)]
        A.I("s_cmp_eq_u32", "s22", wd)
        A.I("s_cbranch_scc1", L(f"own{wd}"))
        A.I("s_sub_u32", "s71", wd + 3, "s22")
        A.I("s_and_b32", "s71", "s71", 3)
        A.I("s_lshl_b32", "s71", "s71", 12)
        A.I("v_add_u32", "v8", "s71", "v11")
        for q, r in enumerate(src):
            A.I("ds_write_b128", "v8", vr(r, 4), mods=f"offset:{q * 1024}")
        A.I("s_branch", L(f"nxt{wd}"))
        A.label(L(f"own{wd}"))
        if wd == 0: A.I("s_nop", 3)
        for q, r in enumerate(src):
            for i in range(0, 4, 2):
                A.I("v_pk_mov_b32", vr(OWN + 4 * q + i, 2), vr(r + i, 2), vr(r + i, 2), mods="op_sel:[0,1]")
        A.label(L(f"nxt{wd}"))
    XU = 32
    for gp in range(2):
        for i in range(4):
            A.I("v_lshlrev_b32", vr(XU + 4 * gp + i), 16, vr(244 + 4 * gp + i))
            A.I("v_and_b32", vr(XU + 8 + 4 * gp + i), "s64", vr(244 + 4 * gp + i))
    A.I("v_lshlrev_b32", "v48", 16, "v254")
    A.I("v_and_b32", "v50", "s64", "v254")
    for sl in range(3):
        A.I("s_add_u32", "s71", "s22", 1 + sl)
        A.I("s_and_b32", "s71", "s71", 3)
        A.I("s_mul_i32", "s71", "s71", 20480)
        A.I("s_add_u32", "s71", "s71", (2 - sl) * 4096)
        A.I("v_add_u32", vr(52 + sl), "s71", "v2")
    A.I("s_lshl_b32", "s71", "s22", 5)
    A.I("v_add_u32", "v55", "s71", "v11")
    A.I("v_lshrrev_b32", "v56", 3, "v5")
    A.I("v_mul_u32_u24", "v56", 20512, "v56")
    A.I("v_bfe_u32", "v57", "v5", 2, 1)
    A.I("v_mul_u32_u24", "v57", 1040, "v57")
    A.I("v_add_u32", "v56", "v56", "v57")
    A.I("v_and_b32", "v57", 3, "v5")
    A.I("v_lshl_add_u32", "v56", "v57", 8, "v56")
    A.I("v_lshl_add_u32", "v56", "v4", 3, "v56")
    A.I("v_add_u32", "v56", "s71", "v56")
    A.I("s_mov_b32", "s72", "0xbfb8aa3b")
    A.I("s_mov_b32", "s73", "0xbfb8aa3b")
    A.wait(vm=0)
    A.I("ds_write_b128", "v55", "v[180:183]", mods="offset:12288")
    A.I("ds_write_b128", "v55", "v[184:187]", mods=f"offset:{12288 + 1040}")
    A.wait(lgkm=0)
    A.I("s_barrier")
    stampn(A, "m_red")
    RD = 64
    for sl in range(3):
        for q in range(4):
            A.I("ds_read_b128", vr(RD + 16 * sl + 4 * q, 4), vr(52 + sl), mods=f"offset:{q * 1024}", tag=f"R{sl}")
    SV = 112
    for e in range(2):
        for gp in range(2):
            A.I("ds_read_b64", vr(SV + 4 * e + 2 * gp, 2), "v56", mods=f"offset:{12288 + 128 * e + 16 * gp}")
    for p in range(8):
        A.I("v_pk_add_f32", vr(OWN + 2 * p, 2), vr(OWN + 2 * p, 2), "v[48:49]" if p < 4 else "v[50:51]", mods="op_sel_hi:[1,0]")
    for sl in range(3):
        A.wait_l(f"R{sl}")
        for p in range(8):
            A.I("v_pk_add_f32", vr(OWN + 2 * p, 2), vr(OWN + 2 * p, 2), vr(RD + 16 * sl + 2 * p, 2))
    T_ = 128; SU = 144
    for p in range(8): A.I("v_pk_mul_f32", vr(T_ + 2 * p, 2), vr(OWN + 2 * p, 2), "s[72:73]")
    for r in range(16): A.I("v_exp_f32", vr(T_ + r), vr(T_ + r))
    A.wait(lgkm=0)
    for k in range(8):
        A.I("v_lshlrev_b32", vr(SU + 2 * k), 16, vr(SV + k))
        A.I("v_and_b32", vr(SU + 2 * k + 1), "s64", vr(SV + k))
    for p in range(8): A.I("v_pk_add_f32", vr(T_ + 2 * p, 2), vr(T_ + 2 * p, 2), "1.0", mods="op_sel_hi:[1,0]")
    for p in range(8): A.I("v_pk_mul_f32", vr(SU + 2 * p, 2), vr(SU + 2 * p, 2), vr(OWN + 2 * p, 2))
    for r in range(16): A.I("v_rcp_f32", vr(T_ + r), vr(T_ + r))
    for p in range(8): A.I("v_pk_fma_f32", vr(T_ + 2 * p, 2), vr(T_ + 2 * p, 2), vr(SU + 2 * p, 2), vr(XU + 2 * p, 2))
    for gp in range(2):
        for i in range(4):
            r = 4 * gp + i
            A.I("v_cvt_pk_bf16_f32", vr(64 + r), vr(T_ + r), vr(T_ + 8 + r))
            A.I("buffer_store_dword", vr(64 + r), "v9", "s[44:47]", "s54" if gp == 0 else "s55", mods=f"offen offset:{i * 1024}")
    stamp_flush(A, 0, "s[20:21]", 7)
    A.I("s_endpgm")
```

```python
from asmlib import *
from layout1 import *
from k_prep import srd, DPPM, reduce32, gen_kgen_pair_setup, gen_kgen_pair
KC = 0
UL = 33280
KDT = UL + 9216
ACCX = KDT + 2 * 5632
PSET = [(0, 3, 5, 6), (1, 2, 4, 7)]

def spin_check(A, L, name, vflag, vtag, reissue, cnt="s70", first=False, wait_tag=None):
    if first: reissue()
    A.I("s_mov_b32", cnt, SPIN_LIMIT)
    if wait_tag: A.wait_vm(wait_tag)
    else: A.wait(vm=0)
    A.label(L(name))
    A.I("v_cmp_ne_u32", "vcc", vflag, vtag)
    A.I("s_cbranch_vccz", L(name + "_ok"))
    A.I("s_sub_u32", cnt, cnt, 1)
    A.I("s_cbranch_scc1", L(name + "_ok"))
    A.I("s_sleep", 2)
    reissue(); A.vmq.pop()
    A.wait(vm=0)
    A.I("s_branch", L(name))
    A.label(L(name + "_ok"))

def get_tag(A, L, name, vtag, vzero, dbg, cnt="s70"):
    A.I("s_mov_b32", cnt, SPIN_LIMIT)
    A.label(L(name))
    A.I("v_cmp_eq_u32", "vcc", 0, vtag)
    A.I("s_cbranch_vccz", L(name + "_ok"))
    A.I("s_sub_u32", cnt, cnt, 1)
    A.I("s_cbranch_scc1", L(name + "_ok"))
    A.I("s_sleep", 2)
    A.I("global_load_dword", vtag, vzero, dbg, mods="sc1"); A.vmq.pop()
    A.wait(vm=0)
    A.I("s_branch", L(name))
    A.label(L(name + "_ok"))

def code_prefetch(A, start_label, nbytes, vtmp, vdst, L):
    A.I("s_getpc_b64", "s[74:75]")
    A.I("v_lshlrev_b32", vtmp, 7, "v0")
    assert nbytes <= 32768
    A.I("v_cmp_gt_u32", "vcc", nbytes - 256, vtmp)
    A.I("v_cndmask_b32", vtmp, 0, vtmp, "vcc")
    A.I("global_load_dword", vdst, vtmp, "s[74:75]")

def code_prefetch2(A, nbytes):
    per = ((nbytes - 256) // 128 + 31) // 32
    A.I("s_getpc_b64", "s[74:75]")
    A.I("s_bfe_u32", "s72", "s2", "0x50003")
    A.I("s_mul_i32", "s72", "s72", per * 128)
    A.I("v_lshlrev_b32", "v3", 7, "v0")
    A.I("v_add_u32", "v3", "s72", "v3")
    A.I("v_min_u32", "v3", nbytes - 256, "v3")
    A.I("v_cmp_gt_u32", "vcc", per, "v0")
    A.I("s_and_saveexec_b64", "s[72:73]", "vcc")
    A.I("global_load_dword", "v3", "v3", "s[74:75]")
    A.I("s_mov_b64", "exec", "s[72:73]")

def gen_K(A, L, ksize):
    A.label(L("K"))
    if "nok" in OPTS: A.I("s_endpgm")
    A.I("s_setprio", 3)
    A.I("s_memrealtime", "s[76:77]")
    A.I("s_load_dwordx16", "s[4:19]", "s[0:1]", 0)
    A.I("s_load_dwordx2", "s[20:21]", "s[0:1]", 64)
    A.I("s_load_dwordx4", "s[24:27]", "s[0:1]", 120)
    A.I("s_load_dwordx2", "s[22:23]", "s[0:1]", 96)
    code_prefetch2(A, ksize)
    A.I("s_and_b32", "s3", "s2", 255)
    A.I("v_and_b32", "v1", 63, "v0")
    A.I("v_lshrrev_b32", "v2", 6, "v0")
    A.I("v_readfirstlane_b32", "s28", "v2")
    A.I("s_and_b32", "s29", "s3", 7)
    A.I("s_lshl_b32", "s29", "s29", 5)
    A.I("s_lshr_b32", "s30", "s3", 3)
    A.I("s_add_u32", "s29", "s29", "s30")
    A.I("s_lshr_b32", "s30", "s28", 1)
    A.I("s_and_b32", "s31", "s28", 1)
    A.I("s_lshl_b32", "s32", "s29", 1)
    A.I("s_add_u32", "s32", "s32", "s30")
    A.I("s_lshl_b32", "s33", "s31", 7)
    A.I("s_lshl_b32", "s34", "s32", 8)
    A.I("s_add_u32", "s33", "s33", "s34")
    A.I("v_lshl_add_u32", "v2", "v1", 1, "s33")
    A.I("s_lshl_b32", "s34", "s32", 1)
    A.I("v_mov_b32", "v7", "s34")
    A.I("s_lshl_b32", "s34", "s3", 3)
    A.I("s_lshl_b32", "s35", "s28", 1)
    A.I("s_add_u32", "s34", "s34", "s35")
    A.I("s_lshl_b32", "s34", "s34", 10)
    A.I("v_lshrrev_b32", "v5", 5, "v1")
    A.I("v_and_b32", "v6", 31, "v1")
    A.I("v_lshlrev_b32", "v4", 10, "v5")
    A.I("v_lshl_add_u32", "v4", "v6", 4, "v4")
    A.I("v_add_u32", "v4", "s34", "v4")
    A.I("v_mov_b32", "v122", 0)
    A.wait(lgkm=0)
    P = 48
    A.I("global_load_dwordx4", "v[8:11]", "v4", "s[4:5]", tag="x")
    A.I("global_load_dwordx4", "v[12:15]", "v4", "s[4:5]", mods="offset:512", tag="x")
    A.I("s_or_b32", "s76", "s76", 1)
    A.I("s_or_b32", "s61", "s3", "s28")
    A.I("s_cmp_lg_u32", "s61", 0)
    A.I("s_cbranch_scc1", L("K_notag"))
    A.I("v_mov_b32", "v123", "s76")
    A.I("s_mov_b64", "exec", 1)
    A.I("global_store_dword", "v122", "v123", "s[24:25]", mods="sc1"); A.vmq.pop()
    A.I("s_mov_b64", "exec", -1)
    A.label(L("K_notag"))
    for k, sb in enumerate((6, 8, 10, 12, 14, 16)):
        A.I("global_load_ushort", vr(P + k), "v2", sr(sb, 2))
    A.I("global_load_ushort", vr(P + 6), "v7", "s[18:19]", tag="par")
    srd(A, 64, 22, 1376 * 1024)
    A.I("s_lshl_b32", "s52", "s3", 2)
    A.I("s_add_u32", "s52", "s52", "s28")
    A.I("s_and_b32", "s53", "s52", 7)
    A.I("s_lshr_b32", "s52", "s52", 3)
    A.I("s_lshl_b32", "s57", "s52", 14)
    A.I("s_lshl_b32", "s58", "s53", 7)
    A.I("s_add_u32", "s57", "s57", "s58")
    A.I("s_add_u32", "s58", "s57", 8192)
    A.I("v_lshlrev_b32", "v136", 12, "v5")
    A.I("v_lshl_add_u32", "v136", "v6", 2, "v136")
    for i in range(8):
        A.I("buffer_load_dword", vr((140 if i % 2 == 0 else 144) + i // 2), "v136", "s[64:67]", "s57" if i < 4 else "s58", mods=f"offen offset:{(i & 3) * 1024}", tag="w2")
    A.I("s_mul_i32", "s57", "s53", 87)
    A.I("s_add_u32", "s57", "s57", "s52")
    A.I("s_lshl_b32", "s57", "s57", 11)
    A.I("s_add_u32", "s57", "s57", hex(W2F))
    A.I("s_cmp_ge_u32", "s52", 86)
    A.I("s_cselect_b32", "s57", "0x7f000000", "s57")
    A.I("s_mov_b32", "s68", "0x05040100")
    A.I("s_mov_b32", "s69", "0x07060302")
    A.I("s_lshl_b32", "s33", "s29", 2)
    A.I("s_load_dword", "s36", "s[20:21]", "s33")
    srd(A, 44, 26, WS_SIZE)
    A.I("s_mov_b32", "s56", "0x3f803f80")
    A.I("s_mov_b32", "s59", "0xffff0000")
    A.I("v_and_b32", "v56", 15, "v1")
    A.I("v_cvt_f32_u32", "v56", "v56")
    A.I("s_mul_i32", "s60", "s28", 2 * 1088)
    A.I("v_mul_u32_u24", "v57", 1088, "v5")
    A.I("v_lshl_add_u32", "v57", "v6", 4, "v57")
    A.I("v_add_u32", "v57", "s60", "v57")
    A.I("v_mov_b32", "v58", 0)
    A.I("v_mov_b32", "v59", 0)
    A.I("v_lshlrev_b32", "v7", 4, "v1")
    A.I("v_and_b32", "v16", 7, "v1")
    A.I("v_mul_u32_u24", "v16", 1088, "v16")
    A.I("v_lshrrev_b32", "v17", 3, "v1")
    A.I("v_lshl_add_u32", "v16", "v17", 4, "v16")
    A.I("s_lshl_b32", "s54", "s28", 8)
    A.I("v_add_u32", "v16", "s54", "v16")
    A.I("v_bfe_u32", "v17", "v1", 2, 2)
    A.I("v_mul_u32_u24", "v17", 1088, "v17")
    A.I("v_lshrrev_b32", "v18", 4, "v1")
    A.I("v_lshl_add_u32", "v17", "v18", 5, "v17")
    A.I("v_and_b32", "v18", 3, "v1")
    A.I("v_lshl_add_u32", "v17", "v18", 3, "v17")
    A.I("v_add_u32", "v17", "s54", "v17")
    A.I("s_lshl_b32", "s54", "s3", 13)
    A.I("s_lshl_b32", "s55", "s28", 11)
    A.I("s_add_u32", "s54", "s54", "s55")
    A.I("s_add_u32", "s55", "s54", hex(XNT))
    A.I("s_mul_i32", "s37", "s30", 5632)
    A.I("s_add_u32", "s37", "s37", KDT + 16)
    A.I("s_sub_u32", "s38", "s37", 69120)
    A.I("s_add_u32", "s39", "s37", 508)
    A.I("s_lshl_b32", "s40", "s31", 12)
    A.I("v_lshl_add_u32", "v20", "v1", 5, "s40")
    AD = 200
    for rd in range(2):
        for ii in range(11):
            A.I("v_sub_u32", vr(24 + ii), 8176 - 2048 * rd - 4 * (ii - 3), "v20")
        for ii in range(11):
            A.I("v_add_u32", vr(AD + 11 * rd + ii), "s37", vr(24 + ii))
            if rd == 1 and ii >= 8: A.I("v_max_i32", vr(24 + ii), 0, vr(24 + ii))
            A.I("v_cvt_f32_u32", vr(24 + ii), vr(24 + ii))
        for ii in range(0, 11, 2):
            A.I("v_cvt_pk_bf16_f32", vr(36 + ii // 2), vr(24 + ii), vr(24 + min(ii + 1, 10)))
        for ii in range(11):
            A.I("v_mad_u32_u16", vr(24 + ii), vr(36 + ii // 2), 4, "s38", mods=("op_sel:[1,0,0,0]" if ii & 1 else ""))
        for ii in range(11):
            A.I("v_med3_i32", vr(AD + 11 * rd + ii), vr(24 + ii), vr(AD + 11 * rd + ii), "s39")
    A.wait(vm=0)
    stampn(A, "k_x")
    for p in range(4):
        A.I("v_perm_b32", vr(136 + p), vr(144 + p), vr(140 + p), "s68")
        A.I("v_perm_b32", vr(140 + p), vr(144 + p), vr(140 + p), "s69")
    A.I("buffer_store_dwordx4", "v[136:139]", "v7", "s[44:47]", "s57", mods="offen sc1")
    A.I("buffer_store_dwordx4", "v[140:143]", "v7", "s[44:47]", "s57", mods="offen offset:1024 sc1")
    A.I("global_load_dword", "v123", "v122", "s[24:25]", mods="sc1", tag="tag")
    for k in range(8):
        A.I("v_dot2_f32_bf16", "v58", vr(8 + k), "s56", "v58")
        A.I("v_dot2_f32_bf16", "v59", vr(8 + k), vr(8 + k), "v59")
    reduce32(A, [58, 59], [60, 61])
    A.I("v_mul_f32", "v58", "0x3b000000", "v58")
    A.I("v_mul_f32", "v59", "0x3b000000", "v59")
    A.I("v_fma_f32", "v59", "-v58", "v58", "v59")
    A.I("v_max_f32", "v59", 0, "v59")
    A.I("v_cvt_pk_bf16_f32", "v60", 0, "v58")
    A.I("v_cvt_pk_bf16_f32", "v59", 0, "v59")
    A.I("v_add_f32", "v59", "0x3727c5ac", "v59")
    A.I("v_cvt_pk_bf16_f32", "v59", 0, "v59")
    A.I("v_sqrt_f32", "v59", "v59")
    A.I("v_cvt_pk_bf16_f32", "v59", 0, "v59")
    A.I("v_rcp_f32", "v62", "v59")
    for k in range(8):
        t = 64 + 2 * (k % 4)
        A.I("v_lshlrev_b32", vr(t), 16, vr(8 + k))
        A.I("v_and_b32", vr(t + 1), "s59", vr(8 + k))
        A.I("v_pk_add_f32", vr(t, 2), vr(t, 2), "v[60:61]", mods="op_sel_hi:[1,0] neg_lo:[0,1] neg_hi:[0,1]")
        A.I("v_cvt_pk_bf16_f32", vr(t), 0, vr(t))
        A.I("v_cvt_pk_bf16_f32", vr(t + 1), 0, vr(t + 1))
        A.I("v_pk_mul_f32", vr(t, 2), vr(t, 2), "v[62:63]", mods="op_sel_hi:[1,0]")
        A.I("v_cvt_pk_bf16_f32", vr(8 + k), vr(t), vr(t + 1))
        if k == 3: A.I("ds_write_b128", "v57", "v[8:11]")
    A.I("ds_write_b128", "v57", "v[12:15]", mods="offset:512")
    A.wait(lgkm=0)
    A.I("s_barrier")
    A.I("ds_read_b64_tr_b16", "v[24:25]", "v17")
    A.I("ds_read_b64_tr_b16", "v[26:27]", "v17", mods=f"offset:{4*1088}")
    A.I("ds_read_b64_tr_b16", "v[28:29]", "v17", mods="offset:128")
    A.I("ds_read_b64_tr_b16", "v[30:31]", "v17", mods=f"offset:{4*1088+128}")
    A.wait(lgkm=2)
    A.I("buffer_store_dwordx4", "v[24:27]", "v7", "s[44:47]", "s55", mods="offen sc1")
    A.wait(lgkm=0)
    A.I("buffer_store_dwordx4", "v[28:31]", "v7", "s[44:47]", "s55", mods="offen offset:1024 sc1")
    stampn(A, "k_st")
    A.wait_vm("tag")
    get_tag(A, L, "K_tag", "v123", "v122", "s[24:25]")
    A.I("v_mov_b32", "v132", "v60")
    A.I("v_mov_b32", "v133", "v62")
    A.I("v_mov_b32", "v134", "v123")
    A.I("v_mov_b32", "v135", "v123")
    A.I("v_lshlrev_b32", "v131", 4, "v5")
    A.I("s_lshl_b32", "s71", "s3", 7)
    A.I("s_lshl_b32", "s72", "s28", 5)
    A.I("s_add_u32", "s71", "s71", "s72")
    A.I("s_add_u32", "s71", "s71", hex(STAT))
    A.I("s_mov_b32", "exec_lo", 1)
    A.I("s_mov_b32", "exec_hi", 1)
    A.I("buffer_store_dwordx4", "v[132:135]", "v131", "s[44:47]", "s71", mods="offen sc1")
    A.I("s_mov_b64", "exec", -1)
    A.I("s_lshl_b32", "s71", "s3", 8)
    A.I("s_lshl_b32", "s72", "s28", 6)
    A.I("s_add_u32", "s71", "s71", "s72")
    A.I("s_add_u32", "s71", "s71", hex(F1B))
    A.I("s_mov_b64", "exec", 1)
    A.I("buffer_store_dword", "v123", "v122", "s[44:47]", "s71", mods="offen sc1")
    A.I("s_mov_b64", "exec", -1)
    gen_kgen_pair_setup(A, P)
    A.wait(vm=2)
    stampn(A, "k_dr")
    A.I("s_barrier")
    A.I("s_cmp_lg_u32", "s28", 0)
    A.I("s_cbranch_scc1", L("K_f1done"))
    A.I("s_lshl_b32", "s71", "s3", 7)
    A.I("s_add_u32", "s71", "s71", hex(F1))
    A.I("s_mov_b64", "exec", 1)
    A.I("buffer_store_dword", "v123", "v122", "s[44:47]", "s71", mods="offen sc1")
    A.I("s_mov_b64", "exec", -1)
    A.label(L("K_f1done"))
    stampn(A, "k_f1")
    A.I("s_setprio", 0)
    gen_kgen_pair(A, P, 56, 0)
    A.I("s_lshl_b32", "s71", "s28", 13)
    A.I("v_lshl_add_u32", "v120", "v1", 7, "s71")
    def poll_issue():
        A.I("buffer_load_dword", "v121", "v120", "s[44:47]", "s41", mods="offen sc1")
    A.I("s_mov_b32", "s41", hex(F1))
    for pi in range(1, 8):
        if pi == 3: poll_issue()
        if pi == 6:
            spin_check(A, L, "K_p1", "v121", "v123", poll_issue)
            A.I("v_readfirstlane_b32", "s51", "v123")
            A.I("v_lshrrev_b32", "v120", 1, "v1")
            A.I("v_lshlrev_b32", "v120", 13, "v120")
            A.I("v_and_b32", "v121", 1, "v1")
            A.I("v_lshl_add_u32", "v120", "v121", 4, "v120")
            A.I("s_lshl_b32", "s41", "s28", 19)
            A.I("s_lshl_b32", "s42", "s29", 5)
            A.I("s_add_u32", "s41", "s41", "s42")
            A.I("s_add_u32", "s41", "s41", hex(XNT))
            A.I("s_add_u32", "s42", "s41", 32 * 8192)
            A.I("buffer_load_dwordx4", "v[124:127]", "v120", "s[44:47]", "s41", mods="offen sc1")
            A.I("buffer_load_dwordx4", "v[128:131]", "v120", "s[44:47]", "s42", mods="offen sc1")
        stampn(A, f"k_p{pi}")
        gen_kgen_pair(A, P, 56, pi)
    stampn(A, "k_kgen")
    KACC = 100
    A.I("s_mul_i32", "s42", "s31", 2816)
    A.I("s_add_u32", "s42", "s42", "s37")
    A.I("v_and_b32", "v8", 15, "v1")
    A.I("v_lshrrev_b32", "v14", 4, "v1")
    A.I("v_lshlrev_b32", "v9", 6, "v8")
    A.I("v_lshl_add_u32", "v9", "v14", 4, "v9")
    A.I("v_add_u32", "v9", "s42", "v9")
    for k in range(4): A.I("v_mov_b32", vr(24 + k), 0)
    A.I("s_mul_i32", "s43", "s30", 4608)
    A.I("s_add_u32", "s43", "s43", UL)
    A.I("v_lshl_add_u32", "v10", "v1", 3, "s43")
    A.I("ds_write_b64", "v10", "v[24:25]")
    A.I("s_mul_i32", "s48", "s30", 16640)
    A.I("v_lshrrev_b32", "v10", 1, "v1")
    A.I("v_mul_u32_u24", "v11", 4160, "v10")
    A.I("v_lshl_add_u32", "v11", "v121", 4, "v11")
    A.I("v_add_u32", "v11", "s48", "v11")
    A.I("v_mov_b32", "v12", "s42")
    A.I("v_mul_u32_u24", "v13", 4608, "v121")
    A.I("v_lshl_add_u32", "v10", "v10", 4, "v13")
    A.I("s_lshl_b32", "s49", "s28", 10)
    A.I("s_add_u32", "s49", "s49", UL + 512)
    A.I("v_add_u32", "v10", "s49", "v10")
    A.I("ds_write_b128", "v9", vr(KACC, 4))
    A.I("s_mov_b32", "exec_lo", "0xff00ff00")
    A.I("s_mov_b32", "exec_hi", "0xff00ff00")
    for s in range(1, 4):
        A.I("ds_write_b128", "v9", vr(KACC + 4 * s, 4), mods=f"offset:{512 * s}")
    A.I("s_mov_b64", "exec", "0x8000")
    A.I("ds_write_b32", "v12", vr(KACC + 18), mods=f"offset:{2560}")
    A.I("s_mov_b64", "exec", "0xff")
    A.I("ds_write_b128", "v11", "v[24:27]", mods="offset:4096")
    A.I("v_subrev_u32", "v12", 16, "v12")
    A.I("ds_write_b128", "v12", "v[24:27]")
    A.I("s_mov_b64", "exec", -1)
    stampn(A, "k_uw")
    A.wait(vm=0)
    stampn(A, "k_u")
    A.I("ds_write_b128", "v10", "v[124:127]")
    A.I("ds_write_b128", "v10", "v[128:131]", mods="offset:512")
    A.I("s_lshl_b32", "s49", "s31", 11)
    A.I("s_add_u32", "s50", "s49", "s48")
    A.I("v_add_u32", "v6", "s50", "v7")
    A.I("v_and_b32", "v12", 3, "v1")
    A.I("v_mul_u32_u24", "v12", 4160, "v12")
    A.I("v_bfe_u32", "v13", "v1", 2, 2)
    A.I("v_lshlrev_b32", "v13", 3, "v13")
    A.I("v_lshl_add_u32", "v13", "v14", 4, "v13")
    A.I("v_sub_u32", "v12", "v12", "v13")
    A.I("s_add_u32", "s50", "s48", 2 * 2052 - 64 * 63)
    A.I("v_add_u32", "v12", "s50", "v12")
    A.I("v_lshlrev_b32", "v13", 5, "v8")
    A.I("v_lshlrev_b32", "v15", 4, "v14")
    A.I("v_sub_u32", "v13", "v13", "v15")
    A.I("s_add_u32", "s50", "s43", 512 + 16 - 448)
    A.I("v_add_u32", "v13", "s50", "v13")
    A.I("v_lshlrev_b32", "v15", 5, "v8")
    A.I("v_lshl_add_u32", "v15", "v14", 3, "v15")
    A.I("s_add_u32", "s50", "s43", "s49")
    A.I("s_add_u32", "s50", "s50", 512)
    A.I("v_add_u32", "v38", "s50", "v15")
    A.wait(lgkm=0)
    A.I("s_barrier")
    stampn(A, "k_b1")
    for rd in range(2):
        for ii in range(11):
            A.I("ds_read2st64_b32", vr(128 + 22 * rd + 2 * ii, 2), vr(AD + 11 * rd + ii), mods="offset0:0 offset1:11", tag=f"e{rd}")
    for rd in range(2):
        A.wait_l(f"e{rd}")
        for ii in range(11):
            r = 128 + 22 * rd + 2 * ii
            A.I("v_add_f32", vr(r), vr(r), vr(r + 1))
        e = lambda ip: vr(128 + 22 * rd + 2 * (ip + 3))
        base = 64 + 16 * rd
        for sg in range(4):
            for dwi in range(4):
                lo = 2 * dwi - sg
                A.I("v_cvt_pk_bf16_f32", vr(base + 4 * sg + dwi), e(lo), e(lo + 1))
            A.I("ds_write_b128", "v6", vr(base + 4 * sg, 4), mods=f"offset:{sg * 4160 + rd * 1024}")
    A.wait(lgkm=0)
    A.I("s_barrier")
    stampn(A, "k_exp")
    KF = 128; UB = 96; CA = 64
    A.I("s_cmp_eq_u32", "s31", 1)
    A.I("s_cbranch_scc1", L("conv1"))
    for hw in range(2):
        if hw == 1: A.label(L("conv1"))
        Ps = PSET[hw]
        steps = [(Q, r) for Q in range(8 - min(Ps)) for r in range(8)]
        first = set()
        NB = 8
        def issueU(n):
            Q, r = steps[n]
            q = 8 * Q - r
            A.I("ds_read_b128", vr(UB + 4 * (n % NB), 4), "v13", mods=f"offset:{64 * (q + 7)}", tag=f"U{n}")
        def issueK(r):
            for si, P_ in enumerate(Ps):
                p = 8 * P_ + r
                reg = KF + 32 * si + 4 * r
                A.I("ds_read_b64", vr(reg, 2), "v12", mods=f"offset:{64 * (63 - p)}")
                A.I("ds_read_b64", vr(reg + 2, 2), "v12", mods=f"offset:{64 * (63 - p) + 8}", tag=f"K{r}")
        def mf(n):
            Q, r = steps[n]
            for si, P_ in enumerate(Ps):
                if P_ + Q > 7: continue
                acc = vr(CA + 4 * (P_ + Q), 4)
                c = acc if (P_ + Q) in first else "0"
                first.add(P_ + Q)
                A.I("v_mfma_f32_16x16x32_bf16", acc, vr(KF + 32 * si + 4 * r, 4), vr(UB + 4 * (n % NB), 4), c)
        issueU(0); issueK(0)
        for n in range(8):
            if n < 7:
                issueU(n + 1); issueK(n + 1)
                A.wait_l(f"K{n}")
            else:
                for k in range(8, 8 + NB - 2): issueU(k)
                A.wait_l(f"K{n}")
            mf(n)
        stampn(A, "k_q0")
        nxt = 8 + NB - 2
        issueU(nxt); nxt += 1
        for n in range(8, len(steps)):
            A.wait_l(f"U{n}")
            mf(n)
            if nxt < len(steps): issueU(nxt)
            nxt += 1
        stampn(A, "k_mf")
        oth = range(4, 8) if hw == 0 else range(1, 4)
        A.I("s_lshl_b32", "s41", "s30", 13)
        A.I("s_add_u32", "s41", "s41", ACCX)
        A.I("v_add_u32", "v39", "s41", "v7")
        for k in range(4):
            A.I("ds_read_b64", vr(40 + 2 * k, 2), "v38", mods=f"offset:{512 * k}")
        for Aa in oth:
            A.I("ds_write_b128", "v39", vr(CA + 4 * Aa, 4), mods=f"offset:{Aa * 1024}")
        own = range(0, 4) if hw == 0 else range(4, 8)
        A.I("s_lshl_b32", "s42", "s36", 16)
        A.I("s_and_b32", "s43", "s36", "0xffff0000")
        A.I("s_cmp_eq_u32", "s30", 0)
        A.I("s_cselect_b32", "s42", "s42", "s43")
        A.I("s_mov_b32", "s43", "s42")
        A.I("s_lshl_b32", "s48", "s32", 12)
        A.I("s_add_u32", "s48", "s48", "s49")
        A.I("s_add_u32", "s48", "s48", hex(ST))
        A.wait(lgkm=0)
        A.I("s_barrier")
        for k, Aa in enumerate(own):
            if hw == 0 and Aa == 0: continue
            A.I("ds_read_b128", vr(UB + 4 * k, 4), "v39", mods=f"offset:{Aa * 1024}", tag=f"X{k}")
        for k, Aa in enumerate(own):
            t = 48 + 4 * k; a = CA + 4 * Aa
            A.I("v_lshlrev_b32", vr(t), 16, vr(40 + 2 * k))
            A.I("v_and_b32", vr(t + 1), "s59", vr(40 + 2 * k))
            A.I("v_lshlrev_b32", vr(t + 2), 16, vr(41 + 2 * k))
            A.I("v_and_b32", vr(t + 3), "s59", vr(41 + 2 * k))
            A.I("v_pk_fma_f32", vr(a, 2), vr(t, 2), "s[42:43]", vr(a, 2))
            A.I("v_pk_fma_f32", vr(a + 2, 2), vr(t + 2, 2), "s[42:43]", vr(a + 2, 2))
        for k, Aa in enumerate(own):
            a = CA + 4 * Aa
            if not (hw == 0 and Aa == 0):
                A.wait_l(f"X{k}")
                A.I("v_pk_add_f32", vr(a, 2), vr(a, 2), vr(UB + 4 * k, 2))
                A.I("v_pk_add_f32", vr(a + 2, 2), vr(a + 2, 2), vr(UB + 4 * k + 2, 2))
            A.I("v_cvt_pk_bf16_f32", vr(a), vr(a), vr(a + 1))
            A.I("v_cvt_pk_bf16_f32", vr(a + 1), vr(a + 2), vr(a + 3))
            A.I("buffer_store_dwordx2", vr(a, 2), "v15", "s[44:47]", "s48", mods=f"offen offset:{512 * k} sc1")
        if hw == 0: A.I("s_branch", L("K_pub"))
    A.label(L("K_pub"))
    stampn(A, "k_conv")
    A.wait(vm=0)
    A.I("s_barrier")
    A.I("s_cmp_lg_u32", "s28", 0)
    A.I("s_cbranch_scc1", L("K_end"))
    A.I("s_lshl_b32", "s71", "s29", 7)
    A.I("s_add_u32", "s71", "s71", hex(F3))
    if "kstop" in OPTS: A.I("v_readfirstlane_b32", "s51", "v123")
    A.I("v_mov_b32", "v8", "s51")
    A.I("v_mov_b32", "v9", 0)
    A.I("s_mov_b64", "exec", 1)
    A.I("buffer_store_dword", "v8", "v9", "s[44:47]", "s71", mods="offen sc1")
    A.I("s_mov_b64", "exec", -1)
    A.label(L("K_end"))
    stamp_flush(A, 0, "s[26:27]", 7)
    A.I("s_endpgm")
```

```python
from asmlib import *
from layout1 import *
from k_prep import srd
from t2_k import spin_check, code_prefetch2, get_tag

XB = 49152

def gen_M(A, L, msize):
    A.label(L("M"))
    if "nom" in OPTS: A.I("s_endpgm")
    A.I("s_setprio", 2)
    A.I("s_load_dwordx2", "s[4:5]", "s[0:1]", 0)
    A.I("s_load_dwordx8", "s[8:15]", "s[0:1]", 80)
    A.I("s_load_dwordx4", "s[16:19]", "s[0:1]", 112)
    A.I("s_load_dwordx2", "s[20:21]", "s[0:1]", 128)
    code_prefetch2(A, msize)
    A.I("v_and_b32", "v1", 63, "v0")
    A.I("v_lshrrev_b32", "v2", 6, "v0")
    A.I("v_readfirstlane_b32", "s22", "v2")
    A.I("s_and_b32", "s3", "s2", 255)
    A.I("s_and_b32", "s23", "s3", 7)
    A.I("s_lshr_b32", "s48", "s3", 3)
    A.I("s_lshl_b32", "s49", "s23", 1)
    A.I("s_lshr_b32", "s50", "s48", 4)
    A.I("s_add_u32", "s49", "s49", "s50")
    A.I("s_and_b32", "s50", "s48", 15)
    A.I("s_lshl_b32", "s51", "s23", 2)
    A.I("s_lshr_b32", "s52", "s48", 3)
    A.I("s_add_u32", "s51", "s51", "s52")
    A.I("s_and_b32", "s52", "s48", 7)
    A.I("s_lshl_b32", "s53", "s49", 2)
    A.I("s_add_u32", "s53", "s53", "s22")
    A.I("v_lshlrev_b32", "v2", 4, "v1")
    A.I("v_lshrrev_b32", "v4", 5, "v1")
    A.I("v_and_b32", "v5", 31, "v1")
    A.I("v_lshrrev_b32", "v9", 3, "v1")
    A.I("v_lshrrev_b32", "v10", 4, "v1")
    A.I("v_and_b32", "v11", 7, "v1")
    A.I("v_xor_b32", "v10", "v10", "v11")
    A.I("v_lshlrev_b32", "v9", 10, "v9")
    A.I("v_lshl_add_u32", "v12", "v10", 4, "v9")
    A.I("v_xor_b32", "v13", 64, "v12")
    A.I("s_mov_b32", "s54", 43691)
    for n in range(3):
        A.I("v_add_u32", "v9", 64 * n, "v1")
        A.I("v_mul_u32_u24", "v10", "s54", "v9")
        A.I("v_lshrrev_b32", "v10", 19, "v10")
        A.I("v_mul_u32_u24", "v11", 12, "v10")
        A.I("v_sub_u32", "v9", "v9", "v11")
        A.I("v_mul_u32_u24", "v10", 2752, "v10")
        A.I("v_lshl_add_u32", vr(6 + n), "v9", 4, "v10")
    A.I("v_and_b32", "v14", 15, "v1")
    A.I("v_lshlrev_b32", "v14", 7, "v14")
    A.I("s_mul_i32", "s55", "s50", 192)
    A.I("s_mul_i32", "s56", "s22", 16 * 2752)
    A.I("s_add_u32", "s56", "s56", "s55")
    A.I("s_mul_i32", "s57", "s22", 3072)
    A.I("s_lshl_b32", "s67", "s53", 15)
    A.I("s_lshl_b32", "s61", "s22", 12)
    A.I("s_add_u32", "s61", "s61", XB)
    A.I("s_lshl_b32", "s62", "s49", 17)
    A.I("s_lshl_b32", "s63", "s50", 13)
    A.I("s_add_u32", "s62", "s62", "s63")
    A.I("s_lshl_b32", "s63", "s22", 11)
    A.I("s_add_u32", "s62", "s62", "s63")
    A.wait(lgkm=0)
    for t in range(4):
        A.I("s_add_u32", "s63", "s55", 64 * t)
        A.I("s_min_u32", "s63", "s63", 2752 - 4)
        A.I("s_load_dword", sr(32 + t), "s[10:11]", "s63")
    srd(A, 40, 4, 2048 * 1024)
    srd(A, 28, 8, 512 * 2752)
    A.I("buffer_load_dword", "v3", "v14", "s[40:43]", "s62", mods="offen")
    def xdma(s):
        for b in range(4):
            A.I("s_add_u32", "m0", "s61", (s % 2) * 16384 + b * 1024)
            A.I("s_add_u32", "s63", "s67", b * 8192 + s * 128)
            A.I("buffer_load_dwordx4", "v12" if b % 2 == 0 else "v13", "s[40:43]", "s63", mods="offen lds", tag=f"x{s}")
    def wdma(s):
        for n in range(3):
            A.I("s_add_u32", "m0", "s57", (s % 4) * 12288 + n * 1024)
            A.I("buffer_load_dwordx4", vr(6 + n), "s[28:31]", "s56", mods="offen lds", tag=f"w{s}")
        A.I("s_add_u32", "s56", "s56", 64 * 2752)
    A.I("s_cmp_eq_u32", "s50", 15)
    A.I("s_cbranch_scc1", L("M_now1"))
    xdma(0); wdma(0); xdma(1); wdma(1); wdma(2)
    A.label(L("M_now1"))
    srd(A, 24, 20, WS_SIZE)
    srd(A, 44, 16, 2048 * 1024)
    A.I("s_mov_b32", "s64", "0xffff0000")
    A.I("s_mov_b32", "s69", "0x3f803f80")
    A.I("v_mov_b32", "v10", 0)
    A.I("s_mul_i32", "s58", "s22", 22)
    A.I("s_cmp_eq_u32", "s22", 3)
    A.I("s_cselect_b32", "s59", 1, 0)
    A.I("s_sub_u32", "s58", "s58", "s59")
    A.I("s_mul_i32", "s59", "s52", 87)
    A.I("s_add_u32", "s59", "s59", "s58")
    A.I("s_lshl_b32", "s59", "s59", 11)
    A.I("s_add_u32", "s59", "s59", hex(W2F))
    A.I("s_lshl_b32", "s60", "s52", 7)
    A.I("v_lshlrev_b32", "v9", 12, "v4")
    A.I("v_lshl_add_u32", "v9", "v5", 2, "v9")
    XA = 112
    WA = 252
    A.I("v_bfe_u32", "v14", "v1", 1, 3)
    A.I("v_xor_b32", "v14", "v14", "v4")
    A.I("s_lshl_b32", "s63", "s22", 1)
    A.I("v_xor_b32", "v14", "s63", "v14")
    A.I("v_lshlrev_b32", "v15", 7, "v5")
    A.I("v_add_u32", "v15", "s61", "v15")
    for k in range(4):
        if k: A.I("v_xor_b32", "v11", 2 * k, "v14")
        A.I("v_lshl_add_u32", vr(XA + k), "v14" if k == 0 else "v11", 4, "v15")
    A.I("v_bfe_u32", "v14", "v1", 2, 2)
    A.I("v_lshl_add_u32", "v14", "v4", 3, "v14")
    A.I("v_mul_u32_u24", "v14", 192, "v14")
    A.I("v_bfe_u32", "v15", "v1", 4, 1)
    A.I("v_lshl_add_u32", "v14", "v15", 5, "v14")
    A.I("v_and_b32", "v15", 3, "v1")
    A.I("v_lshl_add_u32", "v14", "v15", 3, "v14")
    for k in range(4):
        A.I("s_xor_b32", "s63", "s22", k)
        A.I("s_mul_i32", "s63", "s63", 3072)
        A.I("v_add_u32", vr(WA + k), "s63", "v14")
    A.I("s_cmp_lt_u32", "s22", 2)
    A.I("s_cselect_b32", "s63", 21, 20)
    A.I("v_min_u32", "v15", "s63", "v1")
    A.I("v_lshlrev_b32", "v15", 9, "v15")
    A.I("s_lshl_b32", "s65", "s58", 3)
    A.I("s_add_u32", "s65", "s65", "s52")
    A.I("s_lshl_b32", "s65", "s65", 6)
    A.I("s_add_u32", "s65", "s65", hex(F1B))
    TAG = "v14"; PF = "v11"
    def pollw():
        A.I("buffer_load_dword", PF, "v15", "s[24:27]", "s65", mods="offen sc1", tag="pw")
    EB = 204; LB = 16
    ldsfr = [(sl * 12288 + i * 1024, 0) for sl in range(4) for i in range(3)] + [(xi * 16384 + i * 1024, 1) for xi in range(2) for i in range(4)]
    def w2load(q):
        k = q // 2
        if q % 4 == 0 and q: pass
        so = q * 1024
        A.I("s_add_u32", "s63", "s59", so // 4096 * 4096)
        if k < 6:
            A.I("buffer_load_dwordx4", vr(EB + 4 * q, 4), "v2", "s[24:27]", "s63", mods=f"offen offset:{so % 4096} sc1", tag=f"q{q}")
        elif k >= 16:
            A.I("buffer_load_dwordx4", vr(LB + 4 * (q - 32), 4), "v2", "s[24:27]", "s63", mods=f"offen offset:{so % 4096} sc1", tag=f"q{q}")
        else:
            off, isx = ldsfr[q - 12]
            A.lines.pop(); A.hist.pop()
            A.I("s_add_u32", "s63", "s59", so)
            A.I("s_add_u32", "m0", "s61" if isx else "s57", off)
            A.I("buffer_load_dwordx4", "v2", "s[24:27]", "s63", mods="offen sc1 lds", tag=f"q{q}")
    A.I("s_cmp_eq_u32", "s50", 15)
    A.I("s_cbranch_scc1", L("M_g15"))
    ACC1 = 116; B1R = 16; CS = 64; WB = 180; CP = 108; NW = 5
    XFb = lambda s: 64 if s % 2 == 0 else 164
    for r in (CP, CP + 1, CP + 2): A.I("v_mov_b32", vr(r), 0)
    A.I("s_mul_i32", "s68", "s53", 86)
    A.I("s_mul_i32", "s63", "s50", 6)
    A.I("s_add_u32", "s68", "s68", "s63")
    A.I("s_lshl_b32", "s68", "s68", 10)
    A.I("s_add_u32", "s68", "s68", hex(HF))
    A.I("s_add_u32", "s66", "s68", 4096)
    A.I("v_cmp_gt_u32", "vcc", 32, "v1")
    A.I("s_mov_b64", "s[76:77]", "vcc")
    SB = 32
    A.wait(lgkm=0)
    for t in range(3):
        for hf in range(2):
            A.I("s_add_u32", "s63", "s55", 64 * t + 32 * hf)
            A.I("s_min_u32", "s63", "s63", 2752 - 32)
            A.I("s_load_dwordx8", "s[32:39]", "s[10:11]", "s63")
            A.wait(lgkm=0)
            for gg in range(2):
                g = 2 * hf + gg
                a = B1R + 16 * t + 4 * g
                for pr in range(2):
                    A.I("v_mov_b32", "v202", sr(SB + 4 * gg + 2 + pr))
                    A.I("v_mov_b32", "v203", sr(SB + 4 * gg + pr))
                    A.I("v_cndmask_b32", "v202", "v202", "v203", "s[76:77]")
                    A.I("v_lshlrev_b32", vr(a + 2 * pr), 16, "v202")
                    A.I("v_and_b32", vr(a + 2 * pr + 1), "s64", "v202")
    A.I("s_lshl_b32", "s74", "s53", 9)
    A.I("s_add_u32", "s74", "s74", hex(STAT))
    def pollstat():
        A.I("buffer_load_dwordx4", "v[200:203]", "v3", "s[24:27]", "s74", mods="offen sc1", tag="st")
    def rdW(s, idx, buf):
        kk, t = idx
        o = (s % 4) * 12288 + t * 64
        r = WB + 4 * buf
        A.I("ds_read_b64_tr_b16", vr(r, 2), vr(WA + kk), mods=f"offset:{o}")
        A.I("ds_read_b64_tr_b16", vr(r + 2, 2), vr(WA + kk), mods=f"offset:{o + 768}", tag=f"W{s}_{kk}_{t}")
    def bar(s):
        A.wait_vm(f"x{s}" if A._after(A.vmq, f"x{s}") < A._after(A.vmq, f"w{s}") else f"w{s}")
        stampn(A, f"m_s{s}a")
        A.I("s_barrier")
        stampn(A, f"m_s{s}b")
        for kk in range(4):
            A.I("ds_read_b128", vr(XFb(s) + 4 * kk, 4), vr(XA + kk), mods=f"offset:{(s % 2) * 16384}")
    def xdma1(s, b):
        A.I("s_add_u32", "m0", "s61", (s % 2) * 16384 + b * 1024)
        A.I("s_add_u32", "s63", "s67", b * 8192 + s * 128)
        A.I("buffer_load_dwordx4", "v12" if b % 2 == 0 else "v13", "s[40:43]", "s63", mods="offen lds", tag=f"x{s}")
    def wdma1(s, n):
        A.I("s_add_u32", "m0", "s57", (s % 4) * 12288 + n * 1024)
        A.I("buffer_load_dwordx4", vr(6 + n), "s[28:31]", "s56", mods="offen lds", tag=f"w{s}")
        if n == 2: A.I("s_add_u32", "s56", "s56", 64 * 2752)
    seq = []
    for s in range(8):
        order = [(kk, t) for kk in range(4) for t in range(3)] if s < 7 else [(0, 0), (0, 1), (0, 2)] + [(kk, t) for t in range(3) for kk in (1, 2, 3)]
        seq += [(s, o) for o in order]
    G1 = "g1only" in OPTS
    bar(0)
    A.I("v_lshlrev_b32", "v3", 4, "v5")
    for m in range(NW - 1): rdW(seq[m][0], seq[m][1], m)
    for m, (s, (kk, t)) in enumerate(seq):
        n = m % 12
        if n == 0: stampn(A, f"m_s{s}")
        A.wait_l(f"W{s}_{kk}_{t}")
        acc = vr(ACC1 + 16 * t, 16)
        A.I("v_mfma_f32_32x32x16_bf16", acc, vr(WB + 4 * (m % NW), 4), vr(XFb(s) + 4 * kk, 4), acc if (s or kk) else "0")
        if kk == 0:
            for d in range(4):
                A.I("v_dot2_f32_bf16", vr(CP + t), vr(WB + 4 * (m % NW) + d), "s69", vr(CP + t))
        if n == 5 and s < 7: bar(s + 1)
        if m + NW - 1 < 96: rdW(seq[m + NW - 1][0], seq[m + NW - 1][1], (m + NW - 1) % NW)
        if n in (5, 6, 7) and s + 3 < 8: wdma1(s + 3, n - 5)
        if s == 0 and n in (0, 1, 2, 3): xdma1(2, n)
        if n in (10, 11) and s + 3 < 8: xdma1(s + 3, n - 10)
        if n in (0, 1) and s >= 1 and s + 2 < 8: xdma1(s + 2, n + 2)
        if G1: continue
        if s == 3 and n == 3:
            A.I("global_load_dword", TAG, "v10", "s[18:19]", mods="sc1")
            pollw()
        if s == 5 and n == 2:
            A.wait_vm("pw")
            get_tag(A, L, "M_tag", TAG, "v10", "s[18:19]")
            spin_check(A, L, "M_pw", PF, TAG, pollw, wait_tag="pw")
            pollstat()
        if s >= 5:
            regq = {5: {3: 0, 4: 1, 9: 2, 10: 3, 11: 4}, 6: {0: 5, 1: 6, 2: 7, 3: 8, 4: 9, 9: 10, 10: 11}, 7: {}}[s]
            if n in regq: w2load(regq[n])
            if s < 7 and n in (6, 7, 8): w2load(12 + 3 * (s - 5) + n - 6)
        if s == 7 and n == 3:
            for t2 in range(3): A.I("v_mov_b32", vr(104 + t2), vr(CP + t2))
            for t2 in range(3): A.I("v_permlane32_swap_b32", vr(CP + t2), vr(104 + t2))
            for t2 in range(3): A.I("v_add_f32", vr(CP + t2), vr(CP + t2), vr(104 + t2))
            A.I("v_lshl_add_u32", "v107", "v5", 2, "s61")
            for t2 in range(3): A.I("ds_write_b32", "v107", vr(CP + t2), mods=f"offset:{128 * t2}", tag="cw")
        if s == 7 and n == 5:
            A.wait_l("cw")
            A.I("s_barrier")
            A.I("v_lshlrev_b32", "v111", 2, "v5")
            for t2 in range(3):
                for ww in range(4):
                    A.I("ds_read_b32", vr(88 + 4 * t2 + ww), "v111", mods=f"offset:{XB + 4096 * ww + 128 * t2}", tag="cr")
            for j in range(3): w2load(18 + j)
        if s == 7 and n == 8:
            A.wait_l("cr")
            for t2 in range(3):
                A.I("v_add_f32", vr(88 + 4 * t2), vr(88 + 4 * t2), vr(89 + 4 * t2))
                A.I("v_add_f32", vr(90 + 4 * t2), vr(90 + 4 * t2), vr(91 + 4 * t2))
                A.I("v_add_f32", vr(88 + 4 * t2), vr(88 + 4 * t2), vr(90 + 4 * t2))
                A.I("ds_write_b32", "v107", vr(88 + 4 * t2), mods=f"offset:{512 + 128 * t2}")
            A.I("v_lshl_add_u32", "v111", "v4", 4, "s61")
            A.wait(lgkm=0)
            for t2 in range(3):
                for g in range(4):
                    A.I("ds_read_b128", vr(CS + 16 * t2 + 4 * g, 4), "v111", mods=f"offset:{512 + 128 * t2 + 32 * g}")
    stampn(A, "m_g1")
    if G1:
        A.I("s_branch", L("M_exit")); A.vmq += ["st", "pw"]
    spin_check(A, L, "M_st", "v202", TAG, pollstat, wait_tag="st")
    A.I("v_mov_b32", "v196", "v200")
    A.I("v_mov_b32", "v198", "v201")
    A.wait(lgkm=0)
    def epi(t):
        a = ACC1 + 16 * t
        for k in range(8):
            r = a + 2 * k
            A.I("v_pk_fma_f32", vr(r, 2), vr(CS + 16 * t + 2 * k, 2), "v[196:197]", vr(r, 2), mods="op_sel_hi:[1,0,1] neg_lo:[0,1,0] neg_hi:[0,1,0]")
            A.I("v_pk_fma_f32", vr(r, 2), vr(r, 2), "v[198:199]", vr(B1R + 16 * t + 2 * k, 2), mods="op_sel_hi:[1,0,1]")
            A.I("v_max_f32", vr(r), 0, vr(r))
            A.I("v_max_f32", vr(r + 1), 0, vr(r + 1))
            A.I("v_pk_mul_f32", vr(r, 2), vr(r, 2), vr(r, 2))
            A.I("v_cvt_pk_bf16_f32", vr(a + k), vr(r), vr(r + 1))
            if k % 4 == 3:
                off = (2 * t + k // 4) * 1024
                A.I("buffer_store_dwordx4", vr(a + k - 3, 4), "v2", "s[24:27]", "s68" if off < 4096 else "s66", mods=f"offen offset:{off % 4096} sc1", tag="hf")
    epi(0)
    A.I("s_cmp_eq_u32", "s50", 14)
    A.I("s_cbranch_scc1", L("M_late"))
    epi(1); epi(2)
    A.label(L("M_late"))
    stampn(A, "m_epi")
    for q in range(32, 44): w2load(q)
    A.wait_vm("hf")
    A.I("s_barrier")
    A.I("v_min_u32", "v202", 47, "v1")
    A.I("v_lshlrev_b32", "v202", 7, "v202")
    A.I("s_cmp_lg_u32", "s22", 0)
    A.I("s_cbranch_scc1", L("M_nf2"))
    A.I("s_lshl_b32", "s71", "s49", 11)
    A.I("s_lshl_b32", "s72", "s50", 7)
    A.I("s_add_u32", "s71", "s71", "s72")
    A.I("s_add_u32", "s71", "s71", hex(F2))
    A.I("s_mov_b64", "exec", 1)
    A.I("buffer_store_dword", TAG, "v10", "s[24:27]", "s71", mods="offen sc1")
    A.vmq.pop()
    A.I("s_mov_b64", "exec", -1)
    A.label(L("M_nf2"))
    if "notouch" not in OPTS:
        A.I("buffer_load_dword", "v203", "v202", "s[24:27]", "s68", mods="offen sc1")
    A.I("s_branch", L("M_join"))
    A.label(L("M_g15"))
    if "g1only" in OPTS: A.I("s_branch", L("M_exit"))
    A.I("global_load_dword", TAG, "v10", "s[18:19]", mods="sc1")
    A.wait(vm=0)
    get_tag(A, L, "M_tag15", TAG, "v10", "s[18:19]")
    spin_check(A, L, "M_g15a", PF, TAG, pollw, first=True)
    for q in list(range(0, 21)) + list(range(32, 44)): w2load(q)
    A.label(L("M_join"))
    stampn(A, "m_f2pub")
    for q in range(21, 32): w2load(q)
    A.I("v_min_u32", "v15", 14, "v1")
    A.I("v_lshlrev_b32", "v15", 7, "v15")
    A.I("s_lshr_b32", "s65", "s51", 1)
    A.I("s_lshl_b32", "s65", "s65", 11)
    A.I("s_add_u32", "s65", "s65", hex(F2))
    A.I("s_lshl_b32", "s54", "s51", 16)
    A.I("s_lshl_b32", "s55", "s22", 14)
    A.I("s_add_u32", "s54", "s54", "s55")
    A.I("s_add_u32", "s54", "s54", "s60")
    A.I("s_add_u32", "s55", "s54", 8192)
    XR = 196
    for gp in range(2):
        for i in range(4):
            A.I("buffer_load_dword", vr(XR + 4 * gp + i), "v9", "s[40:43]", "s54" if gp == 0 else "s55", mods=f"offen offset:{i * 1024}")
    A.I("v_lshl_add_u32", "v6", "v5", 2, "s60")
    A.I("global_load_dword", "v12", "v6", "s[14:15]")
    pollw()
    A.I("s_mul_i32", "s56", "s51", 172)
    A.I("s_add_u32", "s56", "s56", "s58")
    A.I("s_lshl_b32", "s56", "s56", 10)
    A.I("s_add_u32", "s56", "s56", hex(HF))
    A.I("s_add_u32", "s62", "s56", 86 * 1024)
    A.I("v_add_u32", "v252", "s57", "v2")
    A.I("v_add_u32", "v253", "s61", "v2")
    spin_check(A, L, "M_p2", PF, TAG, pollw)
    stampn(A, "m_f2")
    ACC = 116; NH = 8
    def HR(k):
        i = k % NH
        return 64 + 8 * i if i < 6 else 180 + 8 * (i - 6)
    def issueH(k):
        if k and k % 4 == 0:
            A.I("s_add_u32", "s56", "s56", 4096)
            A.I("s_add_u32", "s62", "s62", 4096)
        A.I("buffer_load_dwordx4", vr(HR(k), 4), "v2", "s[24:27]", "s56", mods=f"offen offset:{(k % 4) * 1024} sc1")
        A.I("buffer_load_dwordx4", vr(HR(k) + 4, 4), "v2", "s[24:27]", "s62", mods=f"offen offset:{(k % 4) * 1024} sc1", tag=f"h{k}")
    for k in range(NH): issueH(k)
    A.I("v_and_b32", "v15", 7, "v1")
    A.I("v_lshlrev_b32", "v8", 4, "v15")
    A.I("v_lshlrev_b32", "v15", 7, "v15")
    A.I("s_lshl_b32", "s65", "s52", 12)
    A.I("s_lshl_b32", "s71", "s22", 10)
    A.I("s_add_u32", "s65", "s65", "s71")
    A.I("s_add_u32", "s65", "s65", hex(F3))
    A.I("v_lshrrev_b32", "v7", 3, "v1")
    A.I("v_lshl_add_u32", "v7", "v7", 12, "v8")
    A.I("s_lshl_b32", "s67", "s52", 18)
    A.I("s_lshl_b32", "s68", "s22", 16)
    A.I("s_add_u32", "s67", "s67", "s68")
    A.I("s_lshl_b32", "s68", "s51", 7)
    A.I("s_add_u32", "s67", "s67", "s68")
    A.I("s_add_u32", "s67", "s67", hex(ST))
    A.I("s_add_u32", "s68", "s67", 8 * 4096)
    def wreg(k, e):
        if k < 6: return EB + 8 * k + 4 * e
        if k < 16: return EB + 8 * ((k - 6) % 6) + 4 * e
        return LB + 8 * (k - 16) + 4 * e
    for k in range(22):
        if k == 21:
            A.I("s_cmp_ge_u32", "s22", 2)
            A.I("s_cbranch_scc1", L("M_skip21"))
        A.wait_vm(f"h{k}")
        stampn(A, f"m_k{k}")
        if 6 <= k < 16: A.wait_l(f"S{k}")
        for tj in range(2):
            for e in range(2):
                acc = vr(ACC + 32 * tj + 16 * e, 16)
                A.I("v_mfma_f32_32x32x16_bf16", acc, vr(HR(k) + 4 * tj, 4), vr(wreg(k, e), 4), acc if k else "0")
        if k + NH < 22: issueH(k + NH)
        if k + 6 < 16:
            for e in range(2):
                off, isx = ldsfr[2 * k + e]
                A.I("ds_read_b128", vr(wreg(k + 6, e), 4), "v253" if isx else "v252", mods=f"offset:{off}", tag=f"S{k + 6}")
        if k == 14: pollw()
    A.label(L("M_skip21"))
    stampn(A, "m_g2")
    spin_check(A, L, "M_p3", PF, TAG, pollw)
    A.I("buffer_load_dwordx4", "v[180:183]", "v7", "s[24:27]", "s67", mods="offen sc1")
    A.I("buffer_load_dwordx4", "v[184:187]", "v7", "s[24:27]", "s68", mods="offen sc1")
    stampn(A, "m_f3")
    OWN = 16
    def redoff(sl, q):
        return ldsfr[4 * sl + q][0]
    for wd in range(4):
        src = [ACC + 32 * (wd >> 1) + 16 * e + 8 * (wd & 1) + 4 * q for e in range(2) for q in range(2)]
        A.I("s_cmp_eq_u32", "s22", wd)
        A.I("s_cbranch_scc1", L(f"own{wd}"))
        for q, r in enumerate(src):
            if q < 3: A.I("ds_write_b128", "v252", vr(r, 4), mods=f"offset:{wd * 12288 + q * 1024}")
            else: A.I("ds_write_b128", "v253", vr(r, 4), mods=f"offset:{16384 + wd * 1024}")
        A.I("s_branch", L(f"nxt{wd}"))
        A.label(L(f"own{wd}"))
        if wd == 0: A.I("s_nop", 3)
        for q, r in enumerate(src):
            for i in range(0, 4, 2):
                A.I("v_pk_mov_b32", vr(OWN + 4 * q + i, 2), vr(r + i, 2), vr(r + i, 2), mods="op_sel:[0,1]")
        A.label(L(f"nxt{wd}"))
    XU = 32
    for gp in range(2):
        for i in range(4):
            A.I("v_lshlrev_b32", vr(XU + 4 * gp + i), 16, vr(XR + 4 * gp + i))
            A.I("v_and_b32", vr(XU + 8 + 4 * gp + i), "s64", vr(XR + 4 * gp + i))
    A.I("v_lshlrev_b32", "v48", 16, "v12")
    A.I("v_and_b32", "v50", "s64", "v12")
    for sl in range(3):
        A.I("s_add_u32", "s71", "s22", 1 + sl)
        A.I("s_and_b32", "s71", "s71", 3)
        A.I("s_mul_i32", "s72", "s71", 3072)
        A.I("s_mul_i32", "s73", "s22", 12288)
        A.I("s_add_u32", "s72", "s72", "s73")
        A.I("v_add_u32", vr(52 + sl), "s72", "v2")
        A.I("s_lshl_b32", "s71", "s71", 12)
        A.I("s_lshl_b32", "s72", "s22", 10)
        A.I("s_add_u32", "s71", "s71", "s72")
        A.I("s_add_u32", "s71", "s71", XB + 16384)
        A.I("v_add_u32", vr(58 + sl), "s71", "v2")
    A.I("s_lshl_b32", "s71", "s22", 5)
    A.I("v_add_u32", "v55", "s71", "v253")
    A.I("v_lshrrev_b32", "v56", 3, "v5")
    A.I("v_mul_u32_u24", "v56", 4128, "v56")
    A.I("v_bfe_u32", "v57", "v5", 2, 1)
    A.I("v_mul_u32_u24", "v57", 1040, "v57")
    A.I("v_add_u32", "v56", "v56", "v57")
    A.I("v_and_b32", "v57", 3, "v5")
    A.I("v_lshl_add_u32", "v56", "v57", 8, "v56")
    A.I("v_lshl_add_u32", "v56", "v4", 3, "v56")
    A.I("v_add_u32", "v56", "s71", "v56")
    A.I("s_mov_b32", "s72", "0xbfb8aa3b")
    A.I("s_mov_b32", "s73", "0xbfb8aa3b")
    A.wait(vm=0)
    A.I("ds_write_b128", "v55", "v[180:183]")
    A.I("ds_write_b128", "v55", "v[184:187]", mods="offset:1040")
    A.wait(lgkm=0)
    A.I("s_barrier")
    stampn(A, "m_red")
    RD = 64
    for sl in range(3):
        for q in range(4):
            if q < 3: A.I("ds_read_b128", vr(RD + 16 * sl + 4 * q, 4), vr(52 + sl), mods=f"offset:{q * 1024}")
            else: A.I("ds_read_b128", vr(RD + 16 * sl + 4 * q, 4), vr(58 + sl), tag=f"R{sl}")
    SV = 112
    for e in range(2):
        for gp in range(2):
            A.I("ds_read_b64", vr(SV + 4 * e + 2 * gp, 2), "v56", mods=f"offset:{XB + 128 * e + 16 * gp}")
    for p in range(8):
        A.I("v_pk_add_f32", vr(OWN + 2 * p, 2), vr(OWN + 2 * p, 2), "v[48:49]" if p < 4 else "v[50:51]", mods="op_sel_hi:[1,0]")
    for sl in range(3):
        A.wait_l(f"R{sl}")
        for p in range(8):
            A.I("v_pk_add_f32", vr(OWN + 2 * p, 2), vr(OWN + 2 * p, 2), vr(RD + 16 * sl + 2 * p, 2))
    T_ = 128; SU = 144
    for p in range(8): A.I("v_pk_mul_f32", vr(T_ + 2 * p, 2), vr(OWN + 2 * p, 2), "s[72:73]")
    for r in range(16): A.I("v_exp_f32", vr(T_ + r), vr(T_ + r))
    A.wait(lgkm=0)
    for k in range(8):
        A.I("v_lshlrev_b32", vr(SU + 2 * k), 16, vr(SV + k))
        A.I("v_and_b32", vr(SU + 2 * k + 1), "s64", vr(SV + k))
    for p in range(8): A.I("v_pk_add_f32", vr(T_ + 2 * p, 2), vr(T_ + 2 * p, 2), "1.0", mods="op_sel_hi:[1,0]")
    for p in range(8): A.I("v_pk_mul_f32", vr(SU + 2 * p, 2), vr(SU + 2 * p, 2), vr(OWN + 2 * p, 2))
    for r in range(16): A.I("v_rcp_f32", vr(T_ + r), vr(T_ + r))
    for p in range(8): A.I("v_pk_fma_f32", vr(T_ + 2 * p, 2), vr(T_ + 2 * p, 2), vr(SU + 2 * p, 2), vr(XU + 2 * p, 2))
    for gp in range(2):
        for i in range(4):
            r = 4 * gp + i
            A.I("v_cvt_pk_bf16_f32", vr(64 + r), vr(T_ + r), vr(T_ + 8 + r))
            A.I("buffer_store_dword", vr(64 + r), "v9", "s[44:47]", "s54" if gp == 0 else "s55", mods=f"offen offset:{i * 1024}")
    A.label(L("M_exit"))
    stamp_flush(A, 0, "s[20:21]", 7)
    A.I("s_endpgm")
```

```python
import re

def regs_of(tok):
    tok = tok.strip()
    tok = tok.lstrip('-')
    if tok.startswith('|') and tok.endswith('|'): tok = tok[1:-1]
    if tok.startswith('abs(') and tok.endswith(')'): tok = tok[4:-1]
    m = re.fullmatch(r'([vas])(\d+)', tok)
    if m: return [(m.group(1), int(m.group(2)))]
    m = re.fullmatch(r'([vas])\[(\d+):(\d+)\]', tok)
    if m: return [(m.group(1), i) for i in range(int(m.group(2)), int(m.group(3)) + 1)]
    if tok == 'vcc': return [('s', 'vcc')]
    if tok == 'exec': return [('s', 'exec')]
    if tok == 'm0': return [('s', 'm0')]
    return []

TRANS = ('v_exp_f32', 'v_log_f32', 'v_rcp_f32', 'v_rsq_f32', 'v_sqrt_f32', 'v_sin_f32', 'v_cos_f32')

class Ins:
    __slots__ = ('mn', 'ops', 'mods', 'w', 'r', 'cls', 'passes', 'srcc', 'text', 'states')

def vr(i, n=1): return f"v{i}" if n == 1 else f"v[{i}:{i+n-1}]"
def ar(i, n=1): return f"a{i}" if n == 1 else f"a[{i}:{i+n-1}]"
def sr(i, n=1): return f"s{i}" if n == 1 else f"s[{i}:{i+n-1}]"

class Asm:
    def __init__(self):
        self.lines = []
        self.hist = []
        self.nnop = 0
        self.unpk = False
        self.vmq = []
        self.lq = []
    def raw(self, text):
        self.lines.append(text)
    def comment(self, t): self.lines.append("    ; " + t)
    def label(self, name, flush=True):
        self.lines.append(name + ":")
        if flush:
            pass
    def _classify(self, mn, ops, mods):
        i = Ins(); i.mn = mn; i.ops = ops; i.mods = mods; i.passes = 0; i.srcc = []; i.states = 1
        R = lambda k: regs_of(ops[k]) if k < len(ops) else []
        allr = lambda ks: [x for k in ks for x in R(k)]
        n = len(ops)
        if mn.startswith('v_mfma'):
            i.cls = 'mfma'; i.w = R(0); i.r = allr([1, 2, 3]); i.srcc = R(3)
            i.passes = 8 if '32x32x16' in mn else 4 if '16x16x32' in mn else 16
        elif mn.startswith('v_cmpx'):
            i.cls = 'valu'; i.w = R(0) + [('s', 'exec')]; i.r = allr(range(1, n))
        elif mn.startswith('v_cmp'):
            i.cls = 'valu'; i.w = R(0); i.r = allr(range(1, n))
        elif mn.startswith('v_readfirstlane') or mn.startswith('v_readlane'):
            i.cls = 'valu'; i.w = R(0); i.r = allr(range(1, n))
        elif mn.startswith('v_permlane') and 'swap' in mn:
            i.cls = 'valu'; i.w = allr([0, 1]); i.r = allr([0, 1])
        elif mn.startswith('v_'):
            i.cls = 'valu'; i.w = R(0); i.r = allr(range(1, n))
            if '_co_' in mn: i.w = allr([0, 1]); i.r = allr(range(2, n))
            if mn.startswith(('v_fmac', 'v_dot2c', 'v_pk_fmac')): i.r = i.r + R(0)
            if 'dpp' in mn or 'row_' in mods or 'quad_perm' in mods: i.r = i.r + R(0)
            if mn.startswith('v_cndmask') and n == 3: i.r = i.r + [('s', 'vcc')]
            if 'd16' in mn: i.r = i.r + R(0)
        elif mn.startswith('buffer_load') or mn.startswith('global_load'):
            i.cls = 'vmem'
            if ' lds' in (' ' + mods) or '_lds_' in mn:
                i.w = []; i.r = allr(range(0, n)) + [('s', 'm0')]; i.cls = 'ldsdma'
            else:
                i.w = R(0); i.r = allr(range(1, n))
        elif mn.startswith('buffer_store') or mn.startswith('global_store') or mn.startswith('buffer_atomic') or mn.startswith('global_atomic'):
            i.cls = 'vstore'; i.w = []; i.r = allr(range(0, n))
        elif mn.startswith('ds_read') or mn.startswith('ds_bpermute') or mn.startswith('ds_swizzle'):
            i.cls = 'ds'; i.w = R(0); i.r = allr(range(1, n))
        elif mn.startswith('ds_'):
            i.cls = 'ds'; i.w = []; i.r = allr(range(0, n))
        elif mn == 's_nop':
            i.cls = 'nop'; i.w = []; i.r = []; i.states = int(ops[0]) + 1
        elif mn.startswith('s_'):
            i.cls = 'salu'
            if mn.startswith(('s_cmp', 's_cbranch', 's_branch', 's_waitcnt', 's_barrier', 's_endpgm', 's_setprio', 's_sleep')):
                i.w = []; i.r = allr(range(0, n))
            else:
                i.w = R(0); i.r = allr(range(1, n))
                if 'saveexec' in mn: i.w = i.w + [('s', 'exec')]
        else:
            raise ValueError("unknown mnemonic " + mn)
        return i
    def _need(self, p, c):
        need = 0
        pw = set(p.w); cr = set(c.r); cw = set(c.w)
        isv = lambda s: {x for x in s if x[0] in 'va'}
        iss = lambda s: {x for x in s if x[0] == 's'}
        cdpp = c.cls == 'valu' and ('dpp' in c.mn or 'row_' in c.mods or 'quad_perm' in c.mods)
        if p.cls == 'valu':
            raw_v = isv(pw) & cr
            raw_s = iss(pw) & cr
            if c.cls == 'mfma' and raw_v: need = max(need, 2)
            if c.cls == 'mfma' and ('s', 'exec') in pw: need = max(need, 4)
            if cdpp and raw_v: need = max(need, 2)
            if cdpp and ('s', 'exec') in pw: need = max(need, 5)
            if c.mn.startswith('v_permlane') and raw_v: need = max(need, 2)
            if c.mn.startswith(('v_readfirstlane', 'v_readlane')) and raw_v: need = max(need, 1)
            if c.mn.startswith(('v_readfirstlane', 'v_readlane', 'v_writelane', 'v_permlane')) and ('s', 'exec') in pw: need = max(need, 4)
            if c.cls in ('vmem', 'ldsdma', 'vstore') and raw_s: need = max(need, 5)
            if c.cls == 'valu' and raw_s: need = max(need, 4 if c.mn.startswith(('v_readlane', 'v_writelane')) else 2)
            if c.cls == 'salu' and raw_s: need = max(need, 1)
            if p.mn.startswith(TRANS) and c.cls in ('valu', 'mfma') and raw_v: need = max(need, 1 if c.cls == 'valu' else 2)
            if p.mn.startswith('v_dot') and (isv(pw) & (cr | cw)):
                same = (c.mn == p.mn)
                if same and not (isv(pw) & set(regs_of(c.ops[1]) + regs_of(c.ops[2]))): pass
                else: need = max(need, 3)
            if ('op_sel' in p.mods or 'sdwa' in p.mn or 'dst_sel' in p.mods) and not p.mn.startswith('v_pk') and c.cls == 'valu' and (isv(pw) & (cr | cw)): need = max(need, 1)
        if p.cls == 'mfma':
            P = p.passes
            tbl_ab = {4: 8, 8: 12, 16: 20}[P]
            if c.cls == 'mfma':
                if pw & set(regs_of(c.ops[1]) + regs_of(c.ops[2])): need = max(need, tbl_ab)
                ov = pw & set(c.srcc)
                if ov:
                    if set(c.srcc) == pw and c.passes == P: pass
                    else: need = max(need, {4: 6, 8: 10, 16: 18}[P])
                elif pw & cw: need = max(need, tbl_ab)
            elif c.cls in ('valu', 'vmem', 'vstore', 'ds', 'ldsdma'):
                if pw & (cr | cw): need = max(need, tbl_ab)
            if c.cls == 'valu' and set(p.srcc) & cw: need = max(need, {4: 3, 8: 7, 16: 15}[P])
        if p.cls == 'vstore' and ('x4' in p.mn or 'x3' in p.mn):
            data = set(regs_of(p.ops[0])) if p.mn.startswith('buffer') else set(regs_of(p.ops[1]))
            if data & cw: need = max(need, 2 if c.cls in ('valu', 'mfma') else 1)
        if p.cls == 'salu' and ('s', 'm0') in pw and c.cls == 'ldsdma': need = max(need, 1)
        return need
    def _unpack(self, mn, ops, mods):
        base = {"v_pk_mul_f32": "v_mul_f32", "v_pk_add_f32": "v_add_f32", "v_pk_fma_f32": "v_fma_f32"}[mn]
        n = len(ops) - 1
        def lst(key, default):
            m = re.search(key + r":\[([01,]+)\]", mods)
            return [int(x) for x in m.group(1).split(",")] if m else [default] * n
        osl, osh, ngl, ngh = lst("op_sel", 0) if re.search(r"op_sel:\[", mods) else [0] * n, lst("op_sel_hi", 1), lst("neg_lo", 0), lst("neg_hi", 0)
        def half(tok, hi):
            m = re.fullmatch(r"([vs])\[(\d+):(\d+)\]", tok)
            if m: return f"{m.group(1)}{int(m.group(2)) + hi}"
            return tok
        dl, dh = half(ops[0], 0), half(ops[0], 1)
        lo = [("-" if ngl[i] else "") + half(ops[i + 1], osl[i]) for i in range(n)]
        hi = [("-" if ngh[i] else "") + half(ops[i + 1], osh[i]) for i in range(n)]
        assert dl not in [x.lstrip("-") for x in hi], "unpack hazard"
        for d, src in ((dl, lo), (dh, hi)):
            b = base
            if base != "v_fma_f32":
                if any(x.startswith("-") for x in src): b = base + "_e64"
                elif not src[1].startswith("v"): src = [src[1], src[0]]
            self.I(b, d, *src)
    def I(self, mn, *ops, mods="", tag=None):
        ops = [str(o) for o in ops]
        if self.unpk and mn in ("v_pk_mul_f32", "v_pk_add_f32", "v_pk_fma_f32"):
            return self._unpack(mn, ops, mods)
        c = self._classify(mn, ops, mods)
        if c.cls in ('vmem', 'vstore', 'ldsdma'): self.vmq.append(tag)
        if c.cls == 'ds': self.lq.append(tag)
        dist = 0; pad = 0
        for p in reversed(self.hist[-24:]):
            n = self._need(p, c)
            if n > dist: pad = max(pad, n - dist)
            dist += p.states
            if dist >= 20: break
        while pad > 0:
            k = min(pad, 16)
            self._emit(self._classify('s_nop', [str(k - 1)], ""))
            self.nnop += 1
            pad -= k
        self._emit(c)
    def _emit(self, c):
        t = "    " + c.mn + (" " + ", ".join(c.ops) if c.ops else "") + (" " + c.mods if c.mods else "")
        self.lines.append(t)
        self.hist.append(c)
    def wait(self, vm=None, lgkm=None):
        parts = []
        if vm is not None: parts.append(f"vmcnt({vm})")
        if lgkm is not None: parts.append(f"lgkmcnt({lgkm})")
        self.I("s_waitcnt", " ".join(parts))
    def _after(self, q, tag):
        idx = [i for i, t in enumerate(q) if t == tag]
        assert idx, f"tag {tag} not found"
        return len(q) - 1 - idx[-1]
    def wait_vm(self, tag, lgkm=None):
        n = self._after(self.vmq, tag)
        if n >= 63:
            if lgkm is not None: self.wait(lgkm=lgkm)
            return
        self.wait(vm=n, lgkm=lgkm)
    def wait_l(self, tag):
        n = self._after(self.lq, tag)
        self.wait(lgkm=min(n, 15))
    def text(self): return "\n".join(self.lines) + "\n"

def kernel_footer(name, vgpr, accum, sgpr=102):
    return f"""
.section .rodata,"a"
.p2align 6
.amdhsa_kernel {name}
  .amdhsa_next_free_vgpr {vgpr}
  .amdhsa_next_free_sgpr {sgpr}
  .amdhsa_accum_offset {accum}
  .amdhsa_group_segment_fixed_size 0
  .amdhsa_kernarg_size 136
  .amdhsa_ieee_mode 0
  .amdhsa_user_sgpr_count 2
  .amdhsa_user_sgpr_kernarg_segment_ptr 1
  .amdhsa_system_sgpr_workgroup_id_x 1
.end_amdhsa_kernel
.text
"""
def kernel_header(name):
    return f""".text
.globl {name}
.p2align 8
.type {name},@function
{name}:
"""

STAMPS = [False]
STAMP_OFF = 0x1400000
def stamp_at(A, slot, tmp=84):
    if not STAMPS[0]: return
    A.I("s_memrealtime", sr(tmp + 2 * slot, 2))
    if slot == 0: A.I("s_memtime", "s[80:81]")
def stamp_flush(A, kidx, wsreg, nslots, tmp=84, V0="v124", V1="v125", V2="v126", V01="v[124:125]"):
    if not STAMPS[0]: return
    A.wait(vm=0, lgkm=0)
    A.I("s_memrealtime", sr(tmp + 2 * (nslots - 1), 2))
    A.I("s_memtime", "s[82:83]")
    A.I("s_lshl_b32", "s98", "s2", 8)
    A.I("s_add_u32", "s98", "s98", hex(STAMP_OFF + kidx * 0x40000))
    A.I("v_and_b32", V2, "0x3c0", "v0")
    A.I("v_add_u32", V2, "s98", V2)
    A.I("v_and_b32", V1, 63, "v0")
    A.I("v_cmp_eq_u32", "vcc", 0, V1)
    A.wait(lgkm=0)
    A.I("s_and_saveexec_b64", "s[100:101]", "vcc")
    for k in range(nslots):
        A.I("v_mov_b32", V0, sr(tmp + 2 * k))
        A.I("v_mov_b32", V1, sr(tmp + 2 * k + 1))
        A.I("global_store_dwordx2", V2, V01, wsreg, mods=f"offset:{8 * k}")
    A.I("s_sub_u32", "s82", "s82", "s80")
    A.I("v_mov_b32", V0, "s82")
    A.I("v_mov_b32", V1, 0)
    A.I("global_store_dwordx2", V2, V01, wsreg, mods="offset:56")

import os
STAMPMAP = {}
for kv in os.environ.get("STAMPSET", "").split(","):
    if "=" in kv:
        k, v = kv.split("="); STAMPMAP[k] = int(v)
OPTS = set(os.environ.get("OPTS", "").split(","))
def stampn(A, name):
    if name in STAMPMAP: stamp_at(A, STAMPMAP[name])
```

```python
from asmlib import *
from layout import *

def srd(A, d, base, nrec):
    A.I("s_mov_b32", sr(d), sr(base))
    A.I("s_mov_b32", sr(d + 1), sr(base + 1))
    A.I("s_mov_b32", sr(d + 2), hex(nrec))
    A.I("s_mov_b32", sr(d + 3), "0x20000")

DPPM = "row_mask:0xf bank_mask:0xf"

def reduce32(A, v, t):
    for m in ("quad_perm:[1,0,3,2]", "quad_perm:[2,3,0,1]", "row_half_mirror", "row_mirror"):
        for x in v:
            A.I("v_add_f32_dpp", vr(x), vr(x), vr(x), mods=f"{m} {DPPM}")
    for x, y in zip(v, t):
        A.I("v_mov_b32", vr(y), vr(x))
    for x, y in zip(v, t):
        A.I("v_permlane16_swap_b32", vr(x), vr(y))
    for x, y in zip(v, t):
        A.I("v_add_f32", vr(x), vr(x), vr(y))

NST = 4
def gen_prep(name="prep_kernel"):
    A = Asm()
    A.raw(kernel_header(name))
    L = lambda s: f"L_{name}_{s}"
    stamp_at(A, 0)
    A.I("s_cmp_ge_u32", "s2", 256)
    A.I("s_cbranch_scc1", L("exit"))
    A.I("s_load_dwordx16", "s[4:19]", "s[0:1]", 0)
    A.I("s_load_dwordx4", "s[20:23]", "s[0:1]", 80)
    A.I("s_load_dwordx2", "s[24:25]", "s[0:1]", 96)
    A.I("s_load_dwordx2", "s[26:27]", "s[0:1]", 128)
    A.I("v_and_b32", "v1", 63, "v0")
    A.I("v_lshrrev_b32", "v2", 6, "v0")
    A.I("v_readfirstlane_b32", "s28", "v2")
    A.I("s_lshl_b32", "s29", "s2", 2)
    A.I("s_add_u32", "s29", "s29", "s28")
    A.I("s_and_b32", "s30", "s2", 7)
    A.I("s_lshl_b32", "s30", "s30", 5)
    A.I("s_lshr_b32", "s31", "s2", 3)
    A.I("s_add_u32", "s30", "s30", "s31")
    A.I("s_lshr_b32", "s31", "s28", 1)
    A.I("s_lshl_b32", "s32", "s2", 1)
    A.I("s_add_u32", "s32", "s32", "s31")
    A.I("s_and_b32", "s33", "s28", 1)
    A.I("s_lshl_b32", "s33", "s33", 7)
    A.I("s_lshl_b32", "s34", "s32", 8)
    A.I("s_add_u32", "s33", "s33", "s34")
    A.I("v_lshl_add_u32", "v2", "v1", 1, "s33")
    A.I("s_lshl_b32", "s34", "s32", 1)
    A.I("v_mov_b32", "v3", "s34")
    A.I("s_lshl_b32", "s34", "s30", 3)
    A.I("s_lshl_b32", "s35", "s28", 1)
    A.I("s_add_u32", "s34", "s34", "s35")
    A.I("s_lshl_b32", "s34", "s34", 10)
    A.I("v_lshrrev_b32", "v5", 5, "v1")
    A.I("v_and_b32", "v6", 31, "v1")
    A.I("v_lshlrev_b32", "v4", 10, "v5")
    A.I("v_lshl_add_u32", "v4", "v6", 4, "v4")
    A.I("v_add_u32", "v4", "s34", "v4")
    A.wait(lgkm=0)
    P = 48
    for k, sb in enumerate((6, 8, 10, 12, 14, 16)):
        A.I("global_load_ushort", vr(P + k), "v2", sr(sb, 2))
    A.I("global_load_ushort", vr(P + 6), "v3", "s[18:19]")
    A.I("global_load_dwordx4", "v[8:11]", "v4", "s[4:5]")
    A.I("global_load_dwordx4", "v[12:15]", "v4", "s[4:5]", mods="offset:512")
    srd(A, 36, 20, 512 * 2752)
    srd(A, 40, 24, 1376 * 1024)
    srd(A, 44, 26, WS_SIZE)
    srd(A, 48, 22, 2752)
    A.I("s_cmp_ge_u32", "s29", 352)
    A.I("s_cbranch_scc1", L("ld_w2"))
    A.I("s_lshr_b32", "s52", "s29", 5)
    A.I("s_and_b32", "s53", "s29", 31)
    A.I("s_mul_i32", "s54", "s53", 16 * 2752)
    A.I("s_lshl_b32", "s55", "s52", 8)
    A.I("s_add_u32", "s54", "s54", "s55")
    A.I("v_mul_u32_u24", "v7", 8 * 2752, "v5")
    A.I("v_lshl_add_u32", "v7", "v6", 3, "v7")
    A.I("v_lshl_add_u32", "v16", "v6", 3, "s55")
    A.I("v_cmp_gt_u32", "vcc", 2752, "v16")
    A.I("v_mov_b32", "v17", "0x7f000000")
    A.I("v_cndmask_b32", "v7", "v17", "v7", "vcc")
    for i in range(8):
        A.I("buffer_load_dwordx2", vr(16 + 2 * i, 2), "v7", "s[36:39]", "s54", mods="offen")
        if i < 7: A.I("s_add_u32", "s54", "s54", 2752)
    A.I("s_branch", L("ld_done"))
    A.label(L("ld_w2"))
    A.I("s_cmp_ge_u32", "s29", 704)
    A.I("s_cbranch_scc1", L("ld_b1"))
    A.I("s_sub_u32", "s52", "s29", 352)
    A.I("s_and_b32", "s53", "s52", 7)
    A.I("s_lshr_b32", "s52", "s52", 3)
    A.I("s_lshr_b32", "s54", "s52", 2)
    A.I("s_lshl_b32", "s54", "s54", 7)
    A.I("s_and_b32", "s55", "s52", 3)
    A.I("s_add_u32", "s54", "s54", "s55")
    A.I("s_lshl_b32", "s54", "s54", 10)
    A.I("s_lshl_b32", "s55", "s53", 7)
    A.I("s_add_u32", "s54", "s54", "s55")
    A.I("v_lshlrev_b32", "v7", 14, "v5")
    A.I("v_lshl_add_u32", "v7", "v6", 2, "v7")
    for rb in range(2):
        for i in range(8):
            roff = (64 * rb + 32 * (i >> 2) + 4 * (i & 3)) * 1024
            A.I("s_add_u32", "s55", "s54", roff)
            A.I("buffer_load_dword", vr(16 + 8 * rb + i), "v7", "s[40:43]", "s55", mods="offen")
    A.I("s_branch", L("ld_done"))
    A.label(L("ld_b1"))
    A.I("s_cmp_ge_u32", "s29", 748)
    A.I("s_cbranch_scc1", L("ld_done"))
    A.I("s_sub_u32", "s52", "s29", 704)
    A.I("s_lshr_b32", "s54", "s52", 2)
    A.I("s_lshl_b32", "s54", "s54", 7)
    A.I("s_and_b32", "s55", "s52", 3)
    A.I("s_add_u32", "s54", "s54", "s55")
    A.I("s_lshl_b32", "s54", "s54", 1)
    A.I("v_bfe_u32", "v7", "v1", 2, 2)
    A.I("v_lshlrev_b32", "v7", 3, "v7")
    A.I("v_bfe_u32", "v16", "v1", 4, 1)
    A.I("v_lshl_add_u32", "v7", "v16", 2, "v7")
    A.I("v_and_b32", "v16", 3, "v1")
    A.I("v_add_u32", "v7", "v7", "v16")
    A.I("v_lshlrev_b32", "v7", 3, "v7")
    A.I("buffer_load_ushort", "v16", "v7", "s[48:51]", "s54", mods="offen")
    A.label(L("ld_done"))
    A.I("s_mov_b32", "s56", "0x3f803f80")
    A.I("s_mov_b32", "s57", "0x05040100")
    A.I("s_mov_b32", "s58", "0x07060302")
    A.I("s_mov_b32", "s59", "0xffff0000")
    A.I("v_and_b32", "v56", 15, "v1")
    A.I("v_cvt_f32_u32", "v56", "v56")
    A.I("s_mul_i32", "s60", "s28", 2 * 1088)
    A.I("v_mul_u32_u24", "v57", 1088, "v5")
    A.I("v_lshl_add_u32", "v57", "v6", 4, "v57")
    A.I("v_add_u32", "v57", "s60", "v57")
    A.I("v_mov_b32", "v58", 0)
    A.I("v_mov_b32", "v59", 0)
    A.wait(vm=0)
    stamp_at(A, 1)
    for k in range(8):
        A.I("v_dot2_f32_bf16", "v58", vr(8 + k), "s56", "v58")
        A.I("v_dot2_f32_bf16", "v59", vr(8 + k), vr(8 + k), "v59")
    reduce32(A, [58, 59], [60, 61])
    A.I("v_mul_f32", "v58", "0x3b000000", "v58")
    A.I("v_mul_f32", "v59", "0x3b000000", "v59")
    A.I("v_fma_f32", "v59", "-v58", "v58", "v59")
    A.I("v_max_f32", "v59", 0, "v59")
    A.I("v_cvt_pk_bf16_f32", "v60", 0, "v58")
    A.I("v_cvt_pk_bf16_f32", "v59", 0, "v59")
    A.I("v_add_f32", "v59", "0x3727c5ac", "v59")
    A.I("v_cvt_pk_bf16_f32", "v59", 0, "v59")
    A.I("v_sqrt_f32", "v59", "v59")
    A.I("v_cvt_pk_bf16_f32", "v59", 0, "v59")
    A.I("v_rcp_f32", "v62", "v59")
    for k in range(8):
        t = 64 + 2 * (k % 4)
        A.I("v_lshlrev_b32", vr(t), 16, vr(8 + k))
        A.I("v_and_b32", vr(t + 1), "s59", vr(8 + k))
        A.I("v_pk_add_f32", vr(t, 2), vr(t, 2), "v[60:61]", mods="op_sel_hi:[1,0] neg_lo:[0,1] neg_hi:[0,1]")
        A.I("v_cvt_pk_bf16_f32", vr(t), 0, vr(t))
        A.I("v_cvt_pk_bf16_f32", vr(t + 1), 0, vr(t + 1))
        A.I("v_pk_mul_f32", vr(t, 2), vr(t, 2), "v[62:63]", mods="op_sel_hi:[1,0]")
        A.I("v_cvt_pk_bf16_f32", vr(8 + k), vr(t), vr(t + 1))
    A.I("ds_write_b128", "v57", "v[8:11]")
    A.I("ds_write_b128", "v57", "v[12:15]", mods="offset:512")
    A.I("v_lshlrev_b32", "v7", 4, "v1")
    A.I("s_cmp_ge_u32", "s29", 352)
    A.I("s_cbranch_scc1", L("pt_w2"))
    for c in range(4):
        for p in range(4):
            A.I("v_perm_b32", vr(32 + 4 * c + p), vr(16 + 2 * (2 * p + 1) + (c >> 1)), vr(16 + 2 * (2 * p) + (c >> 1)), "s57" if (c & 1) == 0 else "s58")
    A.I("s_lshl_b32", "s54", "s53", 10)
    A.I("s_lshl_b32", "s55", "s52", 17)
    A.I("s_add_u32", "s54", "s54", "s55")
    A.I("s_add_u32", "s54", "s54", hex(W1F))
    for c in range(4):
        A.I("buffer_store_dwordx4", vr(32 + 4 * c, 4), "v7", "s[44:47]", "s54", mods="offen")
        if c < 3: A.I("s_add_u32", "s54", "s54", 32768)
    A.I("s_branch", L("pt_done"))
    A.label(L("pt_w2"))
    A.I("s_cmp_ge_u32", "s29", 704)
    A.I("s_cbranch_scc1", L("pt_b1"))
    for rb in range(2):
        for e in range(2):
            for p in range(4):
                A.I("v_perm_b32", vr(32 + 8 * rb + 4 * e + p), vr(16 + 8 * rb + 2 * p + 1), vr(16 + 8 * rb + 2 * p), "s57" if e == 0 else "s58")
    A.I("s_mul_i32", "s54", "s53", 88 * 2048)
    A.I("s_lshl_b32", "s55", "s52", 12)
    A.I("s_add_u32", "s54", "s54", "s55")
    A.I("s_add_u32", "s54", "s54", hex(W2F))
    for q in range(4):
        A.I("buffer_store_dwordx4", vr(32 + 4 * q, 4), "v7", "s[44:47]", "s54", mods=f"offen offset:{q*1024}")
    A.I("s_branch", L("pt_done"))
    A.label(L("pt_b1"))
    A.I("s_cmp_ge_u32", "s29", 748)
    A.I("s_cbranch_scc1", L("pt_done"))
    A.I("v_lshlrev_b32", "v16", 16, "v16")
    A.I("s_lshl_b32", "s54", "s52", 7)
    A.I("s_add_u32", "s54", "s54", hex(B1F))
    A.I("v_lshlrev_b32", "v17", 2, "v1")
    A.I("v_mov_b32", "v18", "0x7f000000")
    A.I("v_cmp_gt_u32", "vcc", 32, "v1")
    A.I("v_cndmask_b32", "v17", "v18", "v17", "vcc")
    A.I("buffer_store_dword", "v16", "v17", "s[44:47]", "s54", mods="offen")
    A.label(L("pt_done"))
    A.I("s_nop", 1)
    A.I("v_and_b32", "v16", 7, "v1")
    A.I("v_mul_u32_u24", "v16", 1088, "v16")
    A.I("v_lshrrev_b32", "v17", 3, "v1")
    A.I("v_lshl_add_u32", "v16", "v17", 4, "v16")
    A.I("s_lshl_b32", "s54", "s28", 8)
    A.I("v_add_u32", "v16", "s54", "v16")
    A.I("v_bfe_u32", "v17", "v1", 2, 2)
    A.I("v_mul_u32_u24", "v17", 1088, "v17")
    A.I("v_lshrrev_b32", "v18", 4, "v1")
    A.I("v_lshl_add_u32", "v17", "v18", 5, "v17")
    A.I("v_and_b32", "v18", 3, "v1")
    A.I("v_lshl_add_u32", "v17", "v18", 3, "v17")
    A.I("v_add_u32", "v17", "s54", "v17")
    A.I("v_lshlrev_b32", "v18", 12, "v1")
    A.wait(lgkm=0)
    A.I("s_barrier")
    A.I("ds_read_b128", "v[8:11]", "v16")
    A.I("ds_read_b128", "v[12:15]", "v16", mods="offset:128")
    A.I("ds_read_b64_tr_b16", "v[20:21]", "v17")
    A.I("ds_read_b64_tr_b16", "v[22:23]", "v17", mods=f"offset:{4*1088}")
    A.I("ds_read_b64_tr_b16", "v[24:25]", "v17", mods="offset:128")
    A.I("ds_read_b64_tr_b16", "v[26:27]", "v17", mods=f"offset:{4*1088+128}")
    A.I("s_lshl_b32", "s54", "s30", 13)
    A.I("s_lshl_b32", "s55", "s28", 11)
    A.I("s_add_u32", "s54", "s54", "s55")
    A.I("s_lshl_b32", "s55", "s28", 19)
    A.I("s_lshl_b32", "s60", "s30", 4)
    A.I("s_add_u32", "s55", "s55", "s60")
    A.I("s_add_u32", "s55", "s55", hex(XNT))
    A.I("s_add_u32", "s60", "s55", 64 * 4096)
    A.wait(lgkm=4)
    A.I("buffer_store_dwordx4", "v[8:11]", "v7", "s[44:47]", "s54", mods="offen")
    A.I("buffer_store_dwordx4", "v[12:15]", "v7", "s[44:47]", "s54", mods="offen offset:1024")
    A.wait(lgkm=2)
    A.I("buffer_store_dwordx4", "v[20:23]", "v18", "s[44:47]", "s55", mods="offen")
    A.wait(lgkm=0)
    A.I("buffer_store_dwordx4", "v[24:27]", "v18", "s[44:47]", "s60", mods="offen")
    stamp_at(A, 2)
    gen_kgen(A, P=P, vidx=56)
    KACC = 100
    A.I("s_lshr_b32", "s54", "s28", 1)
    A.I("s_mul_i32", "s54", "s54", 5 * 1024)
    A.I("s_add_u32", "s54", "s54", 16384)
    A.I("v_add_u32", "v16", "s54", "v7")
    A.I("s_and_b32", "s55", "s28", 1)
    A.I("s_cmp_eq_u32", "s55", 0)
    A.I("s_cbranch_scc1", L("k_even"))
    for s in range(5):
        A.I("ds_write_b128", "v16", vr(KACC + 4 * s, 4), mods=f"offset:{s*1024}")
    A.wait(lgkm=0)
    A.I("s_barrier")
    A.I("s_branch", L("end"))
    A.label(L("k_even"))
    A.I("v_and_b32", "v17", 15, "v1")
    A.I("v_lshrrev_b32", "v18", 4, "v1")
    A.I("v_lshlrev_b32", "v19", 5, "v17")
    A.I("v_lshl_add_u32", "v19", "v18", 3, "v19")
    A.I("v_mov_b32", "v21", "0x7f000000")
    A.I("v_cmp_lt_u32", "vcc", 7, "v17")
    A.I("v_cndmask_b32", "v20", "v21", "v19", "vcc")
    A.I("v_cmp_eq_u32", "vcc", 15, "v1")
    A.I("v_mov_b32", "v22", 1280)
    A.I("v_cndmask_b32", "v21", "v21", "v22", "vcc")
    A.I("s_lshl_b32", "s54", "s32", 11)
    A.I("s_add_u32", "s54", "s54", hex(KD))
    A.I("s_barrier")
    for s in range(5):
        A.I("ds_read_b128", vr(24 + 4 * s, 4), "v16", mods=f"offset:{s*1024}")
    for s in range(5):
        A.wait(lgkm=4 - s)
        A.I("v_pk_add_f32", vr(KACC + 4 * s, 2), vr(KACC + 4 * s, 2), vr(24 + 4 * s, 2))
        A.I("v_pk_add_f32", vr(KACC + 4 * s + 2, 2), vr(KACC + 4 * s + 2, 2), vr(24 + 4 * s + 2, 2))
        A.I("v_cvt_pk_bf16_f32", vr(KACC + 4 * s), vr(KACC + 4 * s), vr(KACC + 4 * s + 1))
        A.I("v_cvt_pk_bf16_f32", vr(KACC + 4 * s + 1), vr(KACC + 4 * s + 2), vr(KACC + 4 * s + 3))
        if s < 4:
            A.I("buffer_store_dwordx2", vr(KACC + 4 * s, 2), "v19" if s == 0 else "v20", "s[44:47]", "s54", mods=f"offen offset:{256*s}")
        else:
            A.I("buffer_store_short", vr(KACC + 4 * s + 1), "v21", "s[44:47]", "s54", mods="offen")
    A.label(L("end"))
    stamp_flush(A, 0, "s[26:27]", NST)
    A.label(L("exit"))
    A.I("s_endpgm")
    A.raw(kernel_footer(name, 128, 128))
    return A.text()

def gen_kgen_pair_setup(A, P):
    for k in range(7):
        A.I("v_lshlrev_b32", vr(P + k), 16, vr(P + k))
    A.I("s_mov_b32", "s62", hex(LOG2E))
    A.I("s_mov_b32", "s63", "0x32a57060")
    A.I("v_mul_f32", "v8", "s62", vr(P + 6))
    A.I("v_fma_f32", "v9", vr(P + 6), "s62", "-v8")
    A.I("v_fma_f32", "v9", vr(P + 6), "s63", "v9")
    A.I("v_exp_f32", "v8", "v8")
    A.I("v_mul_f32", "v9", "0x3f317218", "v9")
    A.I("v_fma_f32", "v8", "v8", "v9", "v8")
    A.I("v_cvt_pk_bf16_f32", "v8", 0, "v8")
    A.I("v_mul_f32", vr(P + 0), "v8", vr(P + 0))
    A.I("v_mul_f32", vr(P + 1), "v8", vr(P + 1))
    A.I("v_mul_f32", vr(P + 2), "v8", vr(P + 2))
    A.I("v_mul_f32", vr(P + 3), "v8", vr(P + 3))
    A.I("v_mul_f32", vr(P + 0), "s62", vr(P + 0))
    A.I("v_mul_f32", vr(P + 1), hex(INV2PI), vr(P + 1))
    A.I("v_mul_f32", "v9", vr(P + 5), vr(P + 3))
    A.I("v_mul_f32", "v10", vr(P + 5), vr(P + 2))
    A.I("v_fma_f32", vr(P + 2), vr(P + 4), vr(P + 2), "-v9")
    A.I("v_fma_f32", vr(P + 3), vr(P + 4), vr(P + 3), "v10")

def gen_kgen_pair(A, P, vidx, pi):
    KACC = 100
    va, vb, vcr, vci = P, P + 1, P + 2, P + 3
    ET = [64 + 4 * s for s in range(5)]
    GT = [84 + 4 * s for s in range(4)]
    E, C, S, T = 8, 10, 12, 14
    R = [16, 20]; Im = [18, 22]
    GR = [24, 28]; GI = [26, 30]
    def bc(n): return f"row_newbcast:{n} {DPPM}"
    NEG2 = "neg_lo:[0,0,1] neg_hi:[0,0,1]"
    n0, n1 = 2 * pi, 2 * pi + 1
    ks, pos = pi >> 1, 2 * (pi & 1)
    A.I("v_mul_f32_dpp", vr(E), vr(va), vr(vidx), mods=bc(n0))
    A.I("v_mul_f32_dpp", vr(E + 1), vr(va), vr(vidx), mods=bc(n1))
    A.I("v_mul_f32_dpp", vr(S), vr(vb), vr(vidx), mods=bc(n0))
    A.I("v_mul_f32_dpp", vr(S + 1), vr(vb), vr(vidx), mods=bc(n1))
    A.I("v_exp_f32", vr(E), vr(E))
    A.I("v_exp_f32", vr(E + 1), vr(E + 1))
    A.I("v_fract_f32", vr(S), vr(S))
    A.I("v_fract_f32", vr(S + 1), vr(S + 1))
    A.I("v_cos_f32", vr(C), vr(S))
    A.I("v_cos_f32", vr(C + 1), vr(S + 1))
    A.I("v_sin_f32", vr(S), vr(S))
    A.I("v_sin_f32", vr(S + 1), vr(S + 1))
    A.I("v_pk_mul_f32", vr(R[0], 2), vr(E, 2), vr(C, 2))
    A.I("v_pk_mul_f32", vr(Im[0], 2), vr(E, 2), vr(S, 2))
    cur = 0
    g = 0
    for s in range(7):
        r, im = R[cur], Im[cur]
        if s <= 3 or s == 6:
            t = ET[s] if s <= 3 else ET[4]
            A.I("v_cvt_pk_bf16_f32", vr(t + pos), vr(r), vr(r + 1))
            A.I("v_cvt_pk_bf16_f32", vr(t + pos + 1), f"-{vr(im)}", f"-{vr(im + 1)}")
        if s == 4:
            for e, n in ((0, n0), (1, n1)):
                A.I("v_mul_f32_dpp", vr(GR[0] + e), vr(vcr), vr(r + e), mods=bc(n))
                A.I("v_mul_f32_dpp", vr(GI[0] + e), vr(vcr), vr(im + e), mods=bc(n))
                A.I("v_fmac_f32_dpp", vr(GR[0] + e), f"-{vr(vci)}", vr(im + e), mods=bc(n))
                A.I("v_fmac_f32_dpp", vr(GI[0] + e), vr(vci), vr(r + e), mods=bc(n))
            A.I("v_cvt_pk_bf16_f32", vr(GT[0] + pos), vr(GR[0]), vr(GR[0] + 1))
            A.I("v_cvt_pk_bf16_f32", vr(GT[0] + pos + 1), vr(GI[0]), vr(GI[0] + 1))
        if s >= 4:
            a, b = g, 1 - g
            A.I("v_pk_mul_f32", vr(T, 2), vr(GI[a], 2), vr(im, 2))
            A.I("v_pk_mul_f32", vr(GI[b], 2), vr(GI[a], 2), vr(r, 2))
            A.I("v_pk_fma_f32", vr(GR[b], 2), vr(GR[a], 2), vr(r, 2), vr(T, 2), mods=NEG2)
            A.I("v_pk_fma_f32", vr(GI[b], 2), vr(GR[a], 2), vr(im, 2), vr(GI[b], 2))
            A.I("v_cvt_pk_bf16_f32", vr(GT[s - 3] + pos), vr(GR[b]), vr(GR[b] + 1))
            A.I("v_cvt_pk_bf16_f32", vr(GT[s - 3] + pos + 1), vr(GI[b]), vr(GI[b] + 1))
            g = b
        if s < 6:
            r2, im2 = R[1 - cur], Im[1 - cur]
            A.I("v_pk_mul_f32", vr(T, 2), vr(im, 2), vr(im, 2))
            A.I("v_pk_mul_f32", vr(im2, 2), vr(r, 2), vr(im, 2))
            A.I("v_pk_fma_f32", vr(r2, 2), vr(r, 2), vr(r, 2), vr(T, 2), mods=NEG2)
            A.I("v_pk_add_f32", vr(im2, 2), vr(im2, 2), vr(im2, 2))
            cur = 1 - cur
    if pi & 1:
        for s in range(5):
            acc = vr(KACC + 4 * s, 4)
            A.I("v_mfma_f32_16x16x32_bf16", acc, vr(ET[s], 4), vr(GT[min(s, 3)], 4), acc if ks > 0 else "0")


def gen_kgen_pair_np(A, P, vidx, pi):
    KACC = 100
    va, vb, vcr, vci = P, P + 1, P + 2, P + 3
    ET = [64 + 4 * s for s in range(5)]
    GT = [84 + 4 * s for s in range(4)]
    E, C, S, T = 8, 10, 12, 14
    R = [16, 20]; Im = [18, 22]
    GR = [24, 28]; GI = [26, 30]
    def bc(n): return f"row_newbcast:{n} {DPPM}"
    n0, n1 = 2 * pi, 2 * pi + 1
    ks, pos = pi >> 1, 2 * (pi & 1)
    A.I("v_mul_f32_dpp", vr(E), vr(va), vr(vidx), mods=bc(n0))
    A.I("v_mul_f32_dpp", vr(E + 1), vr(va), vr(vidx), mods=bc(n1))
    A.I("v_mul_f32_dpp", vr(S), vr(vb), vr(vidx), mods=bc(n0))
    A.I("v_mul_f32_dpp", vr(S + 1), vr(vb), vr(vidx), mods=bc(n1))
    A.I("v_exp_f32", vr(E), vr(E))
    A.I("v_exp_f32", vr(E + 1), vr(E + 1))
    A.I("v_fract_f32", vr(S), vr(S))
    A.I("v_fract_f32", vr(S + 1), vr(S + 1))
    A.I("v_cos_f32", vr(C), vr(S))
    A.I("v_cos_f32", vr(C + 1), vr(S + 1))
    A.I("v_sin_f32", vr(S), vr(S))
    A.I("v_sin_f32", vr(S + 1), vr(S + 1))
    for e in range(2): A.I("v_mul_f32", vr(R[0] + e), vr(E + e), vr(C + e))
    for e in range(2): A.I("v_mul_f32", vr(Im[0] + e), vr(E + e), vr(S + e))
    cur = 0; g = 0
    for s in range(7):
        r, im = R[cur], Im[cur]
        if s <= 3 or s == 6:
            t = ET[s] if s <= 3 else ET[4]
            A.I("v_cvt_pk_bf16_f32", vr(t + pos), vr(r), vr(r + 1))
            A.I("v_cvt_pk_bf16_f32", vr(t + pos + 1), f"-{vr(im)}", f"-{vr(im + 1)}")
        if s == 4:
            for e, n in ((0, n0), (1, n1)):
                A.I("v_mul_f32_dpp", vr(GR[0] + e), vr(vcr), vr(r + e), mods=bc(n))
                A.I("v_mul_f32_dpp", vr(GI[0] + e), vr(vcr), vr(im + e), mods=bc(n))
                A.I("v_fmac_f32_dpp", vr(GR[0] + e), f"-{vr(vci)}", vr(im + e), mods=bc(n))
                A.I("v_fmac_f32_dpp", vr(GI[0] + e), vr(vci), vr(r + e), mods=bc(n))
            A.I("v_cvt_pk_bf16_f32", vr(GT[0] + pos), vr(GR[0]), vr(GR[0] + 1))
            A.I("v_cvt_pk_bf16_f32", vr(GT[0] + pos + 1), vr(GI[0]), vr(GI[0] + 1))
        if s >= 4:
            a, b = g, 1 - g
            for e in range(2):
                A.I("v_mul_f32", vr(T + e), vr(GI[a] + e), vr(im + e))
                A.I("v_mul_f32", vr(GI[b] + e), vr(GI[a] + e), vr(r + e))
            for e in range(2):
                A.I("v_fma_f32", vr(GR[b] + e), vr(GR[a] + e), vr(r + e), f"-{vr(T + e)}")
                A.I("v_fmac_f32", vr(GI[b] + e), vr(GR[a] + e), vr(im + e))
            A.I("v_cvt_pk_bf16_f32", vr(GT[s - 3] + pos), vr(GR[b]), vr(GR[b] + 1))
            A.I("v_cvt_pk_bf16_f32", vr(GT[s - 3] + pos + 1), vr(GI[b]), vr(GI[b] + 1))
            g = b
        if s < 6:
            r2, im2 = R[1 - cur], Im[1 - cur]
            for e in range(2):
                A.I("v_mul_f32", vr(T + e), vr(im + e), vr(im + e))
                A.I("v_mul_f32_e64", vr(im2 + e), vr(r + e), vr(im + e), mods="mul:2")
            for e in range(2):
                A.I("v_fma_f32", vr(r2 + e), vr(r + e), vr(r + e), f"-{vr(T + e)}")
            cur = 1 - cur
    if pi & 1:
        for s in range(5):
            acc = vr(KACC + 4 * s, 4)
            A.I("v_mfma_f32_16x16x32_bf16", acc, vr(ET[s], 4), vr(GT[min(s, 3)], 4), acc if ks > 0 else "0")

def gen_kgen(A, P, vidx):
    gen_kgen_pair_setup(A, P)
    for pi in range(8): gen_kgen_pair(A, P, vidx, pi)

if __name__ == "__main__":
    print(gen_prep())
```

```python
XNF = 0x000000
XNT = 0x200000
HF  = 0x400000
ST  = 0xA00000
W2F = 0xD00000
F1  = 0xC00000
F1B = 0xC30000
STAT = 0xC60000
CSB = 0xC70000
FA  = 0xC58000
F2W = 0xD00000
F2  = 0xC10000
F3  = 0xC20000
WS_SIZE = 0xF00000
LOG2E = 0x3fb8aa3b
INV2PI = 0x3e22f983
SPIN_LIMIT = 0x40000
import os
F1SH = int(os.environ.get("F1SH", 7)); F1BSH = int(os.environ.get("F1BSH", 6)); F2SH = int(os.environ.get("F2SH", 7)); F3SH = int(os.environ.get("F3SH", 7))
```

```python
from asmlib import *
from layout1 import *
from k_prep import srd, DPPM, reduce32, gen_kgen_pair_setup, gen_kgen_pair_np
import k_prep
def gen_kgen_pair(A, P, vidx, pi):
    lim = int(os.environ.get('NPFROM', 8))
    (gen_kgen_pair_np if pi >= lim else k_prep.gen_kgen_pair)(A, P, vidx, pi)
KC = 0
UL = 33280
KDT = UL + 9216
KTS = 5888
ACCX = KDT + 2 * KTS
PSET = [(0, 3, 5, 6), (1, 2, 4, 7)]

def spin_check(A, L, name, vflag, vtag, reissue, cnt="s70", first=False, wait_tag=None):
    if first: reissue()
    A.I("s_mov_b32", cnt, SPIN_LIMIT)
    if wait_tag: A.wait_vm(wait_tag)
    else: A.wait(vm=0)
    A.label(L(name))
    A.I("v_cmp_ne_u32", "vcc", vflag, vtag)
    A.I("s_cbranch_vccz", L(name + "_ok"))
    A.I("s_sub_u32", cnt, cnt, 1)
    A.I("s_cbranch_scc1", L(name + "_ok"))
    A.I("s_sleep", 2)
    reissue(); A.vmq.pop()
    A.wait(vm=0)
    A.I("s_branch", L(name))
    A.label(L(name + "_ok"))

def get_tag(A, L, name, vtag, vzero, dbg, cnt="s70"):
    A.I("s_mov_b32", cnt, SPIN_LIMIT)
    A.label(L(name))
    A.I("v_cmp_eq_u32", "vcc", 0, vtag)
    A.I("s_cbranch_vccz", L(name + "_ok"))
    A.I("s_sub_u32", cnt, cnt, 1)
    A.I("s_cbranch_scc1", L(name + "_ok"))
    A.I("s_sleep", 2)
    A.I("global_load_dword", vtag, vzero, dbg, mods="sc1"); A.vmq.pop()
    A.wait(vm=0)
    A.I("s_branch", L(name))
    A.label(L(name + "_ok"))

def code_prefetch(A, start_label, nbytes, vtmp, vdst, L):
    A.I("s_getpc_b64", "s[74:75]")
    A.I("v_lshlrev_b32", vtmp, 7, "v0")
    assert nbytes <= 32768
    A.I("v_cmp_gt_u32", "vcc", nbytes - 256, vtmp)
    A.I("v_cndmask_b32", vtmp, 0, vtmp, "vcc")
    A.I("global_load_dword", vdst, vtmp, "s[74:75]")

def code_prefetch2(A, nbytes):
    per = ((nbytes - 256) // 128 + 31) // 32
    A.I("s_getpc_b64", "s[74:75]")
    A.I("s_bfe_u32", "s72", "s2", "0x50003")
    A.I("s_mul_i32", "s72", "s72", per * 128)
    A.I("v_lshlrev_b32", "v3", 7, "v0")
    A.I("v_add_u32", "v3", "s72", "v3")
    A.I("v_min_u32", "v3", nbytes - 256, "v3")
    A.I("v_cmp_gt_u32", "vcc", per, "v0")
    A.I("s_and_saveexec_b64", "s[72:73]", "vcc")
    A.I("global_load_dword", "v3", "v3", "s[74:75]")
    A.I("s_mov_b64", "exec", "s[72:73]")

def gen_K(A, L, ksize):
    A.label(L("K"))
    if "nok" in OPTS: A.I("s_endpgm")
    if "kv" in OPTS:
        A.I("s_load_dwordx4", "s[24:27]", "s[0:1]", 120)
        if "kvhi" in OPTS: A.I("s_setprio", 3)
        for rep in range(3):
            for pi in range(8): gen_kgen_pair(A, 48, 56, pi)
        A.I("s_branch", L("K_end"))
    A.unpk = "knp" in OPTS
    A.I("s_setprio", 3)
    A.I("s_memrealtime", "s[76:77]")
    A.I("s_load_dwordx16", "s[4:19]", "s[0:1]", 0)
    A.I("s_load_dwordx2", "s[20:21]", "s[0:1]", 64)
    A.I("s_load_dwordx4", "s[24:27]", "s[0:1]", 120)
    A.I("s_load_dwordx2", "s[22:23]", "s[0:1]", 96)
    code_prefetch2(A, ksize)
    A.I("s_and_b32", "s3", "s2", 255)
    A.I("v_and_b32", "v1", 63, "v0")
    A.I("v_lshrrev_b32", "v2", 6, "v0")
    A.I("v_readfirstlane_b32", "s28", "v2")
    A.I("s_and_b32", "s29", "s3", 7)
    A.I("s_lshl_b32", "s29", "s29", 5)
    A.I("s_lshr_b32", "s30", "s3", 3)
    A.I("s_add_u32", "s29", "s29", "s30")
    A.I("s_lshr_b32", "s30", "s28", 1)
    A.I("s_and_b32", "s31", "s28", 1)
    A.I("s_lshl_b32", "s32", "s29", 1)
    A.I("s_add_u32", "s32", "s32", "s30")
    A.I("s_lshl_b32", "s33", "s31", 7)
    A.I("s_lshl_b32", "s34", "s32", 8)
    A.I("s_add_u32", "s33", "s33", "s34")
    A.I("v_and_b32", "v2", 7, "v1")
    A.I("v_lshl_add_u32", "v2", "v2", 4, "s33")
    A.I("s_lshl_b32", "s34", "s3", 3)
    A.I("s_lshl_b32", "s35", "s28", 1)
    A.I("s_add_u32", "s34", "s34", "s35")
    A.I("s_lshl_b32", "s34", "s34", 10)
    A.I("v_lshrrev_b32", "v5", 5, "v1")
    A.I("v_and_b32", "v6", 31, "v1")
    A.I("v_lshlrev_b32", "v4", 10, "v5")
    A.I("v_lshl_add_u32", "v4", "v6", 4, "v4")
    A.I("v_add_u32", "v4", "s34", "v4")
    A.I("v_mov_b32", "v122", 0)
    A.wait(lgkm=0)
    P = 48
    A.I("global_load_dwordx4", "v[8:11]", "v4", "s[4:5]", tag="x")
    A.I("global_load_dwordx4", "v[12:15]", "v4", "s[4:5]", mods="offset:512", tag="x")
    A.I("s_or_b32", "s76", "s76", 1)
    A.I("s_or_b32", "s61", "s3", "s28")
    A.I("s_cmp_lg_u32", "s61", 0)
    A.I("s_cbranch_scc1", L("K_notag"))
    A.I("v_mov_b32", "v123", "s76")
    A.I("s_mov_b64", "exec", 1)
    A.I("global_store_dword", "v122", "v123", "s[24:25]", mods="sc1"); A.vmq.pop()
    A.I("s_mov_b64", "exec", -1)
    A.label(L("K_notag"))
    A.I("s_mov_b64", "exec", "0xff")
    for k, sb in enumerate((6, 8, 10, 12, 14, 16)):
        A.I("v_mov_b32", "v136", sr(sb))
        A.I("v_mov_b32", "v137", sr(sb + 1))
        if k < 5: A.I("s_lshl_b64", "exec", "exec", 8)
    A.I("s_mov_b32", "exec_lo", -1)
    A.I("s_mov_b32", "exec_hi", "0xffff")
    A.I("v_add_co_u32", "v136", "vcc", "v136", "v2")
    A.I("v_addc_co_u32", "v137", "vcc", 0, "v137", "vcc")
    A.I("global_load_dwordx4", "v[140:143]", "v[136:137]", "off", tag="par")
    A.I("s_mov_b64", "exec", -1)
    A.I("s_lshl_b32", "s33", "s29", 2)
    A.I("s_load_dword", "s36", "s[20:21]", "s33")
    A.I("s_load_dword", "s52", "s[18:19]", "s33")
    srd(A, 44, 26, WS_SIZE)
    if "nowarm" not in OPTS:
        srd(A, 64, 22, 1376 * 1024)
        A.I("s_lshl_b32", "s57", "s3", 12)
        A.I("s_lshl_b32", "s58", "s28", 10)
        A.I("s_add_u32", "s57", "s57", "s58")
        A.I("s_add_u32", "s58", "s57", 1 << 20)
        A.I("v_lshlrev_b32", "v7", 4, "v1")
        A.I("buffer_load_dwordx4", "v[144:147]", "v7", "s[64:67]", "s57", mods="offen", tag="warm")
        A.I("buffer_load_dwordx4", "v[144:147]", "v7", "s[64:67]", "s58", mods="offen", tag="warm")
    A.I("s_mov_b32", "s56", "0x3f803f80")
    A.I("s_mov_b32", "s59", "0xffff0000")
    A.I("v_and_b32", "v56", 15, "v1")
    A.I("v_cvt_f32_u32", "v56", "v56")
    A.I("s_mul_i32", "s60", "s28", 2 * 1088)
    A.I("v_mul_u32_u24", "v57", 1088, "v5")
    A.I("v_lshl_add_u32", "v57", "v6", 4, "v57")
    A.I("v_add_u32", "v57", "s60", "v57")
    A.I("v_mov_b32", "v58", 0)
    A.I("v_mov_b32", "v59", 0)
    A.I("v_lshlrev_b32", "v7", 4, "v1")
    A.I("v_and_b32", "v16", 7, "v1")
    A.I("v_mul_u32_u24", "v16", 1088, "v16")
    A.I("v_lshrrev_b32", "v17", 3, "v1")
    A.I("v_lshl_add_u32", "v16", "v17", 4, "v16")
    A.I("s_lshl_b32", "s54", "s28", 8)
    A.I("v_add_u32", "v16", "s54", "v16")
    A.I("v_bfe_u32", "v17", "v1", 2, 2)
    A.I("v_mul_u32_u24", "v17", 1088, "v17")
    A.I("v_lshrrev_b32", "v18", 4, "v1")
    A.I("v_lshl_add_u32", "v17", "v18", 5, "v17")
    A.I("v_and_b32", "v18", 3, "v1")
    A.I("v_lshl_add_u32", "v17", "v18", 3, "v17")
    A.I("v_add_u32", "v17", "s54", "v17")
    A.I("s_lshl_b32", "s54", "s3", 13)
    A.I("s_lshl_b32", "s55", "s28", 11)
    A.I("s_add_u32", "s54", "s54", "s55")
    A.I("s_add_u32", "s55", "s54", hex(XNT))
    A.I("s_mul_i32", "s37", "s30", KTS)
    A.I("s_add_u32", "s37", "s37", KDT + 32)
    A.I("s_mov_b32", "s38", -17024)
    A.I("s_movk_i32", "s39", 127)
    A.I("s_lshl_b32", "s40", "s31", 10)
    A.I("v_lshl_add_u32", "v20", "v1", 3, "s40")
    AD = 200
    for rd in range(2):
        for ii in range(11):
            A.I("v_sub_u32", vr(AD + 11 * rd + ii), 2044 - 512 * rd - (ii - 3), "v20")
        for ii in range(11):
            if rd == 1 and ii >= 8:
                A.I("v_max_i32", vr(24 + ii), 0, vr(AD + 11 * rd + ii))
                A.I("v_cvt_f32_u32", vr(24 + ii), vr(24 + ii))
            else:
                A.I("v_cvt_f32_u32", vr(24 + ii), vr(AD + 11 * rd + ii))
        for ii in range(0, 11, 2):
            A.I("v_cvt_pk_bf16_f32", vr(36 + ii // 2), vr(24 + ii), vr(24 + min(ii + 1, 10)))
        for ii in range(11):
            A.I("v_mad_u32_u16", vr(24 + ii), vr(36 + ii // 2), 1, "s38", mods=("op_sel:[1,0,0,0]" if ii & 1 else ""))
        for ii in range(11):
            A.I("v_med3_i32", vr(24 + ii), vr(24 + ii), vr(AD + 11 * rd + ii), "s39")
        for ii in range(11):
            A.I("v_ashrrev_i32", vr(AD + 11 * rd + ii), 3, vr(24 + ii))
        for ii in range(11):
            A.I("v_add_u32", vr(24 + ii), vr(24 + ii), vr(AD + 11 * rd + ii))
        for ii in range(11):
            A.I("v_lshl_add_u32", vr(AD + 11 * rd + ii), vr(24 + ii), 3, "s37")
    A.wait_vm("par", lgkm=0)
    stampn(A, "k_x")
    if "kx1" in OPTS: A.I("s_branch", L("K_end"))
    A.I("s_lshl_b32", "s53", "s28", 10)
    A.I("s_add_u32", "s53", "s53", ACCX)
    A.I("v_add_u32", "v136", "s53", "v7")
    A.I("v_lshl_add_u32", "v137", "v1", 1, "s53")
    A.I("ds_write_b128", "v136", "v[140:143]")
    A.I("global_load_dword", "v123", "v122", "s[24:25]", mods="sc1", tag="tag")
    for k in range(8):
        A.I("v_dot2_f32_bf16", "v58", vr(8 + k), "s56", "v58")
        A.I("v_dot2_f32_bf16", "v59", vr(8 + k), vr(8 + k), "v59")
    reduce32(A, [58, 59], [60, 61])
    A.I("v_mul_f32", "v58", "0x3b000000", "v58")
    A.I("v_mul_f32", "v59", "0x3b000000", "v59")
    A.I("v_fma_f32", "v59", "-v58", "v58", "v59")
    A.I("v_max_f32", "v59", 0, "v59")
    A.I("v_cvt_pk_bf16_f32", "v60", 0, "v58")
    A.I("v_cvt_pk_bf16_f32", "v59", 0, "v59")
    A.I("v_add_f32", "v59", "0x3727c5ac", "v59")
    A.I("v_cvt_pk_bf16_f32", "v59", 0, "v59")
    A.I("v_sqrt_f32", "v59", "v59")
    A.I("v_cvt_pk_bf16_f32", "v59", 0, "v59")
    A.I("v_rcp_f32", "v62", "v59")
    for k in range(8):
        t = 64 + 2 * (k % 4)
        A.I("v_lshlrev_b32", vr(t), 16, vr(8 + k))
        A.I("v_and_b32", vr(t + 1), "s59", vr(8 + k))
        A.I("v_pk_add_f32", vr(t, 2), vr(t, 2), "v[60:61]", mods="op_sel_hi:[1,0] neg_lo:[0,1] neg_hi:[0,1]")
        A.I("v_cvt_pk_bf16_f32", vr(t), 0, vr(t))
        A.I("v_cvt_pk_bf16_f32", vr(t + 1), 0, vr(t + 1))
        A.I("v_pk_mul_f32", vr(t, 2), vr(t, 2), "v[62:63]", mods="op_sel_hi:[1,0]")
        A.I("v_cvt_pk_bf16_f32", vr(8 + k), vr(t), vr(t + 1))
        if k == 3: A.I("ds_write_b128", "v57", "v[8:11]")
    A.I("ds_write_b128", "v57", "v[12:15]", mods="offset:512")
    A.wait(lgkm=0)
    A.I("s_barrier")
    A.I("ds_read_b64_tr_b16", "v[24:25]", "v17")
    A.I("ds_read_b64_tr_b16", "v[26:27]", "v17", mods=f"offset:{4*1088}")
    A.I("ds_read_b64_tr_b16", "v[28:29]", "v17", mods="offset:128")
    A.I("ds_read_b64_tr_b16", "v[30:31]", "v17", mods=f"offset:{4*1088+128}")
    for k in range(6): A.I("ds_read_u16", vr(P + k), "v137", mods=f"offset:{128 * k}")
    A.wait(lgkm=8)
    A.I("buffer_store_dwordx4", "v[24:27]", "v7", "s[44:47]", "s55", mods="offen sc1")
    A.wait(lgkm=6)
    A.I("buffer_store_dwordx4", "v[28:31]", "v7", "s[44:47]", "s55", mods="offen offset:1024 sc1")
    A.I("s_lshl_b32", "s53", "s30", 4)
    A.I("s_lshr_b32", "s52", "s52", "s53")
    A.I("v_mov_b32", vr(P + 6), "s52")
    stampn(A, "k_st")
    if "kx2" in OPTS: A.I("s_branch", L("K_end"))
    A.wait_vm("tag")
    get_tag(A, L, "K_tag", "v123", "v122", "s[24:25]")
    A.I("v_mov_b32", "v132", "v60")
    A.I("v_mov_b32", "v133", "v62")
    A.I("v_mov_b32", "v134", "v59")
    A.I("v_mov_b32", "v135", "v123")
    A.I("v_lshlrev_b32", "v131", 4, "v5")
    A.I("s_lshl_b32", "s71", "s3", 7)
    A.I("s_lshl_b32", "s72", "s28", 5)
    A.I("s_add_u32", "s71", "s71", "s72")
    A.I("s_add_u32", "s71", "s71", hex(STAT))
    A.I("s_mov_b32", "exec_lo", 1)
    A.I("s_mov_b32", "exec_hi", 1)
    A.I("buffer_store_dwordx4", "v[132:135]", "v131", "s[44:47]", "s71", mods="offen sc1")
    A.I("s_mov_b64", "exec", -1)
    A.wait(lgkm=0)
    gen_kgen_pair_setup(A, P)
    gen_kgen_pair(A, P, 56, 0)
    A.wait(vm=1)
    stampn(A, "k_dr")
    A.I("s_barrier")
    A.I("s_cmp_lg_u32", "s28", 0)
    A.I("s_cbranch_scc1", L("K_f1done"))
    A.I("s_lshl_b32", "s71", "s3", F1SH)
    A.I("s_add_u32", "s71", "s71", hex(F1))
    A.I("s_mov_b64", "exec", 1)
    A.I("buffer_store_dword", "v123", "v122", "s[44:47]", "s71", mods="offen sc1")
    A.I("s_mov_b64", "exec", -1)
    A.label(L("K_f1done"))
    stampn(A, "k_f1")
    if "kx3" in OPTS: A.I("s_branch", L("K_end"))
    A.I("s_setprio", 0)
    A.I("s_lshl_b32", "s71", "s28", F1SH + 6)
    A.I("v_lshl_add_u32", "v120", "v1", F1SH, "s71")
    def poll_issue():
        A.I("buffer_load_dword", "v121", "v120", "s[44:47]", "s41", mods="offen sc1")
    A.I("s_mov_b32", "s41", hex(F1))
    for pi in range(1, 8):
        if pi == 3: poll_issue()
        if pi == 6:
            spin_check(A, L, "K_p1", "v121", "v123", poll_issue)
            A.I("v_readfirstlane_b32", "s51", "v123")
            A.I("v_lshrrev_b32", "v120", 1, "v1")
            A.I("v_lshlrev_b32", "v120", 13, "v120")
            A.I("v_and_b32", "v121", 1, "v1")
            A.I("v_lshl_add_u32", "v120", "v121", 4, "v120")
            A.I("s_lshl_b32", "s41", "s28", 19)
            A.I("s_lshl_b32", "s42", "s29", 5)
            A.I("s_add_u32", "s41", "s41", "s42")
            A.I("s_add_u32", "s41", "s41", hex(XNT))
            A.I("s_add_u32", "s42", "s41", 32 * 8192)
            A.I("buffer_load_dwordx4", "v[124:127]", "v120", "s[44:47]", "s41", mods="offen sc1")
            A.I("buffer_load_dwordx4", "v[128:131]", "v120", "s[44:47]", "s42", mods="offen sc1")
        stampn(A, f"k_p{pi}")
        if "km" not in OPTS: gen_kgen_pair(A, P, 56, pi)
    stampn(A, "k_kgen")
    if "kprio" in OPTS: A.I("s_setprio", 3)
    if "kx4" in OPTS: A.I("s_branch", L("K_end"))
    KACC = 100
    A.I("s_lshl_b32", "s42", "s31", 2)
    A.I("s_add_u32", "s42", "s42", "s37")
    A.I("v_and_b32", "v8", 15, "v1")
    A.I("v_lshrrev_b32", "v14", 4, "v1")
    A.I("v_mul_u32_u24", "v9", 144, "v8")
    A.I("v_lshl_add_u32", "v9", "v14", 5, "v9")
    A.I("v_lshl_add_u32", "v9", "v5", 3, "v9")
    A.I("v_add_u32", "v9", "s42", "v9")
    for sg in range(1, 4): A.I("v_add_u32", vr(27 + sg), 1152 * sg, "v9")
    for k in range(4): A.I("v_mov_b32", vr(24 + k), 0)
    A.I("s_mul_i32", "s43", "s30", 4608)
    A.I("s_add_u32", "s43", "s43", UL)
    A.I("v_lshl_add_u32", "v10", "v1", 3, "s43")
    A.I("ds_write_b64", "v10", "v[24:25]")
    A.I("s_mul_i32", "s48", "s30", 16640)
    A.I("v_lshrrev_b32", "v10", 1, "v1")
    A.I("v_mul_u32_u24", "v11", 4160, "v10")
    A.I("v_lshl_add_u32", "v11", "v121", 4, "v11")
    A.I("v_add_u32", "v11", "s48", "v11")
    A.I("v_mov_b32", "v12", "s42")
    A.I("v_mul_u32_u24", "v13", 4608, "v121")
    A.I("v_lshl_add_u32", "v10", "v10", 4, "v13")
    A.I("s_lshl_b32", "s49", "s28", 10)
    A.I("s_add_u32", "s49", "s49", UL + 512)
    A.I("v_add_u32", "v10", "s49", "v10")
    A.I("ds_write2_b32", "v9", vr(KACC), vr(KACC + 1), mods="offset0:0 offset1:2")
    A.I("ds_write2_b32", "v9", vr(KACC + 2), vr(KACC + 3), mods="offset0:4 offset1:6")
    A.I("s_mov_b32", "exec_lo", "0xff00ff00")
    A.I("s_mov_b32", "exec_hi", "0xff00ff00")
    for s in range(1, 4):
        A.I("ds_write2_b32", vr(27 + s), vr(KACC + 4 * s), vr(KACC + 4 * s + 1), mods="offset0:0 offset1:2")
        A.I("ds_write2_b32", vr(27 + s), vr(KACC + 4 * s + 2), vr(KACC + 4 * s + 3), mods="offset0:4 offset1:6")
    A.I("s_mov_b64", "exec", "0x8000")
    A.I("ds_write_b32", "v12", vr(KACC + 18), mods=f"offset:{8 * 720}")
    A.I("s_mov_b64", "exec", "0xff")
    A.I("ds_write_b128", "v11", "v[24:27]", mods="offset:4096")
    A.I("s_sub_u32", "s50", "s37", 32)
    A.I("v_lshl_add_u32", "v12", "v121", 4, "s50")
    A.I("ds_write_b128", "v12", "v[24:27]")
    A.I("s_mov_b64", "exec", -1)
    stampn(A, "k_uw")
    A.wait(vm=0)
    stampn(A, "k_u")
    A.I("ds_write_b128", "v10", "v[124:127]")
    A.I("ds_write_b128", "v10", "v[128:131]", mods="offset:512")
    A.I("s_lshl_b32", "s49", "s31", 11)
    A.I("s_add_u32", "s50", "s49", "s48")
    A.I("v_add_u32", "v6", "s50", "v7")
    A.I("v_and_b32", "v12", 3, "v1")
    A.I("v_mul_u32_u24", "v12", 4160, "v12")
    A.I("v_bfe_u32", "v13", "v1", 2, 2)
    A.I("v_lshlrev_b32", "v13", 3, "v13")
    A.I("v_lshl_add_u32", "v13", "v14", 4, "v13")
    A.I("v_sub_u32", "v12", "v12", "v13")
    A.I("s_add_u32", "s50", "s48", 2 * 2052 - 64 * 63)
    A.I("v_add_u32", "v12", "s50", "v12")
    A.I("v_lshlrev_b32", "v13", 5, "v8")
    A.I("v_lshlrev_b32", "v15", 4, "v14")
    A.I("v_sub_u32", "v13", "v13", "v15")
    A.I("s_add_u32", "s50", "s43", 512 + 16 - 448)
    A.I("v_add_u32", "v13", "s50", "v13")
    A.I("v_lshlrev_b32", "v15", 5, "v8")
    A.I("v_lshl_add_u32", "v15", "v14", 3, "v15")
    A.I("s_add_u32", "s50", "s43", "s49")
    A.I("s_add_u32", "s50", "s50", 512)
    A.I("v_add_u32", "v38", "s50", "v15")
    A.wait(lgkm=0)
    A.I("s_barrier")
    stampn(A, "k_b1")
    for rd in range(2):
        for ii in range(11):
            A.I("ds_read_b64", vr(128 + 22 * rd + 2 * ii, 2), vr(AD + 11 * rd + ii), tag=f"e{rd}")
    for rd in range(2):
        A.wait_l(f"e{rd}")
        for ii in range(11):
            r = 128 + 22 * rd + 2 * ii
            A.I("v_add_f32", vr(r), vr(r), vr(r + 1))
        e = lambda ip: vr(128 + 22 * rd + 2 * (ip + 3))
        base = 64 + 16 * rd
        for sg in range(4):
            for dwi in range(4):
                lo = 2 * dwi - sg
                A.I("v_cvt_pk_bf16_f32", vr(base + 4 * sg + dwi), e(lo), e(lo + 1))
            A.I("ds_write_b128", "v6", vr(base + 4 * sg, 4), mods=f"offset:{sg * 4160 + rd * 1024}")
    A.wait(lgkm=0)
    A.I("s_barrier")
    stampn(A, "k_exp")
    KF = 128; UB = 96; CA = 64
    A.I("s_cmp_eq_u32", "s31", 1)
    A.I("s_cbranch_scc1", L("conv1"))
    for hw in range(2):
        if hw == 1: A.label(L("conv1"))
        Ps = PSET[hw]
        steps = [(Q, r) for Q in range(8 - min(Ps)) for r in range(8)]
        first = set()
        NB = 8
        def issueU(n):
            Q, r = steps[n]
            q = 8 * Q - r
            A.I("ds_read_b128", vr(UB + 4 * (n % NB), 4), "v13", mods=f"offset:{64 * (q + 7)}", tag=f"U{n}")
        def issueK(r):
            for si, P_ in enumerate(Ps):
                p = 8 * P_ + r
                reg = KF + 32 * si + 4 * r
                A.I("ds_read_b64", vr(reg, 2), "v12", mods=f"offset:{64 * (63 - p)}")
                A.I("ds_read_b64", vr(reg + 2, 2), "v12", mods=f"offset:{64 * (63 - p) + 8}", tag=f"K{r}")
        def mf(n):
            Q, r = steps[n]
            for si, P_ in enumerate(Ps):
                if P_ + Q > 7: continue
                acc = vr(CA + 4 * (P_ + Q), 4)
                c = acc if (P_ + Q) in first else "0"
                first.add(P_ + Q)
                A.I("v_mfma_f32_16x16x32_bf16", acc, vr(KF + 32 * si + 4 * r, 4), vr(UB + 4 * (n % NB), 4), c)
        issueU(0); issueK(0)
        for n in range(8):
            if n < 7:
                issueU(n + 1); issueK(n + 1)
                A.wait_l(f"K{n}")
            else:
                for k in range(8, 8 + NB - 2): issueU(k)
                A.wait_l(f"K{n}")
            mf(n)
        stampn(A, "k_q0")
        nxt = 8 + NB - 2
        issueU(nxt); nxt += 1
        for n in range(8, len(steps)):
            A.wait_l(f"U{n}")
            mf(n)
            if nxt < len(steps): issueU(nxt)
            nxt += 1
        stampn(A, "k_mf")
        oth = range(4, 8) if hw == 0 else range(1, 4)
        A.I("s_lshl_b32", "s41", "s30", 13)
        A.I("s_add_u32", "s41", "s41", ACCX)
        A.I("v_add_u32", "v39", "s41", "v7")
        for k in range(4):
            A.I("ds_read_b64", vr(40 + 2 * k, 2), "v38", mods=f"offset:{512 * k}")
        for Aa in oth:
            A.I("ds_write_b128", "v39", vr(CA + 4 * Aa, 4), mods=f"offset:{Aa * 1024}")
        own = range(0, 4) if hw == 0 else range(4, 8)
        A.I("s_lshl_b32", "s42", "s36", 16)
        A.I("s_and_b32", "s43", "s36", "0xffff0000")
        A.I("s_cmp_eq_u32", "s30", 0)
        A.I("s_cselect_b32", "s42", "s42", "s43")
        A.I("s_mov_b32", "s43", "s42")
        A.I("s_lshl_b32", "s48", "s32", 12)
        A.I("s_add_u32", "s48", "s48", "s49")
        A.I("s_add_u32", "s48", "s48", hex(ST))
        A.wait(lgkm=0)
        A.I("s_barrier")
        for k, Aa in enumerate(own):
            if hw == 0 and Aa == 0: continue
            A.I("ds_read_b128", vr(UB + 4 * k, 4), "v39", mods=f"offset:{Aa * 1024}", tag=f"X{k}")
        for k, Aa in enumerate(own):
            t = 48 + 4 * k; a = CA + 4 * Aa
            A.I("v_lshlrev_b32", vr(t), 16, vr(40 + 2 * k))
            A.I("v_and_b32", vr(t + 1), "s59", vr(40 + 2 * k))
            A.I("v_lshlrev_b32", vr(t + 2), 16, vr(41 + 2 * k))
            A.I("v_and_b32", vr(t + 3), "s59", vr(41 + 2 * k))
            A.I("v_pk_fma_f32", vr(a, 2), vr(t, 2), "s[42:43]", vr(a, 2))
            A.I("v_pk_fma_f32", vr(a + 2, 2), vr(t + 2, 2), "s[42:43]", vr(a + 2, 2))
        for k, Aa in enumerate(own):
            a = CA + 4 * Aa
            if not (hw == 0 and Aa == 0):
                A.wait_l(f"X{k}")
                A.I("v_pk_add_f32", vr(a, 2), vr(a, 2), vr(UB + 4 * k, 2))
                A.I("v_pk_add_f32", vr(a + 2, 2), vr(a + 2, 2), vr(UB + 4 * k + 2, 2))
            A.I("v_cvt_pk_bf16_f32", vr(a), vr(a), vr(a + 1))
            A.I("v_cvt_pk_bf16_f32", vr(a + 1), vr(a + 2), vr(a + 3))
            A.I("buffer_store_dwordx2", vr(a, 2), "v15", "s[44:47]", "s48", mods=f"offen offset:{512 * k} sc1")
        if hw == 0: A.I("s_branch", L("K_pub"))
    A.label(L("K_pub"))
    stampn(A, "k_conv")
    A.wait(vm=0)
    A.I("s_barrier")
    A.I("s_cmp_lg_u32", "s28", 0)
    A.I("s_cbranch_scc1", L("K_end"))
    A.I("s_lshl_b32", "s71", "s29", F3SH)
    A.I("s_add_u32", "s71", "s71", hex(F3))
    if "kstop" in OPTS: A.I("v_readfirstlane_b32", "s51", "v123")
    A.I("v_mov_b32", "v8", "s51")
    A.I("v_mov_b32", "v9", 0)
    A.I("s_mov_b64", "exec", 1)
    A.I("buffer_store_dword", "v8", "v9", "s[44:47]", "s71", mods="offen sc1")
    A.I("s_mov_b64", "exec", -1)
    A.unpk = False
    A.label(L("K_end"))
    stamp_flush(A, 0, "s[26:27]", 7)
    A.I("s_endpgm")
```

```python
from asmlib import *
from layout1 import *
from k_prep import srd
from t2_k import spin_check, code_prefetch2, get_tag

XB = 49152

def gen_csb(A, L, TAG):
    A.I("s_lshl_b32", "s71", "s49", 2)
    A.I("s_add_u32", "s71", "s71", "s22")
    A.I("global_load_dword", TAG, "v10", "s[18:19]", mods="sc1")
    A.I("s_cmp_ge_u32", "s71", 45)
    A.I("s_cbranch_scc1", L("M_csb_skip"))
    A.I("s_min_u32", "s72", "s71", 42)
    A.I("s_lshl_b32", "s72", "s72", 6)
    A.I("v_lshrrev_b32", "v16", 2, "v1")
    A.I("v_mul_u32_u24", "v16", 2752, "v16")
    A.I("v_and_b32", "v17", 3, "v1")
    A.I("v_lshl_add_u32", "v16", "v17", 4, "v16")
    A.I("s_mov_b32", "s73", "s72")
    for i in range(32):
        A.I("buffer_load_dwordx4", vr(128 + 4 * i - (0 if i < 28 else 0), 4) if i < 28 else vr(32 + 4 * (i - 28), 4), "v16", "s[28:31]", "s73", mods="offen", tag=f"c{i}")
        A.I("s_add_u32", "s73", "s73", 16 * 2752)
    A.I("v_lshl_add_u32", "v18", "v5", 1, "s72")
    A.I("global_load_ushort", "v19", "v18", "s[10:11]")
    A.I("s_mov_b32", "s74", "0x00003f80")
    A.I("s_mov_b32", "s75", "0x3f800000")
    for c in range(8): A.I("v_mov_b32", vr(20 + c), 0)
    for i in range(32):
        A.wait_vm(f"c{i}")
        b = 128 + 4 * i if i < 28 else 32 + 4 * (i - 28)
        for d in range(4):
            A.I("v_dot2_f32_bf16", vr(20 + 2 * d), vr(b + d), "s74", vr(20 + 2 * d))
            A.I("v_dot2_f32_bf16", vr(21 + 2 * d), vr(b + d), "s75", vr(21 + 2 * d))
    D = "row_mask:0xf bank_mask:0xf"
    for m in ("row_ror:4", "row_ror:8"):
        for c in range(8): A.I("v_add_f32_dpp", vr(20 + c), vr(20 + c), vr(20 + c), mods=f"{m} {D}")
    for sw in ("v_permlane16_swap_b32", "v_permlane32_swap_b32"):
        for c in range(8): A.I("v_mov_b32", vr(48 + c), vr(20 + c))
        for c in range(8): A.I(sw, vr(20 + c), vr(48 + c))
        for c in range(8): A.I("v_add_f32", vr(20 + c), vr(20 + c), vr(48 + c))
    A.I("v_lshlrev_b32", "v17", 5, "v17")
    A.I("v_add_u32", "v17", "s61", "v17")
    A.I("ds_write_b128", "v17", "v[20:23]")
    A.I("ds_write_b128", "v17", "v[24:27]", mods="offset:16")
    A.I("v_lshl_add_u32", "v17", "v5", 2, "s61")
    A.wait(lgkm=0)
    A.I("ds_read_b32", "v20", "v17")
    A.wait(vm=0, lgkm=0)
    get_tag(A, L, "M_tag15a", TAG, "v10", "s[18:19]")
    A.I("v_cvt_pk_bf16_f32", "v21", 0, "v20")
    A.I("v_sub_f32", "v20", "v20", "v21")
    A.I("v_cvt_pk_bf16_f32", "v22", 0, "v20")
    A.I("v_sub_f32", "v20", "v20", "v22")
    A.I("v_cvt_pk_bf16_f32", "v24", "v21", "v22")
    A.I("v_cvt_pk_bf16_f32", "v25", "v20", 0)
    A.I("v_lshl_or_b32", "v25", "v19", 16, "v25")
    A.I("v_mov_b32", "v26", TAG)
    A.I("v_mov_b32", "v27", TAG)
    A.I("s_lshl_b32", "s72", "s71", 9)
    A.I("s_add_u32", "s72", "s72", hex(CSB))
    A.I("v_lshlrev_b32", "v17", 4, "v5")
    A.I("s_mov_b64", "exec", "0xffffffff")
    A.I("buffer_store_dwordx4", "v[24:27]", "v17", "s[24:27]", "s72", mods="offen sc1")
    A.I("s_mov_b64", "exec", -1)
    stampn(A, "m_csb")
    A.label(L("M_csb_skip"))
    A.wait(vm=0)
    get_tag(A, L, "M_tag15", TAG, "v10", "s[18:19]")

def gen_M(A, L, msize):
    G1 = "g1only" in OPTS
    A.label(L("M"))
    if "nom" in OPTS: A.I("s_endpgm")
    A.I("s_setprio", 2)
    A.I("s_load_dwordx2", "s[4:5]", "s[0:1]", 0)
    A.I("s_load_dwordx8", "s[8:15]", "s[0:1]", 80)
    A.I("s_load_dwordx4", "s[16:19]", "s[0:1]", 112)
    A.I("s_load_dwordx2", "s[20:21]", "s[0:1]", 128)
    code_prefetch2(A, msize)
    A.I("v_and_b32", "v1", 63, "v0")
    A.I("v_lshrrev_b32", "v2", 6, "v0")
    A.I("v_readfirstlane_b32", "s22", "v2")
    A.I("s_and_b32", "s3", "s2", 255)
    A.I("s_and_b32", "s23", "s3", 7)
    A.I("s_lshr_b32", "s48", "s3", 3)
    A.I("s_lshr_b32", "s49", "s23", 1)
    A.I("s_lshl_b32", "s49", "s49", 2)
    A.I("s_lshr_b32", "s76", "s48", 3)
    A.I("s_add_u32", "s49", "s49", "s76")
    A.I("s_and_b32", "s50", "s23", 1)
    A.I("s_lshl_b32", "s50", "s50", 3)
    A.I("s_and_b32", "s52", "s48", 7)
    A.I("s_add_u32", "s50", "s50", "s52")
    A.I("s_lshl_b32", "s76", "s76", 1)
    if "norot" in OPTS: A.I("s_mov_b32", "s76", 0)
    A.I("s_lshl_b32", "s51", "s23", 2)
    A.I("s_lshr_b32", "s52", "s48", 3)
    A.I("s_add_u32", "s51", "s51", "s52")
    A.I("s_and_b32", "s52", "s48", 7)
    A.I("s_lshl_b32", "s53", "s49", 2)
    A.I("s_add_u32", "s53", "s53", "s22")
    A.I("v_lshlrev_b32", "v2", 4, "v1")
    A.I("v_lshrrev_b32", "v4", 5, "v1")
    A.I("v_and_b32", "v5", 31, "v1")
    A.I("v_lshrrev_b32", "v9", 3, "v1")
    A.I("v_lshrrev_b32", "v10", 4, "v1")
    A.I("v_and_b32", "v11", 7, "v1")
    A.I("v_xor_b32", "v10", "v10", "v11")
    A.I("v_lshlrev_b32", "v9", 10, "v9")
    A.I("v_lshl_add_u32", "v12", "v10", 4, "v9")
    A.I("v_xor_b32", "v13", 64, "v12")
    A.I("v_bfe_u32", "v10", "v1", 4, 1)
    A.I("v_lshlrev_b32", "v10", 2, "v10")
    A.I("v_xor_b32", "v10", "v10", "v11")
    A.I("v_lshl_add_u32", "v15", "v10", 4, "v9")
    A.I("s_mov_b32", "s54", 43691)
    for n in range(3):
        A.I("v_add_u32", "v9", 64 * n, "v1")
        A.I("v_mul_u32_u24", "v10", "s54", "v9")
        A.I("v_lshrrev_b32", "v10", 19, "v10")
        A.I("v_mul_u32_u24", "v11", 12, "v10")
        A.I("v_sub_u32", "v9", "v9", "v11")
        A.I("v_mul_u32_u24", "v10", 2752, "v10")
        A.I("v_lshl_add_u32", vr(6 + n), "v9", 4, "v10")
    A.I("v_lshlrev_b32", "v14", 7, "v5")
    A.I("s_mul_i32", "s55", "s50", 192)
    A.I("s_mul_i32", "s56", "s22", 16 * 2752)
    A.I("s_add_u32", "s56", "s56", "s55")
    A.I("s_mul_i32", "s57", "s22", 3072)
    A.I("s_lshl_b32", "s67", "s53", 15)
    A.I("s_lshl_b32", "s61", "s22", 12)
    A.I("s_add_u32", "s61", "s61", XB)
    A.I("s_lshl_b32", "s62", "s49", 17)
    A.I("s_lshl_b32", "s63", "s52", 14)
    A.I("s_add_u32", "s62", "s62", "s63")
    A.I("s_lshl_b32", "s63", "s22", 12)
    A.I("s_add_u32", "s62", "s62", "s63")
    A.wait(lgkm=0)
    srd(A, 40, 4, 2048 * 1024)
    srd(A, 28, 8, 512 * 2752)
    A.I("s_mov_b32", "exec_hi", 0)
    A.I("buffer_load_dword", "v3", "v14", "s[40:43]", "s62", mods="offen")
    A.I("s_mov_b64", "exec", -1)
    def xdma1(s, b):
        A.I("s_add_u32", "m0", "s61", (s % 2) * 16384 + b * 1024)
        if b == 0:
            A.I("s_add_u32", "s77", "s76", s)
            A.I("s_and_b32", "s77", "s77", 7)
            A.I("s_lshl_b32", "s77", "s77", 7)
            A.I("s_add_u32", "s77", "s77", "s67")
        A.I("s_add_u32", "s63", "s77", b * 8192)
        A.I("buffer_load_dwordx4", "v12" if b % 2 == 0 else "v13", "s[40:43]", "s63", mods="offen lds", tag=f"x{s}")
    def wdma1(s, n):
        if n == 0:
            A.I("s_add_u32", "s78", "s76", s)
            A.I("s_and_b32", "s78", "s78", 7)
            A.I("s_mul_i32", "s78", "s78", 64 * 2752)
            A.I("s_add_u32", "s78", "s78", "s56")
        A.I("s_add_u32", "m0", "s57", (s % 4) * 12288 + n * 1024)
        A.I("buffer_load_dwordx4", vr(6 + n), "s[28:31]", "s78", mods="offen lds", tag=f"w{s}")
    A.I("s_cmp_eq_u32", "s50", 15)
    A.I("s_cbranch_scc1", L("M_now1"))
    for b in range(4): xdma1(0, b)
    srd(A, 36, 10, 2752)
    A.I("s_mov_b32", "m0", 36864)
    A.I("s_mov_b64", "exec", "0xfff")
    A.I("buffer_load_dwordx4", "v2", "s[36:39]", "s55", mods="offen lds")
    A.I("s_mov_b64", "exec", -1)
    for n in range(3): wdma1(0, n)
    for b in range(4): xdma1(1, b)
    for s in (1, 2):
        for n in range(3): wdma1(s, n)
    A.label(L("M_now1"))
    srd(A, 24, 20, WS_SIZE)
    srd(A, 44, 16, 2048 * 1024)
    srd(A, 32, 12, 1376 * 1024)
    A.I("s_mov_b32", "s64", "0xffff0000")
    A.I("s_mov_b32", "s69", "0x3f803f80")
    A.I("v_mov_b32", "v10", 0)
    A.I("s_mul_i32", "s58", "s22", 22)
    A.I("s_cmp_eq_u32", "s22", 3)
    A.I("s_cselect_b32", "s59", 1, 0)
    A.I("s_sub_u32", "s58", "s58", "s59")
    A.I("s_lshl_b32", "s59", "s58", 14)
    A.I("s_lshl_b32", "s60", "s52", 7)
    A.I("s_add_u32", "s59", "s59", "s60")
    A.I("s_cmp_lt_u32", "s22", 2)
    A.I("s_cselect_b32", "s48", 22, 21)
    A.I("s_mul_i32", "s79", "s52", 2)
    A.I("s_and_b32", "s63", "s51", 3)
    A.I("s_mul_i32", "s63", "s63", 5)
    A.I("s_add_u32", "s79", "s79", "s63")
    A.I("s_cmp_ge_u32", "s79", 21)
    A.I("s_cselect_b32", "s63", 21, 0)
    A.I("s_sub_u32", "s79", "s79", "s63")
    if "norot" in OPTS: A.I("s_mov_b32", "s79", 0)
    A.I("v_and_b32", "v9", 1, "v1")
    A.I("v_lshl_add_u32", "v9", "v4", 2, "v9")
    A.I("v_lshlrev_b32", "v9", 10, "v9")
    A.I("v_lshrrev_b32", "v11", 1, "v5")
    A.I("v_lshl_add_u32", "v9", "v11", 2, "v9")
    XA = 244; WA = 248; TA_ = 252
    A.I("v_bfe_u32", "v14", "v1", 1, 3)
    A.I("v_xor_b32", "v14", "v14", "v4")
    A.I("s_lshl_b32", "s63", "s22", 1)
    A.I("v_xor_b32", "v14", "s63", "v14")
    A.I("v_lshlrev_b32", "v16", 7, "v5")
    A.I("v_add_u32", "v16", "s61", "v16")
    for k in range(4):
        if k: A.I("v_xor_b32", "v11", 2 * k, "v14")
        A.I("v_lshl_add_u32", vr(XA + k), "v14" if k == 0 else "v11", 4, "v16")
    A.I("v_bfe_u32", "v16", "v1", 2, 2)
    A.I("v_bfe_u32", "v17", "v1", 4, 1)
    A.I("v_and_b32", "v18", 3, "v1")
    A.I("v_lshlrev_b32", "v18", 3, "v18")
    A.I("v_lshl_add_u32", "v17", "v17", 5, "v18")
    A.I("v_lshl_add_u32", "v14", "v4", 3, "v16")
    A.I("v_mul_u32_u24", "v14", 192, "v14")
    A.I("v_add_u32", "v14", "v14", "v17")
    for k in range(4):
        A.I("s_xor_b32", "s63", "s22", k)
        A.I("s_mul_i32", "s63", "s63", 3072)
        A.I("v_add_u32", vr(WA + k), "s63", "v14")
    A.I("v_lshl_add_u32", "v14", "v4", 2, "v16")
    A.I("v_lshl_add_u32", "v14", "v14", 7, "v17")
    A.I("v_bfe_u32", "v16", "v1", 3, 1)
    A.I("v_lshl_add_u32", "v14", "v16", 6, "v14")
    A.I("v_xor_b32", "v16", 64, "v14")
    A.I("v_add_u32", vr(TA_), "s57", "v14")
    A.I("v_add_u32", vr(TA_ + 1), "s57", "v16")
    A.I("v_add_u32", vr(TA_ + 2), "s61", "v14")
    A.I("v_add_u32", vr(TA_ + 3), "s61", "v16")
    TAG = "v14"; PF = "v11"
    def pollw():
        A.I("buffer_load_dword", PF, "v13", "s[24:27]", "s65", mods="offen sc1", tag="pw")
    Wb = lambda sl: [(sl * 12288 + i * 1024, 0) for i in range(3)]
    blocks = Wb(0) + [(i * 1024, 1) for i in (1, 2, 3)] + Wb(1) + [(16384 + i * 1024, 1) for i in range(4)] + Wb(2) + Wb(3) + [(0, 1)]
    KB = {k: k for k in range(8)}
    KB.update({8: 0, 9: 1, 10: 2, 11: 8, 12: 9, 13: 3, 14: 4, 15: 5, 16: 6, 17: 7, 18: 0, 19: 1, 20: 2, 21: 8})
    lastk = [None]
    def w2dma(k, hf):
        off, isx = blocks[2 * KB[k] + hf]
        if hf == 0 or lastk[0] != k:
            A.I("s_add_u32", "s23", "s79", k)
            A.I("s_cmp_ge_u32", "s23", "s48")
            A.I("s_cselect_b32", "s63", "s48", 0)
            A.I("s_sub_u32", "s23", "s23", "s63")
            A.I("s_lshl_b32", "s23", "s23", 14)
            A.I("s_add_u32", "s23", "s23", "s59")
        lastk[0] = k
        A.I("s_add_u32", "s63", "s23", hf * 8192)
        A.I("s_add_u32", "m0", "s61" if isx else "s57", off)
        A.I("buffer_load_dwordx4", "v15", "s[32:35]", "s63", mods="offen lds", tag=f"d{k}")
    WR = 16
    NWR = 12
    def wreg(k, e): return WR + 8 * (k % NWR) + 4 * e
    def w2read(k):
        for e in range(2):
            for hf in range(2):
                off, isx = blocks[2 * KB[k] + hf]
                A.I("ds_read_b64_tr_b16", vr(wreg(k, e) + 2 * hf, 2), vr(TA_ + 2 * isx + e), mods=f"offset:{off}", tag=f"S{k}")
    A.I("s_cmp_eq_u32", "s50", 15)
    A.I("s_cbranch_scc1", L("M_g15"))
    ACC1 = 128; WB = 208; NW = 5; CP = 228; B1 = 231; ST_ = 232 + 4
    XFb = lambda s: 176 if s % 2 == 0 else 192
    for r in (CP, CP + 1, CP + 2): A.I("v_mov_b32", vr(r), 0)
    A.I("s_mul_i32", "s68", "s53", 86)
    A.I("s_mul_i32", "s63", "s50", 6)
    A.I("s_add_u32", "s68", "s68", "s63")
    A.I("s_lshl_b32", "s68", "s68", 10)
    A.I("s_add_u32", "s68", "s68", hex(HF))
    A.I("s_add_u32", "s66", "s68", 4096)
    A.I("s_lshl_b32", "s74", "s53", 9)
    A.I("s_add_u32", "s74", "s74", hex(STAT))
    AX = 176
    def pollstat():
        A.I("buffer_load_dwordx4", vr(ST_, 4), "v3", "s[24:27]", "s74", mods="offen sc1", tag="st")
    def rdW(s, idx, buf):
        kk, t = idx
        o = (s % 4) * 12288 + t * 64
        r = WB + 4 * buf
        A.I("ds_read_b64_tr_b16", vr(r, 2), vr(WA + kk), mods=f"offset:{o}")
        A.I("ds_read_b64_tr_b16", vr(r + 2, 2), vr(WA + kk), mods=f"offset:{o + 768}", tag=f"W{s}_{kk}_{t}")
    def bar(s):
        A.wait_vm(f"x{s}" if A._after(A.vmq, f"x{s}") < A._after(A.vmq, f"w{s}") else f"w{s}")
        stampn(A, f"m_s{s}a")
        A.I("s_barrier")
        for kk in range(4):
            A.I("ds_read_b128", vr(XFb(s) + 4 * kk, 4), vr(XA + kk), mods=f"offset:{(s % 2) * 16384}")
    seq = []
    for s in range(8):
        order = [(kk, t) for kk in range(4) for t in range(3)] if s < 7 else [(0, 0), (0, 1), (0, 2)] + [(kk, t) for t in range(3) for kk in (1, 2, 3)]
        seq += [(s, o) for o in order]
    bar(0)
    A.I("v_lshlrev_b32", "v3", 1, "v5")
    for t in range(3): A.I("ds_read_u16", vr(B1 + t), "v3", mods=f"offset:{36864 + 64 * t}")
    A.I("v_lshlrev_b32", "v3", 4, "v5")
    for m in range(NW - 1): rdW(seq[m][0], seq[m][1], m)
    BN = 7; WPOS = (7, 9, 10); XPOS = (0, 2, 4, 5)
    early = {(5, 7): 0, (5, 9): 1, (5, 10): 2, (6, 0): 3, (6, 2): 4, (6, 4): 5, (6, 7): 6, (6, 9): 7, (6, 10): 8, (7, 0): 9, (7, 1): 10, (7, 2): 11, (7, 3): 12}
    for m, (s, (kk, t)) in enumerate(seq):
        n = m % 12
        if n == 0: stampn(A, f"m_s{s}")
        if G1 and m == 84: A.I("s_branch", L("M_exit"))
        A.wait_l(f"W{s}_{kk}_{t}")
        acc = vr(ACC1 + 16 * t, 16)
        if "nomfma" not in OPTS: A.I("v_mfma_f32_32x32x16_bf16", acc, vr(WB + 4 * (m % NW), 4), vr(XFb(s) + 4 * kk, 4), acc if (s or kk) else "0")
        if kk == 0 and "nocs" not in OPTS:
            for d in range(4):
                A.I("v_dot2_f32_bf16", vr(CP + t), vr(WB + 4 * (m % NW) + d), "s69", vr(CP + t))
        if n == BN and s < 7: bar(s + 1)
        if m + NW - 1 < 96: rdW(seq[m + NW - 1][0], seq[m + NW - 1][1], (m + NW - 1) % NW)
        if "nodma" in OPTS:
            A.vmq += [f"w{s + 3}", f"x{s + 2}"] + [None] * 70
        else:
            if n in WPOS and s + 3 < 8 and "now" not in OPTS: wdma1(s + 3, WPOS.index(n))
            if n in XPOS and s + 2 < 8 and "nox" not in OPTS: xdma1(s + 2, XPOS.index(n))
            if "now" in OPTS: A.vmq.insert(0, f"w{s + 3}")
            if "nox" in OPTS: A.vmq.insert(0, f"x{s + 2}")
        if s == 5 and n == 6:
            A.I("global_load_dword", TAG, "v10", "s[18:19]", mods="sc1")
            pollstat()
        if (s, n) in early:
            b = early[(s, n)]
            w2dma(b // 2, b % 2)
        if s == 7 and n == 2:
            A.I("v_lshl_add_u32", "v240", "v1", 2, "s61")
            for t2 in range(3): A.I("ds_write_b32", "v240", vr(CP + t2), mods=f"offset:{256 * t2}", tag="cw")
            A.I("v_lshlrev_b32", "v241", 2, "v1")
        if s == 7 and n == 4:
            A.wait_l("cw")
            A.I("s_barrier")
            for t2 in range(3):
                for ww in range(4):
                    A.I("ds_read_b32", vr(112 + 4 * t2 + ww), "v241", mods=f"offset:{XB + 4096 * ww + 256 * t2}", tag="cr")
            for b in (13, 14, 15): w2dma(b // 2, b % 2)
        if s == 7 and n == 6:
            A.wait_vm("st")
            get_tag(A, L, "M_tag", TAG, "v10", "s[18:19]")
            spin_check(A, L, "M_st", vr(ST_ + 3), TAG, pollstat, wait_tag="st")
            A.I("v_cmp_gt_u32", "vcc", 32, "v1")
            A.I("v_cndmask_b32", vr(ST_ + 2), 0, vr(ST_ + 2), "vcc")
            A.I("v_cvt_pk_bf16_f32", "v188", f"-{vr(ST_)}", f"-{vr(ST_)}")
            A.I("v_cvt_pk_bf16_f32", "v189", f"-{vr(ST_)}", vr(ST_ + 2))
            A.I("v_mov_b32", "v190", 0)
            A.I("v_mov_b32", "v191", 0)
        if s == 7 and n == 7:
            A.wait_l("cr")
            for t2 in range(3):
                c = 112 + 4 * t2; a = AX + 4 * t2
                A.I("v_add_f32", vr(c), vr(c), vr(c + 1))
                A.I("v_add_f32", vr(c + 2), vr(c + 2), vr(c + 3))
                A.I("v_add_f32", vr(c), vr(c), vr(c + 2))
                A.I("v_cvt_pk_bf16_f32", vr(c + 1), 0, vr(c))
                A.I("v_sub_f32", vr(c), vr(c), vr(c + 1))
                A.I("v_cvt_pk_bf16_f32", vr(c + 2), 0, vr(c))
                A.I("v_sub_f32", vr(c), vr(c), vr(c + 2))
                A.I("v_cvt_pk_bf16_f32", vr(a), vr(c + 1), vr(c + 2))
                A.I("v_cvt_pk_bf16_f32", vr(a + 1), vr(c), 0)
                A.I("v_lshl_or_b32", vr(a + 1), vr(B1 + t2), 16, vr(a + 1))
                A.I("v_mov_b32", vr(a + 2), 0)
                A.I("v_mov_b32", vr(a + 3), 0)
        if s == 7 and n == 8:
            for t2 in range(2):
                acc2 = vr(ACC1 + 16 * t2, 16)
                A.I("v_mfma_f32_32x32x16_bf16", acc2, vr(AX + 4 * t2, 4), "v[188:191]", acc2)
    A.I("v_mfma_f32_32x32x16_bf16", vr(ACC1 + 32, 16), vr(AX + 8, 4), "v[188:191]", vr(ACC1 + 32, 16))
    stampn(A, "m_g1")
    if G1: A.I("s_branch", L("M_exit"))
    A.I("v_mov_b32", "v242", vr(ST_ + 1))
    def r_and_redma(ks):
        for k in ks: w2read(k)
    A.wait_vm("d2")
    r_and_redma((0, 1, 2))
    def epi(t):
        a = ACC1 + 16 * t
        for k in range(8):
            r = a + 2 * k
            A.I("v_max_f32", vr(r), 0, vr(r))
            A.I("v_max_f32", vr(r + 1), 0, vr(r + 1))
            A.I("v_pk_mul_f32", vr(r, 2), vr(r, 2), "v[242:243]", mods="op_sel_hi:[1,0]")
            A.I("v_pk_mul_f32", vr(r, 2), vr(r, 2), vr(r, 2))
            A.I("v_cvt_pk_bf16_f32", vr(a + k), vr(r), vr(r + 1))
            if k % 4 == 3:
                off = (2 * t + k // 4) * 1024
                A.I("buffer_store_dwordx4", vr(a + k - 3, 4), "v2", "s[24:27]", "s68" if off < 4096 else "s66", mods=f"offen offset:{off % 4096} sc1", tag="hf")
    A.unpk = "mnp1" in OPTS
    epi(0)
    A.I("s_cmp_eq_u32", "s50", 14)
    A.I("s_cbranch_scc1", L("M_late"))
    epi(1); epi(2)
    A.label(L("M_late"))
    A.unpk = "mnp2" in OPTS
    stampn(A, "m_epi")
    A.wait(vm=2, lgkm=0)
    r_and_redma((3, 4, 5, 6, 7))
    for k in (8, 9, 10):
        w2dma(k, 0); w2dma(k, 1)
    A.wait(vm=6)
    A.I("s_barrier")
    A.I("s_cmp_lg_u32", "s22", 0)
    A.I("s_cbranch_scc1", L("M_nf2"))
    A.I("s_lshl_b32", "s71", "s49", F2SH + 4)
    A.I("s_lshl_b32", "s72", "s50", F2SH)
    A.I("s_add_u32", "s71", "s71", "s72")
    A.I("s_add_u32", "s71", "s71", hex(F2))
    A.I("s_mov_b64", "exec", 1)
    A.I("buffer_store_dword", TAG, "v10", "s[24:27]", "s71", mods="offen sc1")
    A.vmq.pop()
    A.I("s_mov_b64", "exec", -1)
    A.label(L("M_nf2"))
    if "touch" in OPTS:
        A.I("v_min_u32", "v240", 47, "v1")
        A.I("v_lshlrev_b32", "v240", 7, "v240")
        A.I("buffer_load_dword", "v241", "v240", "s[24:27]", "s68", mods="offen sc1")
    A.I("s_branch", L("M_join"))
    A.label(L("M_g15"))
    lastk[0] = None
    if G1: A.I("s_branch", L("M_exit"))
    for b in range(16): w2dma(b // 2, b % 2)
    A.I("global_load_dword", TAG, "v10", "s[18:19]", mods="sc1")
    A.wait(vm=0)
    get_tag(A, L, "M_tag15", TAG, "v10", "s[18:19]")
    for k in range(8): w2read(k)
    A.wait(lgkm=0)
    for k in (8, 9, 10):
        w2dma(k, 0); w2dma(k, 1)
    A.label(L("M_join"))
    lastk[0] = None
    stampn(A, "m_f2pub")
    for k in (11, 12):
        w2dma(k, 0); w2dma(k, 1)
    A.wait(lgkm=0)
    for k in (13, 14, 15, 16, 17):
        w2dma(k, 0); w2dma(k, 1)
    A.wait(vm=14)
    for k in (8, 9, 10): w2read(k)
    A.I("v_min_u32", "v13", 14, "v1")
    A.I("v_lshlrev_b32", "v13", F2SH, "v13")
    A.I("s_lshr_b32", "s65", "s51", 1)
    A.I("s_lshl_b32", "s65", "s65", F2SH + 4)
    A.I("s_add_u32", "s65", "s65", hex(F2))
    A.I("s_lshl_b32", "s54", "s51", 16)
    A.I("s_lshl_b32", "s55", "s22", 14)
    A.I("s_add_u32", "s54", "s54", "s55")
    A.I("s_add_u32", "s54", "s54", "s60")
    A.I("s_add_u32", "s55", "s54", 8192)
    A.I("s_mul_i32", "s56", "s51", 172)
    A.I("s_add_u32", "s56", "s56", "s58")
    A.I("s_lshl_b32", "s56", "s56", 10)
    A.I("s_add_u32", "s56", "s56", hex(HF))
    A.I("s_add_u32", "s62", "s56", 86 * 1024)
    XR = 240
    def xo(e, gp, ip): return ("s54" if gp == 0 else "s55", ip * 2048 + e * 64)
    for qq in range(8):
        so, im = xo(qq >> 2, (qq >> 1) & 1, qq & 1)
        A.I("buffer_load_dword", vr(XR + qq), "v9", "s[40:43]", so, mods=f"offen offset:{im}")
    A.I("v_lshl_add_u32", "v6", "v5", 1, "s60")
    A.I("global_load_ushort", "v12", "v6", "s[14:15]")
    A.I("global_load_ushort", "v3", "v6", "s[14:15]", mods="offset:64")
    A.wait(lgkm=0)
    for k in (18, 19, 20):
        w2dma(k, 0); w2dma(k, 1)
    A.wait_vm("d11")
    w2read(11)
    A.wait(lgkm=0)
    w2dma(21, 0); w2dma(21, 1)
    A.I("s_cmp_lg_u32", "s22", 0)
    A.I("s_cbranch_scc1", L("M_p2w"))
    A.I("s_mov_b64", "exec", "0x7fff")
    spin_check(A, L, "M_p2", PF, TAG, pollw, first=True)
    A.I("s_mov_b64", "exec", -1)
    A.label(L("M_p2w"))
    A.I("s_barrier")
    stampn(A, "m_f2")
    ACC = 128; NH = 8
    HR = lambda k: (192 + 8 * (k % NH)) if (k % NH) < 6 else (112 + 8 * (k % NH - 6))
    def issueH(k):
        A.I("s_add_u32", "s23", "s79", k)
        A.I("s_cmp_ge_u32", "s23", "s48")
        A.I("s_cselect_b32", "s63", "s48", 0)
        A.I("s_sub_u32", "s23", "s23", "s63")
        A.I("s_lshl_b32", "s23", "s23", 10)
        A.I("s_add_u32", "s63", "s23", "s56")
        A.I("s_add_u32", "s23", "s23", "s62")
        A.I("buffer_load_dwordx4", vr(HR(k), 4), "v2", "s[24:27]", "s63", mods="offen sc1")
        A.I("buffer_load_dwordx4", vr(HR(k) + 4, 4), "v2", "s[24:27]", "s23", mods="offen sc1", tag=f"h{k}")
    for k in range(NH): issueH(k)
    A.I("v_and_b32", "v13", 7, "v1")
    A.I("v_lshlrev_b32", "v8", 4, "v13")
    A.I("v_lshlrev_b32", "v13", F3SH, "v13")
    A.I("s_lshl_b32", "s65", "s52", F3SH + 5)
    A.I("s_lshl_b32", "s71", "s22", F3SH + 3)
    A.I("s_add_u32", "s65", "s65", "s71")
    A.I("s_add_u32", "s65", "s65", hex(F3))
    A.I("v_lshrrev_b32", "v7", 3, "v1")
    A.I("v_lshl_add_u32", "v7", "v7", 12, "v8")
    A.I("s_lshl_b32", "s67", "s52", 18)
    A.I("s_lshl_b32", "s68", "s22", 16)
    A.I("s_add_u32", "s67", "s67", "s68")
    A.I("s_lshl_b32", "s68", "s51", 7)
    A.I("s_add_u32", "s67", "s67", "s68")
    A.I("s_add_u32", "s67", "s67", hex(ST))
    A.I("s_add_u32", "s68", "s67", 8 * 4096)
    A.I("s_mov_b32", "s75", 0)
    def sload():
        A.I("buffer_load_dwordx4", "v[96:99]", "v7", "s[24:27]", "s67", mods="offen sc1")
        A.I("buffer_load_dwordx4", "v[100:103]", "v7", "s[24:27]", "s68", mods="offen sc1")
    for k in range(22):
        if k == 21:
            A.I("s_cmp_ge_u32", "s22", 2)
            A.I("s_cbranch_scc1", L("M_skip21"))
        A.wait_vm(f"h{k}")
        stampn(A, f"m_k{k}")
        if k >= 12: A.wait_l(f"S{k}")
        for tj in range(2):
            for e in range(2):
                acc = vr(ACC + 32 * tj + 16 * e, 16)
                A.I("v_mfma_f32_32x32x16_bf16", acc, vr(HR(k) + 4 * tj, 4), vr(wreg(k, e), 4), acc if k else "0")
        if k + NH < 22: issueH(k + NH)
        if k < 10: w2read(k + 12)
        if k == 13: pollw()
        if k == 18 and "kx3" not in OPTS:
            A.wait_vm("pw")
            A.I("v_cmp_ne_u32", "vcc", PF, TAG)
            A.I("s_cbranch_vccnz", L("M_s_no"))
            sload(); A.vmq.pop(); A.vmq.pop()
            A.I("s_mov_b32", "s75", 1)
            A.label(L("M_s_no"))
    A.label(L("M_skip21"))
    stampn(A, "m_g2")
    A.I("s_cmp_eq_u32", "s75", 1)
    A.I("s_cbranch_scc1", L("M_s_have"))
    if "kx3" not in OPTS: spin_check(A, L, "M_p3", PF, TAG, pollw, first=True)
    sload()
    A.label(L("M_s_have"))
    stampn(A, "m_f3")
    A.I("v_add_u32", "v252", "s57", "v2")
    A.I("v_add_u32", "v253", "s61", "v2")
    OWN = 16
    A.I("s_nop", 7)
    for wd in range(4):
        src = [ACC + 32 * (wd >> 1) + 16 * e + 8 * (wd & 1) + 4 * q for e in range(2) for q in range(2)]
        A.I("s_cmp_eq_u32", "s22", wd)
        A.I("s_cbranch_scc1", L(f"own{wd}"))
        for q, r in enumerate(src):
            if q < 3: A.I("ds_write_b128", "v252", vr(r, 4), mods=f"offset:{wd * 12288 + q * 1024}")
            else: A.I("ds_write_b128", "v253", vr(r, 4), mods=f"offset:{16384 + wd * 1024}")
        A.I("s_branch", L(f"nxt{wd}"))
        A.label(L(f"own{wd}"))
        if wd == 0: A.I("s_nop", 3)
        for q, r in enumerate(src):
            for i in range(0, 4, 2):
                A.I("v_pk_mov_b32", vr(OWN + 4 * q + i, 2), vr(r + i, 2), vr(r + i, 2), mods="op_sel:[0,1]")
        A.label(L(f"nxt{wd}"))
    A.I("s_lshl_b32", "s71", "s22", 5)
    A.I("v_add_u32", "v63", "s71", "v253")
    A.wait(vm=0)
    A.I("ds_write_b128", "v63", "v[96:99]")
    A.I("ds_write_b128", "v63", "v[100:103]", mods="offset:1040")
    XU = 32
    for q in range(8):
        A.I("v_lshlrev_b32", vr(XU + 2 * q), 16, vr(XR + q))
        A.I("v_and_b32", vr(XU + 2 * q + 1), "s64", vr(XR + q))
    A.I("v_lshlrev_b32", "v124", 16, "v12")
    A.I("v_lshlrev_b32", "v126", 16, "v3")
    A.I("v_lshrrev_b32", "v56", 4, "v5")
    A.I("v_mul_u32_u24", "v56", 4128, "v56")
    A.I("v_bfe_u32", "v57", "v5", 3, 1)
    A.I("v_mul_u32_u24", "v57", 1040, "v57")
    A.I("v_add_u32", "v56", "v56", "v57")
    A.I("v_and_b32", "v57", 7, "v5")
    A.I("v_lshl_add_u32", "v56", "v57", 7, "v56")
    A.I("v_lshl_add_u32", "v56", "v4", 3, "v56")
    A.I("v_add_u32", "v56", "s71", "v56")
    for sl in range(3):
        A.I("s_add_u32", "s71", "s22", 1 + sl)
        A.I("s_and_b32", "s71", "s71", 3)
        A.I("s_mul_i32", "s72", "s71", 3072)
        A.I("s_mul_i32", "s73", "s22", 12288)
        A.I("s_add_u32", "s72", "s72", "s73")
        A.I("v_add_u32", vr(120 + sl), "s72", "v2")
        A.I("s_lshl_b32", "s71", "s71", 12)
        A.I("s_lshl_b32", "s72", "s22", 10)
        A.I("s_add_u32", "s71", "s71", "s72")
        A.I("s_add_u32", "s71", "s71", XB + 16384)
        A.I("v_add_u32", vr(58 + sl), "s71", "v2")
    for p in range(8):
        A.I("v_pk_add_f32", vr(OWN + 2 * p, 2), vr(OWN + 2 * p, 2), "v[124:125]" if p < 4 else "v[126:127]", mods="op_sel_hi:[1,0]")
    A.I("s_mov_b32", "s72", "0xbfb8aa3b")
    A.I("s_mov_b32", "s73", "0xbfb8aa3b")
    A.wait(lgkm=0)
    A.I("s_barrier")
    stampn(A, "m_red")
    RD = 64
    for sl in range(3):
        for q in range(4):
            if q < 3: A.I("ds_read_b128", vr(RD + 16 * sl + 4 * q, 4), vr(120 + sl), mods=f"offset:{q * 1024}")
            else: A.I("ds_read_b128", vr(RD + 16 * sl + 4 * q, 4), vr(58 + sl), tag=f"R{sl}")
    SV = 112
    for e in range(2):
        for gp in range(2):
            A.I("ds_read_b64", vr(SV + 4 * e + 2 * gp, 2), "v56", mods=f"offset:{XB + 2 * 4128 * e + 16 * gp}")
    for sl in range(3):
        A.wait_l(f"R{sl}")
        for p in range(8):
            A.I("v_pk_add_f32", vr(OWN + 2 * p, 2), vr(OWN + 2 * p, 2), vr(RD + 16 * sl + 2 * p, 2))
    T_ = 128; SU = 144
    for p in range(8): A.I("v_pk_mul_f32", vr(T_ + 2 * p, 2), vr(OWN + 2 * p, 2), "s[72:73]")
    for r in range(16): A.I("v_exp_f32", vr(T_ + r), vr(T_ + r))
    A.wait(lgkm=0)
    for k in range(8):
        A.I("v_lshlrev_b32", vr(SU + 2 * k), 16, vr(SV + k))
        A.I("v_and_b32", vr(SU + 2 * k + 1), "s64", vr(SV + k))
    for p in range(8): A.I("v_pk_add_f32", vr(T_ + 2 * p, 2), vr(T_ + 2 * p, 2), "1.0", mods="op_sel_hi:[1,0]")
    for p in range(8): A.I("v_pk_mul_f32", vr(SU + 2 * p, 2), vr(SU + 2 * p, 2), vr(OWN + 2 * p, 2))
    for r in range(16): A.I("v_rcp_f32", vr(T_ + r), vr(T_ + r))
    for p in range(8): A.I("v_pk_mul_f32", vr(T_ + 2 * p, 2), vr(T_ + 2 * p, 2), vr(SU + 2 * p, 2))
    A.I("s_mov_b32", "vcc_lo", "0x55555555")
    A.I("s_mov_b32", "vcc_hi", "0x55555555")
    QP = "quad_perm:[1,0,3,2] row_mask:0xf bank_mask:0xf"
    for p in range(8): A.I("v_cndmask_b32_dpp", vr(SU + 2 * p), vr(T_ + 2 * p + 1), vr(T_ + 2 * p), "vcc", mods=QP)
    A.I("s_not_b64", "vcc", "vcc")
    for p in range(8): A.I("v_cndmask_b32_dpp", vr(SU + 2 * p + 1), vr(T_ + 2 * p), vr(T_ + 2 * p + 1), "vcc", mods=QP)
    for p in range(8):
        A.I("v_pk_add_f32", vr(SU + 2 * p, 2), vr(SU + 2 * p, 2), vr(XU + 2 * p, 2))
        A.I("v_cvt_pk_bf16_f32", vr(64 + p), vr(SU + 2 * p), vr(SU + 2 * p + 1))
        so, im = xo(p >> 2, (p >> 1) & 1, p & 1)
        A.I("buffer_store_dword", vr(64 + p), "v9", "s[44:47]", so, mods=f"offen offset:{im}")
    A.unpk = False
    A.label(L("M_exit"))
    stamp_flush(A, 0, "s[20:21]", 7)
    A.I("s_endpgm")
```

```python
from asmlib import *
from layout1 import *
from k_prep import srd, DPPM, reduce32, gen_kgen_pair_setup, gen_kgen_pair_np
import k_prep
def gen_kgen_pair(A, P, vidx, pi):
    lim = int(os.environ.get('NPFROM', 8))
    (gen_kgen_pair_np if pi >= lim else k_prep.gen_kgen_pair)(A, P, vidx, pi)
KC = 0
UL = 33280
KDT = UL + 9216
KTS = 5888
ACCX = KDT + 2 * KTS
PSET = [(0, 3, 5, 6), (1, 2, 4, 7)]

def spin_check(A, L, name, vflag, vtag, reissue, cnt="s70", first=False, wait_tag=None, sleep=2):
    if first: reissue()
    A.I("s_mov_b32", cnt, SPIN_LIMIT)
    if wait_tag: A.wait_vm(wait_tag)
    else: A.wait(vm=0)
    A.label(L(name))
    A.I("v_cmp_ne_u32", "vcc", vflag, vtag)
    A.I("s_cbranch_vccz", L(name + "_ok"))
    A.I("s_sub_u32", cnt, cnt, 1)
    A.I("s_cbranch_scc1", L(name + "_ok"))
    A.I("s_sleep", sleep)
    reissue(); A.vmq.pop()
    A.wait(vm=0)
    A.I("s_branch", L(name))
    A.label(L(name + "_ok"))

def get_tag(A, L, name, vtag, vzero, dbg, cnt="s70"):
    A.I("s_mov_b32", cnt, SPIN_LIMIT)
    A.label(L(name))
    A.I("v_cmp_eq_u32", "vcc", 0, vtag)
    A.I("s_cbranch_vccz", L(name + "_ok"))
    A.I("s_sub_u32", cnt, cnt, 1)
    A.I("s_cbranch_scc1", L(name + "_ok"))
    A.I("s_sleep", 2)
    A.I("global_load_dword", vtag, vzero, dbg, mods="sc1"); A.vmq.pop()
    A.wait(vm=0)
    A.I("s_branch", L(name))
    A.label(L(name + "_ok"))

def code_prefetch(A, start_label, nbytes, vtmp, vdst, L):
    A.I("s_getpc_b64", "s[74:75]")
    A.I("v_lshlrev_b32", vtmp, 7, "v0")
    assert nbytes <= 32768
    A.I("v_cmp_gt_u32", "vcc", nbytes - 256, vtmp)
    A.I("v_cndmask_b32", vtmp, 0, vtmp, "vcc")
    A.I("global_load_dword", vdst, vtmp, "s[74:75]")

def code_prefetch2(A, nbytes):
    per = ((nbytes - 256) // 128 + 31) // 32
    A.I("s_getpc_b64", "s[74:75]")
    A.I("s_bfe_u32", "s72", "s2", "0x50003")
    A.I("s_mul_i32", "s72", "s72", per * 128)
    A.I("v_lshlrev_b32", "v3", 7, "v0")
    A.I("v_add_u32", "v3", "s72", "v3")
    A.I("v_min_u32", "v3", nbytes - 256, "v3")
    A.I("v_cmp_gt_u32", "vcc", per, "v0")
    A.I("s_and_saveexec_b64", "s[72:73]", "vcc")
    A.I("global_load_dword", "v3", "v3", "s[74:75]")
    A.I("s_mov_b64", "exec", "s[72:73]")

def swarm(A, base, sid, sw):
    A.I("s_lshl_b32", "s96", sid, 2)
    A.I("s_add_u32", "s96", "s96", sw)
    A.I("s_mul_i32", "s96", "s96", 11 * 128)
    A.I("s_min_u32", "s96", "s96", 1376 * 1024 - 11 * 128)
    A.I("s_add_u32", "s96", "s96", base[:base.index(':')].replace('[', ''))
    A.I("s_addc_u32", "s97", "s" + base[base.index(':') + 1:-1], 0)
    for i in range(11):
        A.I("s_load_dword", "s99", "s[96:97]", 128 * i)

def gen_K(A, L, ksize):
    LNAT = int(os.environ.get("LNAT", 2)); PRIOAT = int(os.environ.get("PRIOAT", 3))
    A.label(L("K"))
    if "nok" in OPTS: A.I("s_endpgm")
    A.I("s_setprio", 3)
    A.I("s_memrealtime", "s[76:77]")
    A.I("s_load_dwordx16", "s[4:19]", "s[0:1]", 0)
    A.I("s_load_dwordx2", "s[20:21]", "s[0:1]", 64)
    A.I("s_load_dwordx4", "s[24:27]", "s[0:1]", 120)
    A.I("s_load_dwordx2", "s[22:23]", "s[0:1]", 96)
    A.I("s_load_dwordx2", "s[68:69]", "s[0:1]", 80)
    code_prefetch2(A, ksize)
    A.I("s_and_b32", "s3", "s2", 255)
    A.I("v_and_b32", "v1", 63, "v0")
    A.I("v_lshrrev_b32", "v2", 6, "v0")
    A.I("v_readfirstlane_b32", "s28", "v2")
    A.I("s_and_b32", "s29", "s3", 7)
    A.I("s_lshl_b32", "s29", "s29", 5)
    A.I("s_lshr_b32", "s30", "s3", 3)
    A.I("s_add_u32", "s29", "s29", "s30")
    A.I("s_lshr_b32", "s30", "s28", 1)
    A.I("s_and_b32", "s31", "s28", 1)
    A.I("s_lshl_b32", "s32", "s29", 1)
    A.I("s_add_u32", "s32", "s32", "s30")
    A.I("s_lshl_b32", "s33", "s31", 7)
    A.I("s_lshl_b32", "s34", "s32", 8)
    A.I("s_add_u32", "s33", "s33", "s34")
    A.I("v_and_b32", "v2", 7, "v1")
    A.I("v_lshl_add_u32", "v2", "v2", 4, "s33")
    A.I("s_lshl_b32", "s34", "s3", 3)
    A.I("s_lshl_b32", "s35", "s28", 1)
    A.I("s_add_u32", "s34", "s34", "s35")
    A.I("s_lshl_b32", "s34", "s34", 10)
    A.I("v_lshrrev_b32", "v5", 5, "v1")
    A.I("v_and_b32", "v6", 31, "v1")
    A.I("v_lshlrev_b32", "v4", 10, "v5")
    A.I("v_lshl_add_u32", "v4", "v6", 4, "v4")
    A.I("v_add_u32", "v4", "s34", "v4")
    A.I("v_mov_b32", "v122", 0)
    A.I("v_lshlrev_b32", "v7", 4, "v1")
    A.I("s_lshl_b32", "s33", "s29", 2)
    A.I("s_lshl_b32", "s57", "s3", 12)
    A.I("s_lshl_b32", "s58", "s28", 10)
    A.I("s_add_u32", "s57", "s57", "s58")
    A.I("s_add_u32", "s58", "s57", 1 << 20)
    A.wait(lgkm=0)
    P = 48; X = 160
    A.I("s_mov_b64", "exec", "0xff")
    for k, sb in enumerate((6, 8, 10, 12, 14, 16)):
        A.I("v_mov_b32", "v136", sr(sb))
        A.I("v_mov_b32", "v137", sr(sb + 1))
        if k < 5: A.I("s_lshl_b64", "exec", "exec", 8)
    A.I("s_mov_b32", "exec_lo", -1)
    A.I("s_mov_b32", "exec_hi", "0xffff")
    A.I("v_add_co_u32", "v136", "vcc", "v136", "v2")
    A.I("v_addc_co_u32", "v137", "vcc", 0, "v137", "vcc")
    A.I("global_load_dwordx4", "v[140:143]", "v[136:137]", "off", tag="par")
    A.I("s_mov_b64", "exec", -1)
    A.I("s_load_dword", "s36", "s[20:21]", "s33")
    A.I("s_load_dword", "s52", "s[18:19]", "s33")
    A.I("s_or_b32", "s76", "s76", 1)
    A.I("s_or_b32", "s61", "s3", "s28")
    A.I("s_cmp_lg_u32", "s61", 0)
    A.I("s_cbranch_scc1", L("K_notag"))
    A.I("v_mov_b32", "v123", "s76")
    A.I("s_mov_b64", "exec", 1)
    A.I("global_store_dword", "v122", "v123", "s[24:25]", mods="sc1"); A.vmq.pop()
    A.I("s_mov_b64", "exec", -1)
    A.label(L("K_notag"))
    A.I("global_load_dwordx4", vr(X, 4), "v4", "s[4:5]")
    A.I("global_load_dwordx4", vr(X + 4, 4), "v4", "s[4:5]", mods="offset:512", tag="x")
    srd(A, 44, 26, WS_SIZE)
    if "swarm" in OPTS:
        swarm(A, "s[68:69]", "s3", "s28")
    else:
        srd(A, 64, 68, 1376 * 1024)
        A.I("buffer_load_dwordx4", "v[144:147]", "v7", "s[64:67]", "s57", mods="offen")
        A.I("buffer_load_dwordx4", "v[144:147]", "v7", "s[64:67]", "s58", mods="offen")
        srd(A, 64, 22, 1376 * 1024)
        A.I("buffer_load_dwordx4", "v[144:147]", "v7", "s[64:67]", "s57", mods="offen")
        A.I("buffer_load_dwordx4", "v[144:147]", "v7", "s[64:67]", "s58", mods="offen")
    A.I("s_mov_b32", "s56", "0x3f803f80")
    A.I("s_mov_b32", "s59", "0xffff0000")
    A.I("v_and_b32", "v56", 15, "v1")
    A.I("v_cvt_f32_u32", "v56", "v56")
    LNL = ACCX + 4096
    A.I("s_mul_i32", "s60", "s28", 2 * 1088)
    A.I("s_add_u32", "s60", "s60", LNL)
    A.I("v_mul_u32_u24", "v182", 1088, "v5")
    A.I("v_lshl_add_u32", "v182", "v6", 4, "v182")
    A.I("v_add_u32", "v182", "s60", "v182")
    A.I("v_mov_b32", "v168", 0)
    A.I("v_mov_b32", "v169", 0)
    A.I("s_lshl_b32", "s54", "s28", 8)
    A.I("s_add_u32", "s54", "s54", LNL)
    A.I("v_bfe_u32", "v183", "v1", 2, 2)
    A.I("v_mul_u32_u24", "v183", 1088, "v183")
    A.I("v_lshrrev_b32", "v18", 4, "v1")
    A.I("v_lshl_add_u32", "v183", "v18", 5, "v183")
    A.I("v_and_b32", "v18", 3, "v1")
    A.I("v_lshl_add_u32", "v183", "v18", 3, "v183")
    A.I("v_add_u32", "v183", "s54", "v183")
    A.I("s_lshl_b32", "s54", "s3", 13)
    A.I("s_lshl_b32", "s55", "s28", 11)
    A.I("s_add_u32", "s54", "s54", "s55")
    A.I("s_add_u32", "s55", "s54", hex(XNT))
    A.I("s_lshl_b32", "s53", "s28", 10)
    A.I("s_add_u32", "s53", "s53", ACCX)
    A.I("v_add_u32", "v138", "s53", "v7")
    A.I("v_lshl_add_u32", "v139", "v1", 1, "s53")
    A.I("s_mul_i32", "s37", "s30", KTS)
    A.I("s_add_u32", "s37", "s37", KDT + 32)
    A.I("s_mov_b32", "s38", -17024)
    A.I("s_movk_i32", "s39", 127)
    A.I("s_lshl_b32", "s40", "s31", 10)
    A.I("v_lshl_add_u32", "v20", "v1", 3, "s40")
    AD = 200
    for rd in range(2):
        for ii in range(11):
            A.I("v_sub_u32", vr(AD + 11 * rd + ii), 2044 - 512 * rd - (ii - 3), "v20")
        for ii in range(11):
            if rd == 1 and ii >= 8:
                A.I("v_max_i32", vr(24 + ii), 0, vr(AD + 11 * rd + ii))
                A.I("v_cvt_f32_u32", vr(24 + ii), vr(24 + ii))
            else:
                A.I("v_cvt_f32_u32", vr(24 + ii), vr(AD + 11 * rd + ii))
        for ii in range(0, 11, 2):
            A.I("v_cvt_pk_bf16_f32", vr(36 + ii // 2), vr(24 + ii), vr(24 + min(ii + 1, 10)))
        for ii in range(11):
            A.I("v_mad_u32_u16", vr(24 + ii), vr(36 + ii // 2), 1, "s38", mods=("op_sel:[1,0,0,0]" if ii & 1 else ""))
        for ii in range(11):
            A.I("v_med3_i32", vr(24 + ii), vr(24 + ii), vr(AD + 11 * rd + ii), "s39")
        for ii in range(11):
            A.I("v_ashrrev_i32", vr(AD + 11 * rd + ii), 3, vr(24 + ii))
        for ii in range(11):
            A.I("v_add_u32", vr(24 + ii), vr(24 + ii), vr(AD + 11 * rd + ii))
        for ii in range(11):
            A.I("v_lshl_add_u32", vr(AD + 11 * rd + ii), vr(24 + ii), 3, "s37")
    for k in range(4): A.I("v_mov_b32", vr(24 + k), 0)
    A.I("s_mul_i32", "s43", "s30", 4608)
    A.I("s_add_u32", "s43", "s43", UL)
    A.I("v_lshl_add_u32", "v10", "v1", 3, "s43")
    A.I("ds_write_b64", "v10", "v[24:25]")
    A.I("s_mul_i32", "s48", "s30", 16640)
    A.I("v_and_b32", "v121", 1, "v1")
    A.I("v_lshrrev_b32", "v10", 1, "v1")
    A.I("v_mul_u32_u24", "v11", 4160, "v10")
    A.I("v_lshl_add_u32", "v11", "v121", 4, "v11")
    A.I("v_add_u32", "v11", "s48", "v11")
    A.I("s_sub_u32", "s50", "s37", 32)
    A.I("v_lshl_add_u32", "v12", "v121", 4, "s50")
    A.I("s_mov_b64", "exec", "0xff")
    A.I("ds_write_b128", "v11", "v[24:27]", mods="offset:4096")
    A.I("ds_write_b128", "v12", "v[24:27]")
    A.I("s_mov_b64", "exec", -1)
    A.I("v_lshlrev_b32", "v32", 13, "v10")
    A.I("v_lshl_add_u32", "v32", "v121", 4, "v32")
    A.I("v_mul_u32_u24", "v33", 4608, "v121")
    A.I("v_lshl_add_u32", "v33", "v10", 4, "v33")
    A.I("s_lshl_b32", "s49", "s28", 10)
    A.I("s_add_u32", "s49", "s49", UL + 512)
    A.I("v_add_u32", "v33", "s49", "v33")
    if "agg" not in OPTS:
        A.I("s_lshl_b32", "s71", "s28", F1SH + 6)
        A.I("v_lshl_add_u32", "v120", "v1", F1SH, "s71")
        A.I("s_mov_b32", "s41", hex(F1))
    else:
        A.I("v_mov_b32", "v120", 0)
        A.I("s_bfe_u32", "s41", "s3", "0x40001")
        A.I("s_lshl_b32", "s41", "s41", 7)
        A.I("s_add_u32", "s41", "s41", hex(FA))
    A.I("s_lshl_b32", "s42", "s31", 2)
    A.I("s_add_u32", "s42", "s42", "s37")
    A.I("v_and_b32", "v8", 15, "v1")
    A.I("v_lshrrev_b32", "v14", 4, "v1")
    A.I("v_mul_u32_u24", "v34", 144, "v8")
    A.I("v_lshl_add_u32", "v34", "v14", 5, "v34")
    A.I("v_lshl_add_u32", "v34", "v5", 3, "v34")
    A.I("v_add_u32", "v34", "s42", "v34")
    for sg in range(1, 4): A.I("v_add_u32", vr(34 + sg), 1152 * sg, "v34")
    A.I("v_mov_b32", "v39", "s42")
    A.I("s_lshl_b32", "s49", "s31", 11)
    A.I("s_add_u32", "s50", "s49", "s48")
    A.I("v_add_u32", "v40", "s50", "v7")
    A.I("v_and_b32", "v41", 3, "v1")
    A.I("v_mul_u32_u24", "v41", 4160, "v41")
    A.I("v_bfe_u32", "v13", "v1", 2, 2)
    A.I("v_lshlrev_b32", "v13", 3, "v13")
    A.I("v_lshl_add_u32", "v13", "v14", 4, "v13")
    A.I("v_sub_u32", "v41", "v41", "v13")
    A.I("s_add_u32", "s50", "s48", 2 * 2052 - 64 * 63)
    A.I("v_add_u32", "v41", "s50", "v41")
    A.I("v_lshlrev_b32", "v42", 5, "v8")
    A.I("v_lshlrev_b32", "v15", 4, "v14")
    A.I("v_sub_u32", "v42", "v42", "v15")
    A.I("s_add_u32", "s50", "s43", 512 + 16 - 448)
    A.I("v_add_u32", "v42", "s50", "v42")
    A.I("v_lshlrev_b32", "v43", 5, "v8")
    A.I("v_lshl_add_u32", "v43", "v14", 3, "v43")
    A.I("s_add_u32", "s50", "s43", "s49")
    A.I("s_add_u32", "s50", "s50", 512)
    A.I("v_add_u32", "v44", "s50", "v43")
    A.wait_vm("par", lgkm=0)
    stampn(A, "k_x")
    A.I("global_load_dword", "v123", "v122", "s[24:25]", mods="sc1", tag="tag")
    A.I("ds_write_b128", "v138", "v[140:143]")
    A.I("s_lshl_b32", "s53", "s30", 4)
    A.I("s_lshr_b32", "s52", "s52", "s53")
    A.I("v_mov_b32", vr(P + 6), "s52")
    A.wait(lgkm=0)
    for k in range(6): A.I("ds_read_u16", vr(P + k), "v139", mods=f"offset:{128 * k}")
    A.wait(lgkm=0)
    gen_kgen_pair_setup(A, P)
    def ln_block():
        stampn(A, "k_ln")
        A.unpk = "lnnp" in OPTS
        A.wait_vm("x")
        for k in range(8):
            A.I("v_dot2_f32_bf16", "v168", vr(X + k), "s56", "v168")
            A.I("v_dot2_f32_bf16", "v169", vr(X + k), vr(X + k), "v169")
        reduce32(A, [168, 169], [170, 171])
        A.I("v_mul_f32", "v168", "0x3b000000", "v168")
        A.I("v_mul_f32", "v169", "0x3b000000", "v169")
        A.I("v_fma_f32", "v169", "-v168", "v168", "v169")
        A.I("v_max_f32", "v169", 0, "v169")
        A.I("v_cvt_pk_bf16_f32", "v192", 0, "v168")
        A.I("v_cvt_pk_bf16_f32", "v169", 0, "v169")
        A.I("v_add_f32", "v169", "0x3727c5ac", "v169")
        A.I("v_cvt_pk_bf16_f32", "v169", 0, "v169")
        A.I("v_sqrt_f32", "v169", "v169")
        A.I("v_cvt_pk_bf16_f32", "v194", 0, "v169")
        A.I("v_rcp_f32", "v172", "v194")
        for k in range(8):
            t = 174 + 2 * (k % 4)
            A.I("v_lshlrev_b32", vr(t), 16, vr(X + k))
            A.I("v_and_b32", vr(t + 1), "s59", vr(X + k))
            A.I("v_pk_add_f32", vr(t, 2), vr(t, 2), "v[192:193]", mods="op_sel_hi:[1,0] neg_lo:[0,1] neg_hi:[0,1]")
            if "lnmimic" in OPTS:
                A.I("v_cvt_pk_bf16_f32", vr(t), 0, vr(t))
                A.I("v_cvt_pk_bf16_f32", vr(t + 1), 0, vr(t + 1))
            A.I("v_pk_mul_f32", vr(t, 2), vr(t, 2), "v[172:173]", mods="op_sel_hi:[1,0]")
            A.I("v_cvt_pk_bf16_f32", vr(X + k), vr(t), vr(t + 1))
            if k == 3: A.I("ds_write_b128", "v182", vr(X, 4))
        A.I("ds_write_b128", "v182", vr(X + 4, 4), mods="offset:512")
        A.unpk = False
        A.I("v_mov_b32", "v193", "v172")
        A.I("v_lshlrev_b32", "v196", 4, "v5")
        A.I("s_lshl_b32", "s71", "s3", 7)
        A.I("s_lshl_b32", "s72", "s28", 5)
        A.I("s_add_u32", "s71", "s71", "s72")
        A.I("s_add_u32", "s71", "s71", hex(STAT))
        A.wait(lgkm=0)
        A.I("s_barrier")
        A.I("ds_read_b64_tr_b16", "v[184:185]", "v183")
        A.I("ds_read_b64_tr_b16", "v[186:187]", "v183", mods=f"offset:{4*1088}")
        A.I("ds_read_b64_tr_b16", "v[188:189]", "v183", mods="offset:128")
        A.I("ds_read_b64_tr_b16", "v[190:191]", "v183", mods=f"offset:{4*1088+128}")
        A.wait(lgkm=2)
        A.I("buffer_store_dwordx4", "v[184:187]", "v7", "s[44:47]", "s55", mods="offen sc1")
        A.wait(lgkm=0)
        A.I("buffer_store_dwordx4", "v[188:191]", "v7", "s[44:47]", "s55", mods="offen offset:1024 sc1")
        A.wait_vm("tag")
        get_tag(A, L, "K_tag", "v123", "v122", "s[24:25]")
        A.I("v_mov_b32", "v195", "v123")
        A.I("v_readfirstlane_b32", "s51", "v123")
        A.I("s_mov_b32", "exec_lo", 1)
        A.I("s_mov_b32", "exec_hi", 1)
        A.I("buffer_store_dwordx4", "v[192:195]", "v196", "s[44:47]", "s71", mods="offen sc1")
        A.I("s_mov_b64", "exec", -1)
        stampn(A, "k_st")
    def f1_block():
        A.wait(vm=1)
        A.I("s_barrier")
        A.I("s_cmp_lg_u32", "s28", 0)
        A.I("s_cbranch_scc1", L("K_f1done"))
        A.I("s_lshl_b32", "s71", "s3", F1SH)
        A.I("s_add_u32", "s71", "s71", hex(F1))
        A.I("s_mov_b64", "exec", 1)
        A.I("buffer_store_dword", "v123", "v122", "s[44:47]", "s71", mods="offen sc1")
        A.I("s_mov_b64", "exec", -1)
        A.label(L("K_f1done"))
        stampn(A, "k_f1")
        if "kx3" in OPTS: A.I("s_branch", L("K_end"))
    def poll_issue():
        A.I("buffer_load_dword", "v121", "v120", "s[44:47]", "s41", mods="offen sc1")
    def gather(sfx=''):
        spin_check(A, L, "K_p1" + sfx, "v121", "v123", poll_issue, sleep=int(os.environ.get("KSLEEP", 4)))
        A.I("s_lshl_b32", "s62", "s28", 19)
        A.I("s_lshl_b32", "s63", "s29", 5)
        A.I("s_add_u32", "s62", "s62", "s63")
        A.I("s_add_u32", "s62", "s62", hex(XNT))
        A.I("s_add_u32", "s63", "s62", 32 * 8192)
        A.I("buffer_load_dwordx4", "v[8:11]", "v32", "s[44:47]", "s62", mods="offen sc1")
        A.I("buffer_load_dwordx4", "v[12:15]", "v32", "s[44:47]", "s63", mods="offen sc1")
    F1AT = min(LNAT + 1, 8)
    POLLAT = int(os.environ.get('POLLAT', 9))
    for pi in range(8):
        if pi == PRIOAT: A.I("s_setprio", 0)
        if pi == LNAT: ln_block()
        if pi == F1AT: f1_block()
        if pi == POLLAT: poll_issue()
        stampn(A, f"k_p{pi}")
        gen_kgen_pair(A, P, 56, pi)
    if PRIOAT == 8: A.I("s_setprio", 0)
    if LNAT >= 8: ln_block()
    if PRIOAT == 9: A.I("s_setprio", 0)
    stampn(A, "k_kgen")
    if "midhi" in OPTS: A.I("s_setprio", 3)
    KACC = 100
    A.I("ds_write2_b32", "v34", vr(KACC), vr(KACC + 1), mods="offset0:0 offset1:2")
    A.I("ds_write2_b32", "v34", vr(KACC + 2), vr(KACC + 3), mods="offset0:4 offset1:6")
    A.I("s_mov_b32", "exec_lo", "0xff00ff00")
    A.I("s_mov_b32", "exec_hi", "0xff00ff00")
    for s in range(1, 4):
        A.I("ds_write2_b32", vr(34 + s), vr(KACC + 4 * s), vr(KACC + 4 * s + 1), mods="offset0:0 offset1:2")
        A.I("ds_write2_b32", vr(34 + s), vr(KACC + 4 * s + 2), vr(KACC + 4 * s + 3), mods="offset0:4 offset1:6")
    A.I("s_mov_b64", "exec", "0x8000")
    A.I("ds_write_b32", "v39", vr(KACC + 18), mods=f"offset:{8 * 720}")
    A.I("s_mov_b64", "exec", -1)
    if POLLAT <= 7: gather()
    A.wait(lgkm=0)
    A.I("s_barrier")
    if POLLAT > 7 and F1AT < 8: poll_issue()
    stampn(A, "k_b1")
    for rd in range(2):
        for ii in range(11):
            A.I("ds_read_b64", vr(128 + 22 * rd + 2 * ii, 2), vr(AD + 11 * rd + ii), tag=f"e{rd}")
    for rd in range(2):
        A.wait_l(f"e{rd}")
        for ii in range(11):
            r = 128 + 22 * rd + 2 * ii
            A.I("v_add_f32", vr(r), vr(r), vr(r + 1))
        e = lambda ip: vr(128 + 22 * rd + 2 * (ip + 3))
        base = 64 + 16 * rd
        for sg in range(4):
            for dwi in range(4):
                lo = 2 * dwi - sg
                A.I("v_cvt_pk_bf16_f32", vr(base + 4 * sg + dwi), e(lo), e(lo + 1))
            A.I("ds_write_b128", "v40", vr(base + 4 * sg, 4), mods=f"offset:{sg * 4160 + rd * 1024}")
    if F1AT >= 8:
        A.wait(lgkm=0)
        f1_block()
    else:
        if POLLAT > 7: gather()
        A.wait(lgkm=0)
        A.I("s_barrier")
    stampn(A, "k_exp")
    if PRIOAT == 10: A.I("s_setprio", 0)
    KF = 128; UB = 96; CA = 64
    A.I("s_cmp_eq_u32", "s31", 1)
    A.I("s_cbranch_scc1", L("conv1"))
    for hw in range(2):
        if hw == 1: A.label(L("conv1"))
        Ps = PSET[hw]
        steps = [(Q, r) for Q in range(8 - min(Ps)) for r in range(8)]
        first = set()
        NB = 8
        def issueU(n):
            Q, r = steps[n]
            q = 8 * Q - r
            A.I("ds_read_b128", vr(UB + 4 * (n % NB), 4), "v42", mods=f"offset:{64 * (q + 7)}", tag=f"U{n}")
        def issueK(r):
            for si, P_ in enumerate(Ps):
                p = 8 * P_ + r
                reg = KF + 32 * si + 4 * r
                A.I("ds_read_b64", vr(reg, 2), "v41", mods=f"offset:{64 * (63 - p)}")
                A.I("ds_read_b64", vr(reg + 2, 2), "v41", mods=f"offset:{64 * (63 - p) + 8}", tag=f"K{r}")
        def mf(n):
            Q, r = steps[n]
            for si, P_ in enumerate(Ps):
                if P_ + Q > 7: continue
                acc = vr(CA + 4 * (P_ + Q), 4)
                c = acc if (P_ + Q) in first else "0"
                first.add(P_ + Q)
                A.I("v_mfma_f32_16x16x32_bf16", acc, vr(KF + 32 * si + 4 * r, 4), vr(UB + 4 * (n % NB), 4), c)
        for r in range(8): issueK(r)
        if F1AT >= 8:
            poll_issue()
            gather(f"_{hw}")
        A.wait(vm=0)
        stampn(A, "k_u")
        A.I("ds_write_b128", "v33", "v[8:11]")
        A.I("ds_write_b128", "v33", "v[12:15]", mods="offset:512")
        A.wait(lgkm=0)
        A.I("s_barrier")
        stampn(A, "k_q0")
        A.I("s_setprio", int(os.environ.get("KPRIO", 0)))
        for k in range(NB - 1): issueU(k)
        nxt = NB - 1
        for n in range(0, len(steps)):
            A.wait_l(f"U{n}")
            mf(n)
            if nxt < len(steps): issueU(nxt)
            nxt += 1
        stampn(A, "k_mf")
        oth = range(4, 8) if hw == 0 else range(1, 4)
        A.I("s_lshl_b32", "s41", "s30", 13)
        A.I("s_add_u32", "s41", "s41", ACCX)
        A.I("v_add_u32", "v45", "s41", "v7")
        for k in range(4):
            A.I("ds_read_b64", vr(16 + 2 * k, 2), "v44", mods=f"offset:{512 * k}")
        for Aa in oth:
            A.I("ds_write_b128", "v45", vr(CA + 4 * Aa, 4), mods=f"offset:{Aa * 1024}")
        own = range(0, 4) if hw == 0 else range(4, 8)
        A.I("s_lshl_b32", "s42", "s36", 16)
        A.I("s_and_b32", "s43", "s36", "0xffff0000")
        A.I("s_cmp_eq_u32", "s30", 0)
        A.I("s_cselect_b32", "s42", "s42", "s43")
        A.I("s_mov_b32", "s43", "s42")
        A.I("s_lshl_b32", "s48", "s32", 12)
        A.I("s_add_u32", "s48", "s48", "s49")
        A.I("s_add_u32", "s48", "s48", hex(ST))
        A.wait(lgkm=0)
        A.I("s_barrier")
        A.unpk = "cenp" in OPTS
        for k, Aa in enumerate(own):
            if hw == 0 and Aa == 0: continue
            A.I("ds_read_b128", vr(UB + 4 * k, 4), "v45", mods=f"offset:{Aa * 1024}", tag=f"X{k}")
        for k, Aa in enumerate(own):
            t = 48 + 4 * k; a = CA + 4 * Aa
            A.I("v_lshlrev_b32", vr(t), 16, vr(16 + 2 * k))
            A.I("v_and_b32", vr(t + 1), "s59", vr(16 + 2 * k))
            A.I("v_lshlrev_b32", vr(t + 2), 16, vr(17 + 2 * k))
            A.I("v_and_b32", vr(t + 3), "s59", vr(17 + 2 * k))
            A.I("v_pk_fma_f32", vr(a, 2), vr(t, 2), "s[42:43]", vr(a, 2))
            A.I("v_pk_fma_f32", vr(a + 2, 2), vr(t + 2, 2), "s[42:43]", vr(a + 2, 2))
        for k, Aa in enumerate(own):
            a = CA + 4 * Aa
            if not (hw == 0 and Aa == 0):
                A.wait_l(f"X{k}")
                A.I("v_pk_add_f32", vr(a, 2), vr(a, 2), vr(UB + 4 * k, 2))
                A.I("v_pk_add_f32", vr(a + 2, 2), vr(a + 2, 2), vr(UB + 4 * k + 2, 2))
            A.I("v_cvt_pk_bf16_f32", vr(a), vr(a), vr(a + 1))
            A.I("v_cvt_pk_bf16_f32", vr(a + 1), vr(a + 2), vr(a + 3))
            A.I("buffer_store_dwordx2", vr(a, 2), "v43", "s[44:47]", "s48", mods=f"offen offset:{512 * k} sc1")
        if hw == 0: A.I("s_branch", L("K_pub"))
    A.label(L("K_pub"))
    stampn(A, "k_conv")
    A.wait(vm=0)
    A.I("s_barrier")
    A.I("s_cmp_lg_u32", "s28", 0)
    A.I("s_cbranch_scc1", L("K_end"))
    A.I("s_lshl_b32", "s71", "s29", F3SH)
    A.I("s_add_u32", "s71", "s71", hex(F3))
    A.I("v_mov_b32", "v8", "s51")
    A.I("v_mov_b32", "v9", 0)
    A.I("s_mov_b64", "exec", 1)
    A.I("buffer_store_dword", "v8", "v9", "s[44:47]", "s71", mods="offen sc1")
    A.I("s_mov_b64", "exec", -1)
    A.unpk = False
    A.label(L("K_end"))
    stamp_flush(A, 0, "s[26:27]", 7)
    A.I("s_endpgm")
```

```python
import os
from asmlib import *
from layout1 import *
from k_prep import srd
from t7_k import spin_check, code_prefetch2, get_tag, swarm

XB = 49152

def gen_csb(A, L, TAG):
    A.I("s_lshl_b32", "s71", "s49", 2)
    A.I("s_add_u32", "s71", "s71", "s22")
    A.I("global_load_dword", TAG, "v10", "s[18:19]", mods="sc1")
    A.I("s_cmp_ge_u32", "s71", 45)
    A.I("s_cbranch_scc1", L("M_csb_skip"))
    A.I("s_min_u32", "s72", "s71", 42)
    A.I("s_lshl_b32", "s72", "s72", 6)
    A.I("v_lshrrev_b32", "v16", 2, "v1")
    A.I("v_mul_u32_u24", "v16", 2752, "v16")
    A.I("v_and_b32", "v17", 3, "v1")
    A.I("v_lshl_add_u32", "v16", "v17", 4, "v16")
    A.I("s_mov_b32", "s73", "s72")
    for i in range(32):
        A.I("buffer_load_dwordx4", vr(128 + 4 * i - (0 if i < 28 else 0), 4) if i < 28 else vr(32 + 4 * (i - 28), 4), "v16", "s[28:31]", "s73", mods="offen", tag=f"c{i}")
        A.I("s_add_u32", "s73", "s73", 16 * 2752)
    A.I("v_lshl_add_u32", "v18", "v5", 1, "s72")
    A.I("global_load_ushort", "v19", "v18", "s[10:11]")
    A.I("s_mov_b32", "s74", "0x00003f80")
    A.I("s_mov_b32", "s75", "0x3f800000")
    for c in range(8): A.I("v_mov_b32", vr(20 + c), 0)
    for i in range(32):
        A.wait_vm(f"c{i}")
        b = 128 + 4 * i if i < 28 else 32 + 4 * (i - 28)
        for d in range(4):
            A.I("v_dot2_f32_bf16", vr(20 + 2 * d), vr(b + d), "s74", vr(20 + 2 * d))
            A.I("v_dot2_f32_bf16", vr(21 + 2 * d), vr(b + d), "s75", vr(21 + 2 * d))
    D = "row_mask:0xf bank_mask:0xf"
    for m in ("row_ror:4", "row_ror:8"):
        for c in range(8): A.I("v_add_f32_dpp", vr(20 + c), vr(20 + c), vr(20 + c), mods=f"{m} {D}")
    for sw in ("v_permlane16_swap_b32", "v_permlane32_swap_b32"):
        for c in range(8): A.I("v_mov_b32", vr(48 + c), vr(20 + c))
        for c in range(8): A.I(sw, vr(20 + c), vr(48 + c))
        for c in range(8): A.I("v_add_f32", vr(20 + c), vr(20 + c), vr(48 + c))
    A.I("v_lshlrev_b32", "v17", 5, "v17")
    A.I("v_add_u32", "v17", "s61", "v17")
    A.I("ds_write_b128", "v17", "v[20:23]")
    A.I("ds_write_b128", "v17", "v[24:27]", mods="offset:16")
    A.I("v_lshl_add_u32", "v17", "v5", 2, "s61")
    A.wait(lgkm=0)
    A.I("ds_read_b32", "v20", "v17")
    A.wait(vm=0, lgkm=0)
    get_tag(A, L, "M_tag15a", TAG, "v10", "s[18:19]")
    A.I("v_cvt_pk_bf16_f32", "v21", 0, "v20")
    A.I("v_sub_f32", "v20", "v20", "v21")
    A.I("v_cvt_pk_bf16_f32", "v22", 0, "v20")
    A.I("v_sub_f32", "v20", "v20", "v22")
    A.I("v_cvt_pk_bf16_f32", "v24", "v21", "v22")
    A.I("v_cvt_pk_bf16_f32", "v25", "v20", 0)
    A.I("v_lshl_or_b32", "v25", "v19", 16, "v25")
    A.I("v_mov_b32", "v26", TAG)
    A.I("v_mov_b32", "v27", TAG)
    A.I("s_lshl_b32", "s72", "s71", 9)
    A.I("s_add_u32", "s72", "s72", hex(CSB))
    A.I("v_lshlrev_b32", "v17", 4, "v5")
    A.I("s_mov_b64", "exec", "0xffffffff")
    A.I("buffer_store_dwordx4", "v[24:27]", "v17", "s[24:27]", "s72", mods="offen sc1")
    A.I("s_mov_b64", "exec", -1)
    stampn(A, "m_csb")
    A.label(L("M_csb_skip"))
    A.wait(vm=0)
    get_tag(A, L, "M_tag15", TAG, "v10", "s[18:19]")

def gen_M(A, L, msize):
    G1 = "g1only" in OPTS
    A.label(L("M"))
    if "nom" in OPTS: A.I("s_endpgm")
    A.I("s_setprio", 2)
    A.I("s_load_dwordx2", "s[4:5]", "s[0:1]", 0)
    A.I("s_load_dwordx8", "s[8:15]", "s[0:1]", 80)
    A.I("s_load_dwordx4", "s[16:19]", "s[0:1]", 112)
    A.I("s_load_dwordx2", "s[20:21]", "s[0:1]", 128)
    code_prefetch2(A, msize)
    A.I("v_and_b32", "v1", 63, "v0")
    A.I("v_lshrrev_b32", "v2", 6, "v0")
    A.I("v_readfirstlane_b32", "s22", "v2")
    A.I("s_and_b32", "s3", "s2", 255)
    A.I("s_and_b32", "s23", "s3", 7)
    A.I("s_lshr_b32", "s48", "s3", 3)
    A.I("s_lshr_b32", "s49", "s23", 1)
    A.I("s_lshl_b32", "s49", "s49", 2)
    A.I("s_lshr_b32", "s76", "s48", 3)
    A.I("s_add_u32", "s49", "s49", "s76")
    A.I("s_and_b32", "s50", "s23", 1)
    A.I("s_lshl_b32", "s50", "s50", 3)
    A.I("s_and_b32", "s52", "s48", 7)
    A.I("s_add_u32", "s50", "s50", "s52")
    A.I("s_lshl_b32", "s76", "s76", 1)
    if "rot1" not in OPTS: A.I("s_mov_b32", "s76", 0)
    A.I("s_lshl_b32", "s51", "s23", 2)
    A.I("s_lshr_b32", "s52", "s48", 3)
    A.I("s_add_u32", "s51", "s51", "s52")
    A.I("s_and_b32", "s52", "s48", 7)
    A.I("s_lshl_b32", "s53", "s49", 2)
    A.I("s_add_u32", "s53", "s53", "s22")
    A.I("v_lshlrev_b32", "v2", 4, "v1")
    A.I("v_lshrrev_b32", "v4", 5, "v1")
    A.I("v_and_b32", "v5", 31, "v1")
    A.I("v_lshrrev_b32", "v9", 3, "v1")
    A.I("v_lshrrev_b32", "v10", 4, "v1")
    A.I("v_and_b32", "v11", 7, "v1")
    A.I("v_xor_b32", "v10", "v10", "v11")
    A.I("v_lshlrev_b32", "v9", 10, "v9")
    A.I("v_lshl_add_u32", "v12", "v10", 4, "v9")
    A.I("v_xor_b32", "v13", 64, "v12")
    A.I("v_bfe_u32", "v10", "v1", 4, 1)
    A.I("v_lshlrev_b32", "v10", 2, "v10")
    A.I("v_xor_b32", "v10", "v10", "v11")
    A.I("v_lshl_add_u32", "v15", "v10", 4, "v9")
    A.I("s_mov_b32", "s54", 43691)
    for n in range(3):
        A.I("v_add_u32", "v9", 64 * n, "v1")
        A.I("v_mul_u32_u24", "v10", "s54", "v9")
        A.I("v_lshrrev_b32", "v10", 19, "v10")
        A.I("v_mul_u32_u24", "v11", 12, "v10")
        A.I("v_sub_u32", "v9", "v9", "v11")
        A.I("v_mul_u32_u24", "v10", 2752, "v10")
        A.I("v_lshl_add_u32", vr(6 + n), "v9", 4, "v10")
    A.I("v_lshlrev_b32", "v14", 7, "v5")
    A.I("s_mul_i32", "s55", "s50", 192)
    A.I("s_mul_i32", "s56", "s22", 16 * 2752)
    A.I("s_add_u32", "s56", "s56", "s55")
    A.I("s_mul_i32", "s57", "s22", 3072)
    A.I("s_lshl_b32", "s67", "s53", 15)
    A.I("s_lshl_b32", "s61", "s22", 12)
    A.I("s_add_u32", "s61", "s61", XB)
    A.I("s_lshl_b32", "s62", "s49", 17)
    A.I("s_lshl_b32", "s63", "s52", 14)
    A.I("s_add_u32", "s62", "s62", "s63")
    A.I("s_lshl_b32", "s63", "s22", 12)
    A.I("s_add_u32", "s62", "s62", "s63")
    stampn(A, "m_pre")
    A.wait(lgkm=0)
    stampn(A, "m_arg")
    srd(A, 40, 4, 2048 * 1024)
    srd(A, 28, 8, 512 * 2752)
    A.I("s_mov_b32", "exec_hi", 0)
    A.I("buffer_load_dword", "v3", "v14", "s[40:43]", "s62", mods="offen")
    A.I("s_mov_b64", "exec", -1)
    def xdma1(s, b):
        A.I("s_add_u32", "m0", "s61", (s % 2) * 16384 + b * 1024)
        if b == 0:
            A.I("s_add_u32", "s77", "s76", s)
            A.I("s_and_b32", "s77", "s77", 7)
            A.I("s_lshl_b32", "s77", "s77", 7)
            A.I("s_add_u32", "s77", "s77", "s67")
        A.I("s_add_u32", "s63", "s77", b * 8192)
        A.I("buffer_load_dwordx4", "v12" if b % 2 == 0 else "v13", "s[40:43]", "s63", mods="offen lds", tag=f"x{s}")
    def wdma1(s, n):
        if n == 0:
            A.I("s_add_u32", "s78", "s76", s)
            A.I("s_and_b32", "s78", "s78", 7)
            A.I("s_mul_i32", "s78", "s78", 64 * 2752)
            A.I("s_add_u32", "s78", "s78", "s56")
        A.I("s_add_u32", "m0", "s57", (s % 4) * 12288 + n * 1024)
        A.I("buffer_load_dwordx4", vr(6 + n), "s[28:31]", "s78", mods="offen lds", tag=f"w{s}")
    A.I("s_cmp_eq_u32", "s50", 15)
    A.I("s_cbranch_scc1", L("M_now1"))
    for b in range(4): xdma1(0, b)
    srd(A, 36, 10, 2752)
    A.I("s_mov_b32", "m0", 36864)
    A.I("s_mov_b64", "exec", "0xfff")
    A.I("buffer_load_dwordx4", "v2", "s[36:39]", "s55", mods="offen lds")
    A.I("s_mov_b64", "exec", -1)
    for n in range(3): wdma1(0, n)
    PRO = int(os.environ.get("PRO", 3))
    if PRO >= 1:
        for b in range(4): xdma1(1, b)
    for s in (1, 2)[:max(PRO - 1, 0)]:
        for n in range(3): wdma1(s, n)
    A.label(L("M_now1"))
    if "swarm" in OPTS:
        swarm(A, "s[12:13]", "s3", "s22")
    stampn(A, "m_iss")
    srd(A, 24, 20, WS_SIZE)
    srd(A, 44, 16, 2048 * 1024)
    srd(A, 32, 12, 1376 * 1024)
    if "otouch" in OPTS:
        A.I("s_lshl_b32", "s63", "s3", 13)
        A.I("s_mov_b64", "exec", 1)
        A.I("buffer_load_dword", "v235", "v2", "s[44:47]", "s63", mods="offen")
        A.I("global_load_dword", "v234", "v2", "s[14:15]")
        A.I("s_mov_b64", "exec", -1)
    A.I("s_mov_b32", "s64", "0xffff0000")
    A.I("s_mov_b32", "s69", "0x3f803f80")
    A.I("v_mov_b32", "v10", 0)
    A.I("s_mul_i32", "s58", "s22", 22)
    A.I("s_cmp_eq_u32", "s22", 3)
    A.I("s_cselect_b32", "s59", 1, 0)
    A.I("s_sub_u32", "s58", "s58", "s59")
    A.I("s_lshl_b32", "s59", "s58", 14)
    A.I("s_lshl_b32", "s60", "s52", 7)
    A.I("s_add_u32", "s59", "s59", "s60")
    A.I("s_cmp_lt_u32", "s22", 2)
    A.I("s_cselect_b32", "s48", 22, 21)
    A.I("s_mul_i32", "s79", "s52", 2)
    A.I("s_and_b32", "s63", "s51", 3)
    A.I("s_mul_i32", "s63", "s63", 5)
    A.I("s_add_u32", "s79", "s79", "s63")
    A.I("s_cmp_ge_u32", "s79", 21)
    A.I("s_cselect_b32", "s63", 21, 0)
    A.I("s_sub_u32", "s79", "s79", "s63")
    if "norot2" in OPTS: A.I("s_mov_b32", "s79", 0)
    A.I("v_and_b32", "v9", 1, "v1")
    A.I("v_lshl_add_u32", "v9", "v4", 2, "v9")
    A.I("v_lshlrev_b32", "v9", 10, "v9")
    A.I("v_lshrrev_b32", "v11", 1, "v5")
    A.I("v_lshl_add_u32", "v9", "v11", 2, "v9")
    XA = 244; WA = 248; TA_ = 252
    A.I("v_bfe_u32", "v14", "v1", 1, 3)
    A.I("v_xor_b32", "v14", "v14", "v4")
    A.I("s_lshl_b32", "s63", "s22", 1)
    A.I("v_xor_b32", "v14", "s63", "v14")
    A.I("v_lshlrev_b32", "v16", 7, "v5")
    A.I("v_add_u32", "v16", "s61", "v16")
    for k in range(4):
        if k: A.I("v_xor_b32", "v11", 2 * k, "v14")
        A.I("v_lshl_add_u32", vr(XA + k), "v14" if k == 0 else "v11", 4, "v16")
    A.I("v_bfe_u32", "v16", "v1", 2, 2)
    A.I("v_bfe_u32", "v17", "v1", 4, 1)
    A.I("v_and_b32", "v18", 3, "v1")
    A.I("v_lshlrev_b32", "v18", 3, "v18")
    A.I("v_lshl_add_u32", "v17", "v17", 5, "v18")
    A.I("v_lshl_add_u32", "v14", "v4", 3, "v16")
    A.I("v_mul_u32_u24", "v14", 192, "v14")
    A.I("v_add_u32", "v14", "v14", "v17")
    for k in range(4):
        A.I("s_xor_b32", "s63", "s22", k)
        A.I("s_mul_i32", "s63", "s63", 3072)
        A.I("v_add_u32", vr(WA + k), "s63", "v14")
    A.I("v_lshl_add_u32", "v14", "v4", 2, "v16")
    A.I("v_lshl_add_u32", "v14", "v14", 7, "v17")
    A.I("v_bfe_u32", "v16", "v1", 3, 1)
    A.I("v_lshl_add_u32", "v14", "v16", 6, "v14")
    A.I("v_xor_b32", "v16", 64, "v14")
    A.I("v_add_u32", vr(TA_), "s57", "v14")
    A.I("v_add_u32", vr(TA_ + 1), "s57", "v16")
    A.I("v_add_u32", vr(TA_ + 2), "s61", "v14")
    A.I("v_add_u32", vr(TA_ + 3), "s61", "v16")
    TAG = "v14"; PF = "v11"
    def pollw():
        A.I("buffer_load_dword", PF, "v13", "s[24:27]", "s65", mods="offen sc1", tag="pw")
    Wb = lambda sl: [(sl * 12288 + i * 1024, 0) for i in range(3)]
    blocks = Wb(0) + [(i * 1024, 1) for i in (1, 2, 3)] + Wb(1) + [(16384 + i * 1024, 1) for i in range(4)] + Wb(2) + Wb(3) + [(0, 1)]
    KB = {k: k for k in range(8)}
    KB.update({8: 0, 9: 1, 10: 2, 11: 8, 12: 9, 13: 3, 14: 4, 15: 5, 16: 6, 17: 7, 18: 0, 19: 1, 20: 2, 21: 8})
    lastk = [None]
    def w2dma(k, hf):
        off, isx = blocks[2 * KB[k] + hf]
        if hf == 0 or lastk[0] != k:
            A.I("s_add_u32", "s23", "s79", k)
            A.I("s_cmp_ge_u32", "s23", "s48")
            A.I("s_cselect_b32", "s63", "s48", 0)
            A.I("s_sub_u32", "s23", "s23", "s63")
            A.I("s_lshl_b32", "s23", "s23", 14)
            A.I("s_add_u32", "s23", "s23", "s59")
        lastk[0] = k
        A.I("s_add_u32", "s63", "s23", hf * 8192)
        A.I("s_add_u32", "m0", "s61" if isx else "s57", off)
        A.I("buffer_load_dwordx4", "v15", "s[32:35]", "s63", mods="offen lds", tag=f"d{k}")
    WR = 16
    NWR = 12
    def wreg(k, e): return WR + 8 * (k % NWR) + 4 * e
    def w2read(k):
        for e in range(2):
            for hf in range(2):
                off, isx = blocks[2 * KB[k] + hf]
                A.I("ds_read_b64_tr_b16", vr(wreg(k, e) + 2 * hf, 2), vr(TA_ + 2 * isx + e), mods=f"offset:{off}", tag=f"S{k}")
    A.I("s_cmp_eq_u32", "s50", 15)
    A.I("s_cbranch_scc1", L("M_g15"))
    ACC1 = 128; WB = 208; NW = 5; CP = 228; B1 = 231; ST_ = 232 + 4
    XFb = lambda s: 176 if s % 2 == 0 else 192
    for r in (CP, CP + 1, CP + 2): A.I("v_mov_b32", vr(r), 0)
    A.I("s_mul_i32", "s68", "s53", 86)
    A.I("s_mul_i32", "s63", "s50", 6)
    A.I("s_add_u32", "s68", "s68", "s63")
    A.I("s_lshl_b32", "s68", "s68", 10)
    A.I("s_add_u32", "s68", "s68", hex(HF))
    A.I("s_add_u32", "s66", "s68", 4096)
    A.I("s_cmp_eq_u32", "s50", 14)
    A.I("s_cselect_b32", "s66", "0x7f000000", "s66")
    A.I("s_cselect_b32", "s73", "0x7f000000", "s68")
    A.I("s_lshl_b32", "s74", "s53", 9)
    A.I("s_add_u32", "s74", "s74", hex(STAT))
    AX = 176
    def pollstat():
        A.I("buffer_load_dwordx4", vr(ST_, 4), "v3", "s[24:27]", "s74", mods="offen sc1", tag="st")
    def rdW(s, idx, buf):
        kk, t = idx
        o = (s % 4) * 12288 + t * 64
        r = WB + 4 * buf
        A.I("ds_read_b64_tr_b16", vr(r, 2), vr(WA + kk), mods=f"offset:{o}")
        A.I("ds_read_b64_tr_b16", vr(r + 2, 2), vr(WA + kk), mods=f"offset:{o + 768}", tag=f"W{s}_{kk}_{t}")
    def bar(s):
        A.wait_vm(f"x{s}" if A._after(A.vmq, f"x{s}") < A._after(A.vmq, f"w{s}") else f"w{s}")
        stampn(A, f"m_s{s}a")
        A.I("s_barrier")
        for kk in range(4):
            A.I("ds_read_b128", vr(XFb(s) + 4 * kk, 4), vr(XA + kk), mods=f"offset:{(s % 2) * 16384}")
    def epi_ops(t):
        ops = []
        a = ACC1 + 16 * t
        for k in range(8):
            r = a + 2 * k
            for q in (r, r + 1):
                ops.append(("v_max_f32", [vr(q), 0, vr(q)], ""))
                ops.append(("v_mul_f32", [vr(q), vr(q), vr(ST_ + 1)], ""))
                ops.append(("v_mul_f32", [vr(q), vr(q), vr(q)], ""))
            ops.append(("v_cvt_pk_bf16_f32", [vr(a + k), vr(r), vr(r + 1)], ""))
            if k % 4 == 3:
                off = (2 * t + k // 4) * 1024
                ops.append(("buffer_store_dwordx4", [vr(a + k - 3, 4), "v2", "s[24:27]", ("s68", "s73", "s66")[t]], f"offen offset:{off % 4096} sc1"))
        return ops
    pend_e = []
    seq = []
    for s in range(8):
        order = [(kk, t) for kk in range(4) for t in range(3)] if s < 7 else [(kk, t) for t in range(3) for kk in range(4)]
        seq += [(s, o) for o in order]
    bar(0)
    A.I("v_lshlrev_b32", "v3", 1, "v5")
    for t in range(3): A.I("ds_read_u16", vr(B1 + t), "v3", mods=f"offset:{36864 + 64 * t}")
    A.I("v_lshlrev_b32", "v3", 4, "v5")
    for m in range(NW - 1): rdW(seq[m][0], seq[m][1], m)
    BN = 7; WPOS = (7, 9, 10); XPOS = (0, 2, 4, 5)
    XP0 = (6, 8, 9, 11)
    early = {(5, 7): 0, (5, 9): 1, (5, 10): 2, (6, 0): 3, (6, 2): 4, (6, 4): 5, (6, 7): 6, (6, 9): 7, (6, 10): 8, (7, 0): 9, (7, 1): 10, (7, 2): 11, (7, 3): 12}
    for m, (s, (kk, t)) in enumerate(seq):
        n = m % 12
        if n == 0: stampn(A, f"m_s{s}")
        if G1 and m == 84: A.I("s_branch", L("M_exit"))
        A.wait_l(f"W{s}_{kk}_{t}")
        acc = vr(ACC1 + 16 * t, 16)
        if "nomfma" not in OPTS: A.I("v_mfma_f32_32x32x16_bf16", acc, vr(WB + 4 * (m % NW), 4), vr(XFb(s) + 4 * kk, 4), acc if (s or kk) else "0")
        if kk == 0 and s < 7 and "nocs" not in OPTS:
            for d in range(4):
                A.I("v_dot2_f32_bf16", vr(CP + t), vr(WB + 4 * (m % NW) + d), "s69", vr(CP + t))
        if n == BN and s < 7: bar(s + 1)
        if m + NW - 1 < 96: rdW(seq[m + NW - 1][0], seq[m + NW - 1][1], (m + NW - 1) % NW)
        if "nodma" in OPTS:
            A.vmq += [f"w{s + 3}", f"x{s + 2}"] + [None] * 70
        else:
            if s == 0:
                pend = ([("x", b) for b in range(4)] if PRO < 1 else []) + ([("w1", i) for i in range(3)] if PRO < 2 else []) + ([("w2", i) for i in range(3)] if PRO < 3 else [])
                per = (len(pend) + 5) // 6
                for typ, i in pend[n * per:(n + 1) * per] if n < 6 else []:
                    if typ == "x": xdma1(1, i)
                    else: wdma1(int(typ[1]), i)
            if n in WPOS and s + 3 < 8 and "now" not in OPTS: wdma1(s + 3, WPOS.index(n))
            xp = XP0 if (s == 0 and PRO < 3) else XPOS
            if n in xp and s + 2 < 8 and "nox" not in OPTS: xdma1(s + 2, xp.index(n))
            if "now" in OPTS: A.vmq.insert(0, f"w{s + 3}")
            if "nox" in OPTS: A.vmq.insert(0, f"x{s + 2}")
        if s == 5 and n == 6:
            A.I("global_load_dword", TAG, "v10", "s[18:19]", mods="sc1")
            pollstat()
        if (s, n) in early:
            b = early[(s, n)]
            w2dma(b // 2, b % 2)
        if s == 6 and n == BN:
            for t2 in range(3):
                o = 3 * 12288 + t2 * 64
                A.I("ds_read_b64_tr_b16", vr(112 + 4 * t2, 2), vr(WA), mods=f"offset:{o}")
                A.I("ds_read_b64_tr_b16", vr(114 + 4 * t2, 2), vr(WA), mods=f"offset:{o + 768}", tag=f"c7_{t2}")
        if s == 6 and n in (9, 10, 11):
            t2 = n - 9
            A.wait_l(f"c7_{t2}")
            for d in range(4):
                A.I("v_dot2_f32_bf16", vr(CP + t2), vr(112 + 4 * t2 + d), "s69", vr(CP + t2))
        if s == 6 and n == 11:
            A.I("v_lshl_add_u32", "v240", "v1", 2, "s61")
            A.I("v_lshlrev_b32", "v241", 2, "v1")
            for t2 in range(3): A.I("ds_write_b32", "v240", vr(CP + t2), mods=f"offset:{256 * t2}", tag="cw")
        if s == 7 and n == 0:
            A.wait_l("cw")
            A.I("s_barrier")
            for t2 in range(3):
                for ww in range(4):
                    A.I("ds_read_b32", vr(112 + 4 * t2 + ww), "v241", mods=f"offset:{XB + 4096 * ww + 256 * t2}", tag="cr")
        if s == 7 and n == 1:
            A.wait_vm("st")
            get_tag(A, L, "M_tag", TAG, "v10", "s[18:19]")
            spin_check(A, L, "M_st", vr(ST_ + 3), TAG, pollstat, wait_tag="st")
            A.I("v_cmp_gt_u32", "vcc", 32, "v1")
            A.I("v_cndmask_b32", vr(ST_ + 2), 0, vr(ST_ + 2), "vcc")
            A.I("v_cvt_pk_bf16_f32", "v188", f"-{vr(ST_)}", f"-{vr(ST_)}")
            A.I("v_cvt_pk_bf16_f32", "v189", f"-{vr(ST_)}", vr(ST_ + 2))
            A.I("v_mov_b32", "v190", 0)
            A.I("v_mov_b32", "v191", 0)
        if s == 7 and n in (2, 3, 4):
            t2 = n - 2
            if n == 2: A.wait_l("cr")
            c = 112 + 4 * t2; a = AX + 4 * t2
            A.I("v_add_f32", vr(c), vr(c), vr(c + 1))
            A.I("v_add_f32", vr(c + 2), vr(c + 2), vr(c + 3))
            A.I("v_add_f32", vr(c), vr(c), vr(c + 2))
            A.I("v_cvt_pk_bf16_f32", vr(c + 1), 0, vr(c))
            A.I("v_sub_f32", vr(c), vr(c), vr(c + 1))
            A.I("v_cvt_pk_bf16_f32", vr(c + 2), 0, vr(c))
            A.I("v_sub_f32", vr(c), vr(c), vr(c + 2))
            A.I("v_cvt_pk_bf16_f32", vr(a), vr(c + 1), vr(c + 2))
            A.I("v_cvt_pk_bf16_f32", vr(a + 1), vr(c), 0)
            A.I("v_lshl_or_b32", vr(a + 1), vr(B1 + t2), 16, vr(a + 1))
            A.I("v_mov_b32", vr(a + 2), 0)
            A.I("v_mov_b32", vr(a + 3), 0)
        if s == 7 and n in (3, 7, 11):
            t2 = n // 4
            acc2 = vr(ACC1 + 16 * t2, 16)
            A.I("v_mfma_f32_32x32x16_bf16", acc2, vr(AX + 4 * t2, 4), "v[188:191]", acc2)
        if s == 7 and n in (4, 5, 6): w2dma((9 + n) // 2, (9 + n) % 2)
        if s == 7 and n >= 5:
            if n == 5: pend_e = epi_ops(0)
            if n == 9: pend_e = pend_e + epi_ops(1)
            for _ in range(13):
                if pend_e:
                    mn, ops, mods = pend_e.pop(0); A.I(mn, *ops, mods=mods, tag="hf")
    stampn(A, "m_g1")
    A.wait_vm("d2")
    for k in (0, 1, 2): w2read(k)
    for mn, ops, mods in pend_e + epi_ops(2): A.I(mn, *ops, mods=mods, tag="hf")
    def r_and_redma(ks):
        for k in ks: w2read(k)
    A.unpk = "mpk2" not in OPTS
    stampn(A, "m_epi")
    A.wait_vm("d7", lgkm=0)
    stampn(A, "m_e1")
    r_and_redma((3, 4, 5, 6, 7))
    for k in (8, 9, 10):
        w2dma(k, 0); w2dma(k, 1)
    stampn(A, "m_e2")
    A.wait(vm=6)
    stampn(A, "m_e3")
    A.I("s_barrier")
    A.I("s_cmp_lg_u32", "s22", 0)
    A.I("s_cbranch_scc1", L("M_nf2"))
    A.I("s_lshl_b32", "s71", "s49", F2SH + 4)
    A.I("s_lshl_b32", "s72", "s50", F2SH)
    A.I("s_add_u32", "s71", "s71", "s72")
    A.I("s_add_u32", "s71", "s71", hex(F2))
    A.I("s_mov_b64", "exec", 1)
    A.I("buffer_store_dword", TAG, "v10", "s[24:27]", "s71", mods="offen sc1")
    A.vmq.pop()
    A.I("s_mov_b64", "exec", -1)
    A.label(L("M_nf2"))
    if "touch" in OPTS:
        A.I("v_min_u32", "v240", 47, "v1")
        A.I("v_lshlrev_b32", "v240", 7, "v240")
        A.I("buffer_load_dword", "v241", "v240", "s[24:27]", "s68", mods="offen sc1")
    A.I("s_branch", L("M_join"))
    A.label(L("M_g15"))
    lastk[0] = None
    if G1: A.I("s_branch", L("M_exit"))
    for b in range(16): w2dma(b // 2, b % 2)
    A.I("global_load_dword", TAG, "v10", "s[18:19]", mods="sc1")
    A.wait(vm=0)
    get_tag(A, L, "M_tag15", TAG, "v10", "s[18:19]")
    if "agg" in OPTS:
        A.I("v_lshlrev_b32", "v13", F1SH, "v1")
        A.I("s_lshl_b32", "s65", "s22", F1SH + 6)
        A.I("s_add_u32", "s65", "s65", hex(F1))
        spin_check(A, L, "M_agg", PF, TAG, pollw, first=True, sleep=1)
        A.I("s_barrier")
        A.I("s_cmp_lg_u32", "s22", 0)
        A.I("s_cbranch_scc1", L("M_agg2"))
        A.I("s_lshl_b32", "s65", "s49", 7)
        A.I("s_add_u32", "s65", "s65", hex(FA))
        A.I("s_mov_b64", "exec", 1)
        A.I("buffer_store_dword", TAG, "v10", "s[24:27]", "s65", mods="offen sc1")
        A.I("s_mov_b64", "exec", -1)
        A.label(L("M_agg2"))
        stampn(A, "m_agg")
    for k in range(8): w2read(k)
    A.wait(lgkm=0)
    for k in (8, 9, 10):
        w2dma(k, 0); w2dma(k, 1)
    A.label(L("M_join"))
    lastk[0] = None
    stampn(A, "m_f2pub")
    for k in (11, 12):
        w2dma(k, 0); w2dma(k, 1)
    A.wait(lgkm=0)
    for k in (13, 14, 15, 16, 17):
        w2dma(k, 0); w2dma(k, 1)
    stampn(A, "m_w1")
    A.wait(vm=14)
    stampn(A, "m_w2")
    for k in (8, 9, 10): w2read(k)
    A.I("v_min_u32", "v13", 14, "v1")
    A.I("v_lshlrev_b32", "v13", F2SH, "v13")
    A.I("s_lshr_b32", "s65", "s51", 1)
    A.I("s_lshl_b32", "s65", "s65", F2SH + 4)
    A.I("s_add_u32", "s65", "s65", hex(F2))
    A.I("s_lshl_b32", "s54", "s51", 16)
    A.I("s_lshl_b32", "s55", "s22", 14)
    A.I("s_add_u32", "s54", "s54", "s55")
    A.I("s_add_u32", "s54", "s54", "s60")
    A.I("s_add_u32", "s55", "s54", 8192)
    A.I("s_mul_i32", "s56", "s51", 172)
    A.I("s_add_u32", "s56", "s56", "s58")
    A.I("s_lshl_b32", "s56", "s56", 10)
    A.I("s_add_u32", "s56", "s56", hex(HF))
    A.I("s_add_u32", "s62", "s56", 86 * 1024)
    XR = 240
    def xo(e, gp, ip): return ("s54" if gp == 0 else "s55", ip * 2048 + e * 64)
    for qq in range(8):
        so, im = xo(qq >> 2, (qq >> 1) & 1, qq & 1)
        A.I("buffer_load_dword", vr(XR + qq), "v9", "s[40:43]", so, mods=f"offen offset:{im}")
    A.I("v_lshl_add_u32", "v6", "v5", 1, "s60")
    A.I("global_load_ushort", "v12", "v6", "s[14:15]")
    A.I("global_load_ushort", "v3", "v6", "s[14:15]", mods="offset:64")
    A.wait(lgkm=0)
    for k in (18, 19, 20):
        w2dma(k, 0); w2dma(k, 1)
    stampn(A, "m_w3")
    A.wait_vm("d11")
    w2read(11)
    A.wait(lgkm=0)
    w2dma(21, 0); w2dma(21, 1)
    stampn(A, "m_w4")
    A.I("s_cmp_lg_u32", "s22", 0)
    A.I("s_cbranch_scc1", L("M_p2w"))
    A.I("s_mov_b64", "exec", "0x7fff")
    spin_check(A, L, "M_p2", PF, TAG, pollw, first=True)
    A.I("s_mov_b64", "exec", -1)
    A.label(L("M_p2w"))
    A.I("s_barrier")
    stampn(A, "m_f2")
    ACC = 128; NH = 8
    HR = lambda k: (192 + 8 * (k % NH)) if (k % NH) < 6 else (112 + 8 * (k % NH - 6))
    def issueH(k):
        A.I("s_add_u32", "s23", "s79", k)
        A.I("s_cmp_ge_u32", "s23", "s48")
        A.I("s_cselect_b32", "s63", "s48", 0)
        A.I("s_sub_u32", "s23", "s23", "s63")
        A.I("s_lshl_b32", "s23", "s23", 10)
        A.I("s_add_u32", "s63", "s23", "s56")
        A.I("s_add_u32", "s23", "s23", "s62")
        A.I("buffer_load_dwordx4", vr(HR(k), 4), "v2", "s[24:27]", "s63", mods="offen sc1")
        A.I("buffer_load_dwordx4", vr(HR(k) + 4, 4), "v2", "s[24:27]", "s23", mods="offen sc1", tag=f"h{k}")
    for k in range(NH): issueH(k)
    A.I("v_and_b32", "v13", 7, "v1")
    A.I("v_lshlrev_b32", "v8", 4, "v13")
    A.I("v_lshlrev_b32", "v13", F3SH, "v13")
    A.I("s_lshl_b32", "s65", "s52", F3SH + 5)
    A.I("s_lshl_b32", "s71", "s22", F3SH + 3)
    A.I("s_add_u32", "s65", "s65", "s71")
    A.I("s_add_u32", "s65", "s65", hex(F3))
    A.I("v_lshrrev_b32", "v7", 3, "v1")
    A.I("v_lshl_add_u32", "v7", "v7", 12, "v8")
    A.I("s_lshl_b32", "s67", "s52", 18)
    A.I("s_lshl_b32", "s68", "s22", 16)
    A.I("s_add_u32", "s67", "s67", "s68")
    A.I("s_lshl_b32", "s68", "s51", 7)
    A.I("s_add_u32", "s67", "s67", "s68")
    A.I("s_add_u32", "s67", "s67", hex(ST))
    A.I("s_add_u32", "s68", "s67", 8 * 4096)
    A.I("s_mov_b32", "s75", 0)
    def sload():
        A.I("buffer_load_dwordx4", "v[96:99]", "v7", "s[24:27]", "s67", mods="offen sc1")
        A.I("buffer_load_dwordx4", "v[100:103]", "v7", "s[24:27]", "s68", mods="offen sc1")
    for k in range(22):
        if k == 21:
            A.I("s_cmp_ge_u32", "s22", 2)
            A.I("s_cbranch_scc1", L("M_skip21"))
        A.wait_vm(f"h{k}")
        stampn(A, f"m_k{k}")
        if k >= 12: A.wait_l(f"S{k}")
        for tj in range(2):
            for e in range(2):
                acc = vr(ACC + 32 * tj + 16 * e, 16)
                A.I("v_mfma_f32_32x32x16_bf16", acc, vr(HR(k) + 4 * tj, 4), vr(wreg(k, e), 4), acc if k else "0")
        if k + NH < 22: issueH(k + NH)
        if k < 10: w2read(k + 12)
        if k == 13: pollw()
        if k == 18 and "kx3" not in OPTS:
            A.wait_vm("pw")
            A.I("v_cmp_ne_u32", "vcc", PF, TAG)
            A.I("s_cbranch_vccnz", L("M_s_no"))
            sload(); A.vmq.pop(); A.vmq.pop()
            A.I("s_mov_b32", "s75", 1)
            A.label(L("M_s_no"))
    A.label(L("M_skip21"))
    stampn(A, "m_g2")
    A.I("s_cmp_eq_u32", "s75", 1)
    A.I("s_cbranch_scc1", L("M_s_have"))
    if "kx3" not in OPTS: spin_check(A, L, "M_p3", PF, TAG, pollw, first=True)
    sload()
    A.label(L("M_s_have"))
    stampn(A, "m_f3")
    A.I("v_add_u32", "v252", "s57", "v2")
    A.I("v_add_u32", "v253", "s61", "v2")
    OWN = 16
    A.I("s_nop", 7)
    for wd in range(4):
        src = [ACC + 32 * (wd >> 1) + 16 * e + 8 * (wd & 1) + 4 * q for e in range(2) for q in range(2)]
        A.I("s_cmp_eq_u32", "s22", wd)
        A.I("s_cbranch_scc1", L(f"own{wd}"))
        for q, r in enumerate(src):
            if q < 3: A.I("ds_write_b128", "v252", vr(r, 4), mods=f"offset:{wd * 12288 + q * 1024}")
            else: A.I("ds_write_b128", "v253", vr(r, 4), mods=f"offset:{16384 + wd * 1024}")
        A.I("s_branch", L(f"nxt{wd}"))
        A.label(L(f"own{wd}"))
        if wd == 0: A.I("s_nop", 3)
        for q, r in enumerate(src):
            for i in range(0, 4, 2):
                A.I("v_pk_mov_b32", vr(OWN + 4 * q + i, 2), vr(r + i, 2), vr(r + i, 2), mods="op_sel:[0,1]")
        A.label(L(f"nxt{wd}"))
    A.I("s_lshl_b32", "s71", "s22", 5)
    A.I("v_add_u32", "v63", "s71", "v253")
    A.wait(vm=0)
    A.I("ds_write_b128", "v63", "v[96:99]")
    A.I("ds_write_b128", "v63", "v[100:103]", mods="offset:1040")
    XU = 32
    for q in range(8):
        A.I("v_lshlrev_b32", vr(XU + 2 * q), 16, vr(XR + q))
        A.I("v_and_b32", vr(XU + 2 * q + 1), "s64", vr(XR + q))
    A.I("v_lshlrev_b32", "v124", 16, "v12")
    A.I("v_lshlrev_b32", "v126", 16, "v3")
    A.I("v_lshrrev_b32", "v56", 4, "v5")
    A.I("v_mul_u32_u24", "v56", 4128, "v56")
    A.I("v_bfe_u32", "v57", "v5", 3, 1)
    A.I("v_mul_u32_u24", "v57", 1040, "v57")
    A.I("v_add_u32", "v56", "v56", "v57")
    A.I("v_and_b32", "v57", 7, "v5")
    A.I("v_lshl_add_u32", "v56", "v57", 7, "v56")
    A.I("v_lshl_add_u32", "v56", "v4", 3, "v56")
    A.I("v_add_u32", "v56", "s71", "v56")
    for sl in range(3):
        A.I("s_add_u32", "s71", "s22", 1 + sl)
        A.I("s_and_b32", "s71", "s71", 3)
        A.I("s_mul_i32", "s72", "s71", 3072)
        A.I("s_mul_i32", "s73", "s22", 12288)
        A.I("s_add_u32", "s72", "s72", "s73")
        A.I("v_add_u32", vr(120 + sl), "s72", "v2")
        A.I("s_lshl_b32", "s71", "s71", 12)
        A.I("s_lshl_b32", "s72", "s22", 10)
        A.I("s_add_u32", "s71", "s71", "s72")
        A.I("s_add_u32", "s71", "s71", XB + 16384)
        A.I("v_add_u32", vr(58 + sl), "s71", "v2")
    for p in range(8):
        A.I("v_pk_add_f32", vr(OWN + 2 * p, 2), vr(OWN + 2 * p, 2), "v[124:125]" if p < 4 else "v[126:127]", mods="op_sel_hi:[1,0]")
    A.I("s_mov_b32", "s72", "0xbfb8aa3b")
    A.I("s_mov_b32", "s73", "0xbfb8aa3b")
    A.wait(lgkm=0)
    A.I("s_barrier")
    stampn(A, "m_red")
    RD = 64
    for sl in range(3):
        for q in range(4):
            if q < 3: A.I("ds_read_b128", vr(RD + 16 * sl + 4 * q, 4), vr(120 + sl), mods=f"offset:{q * 1024}")
            else: A.I("ds_read_b128", vr(RD + 16 * sl + 4 * q, 4), vr(58 + sl), tag=f"R{sl}")
    SV = 112
    for e in range(2):
        for gp in range(2):
            A.I("ds_read_b64", vr(SV + 4 * e + 2 * gp, 2), "v56", mods=f"offset:{XB + 2 * 4128 * e + 16 * gp}")
    for sl in range(3):
        A.wait_l(f"R{sl}")
        for p in range(8):
            A.I("v_pk_add_f32", vr(OWN + 2 * p, 2), vr(OWN + 2 * p, 2), vr(RD + 16 * sl + 2 * p, 2))
    T_ = 128; SU = 144
    for p in range(8): A.I("v_pk_mul_f32", vr(T_ + 2 * p, 2), vr(OWN + 2 * p, 2), "s[72:73]")
    for r in range(16): A.I("v_exp_f32", vr(T_ + r), vr(T_ + r))
    A.wait(lgkm=0)
    for k in range(8):
        A.I("v_lshlrev_b32", vr(SU + 2 * k), 16, vr(SV + k))
        A.I("v_and_b32", vr(SU + 2 * k + 1), "s64", vr(SV + k))
    for p in range(8): A.I("v_pk_add_f32", vr(T_ + 2 * p, 2), vr(T_ + 2 * p, 2), "1.0", mods="op_sel_hi:[1,0]")
    for p in range(8): A.I("v_pk_mul_f32", vr(SU + 2 * p, 2), vr(SU + 2 * p, 2), vr(OWN + 2 * p, 2))
    for r in range(16): A.I("v_rcp_f32", vr(T_ + r), vr(T_ + r))
    for p in range(8): A.I("v_pk_mul_f32", vr(T_ + 2 * p, 2), vr(T_ + 2 * p, 2), vr(SU + 2 * p, 2))
    A.I("s_mov_b32", "vcc_lo", "0x55555555")
    A.I("s_mov_b32", "vcc_hi", "0x55555555")
    QP = "quad_perm:[1,0,3,2] row_mask:0xf bank_mask:0xf"
    for p in range(8): A.I("v_cndmask_b32_dpp", vr(SU + 2 * p), vr(T_ + 2 * p + 1), vr(T_ + 2 * p), "vcc", mods=QP)
    A.I("s_not_b64", "vcc", "vcc")
    for p in range(8): A.I("v_cndmask_b32_dpp", vr(SU + 2 * p + 1), vr(T_ + 2 * p), vr(T_ + 2 * p + 1), "vcc", mods=QP)
    for p in range(8):
        A.I("v_pk_add_f32", vr(SU + 2 * p, 2), vr(SU + 2 * p, 2), vr(XU + 2 * p, 2))
        A.I("v_cvt_pk_bf16_f32", vr(64 + p), vr(SU + 2 * p), vr(SU + 2 * p + 1))
        so, im = xo(p >> 2, (p >> 1) & 1, p & 1)
        A.I("buffer_store_dword", vr(64 + p), "v9", "s[44:47]", so, mods=f"offen offset:{im}" + os.environ.get("OUTMOD", ""))
    A.unpk = False
    A.label(L("M_exit"))
    stamp_flush(A, 0, "s[20:21]", 7)
    A.I("s_endpgm")
```

```python
import re, os

def regs_of(tok):
    tok = tok.strip()
    tok = tok.lstrip('-')
    if tok.startswith('|') and tok.endswith('|'): tok = tok[1:-1]
    if tok.startswith('abs(') and tok.endswith(')'): tok = tok[4:-1]
    m = re.fullmatch(r'([vas])(\d+)', tok)
    if m: return [(m.group(1), int(m.group(2)))]
    m = re.fullmatch(r'([vas])\[(\d+):(\d+)\]', tok)
    if m: return [(m.group(1), i) for i in range(int(m.group(2)), int(m.group(3)) + 1)]
    if tok == 'vcc': return [('s', 'vcc')]
    if tok == 'exec': return [('s', 'exec')]
    if tok == 'm0': return [('s', 'm0')]
    return []

TRANS = ('v_exp_f32', 'v_log_f32', 'v_rcp_f32', 'v_rsq_f32', 'v_sqrt_f32', 'v_sin_f32', 'v_cos_f32')

class Ins:
    __slots__ = ('mn', 'ops', 'mods', 'w', 'r', 'cls', 'passes', 'srcc', 'text', 'states')

def vr(i, n=1): return f"v{i}" if n == 1 else f"v[{i}:{i+n-1}]"
def ar(i, n=1): return f"a{i}" if n == 1 else f"a[{i}:{i+n-1}]"
def sr(i, n=1): return f"s{i}" if n == 1 else f"s[{i}:{i+n-1}]"

class Asm:
    def __init__(self):
        self.lines = []
        self.hist = []
        self.nnop = 0
        self.unpk = False
        self.vmq = []
        self.lq = []
    def raw(self, text):
        self.lines.append(text)
    def comment(self, t): self.lines.append("    ; " + t)
    def label(self, name, flush=True):
        self.lines.append(name + ":")
        if flush:
            pass
    def _classify(self, mn, ops, mods):
        i = Ins(); i.mn = mn; i.ops = ops; i.mods = mods; i.passes = 0; i.srcc = []; i.states = 1
        R = lambda k: regs_of(ops[k]) if k < len(ops) else []
        allr = lambda ks: [x for k in ks for x in R(k)]
        n = len(ops)
        if mn.startswith('v_mfma'):
            i.cls = 'mfma'; i.w = R(0); i.r = allr([1, 2, 3]); i.srcc = R(3)
            i.passes = 8 if '32x32x16' in mn else 4 if '16x16x32' in mn else 2 if '4x4x4' in mn else 16
        elif mn.startswith('v_cmpx'):
            i.cls = 'valu'; i.w = R(0) + [('s', 'exec')]; i.r = allr(range(1, n))
        elif mn.startswith('v_cmp'):
            i.cls = 'valu'; i.w = R(0); i.r = allr(range(1, n))
        elif mn.startswith('v_readfirstlane') or mn.startswith('v_readlane'):
            i.cls = 'valu'; i.w = R(0); i.r = allr(range(1, n))
        elif mn.startswith('v_permlane') and 'swap' in mn:
            i.cls = 'valu'; i.w = allr([0, 1]); i.r = allr([0, 1])
        elif mn.startswith('v_'):
            i.cls = 'valu'; i.w = R(0); i.r = allr(range(1, n))
            if '_co_' in mn: i.w = allr([0, 1]); i.r = allr(range(2, n))
            if mn.startswith(('v_fmac', 'v_dot2c', 'v_pk_fmac')): i.r = i.r + R(0)
            if 'dpp' in mn or 'row_' in mods or 'quad_perm' in mods: i.r = i.r + R(0)
            if mn.startswith('v_cndmask') and n == 3: i.r = i.r + [('s', 'vcc')]
            if 'd16' in mn: i.r = i.r + R(0)
        elif mn.startswith('buffer_load') or mn.startswith('global_load'):
            i.cls = 'vmem'
            if ' lds' in (' ' + mods) or '_lds_' in mn:
                i.w = []; i.r = allr(range(0, n)) + [('s', 'm0')]; i.cls = 'ldsdma'
            else:
                i.w = R(0); i.r = allr(range(1, n))
        elif mn.startswith('buffer_store') or mn.startswith('global_store') or mn.startswith('buffer_atomic') or mn.startswith('global_atomic'):
            i.cls = 'vstore'; i.w = []; i.r = allr(range(0, n))
        elif mn.startswith('ds_read') or mn.startswith('ds_bpermute') or mn.startswith('ds_swizzle'):
            i.cls = 'ds'; i.w = R(0); i.r = allr(range(1, n))
        elif mn.startswith('ds_'):
            i.cls = 'ds'; i.w = []; i.r = allr(range(0, n))
        elif mn == 's_nop':
            i.cls = 'nop'; i.w = []; i.r = []; i.states = int(ops[0]) + 1
        elif mn.startswith('s_'):
            i.cls = 'salu'
            if mn.startswith(('s_cmp', 's_cbranch', 's_branch', 's_waitcnt', 's_barrier', 's_endpgm', 's_setprio', 's_sleep')):
                i.w = []; i.r = allr(range(0, n))
            else:
                i.w = R(0); i.r = allr(range(1, n))
                if 'saveexec' in mn: i.w = i.w + [('s', 'exec')]
        else:
            raise ValueError("unknown mnemonic " + mn)
        return i
    def _need(self, p, c):
        need = 0
        pw = set(p.w); cr = set(c.r); cw = set(c.w)
        isv = lambda s: {x for x in s if x[0] in 'va'}
        iss = lambda s: {x for x in s if x[0] == 's'}
        cdpp = c.cls == 'valu' and ('dpp' in c.mn or 'row_' in c.mods or 'quad_perm' in c.mods)
        if p.cls == 'valu':
            raw_v = isv(pw) & cr
            raw_s = iss(pw) & cr
            if c.cls == 'mfma' and raw_v: need = max(need, 2)
            if c.cls == 'mfma' and ('s', 'exec') in pw: need = max(need, 4)
            if cdpp and raw_v: need = max(need, 2)
            if cdpp and ('s', 'exec') in pw: need = max(need, 5)
            if c.mn.startswith('v_permlane') and raw_v: need = max(need, 2)
            if c.mn.startswith(('v_readfirstlane', 'v_readlane')) and raw_v: need = max(need, 1)
            if c.mn.startswith(('v_readfirstlane', 'v_readlane', 'v_writelane', 'v_permlane')) and ('s', 'exec') in pw: need = max(need, 4)
            if c.cls in ('vmem', 'ldsdma', 'vstore') and raw_s: need = max(need, 5)
            if c.cls == 'valu' and raw_s: need = max(need, 4 if c.mn.startswith(('v_readlane', 'v_writelane')) else 2)
            if c.cls == 'salu' and raw_s: need = max(need, 1)
            if p.mn.startswith(TRANS) and c.cls in ('valu', 'mfma') and raw_v: need = max(need, 1 if c.cls == 'valu' else 2)
            if p.mn.startswith('v_dot') and (isv(pw) & (cr | cw)):
                same = (c.mn == p.mn)
                if same and not (isv(pw) & set(regs_of(c.ops[1]) + regs_of(c.ops[2]))): pass
                else: need = max(need, 3)
            if ('op_sel' in p.mods or 'sdwa' in p.mn or 'dst_sel' in p.mods) and not p.mn.startswith('v_pk') and c.cls == 'valu' and (isv(pw) & (cr | cw)): need = max(need, 1)
        if p.cls == 'mfma':
            P = p.passes
            tbl_ab = {2: 5, 4: 8, 8: 12, 16: 20}[P]
            if c.cls == 'mfma':
                if pw & set(regs_of(c.ops[1]) + regs_of(c.ops[2])): need = max(need, tbl_ab)
                ov = pw & set(c.srcc)
                if ov:
                    if set(c.srcc) == pw and c.passes == P: need = max(need, 2 if P == 2 else 0)
                    else: need = max(need, {2: 4, 4: 6, 8: 10, 16: 18}[P])
                elif pw & cw: need = max(need, tbl_ab)
            elif c.cls in ('valu', 'vmem', 'vstore', 'ds', 'ldsdma'):
                if pw & (cr | cw): need = max(need, tbl_ab)
            if c.cls == 'valu' and set(p.srcc) & cw: need = max(need, {2: 1, 4: 3, 8: 7, 16: 15}[P])
        if p.cls == 'vstore' and ('x4' in p.mn or 'x3' in p.mn):
            data = set(regs_of(p.ops[0])) if p.mn.startswith('buffer') else set(regs_of(p.ops[1]))
            if data & cw: need = max(need, 2 if c.cls in ('valu', 'mfma') else 1)
        if p.cls == 'salu' and ('s', 'm0') in pw and c.cls == 'ldsdma': need = max(need, 1)
        return need
    def _unpack(self, mn, ops, mods):
        base = {"v_pk_mul_f32": "v_mul_f32", "v_pk_add_f32": "v_add_f32", "v_pk_fma_f32": "v_fma_f32"}[mn]
        n = len(ops) - 1
        def lst(key, default):
            m = re.search(key + r":\[([01,]+)\]", mods)
            return [int(x) for x in m.group(1).split(",")] if m else [default] * n
        osl, osh, ngl, ngh = lst("op_sel", 0) if re.search(r"op_sel:\[", mods) else [0] * n, lst("op_sel_hi", 1), lst("neg_lo", 0), lst("neg_hi", 0)
        def half(tok, hi):
            m = re.fullmatch(r"([vs])\[(\d+):(\d+)\]", tok)
            if m: return f"{m.group(1)}{int(m.group(2)) + hi}"
            return tok
        dl, dh = half(ops[0], 0), half(ops[0], 1)
        lo = [("-" if ngl[i] else "") + half(ops[i + 1], osl[i]) for i in range(n)]
        hi = [("-" if ngh[i] else "") + half(ops[i + 1], osh[i]) for i in range(n)]
        assert dl not in [x.lstrip("-") for x in hi], "unpack hazard"
        for d, src in ((dl, lo), (dh, hi)):
            b = base
            if base != "v_fma_f32":
                if any(x.startswith("-") for x in src): b = base + "_e64"
                elif not src[1].startswith("v"): src = [src[1], src[0]]
            self.I(b, d, *src)
    def I(self, mn, *ops, mods="", tag=None):
        ops = [str(o) for o in ops]
        if self.unpk and mn in ("v_pk_mul_f32", "v_pk_add_f32", "v_pk_fma_f32"):
            return self._unpack(mn, ops, mods)
        c = self._classify(mn, ops, mods)
        if c.cls in ('vmem', 'vstore', 'ldsdma'): self.vmq.append(tag)
        if c.cls == 'ds': self.lq.append(tag)
        dist = 0; pad = 0
        for p in reversed(self.hist[-24:]):
            n = self._need(p, c)
            if n > dist: pad = max(pad, n - dist)
            dist += p.states
            if dist >= 20: break
        while pad > 0:
            k = min(pad, 16)
            self._emit(self._classify('s_nop', [str(k - 1)], ""))
            self.nnop += 1
            pad -= k
        self._emit(c)
    def _emit(self, c):
        t = "    " + c.mn + (" " + ", ".join(c.ops) if c.ops else "") + (" " + c.mods if c.mods else "")
        self.lines.append(t)
        self.hist.append(c)
    def wait(self, vm=None, lgkm=None):
        parts = []
        if vm is not None: parts.append(f"vmcnt({vm})")
        if lgkm is not None: parts.append(f"lgkmcnt({lgkm})")
        self.I("s_waitcnt", " ".join(parts))
    def _after(self, q, tag):
        idx = [i for i, t in enumerate(q) if t == tag]
        assert idx, f"tag {tag} not found"
        return len(q) - 1 - idx[-1]
    def wait_vm(self, tag, lgkm=None):
        n = self._after(self.vmq, tag)
        if n >= 63:
            if lgkm is not None: self.wait(lgkm=lgkm)
            return
        self.wait(vm=n, lgkm=lgkm)
    def wait_l(self, tag):
        n = self._after(self.lq, tag)
        self.wait(lgkm=min(n, 15))
    def text(self): return "\n".join(self.lines) + "\n"

def kernel_footer(name, vgpr, accum, sgpr=102):
    return f"""
.section .rodata,"a"
.p2align 6
.amdhsa_kernel {name}
  .amdhsa_next_free_vgpr {vgpr}
  .amdhsa_next_free_sgpr {sgpr}
  .amdhsa_accum_offset {accum}
  .amdhsa_group_segment_fixed_size 0
  .amdhsa_kernarg_size 136
  .amdhsa_ieee_mode 0
  .amdhsa_user_sgpr_count 2
  .amdhsa_user_sgpr_kernarg_segment_ptr 1
  .amdhsa_system_sgpr_workgroup_id_x 1
.end_amdhsa_kernel
.text
"""
def kernel_header(name):
    return f""".text
.globl {name}
.p2align 8
.type {name},@function
{name}:
"""

STAMPS = [False]
STAMP_OFF = 0x1400000
def stamp_at(A, slot, tmp=84):
    if not STAMPS[0]: return
    A.I("s_memtime" if os.environ.get("CYC") else "s_memrealtime", sr(tmp + 2 * slot, 2))
    if slot == 0: A.I("s_memtime", "s[80:81]")
def stamp_flush(A, kidx, wsreg, nslots, tmp=84, V0="v124", V1="v125", V2="v126", V01="v[124:125]"):
    if not STAMPS[0]: return
    A.wait(vm=0, lgkm=0)
    A.I("s_memtime" if os.environ.get("CYC") else "s_memrealtime", sr(tmp + 2 * (nslots - 1), 2))
    A.I("s_memtime", "s[82:83]")
    A.I("s_lshl_b32", "s98", "s2", 8)
    A.I("s_add_u32", "s98", "s98", hex(STAMP_OFF + kidx * 0x40000))
    A.I("v_and_b32", V2, "0x3c0", "v0")
    A.I("v_add_u32", V2, "s98", V2)
    A.I("v_and_b32", V1, 63, "v0")
    A.I("v_cmp_eq_u32", "vcc", 0, V1)
    A.wait(lgkm=0)
    A.I("s_and_saveexec_b64", "s[100:101]", "vcc")
    for k in range(nslots):
        A.I("v_mov_b32", V0, sr(tmp + 2 * k))
        A.I("v_mov_b32", V1, sr(tmp + 2 * k + 1))
        A.I("global_store_dwordx2", V2, V01, wsreg, mods=f"offset:{8 * k}")
    A.I("s_sub_u32", "s82", "s82", "s80")
    A.I("s_getreg_b32", "s83", "hwreg(HW_REG_HW_ID)")
    A.I("v_mov_b32", V0, "s82")
    A.I("v_mov_b32", V1, "s83")
    A.I("global_store_dwordx2", V2, V01, wsreg, mods="offset:56")

import os
STAMPMAP = {}
for kv in os.environ.get("STAMPSET", "").split(","):
    if "=" in kv:
        k, v = kv.split("="); STAMPMAP[k] = int(v)
OPTS = set(os.environ.get("OPTS", "").split(","))
def stampn(A, name):
    if name in STAMPMAP: stamp_at(A, STAMPMAP[name])
```

```python
from asmlib import *
from layout import *

def srd(A, d, base, nrec):
    A.I("s_mov_b32", sr(d), sr(base))
    A.I("s_mov_b32", sr(d + 1), sr(base + 1))
    A.I("s_mov_b32", sr(d + 2), hex(nrec))
    A.I("s_mov_b32", sr(d + 3), "0x20000")

DPPM = "row_mask:0xf bank_mask:0xf"

def reduce32(A, v, t):
    for m in ("quad_perm:[1,0,3,2]", "quad_perm:[2,3,0,1]", "row_half_mirror", "row_mirror"):
        for x in v:
            A.I("v_add_f32_dpp", vr(x), vr(x), vr(x), mods=f"{m} {DPPM}")
    for x, y in zip(v, t):
        A.I("v_mov_b32", vr(y), vr(x))
    for x, y in zip(v, t):
        A.I("v_permlane16_swap_b32", vr(x), vr(y))
    for x, y in zip(v, t):
        A.I("v_add_f32", vr(x), vr(x), vr(y))

NST = 4
def gen_prep(name="prep_kernel"):
    A = Asm()
    A.raw(kernel_header(name))
    L = lambda s: f"L_{name}_{s}"
    stamp_at(A, 0)
    A.I("s_cmp_ge_u32", "s2", 256)
    A.I("s_cbranch_scc1", L("exit"))
    A.I("s_load_dwordx16", "s[4:19]", "s[0:1]", 0)
    A.I("s_load_dwordx4", "s[20:23]", "s[0:1]", 80)
    A.I("s_load_dwordx2", "s[24:25]", "s[0:1]", 96)
    A.I("s_load_dwordx2", "s[26:27]", "s[0:1]", 128)
    A.I("v_and_b32", "v1", 63, "v0")
    A.I("v_lshrrev_b32", "v2", 6, "v0")
    A.I("v_readfirstlane_b32", "s28", "v2")
    A.I("s_lshl_b32", "s29", "s2", 2)
    A.I("s_add_u32", "s29", "s29", "s28")
    A.I("s_and_b32", "s30", "s2", 7)
    A.I("s_lshl_b32", "s30", "s30", 5)
    A.I("s_lshr_b32", "s31", "s2", 3)
    A.I("s_add_u32", "s30", "s30", "s31")
    A.I("s_lshr_b32", "s31", "s28", 1)
    A.I("s_lshl_b32", "s32", "s2", 1)
    A.I("s_add_u32", "s32", "s32", "s31")
    A.I("s_and_b32", "s33", "s28", 1)
    A.I("s_lshl_b32", "s33", "s33", 7)
    A.I("s_lshl_b32", "s34", "s32", 8)
    A.I("s_add_u32", "s33", "s33", "s34")
    A.I("v_lshl_add_u32", "v2", "v1", 1, "s33")
    A.I("s_lshl_b32", "s34", "s32", 1)
    A.I("v_mov_b32", "v3", "s34")
    A.I("s_lshl_b32", "s34", "s30", 3)
    A.I("s_lshl_b32", "s35", "s28", 1)
    A.I("s_add_u32", "s34", "s34", "s35")
    A.I("s_lshl_b32", "s34", "s34", 10)
    A.I("v_lshrrev_b32", "v5", 5, "v1")
    A.I("v_and_b32", "v6", 31, "v1")
    A.I("v_lshlrev_b32", "v4", 10, "v5")
    A.I("v_lshl_add_u32", "v4", "v6", 4, "v4")
    A.I("v_add_u32", "v4", "s34", "v4")
    A.wait(lgkm=0)
    P = 48
    for k, sb in enumerate((6, 8, 10, 12, 14, 16)):
        A.I("global_load_ushort", vr(P + k), "v2", sr(sb, 2))
    A.I("global_load_ushort", vr(P + 6), "v3", "s[18:19]")
    A.I("global_load_dwordx4", "v[8:11]", "v4", "s[4:5]")
    A.I("global_load_dwordx4", "v[12:15]", "v4", "s[4:5]", mods="offset:512")
    srd(A, 36, 20, 512 * 2752)
    srd(A, 40, 24, 1376 * 1024)
    srd(A, 44, 26, WS_SIZE)
    srd(A, 48, 22, 2752)
    A.I("s_cmp_ge_u32", "s29", 352)
    A.I("s_cbranch_scc1", L("ld_w2"))
    A.I("s_lshr_b32", "s52", "s29", 5)
    A.I("s_and_b32", "s53", "s29", 31)
    A.I("s_mul_i32", "s54", "s53", 16 * 2752)
    A.I("s_lshl_b32", "s55", "s52", 8)
    A.I("s_add_u32", "s54", "s54", "s55")
    A.I("v_mul_u32_u24", "v7", 8 * 2752, "v5")
    A.I("v_lshl_add_u32", "v7", "v6", 3, "v7")
    A.I("v_lshl_add_u32", "v16", "v6", 3, "s55")
    A.I("v_cmp_gt_u32", "vcc", 2752, "v16")
    A.I("v_mov_b32", "v17", "0x7f000000")
    A.I("v_cndmask_b32", "v7", "v17", "v7", "vcc")
    for i in range(8):
        A.I("buffer_load_dwordx2", vr(16 + 2 * i, 2), "v7", "s[36:39]", "s54", mods="offen")
        if i < 7: A.I("s_add_u32", "s54", "s54", 2752)
    A.I("s_branch", L("ld_done"))
    A.label(L("ld_w2"))
    A.I("s_cmp_ge_u32", "s29", 704)
    A.I("s_cbranch_scc1", L("ld_b1"))
    A.I("s_sub_u32", "s52", "s29", 352)
    A.I("s_and_b32", "s53", "s52", 7)
    A.I("s_lshr_b32", "s52", "s52", 3)
    A.I("s_lshr_b32", "s54", "s52", 2)
    A.I("s_lshl_b32", "s54", "s54", 7)
    A.I("s_and_b32", "s55", "s52", 3)
    A.I("s_add_u32", "s54", "s54", "s55")
    A.I("s_lshl_b32", "s54", "s54", 10)
    A.I("s_lshl_b32", "s55", "s53", 7)
    A.I("s_add_u32", "s54", "s54", "s55")
    A.I("v_lshlrev_b32", "v7", 14, "v5")
    A.I("v_lshl_add_u32", "v7", "v6", 2, "v7")
    for rb in range(2):
        for i in range(8):
            roff = (64 * rb + 32 * (i >> 2) + 4 * (i & 3)) * 1024
            A.I("s_add_u32", "s55", "s54", roff)
            A.I("buffer_load_dword", vr(16 + 8 * rb + i), "v7", "s[40:43]", "s55", mods="offen")
    A.I("s_branch", L("ld_done"))
    A.label(L("ld_b1"))
    A.I("s_cmp_ge_u32", "s29", 748)
    A.I("s_cbranch_scc1", L("ld_done"))
    A.I("s_sub_u32", "s52", "s29", 704)
    A.I("s_lshr_b32", "s54", "s52", 2)
    A.I("s_lshl_b32", "s54", "s54", 7)
    A.I("s_and_b32", "s55", "s52", 3)
    A.I("s_add_u32", "s54", "s54", "s55")
    A.I("s_lshl_b32", "s54", "s54", 1)
    A.I("v_bfe_u32", "v7", "v1", 2, 2)
    A.I("v_lshlrev_b32", "v7", 3, "v7")
    A.I("v_bfe_u32", "v16", "v1", 4, 1)
    A.I("v_lshl_add_u32", "v7", "v16", 2, "v7")
    A.I("v_and_b32", "v16", 3, "v1")
    A.I("v_add_u32", "v7", "v7", "v16")
    A.I("v_lshlrev_b32", "v7", 3, "v7")
    A.I("buffer_load_ushort", "v16", "v7", "s[48:51]", "s54", mods="offen")
    A.label(L("ld_done"))
    A.I("s_mov_b32", "s56", "0x3f803f80")
    A.I("s_mov_b32", "s57", "0x05040100")
    A.I("s_mov_b32", "s58", "0x07060302")
    A.I("s_mov_b32", "s59", "0xffff0000")
    A.I("v_and_b32", "v56", 15, "v1")
    A.I("v_cvt_f32_u32", "v56", "v56")
    A.I("s_mul_i32", "s60", "s28", 2 * 1088)
    A.I("v_mul_u32_u24", "v57", 1088, "v5")
    A.I("v_lshl_add_u32", "v57", "v6", 4, "v57")
    A.I("v_add_u32", "v57", "s60", "v57")
    A.I("v_mov_b32", "v58", 0)
    A.I("v_mov_b32", "v59", 0)
    A.wait(vm=0)
    stamp_at(A, 1)
    for k in range(8):
        A.I("v_dot2_f32_bf16", "v58", vr(8 + k), "s56", "v58")
        A.I("v_dot2_f32_bf16", "v59", vr(8 + k), vr(8 + k), "v59")
    reduce32(A, [58, 59], [60, 61])
    A.I("v_mul_f32", "v58", "0x3b000000", "v58")
    A.I("v_mul_f32", "v59", "0x3b000000", "v59")
    A.I("v_fma_f32", "v59", "-v58", "v58", "v59")
    A.I("v_max_f32", "v59", 0, "v59")
    A.I("v_cvt_pk_bf16_f32", "v60", 0, "v58")
    A.I("v_cvt_pk_bf16_f32", "v59", 0, "v59")
    A.I("v_add_f32", "v59", "0x3727c5ac", "v59")
    A.I("v_cvt_pk_bf16_f32", "v59", 0, "v59")
    A.I("v_sqrt_f32", "v59", "v59")
    A.I("v_cvt_pk_bf16_f32", "v59", 0, "v59")
    A.I("v_rcp_f32", "v62", "v59")
    for k in range(8):
        t = 64 + 2 * (k % 4)
        A.I("v_lshlrev_b32", vr(t), 16, vr(8 + k))
        A.I("v_and_b32", vr(t + 1), "s59", vr(8 + k))
        A.I("v_pk_add_f32", vr(t, 2), vr(t, 2), "v[60:61]", mods="op_sel_hi:[1,0] neg_lo:[0,1] neg_hi:[0,1]")
        A.I("v_cvt_pk_bf16_f32", vr(t), 0, vr(t))
        A.I("v_cvt_pk_bf16_f32", vr(t + 1), 0, vr(t + 1))
        A.I("v_pk_mul_f32", vr(t, 2), vr(t, 2), "v[62:63]", mods="op_sel_hi:[1,0]")
        A.I("v_cvt_pk_bf16_f32", vr(8 + k), vr(t), vr(t + 1))
    A.I("ds_write_b128", "v57", "v[8:11]")
    A.I("ds_write_b128", "v57", "v[12:15]", mods="offset:512")
    A.I("v_lshlrev_b32", "v7", 4, "v1")
    A.I("s_cmp_ge_u32", "s29", 352)
    A.I("s_cbranch_scc1", L("pt_w2"))
    for c in range(4):
        for p in range(4):
            A.I("v_perm_b32", vr(32 + 4 * c + p), vr(16 + 2 * (2 * p + 1) + (c >> 1)), vr(16 + 2 * (2 * p) + (c >> 1)), "s57" if (c & 1) == 0 else "s58")
    A.I("s_lshl_b32", "s54", "s53", 10)
    A.I("s_lshl_b32", "s55", "s52", 17)
    A.I("s_add_u32", "s54", "s54", "s55")
    A.I("s_add_u32", "s54", "s54", hex(W1F))
    for c in range(4):
        A.I("buffer_store_dwordx4", vr(32 + 4 * c, 4), "v7", "s[44:47]", "s54", mods="offen")
        if c < 3: A.I("s_add_u32", "s54", "s54", 32768)
    A.I("s_branch", L("pt_done"))
    A.label(L("pt_w2"))
    A.I("s_cmp_ge_u32", "s29", 704)
    A.I("s_cbranch_scc1", L("pt_b1"))
    for rb in range(2):
        for e in range(2):
            for p in range(4):
                A.I("v_perm_b32", vr(32 + 8 * rb + 4 * e + p), vr(16 + 8 * rb + 2 * p + 1), vr(16 + 8 * rb + 2 * p), "s57" if e == 0 else "s58")
    A.I("s_mul_i32", "s54", "s53", 88 * 2048)
    A.I("s_lshl_b32", "s55", "s52", 12)
    A.I("s_add_u32", "s54", "s54", "s55")
    A.I("s_add_u32", "s54", "s54", hex(W2F))
    for q in range(4):
        A.I("buffer_store_dwordx4", vr(32 + 4 * q, 4), "v7", "s[44:47]", "s54", mods=f"offen offset:{q*1024}")
    A.I("s_branch", L("pt_done"))
    A.label(L("pt_b1"))
    A.I("s_cmp_ge_u32", "s29", 748)
    A.I("s_cbranch_scc1", L("pt_done"))
    A.I("v_lshlrev_b32", "v16", 16, "v16")
    A.I("s_lshl_b32", "s54", "s52", 7)
    A.I("s_add_u32", "s54", "s54", hex(B1F))
    A.I("v_lshlrev_b32", "v17", 2, "v1")
    A.I("v_mov_b32", "v18", "0x7f000000")
    A.I("v_cmp_gt_u32", "vcc", 32, "v1")
    A.I("v_cndmask_b32", "v17", "v18", "v17", "vcc")
    A.I("buffer_store_dword", "v16", "v17", "s[44:47]", "s54", mods="offen")
    A.label(L("pt_done"))
    A.I("s_nop", 1)
    A.I("v_and_b32", "v16", 7, "v1")
    A.I("v_mul_u32_u24", "v16", 1088, "v16")
    A.I("v_lshrrev_b32", "v17", 3, "v1")
    A.I("v_lshl_add_u32", "v16", "v17", 4, "v16")
    A.I("s_lshl_b32", "s54", "s28", 8)
    A.I("v_add_u32", "v16", "s54", "v16")
    A.I("v_bfe_u32", "v17", "v1", 2, 2)
    A.I("v_mul_u32_u24", "v17", 1088, "v17")
    A.I("v_lshrrev_b32", "v18", 4, "v1")
    A.I("v_lshl_add_u32", "v17", "v18", 5, "v17")
    A.I("v_and_b32", "v18", 3, "v1")
    A.I("v_lshl_add_u32", "v17", "v18", 3, "v17")
    A.I("v_add_u32", "v17", "s54", "v17")
    A.I("v_lshlrev_b32", "v18", 12, "v1")
    A.wait(lgkm=0)
    A.I("s_barrier")
    A.I("ds_read_b128", "v[8:11]", "v16")
    A.I("ds_read_b128", "v[12:15]", "v16", mods="offset:128")
    A.I("ds_read_b64_tr_b16", "v[20:21]", "v17")
    A.I("ds_read_b64_tr_b16", "v[22:23]", "v17", mods=f"offset:{4*1088}")
    A.I("ds_read_b64_tr_b16", "v[24:25]", "v17", mods="offset:128")
    A.I("ds_read_b64_tr_b16", "v[26:27]", "v17", mods=f"offset:{4*1088+128}")
    A.I("s_lshl_b32", "s54", "s30", 13)
    A.I("s_lshl_b32", "s55", "s28", 11)
    A.I("s_add_u32", "s54", "s54", "s55")
    A.I("s_lshl_b32", "s55", "s28", 19)
    A.I("s_lshl_b32", "s60", "s30", 4)
    A.I("s_add_u32", "s55", "s55", "s60")
    A.I("s_add_u32", "s55", "s55", hex(XNT))
    A.I("s_add_u32", "s60", "s55", 64 * 4096)
    A.wait(lgkm=4)
    A.I("buffer_store_dwordx4", "v[8:11]", "v7", "s[44:47]", "s54", mods="offen")
    A.I("buffer_store_dwordx4", "v[12:15]", "v7", "s[44:47]", "s54", mods="offen offset:1024")
    A.wait(lgkm=2)
    A.I("buffer_store_dwordx4", "v[20:23]", "v18", "s[44:47]", "s55", mods="offen")
    A.wait(lgkm=0)
    A.I("buffer_store_dwordx4", "v[24:27]", "v18", "s[44:47]", "s60", mods="offen")
    stamp_at(A, 2)
    gen_kgen(A, P=P, vidx=56)
    KACC = 100
    A.I("s_lshr_b32", "s54", "s28", 1)
    A.I("s_mul_i32", "s54", "s54", 5 * 1024)
    A.I("s_add_u32", "s54", "s54", 16384)
    A.I("v_add_u32", "v16", "s54", "v7")
    A.I("s_and_b32", "s55", "s28", 1)
    A.I("s_cmp_eq_u32", "s55", 0)
    A.I("s_cbranch_scc1", L("k_even"))
    for s in range(5):
        A.I("ds_write_b128", "v16", vr(KACC + 4 * s, 4), mods=f"offset:{s*1024}")
    A.wait(lgkm=0)
    A.I("s_barrier")
    A.I("s_branch", L("end"))
    A.label(L("k_even"))
    A.I("v_and_b32", "v17", 15, "v1")
    A.I("v_lshrrev_b32", "v18", 4, "v1")
    A.I("v_lshlrev_b32", "v19", 5, "v17")
    A.I("v_lshl_add_u32", "v19", "v18", 3, "v19")
    A.I("v_mov_b32", "v21", "0x7f000000")
    A.I("v_cmp_lt_u32", "vcc", 7, "v17")
    A.I("v_cndmask_b32", "v20", "v21", "v19", "vcc")
    A.I("v_cmp_eq_u32", "vcc", 15, "v1")
    A.I("v_mov_b32", "v22", 1280)
    A.I("v_cndmask_b32", "v21", "v21", "v22", "vcc")
    A.I("s_lshl_b32", "s54", "s32", 11)
    A.I("s_add_u32", "s54", "s54", hex(KD))
    A.I("s_barrier")
    for s in range(5):
        A.I("ds_read_b128", vr(24 + 4 * s, 4), "v16", mods=f"offset:{s*1024}")
    for s in range(5):
        A.wait(lgkm=4 - s)
        A.I("v_pk_add_f32", vr(KACC + 4 * s, 2), vr(KACC + 4 * s, 2), vr(24 + 4 * s, 2))
        A.I("v_pk_add_f32", vr(KACC + 4 * s + 2, 2), vr(KACC + 4 * s + 2, 2), vr(24 + 4 * s + 2, 2))
        A.I("v_cvt_pk_bf16_f32", vr(KACC + 4 * s), vr(KACC + 4 * s), vr(KACC + 4 * s + 1))
        A.I("v_cvt_pk_bf16_f32", vr(KACC + 4 * s + 1), vr(KACC + 4 * s + 2), vr(KACC + 4 * s + 3))
        if s < 4:
            A.I("buffer_store_dwordx2", vr(KACC + 4 * s, 2), "v19" if s == 0 else "v20", "s[44:47]", "s54", mods=f"offen offset:{256*s}")
        else:
            A.I("buffer_store_short", vr(KACC + 4 * s + 1), "v21", "s[44:47]", "s54", mods="offen")
    A.label(L("end"))
    stamp_flush(A, 0, "s[26:27]", NST)
    A.label(L("exit"))
    A.I("s_endpgm")
    A.raw(kernel_footer(name, 128, 128))
    return A.text()

def gen_kgen_pair_setup(A, P):
    for k in range(7):
        A.I("v_lshlrev_b32", vr(P + k), 16, vr(P + k))
    A.I("s_mov_b32", "s62", hex(LOG2E))
    A.I("s_mov_b32", "s63", "0x32a57060")
    A.I("v_mul_f32", "v8", "s62", vr(P + 6))
    A.I("v_fma_f32", "v9", vr(P + 6), "s62", "-v8")
    A.I("v_fma_f32", "v9", vr(P + 6), "s63", "v9")
    A.I("v_exp_f32", "v8", "v8")
    A.I("v_mul_f32", "v9", "0x3f317218", "v9")
    A.I("v_fma_f32", "v8", "v8", "v9", "v8")
    A.I("v_cvt_pk_bf16_f32", "v8", 0, "v8")
    A.I("v_mul_f32", vr(P + 0), "v8", vr(P + 0))
    A.I("v_mul_f32", vr(P + 1), "v8", vr(P + 1))
    A.I("v_mul_f32", vr(P + 2), "v8", vr(P + 2))
    A.I("v_mul_f32", vr(P + 3), "v8", vr(P + 3))
    A.I("v_mul_f32", vr(P + 0), "s62", vr(P + 0))
    A.I("v_mul_f32", vr(P + 1), hex(INV2PI), vr(P + 1))
    A.I("v_rndne_f32", "v9", vr(P + 1))
    A.I("v_sub_f32", vr(P + 1), vr(P + 1), "v9")
    A.I("v_mul_f32", "v9", vr(P + 5), vr(P + 3))
    A.I("v_mul_f32", "v10", vr(P + 5), vr(P + 2))
    A.I("v_fma_f32", vr(P + 2), vr(P + 4), vr(P + 2), "-v9")
    A.I("v_fma_f32", vr(P + 3), vr(P + 4), vr(P + 3), "v10")

def gen_kgen_pair(A, P, vidx, pi):
    KACC = 100
    va, vb, vcr, vci = P, P + 1, P + 2, P + 3
    ET = [64 + 4 * s for s in range(5)]
    GT = [84 + 4 * s for s in range(4)]
    E, C, S, T = 8, 10, 12, 14
    R = [16, 20]; Im = [18, 22]
    GR = [24, 28]; GI = [26, 30]
    def bc(n): return f"row_newbcast:{n} {DPPM}"
    NEG2 = "neg_lo:[0,0,1] neg_hi:[0,0,1]"
    n0, n1 = 2 * pi, 2 * pi + 1
    ks, pos = pi >> 1, 2 * (pi & 1)
    A.I("v_mul_f32_dpp", vr(E), vr(va), vr(vidx), mods=bc(n0))
    A.I("v_mul_f32_dpp", vr(E + 1), vr(va), vr(vidx), mods=bc(n1))
    A.I("v_mul_f32_dpp", vr(S), vr(vb), vr(vidx), mods=bc(n0))
    A.I("v_mul_f32_dpp", vr(S + 1), vr(vb), vr(vidx), mods=bc(n1))
    A.I("v_exp_f32", vr(E), vr(E))
    A.I("v_exp_f32", vr(E + 1), vr(E + 1))
    A.I("v_cos_f32", vr(C), vr(S))
    A.I("v_cos_f32", vr(C + 1), vr(S + 1))
    A.I("v_sin_f32", vr(S), vr(S))
    A.I("v_sin_f32", vr(S + 1), vr(S + 1))
    A.I("v_pk_mul_f32", vr(R[0], 2), vr(E, 2), vr(C, 2))
    A.I("v_pk_mul_f32", vr(Im[0], 2), vr(E, 2), vr(S, 2))
    cur = 0
    g = 0
    for s in range(7):
        r, im = R[cur], Im[cur]
        if s <= 3 or s == 6:
            t = ET[s] if s <= 3 else ET[4]
            A.I("v_cvt_pk_bf16_f32", vr(t + pos), vr(r), vr(r + 1))
            A.I("v_cvt_pk_bf16_f32", vr(t + pos + 1), f"-{vr(im)}", f"-{vr(im + 1)}")
        if s == 4:
            for e, n in ((0, n0), (1, n1)):
                A.I("v_mul_f32_dpp", vr(GR[0] + e), vr(vcr), vr(r + e), mods=bc(n))
                A.I("v_mul_f32_dpp", vr(GI[0] + e), vr(vcr), vr(im + e), mods=bc(n))
                A.I("v_fmac_f32_dpp", vr(GR[0] + e), f"-{vr(vci)}", vr(im + e), mods=bc(n))
                A.I("v_fmac_f32_dpp", vr(GI[0] + e), vr(vci), vr(r + e), mods=bc(n))
            A.I("v_cvt_pk_bf16_f32", vr(GT[0] + pos), vr(GR[0]), vr(GR[0] + 1))
            A.I("v_cvt_pk_bf16_f32", vr(GT[0] + pos + 1), vr(GI[0]), vr(GI[0] + 1))
        if s >= 4:
            a, b = g, 1 - g
            A.I("v_pk_mul_f32", vr(T, 2), vr(GI[a], 2), vr(im, 2))
            A.I("v_pk_mul_f32", vr(GI[b], 2), vr(GI[a], 2), vr(r, 2))
            A.I("v_pk_fma_f32", vr(GR[b], 2), vr(GR[a], 2), vr(r, 2), vr(T, 2), mods=NEG2)
            A.I("v_pk_fma_f32", vr(GI[b], 2), vr(GR[a], 2), vr(im, 2), vr(GI[b], 2))
            A.I("v_cvt_pk_bf16_f32", vr(GT[s - 3] + pos), vr(GR[b]), vr(GR[b] + 1))
            A.I("v_cvt_pk_bf16_f32", vr(GT[s - 3] + pos + 1), vr(GI[b]), vr(GI[b] + 1))
            g = b
        if s < 6:
            r2, im2 = R[1 - cur], Im[1 - cur]
            A.I("v_pk_mul_f32", vr(T, 2), vr(im, 2), vr(im, 2))
            A.I("v_pk_mul_f32", vr(im2, 2), vr(r, 2), vr(im, 2))
            A.I("v_pk_fma_f32", vr(r2, 2), vr(r, 2), vr(r, 2), vr(T, 2), mods=NEG2)
            A.I("v_pk_add_f32", vr(im2, 2), vr(im2, 2), vr(im2, 2))
            cur = 1 - cur
    if pi & 1:
        for s in range(5):
            acc = vr(KACC + 4 * s, 4)
            A.I("v_mfma_f32_16x16x32_bf16", acc, vr(ET[s], 4), vr(GT[min(s, 3)], 4), acc if ks > 0 else "0")


def gen_kgen_pair_np(A, P, vidx, pi):
    KACC = 100
    va, vb, vcr, vci = P, P + 1, P + 2, P + 3
    ET = [64 + 4 * s for s in range(5)]
    GT = [84 + 4 * s for s in range(4)]
    E, C, S, T = 8, 10, 12, 14
    R = [16, 20]; Im = [18, 22]
    GR = [24, 28]; GI = [26, 30]
    def bc(n): return f"row_newbcast:{n} {DPPM}"
    n0, n1 = 2 * pi, 2 * pi + 1
    ks, pos = pi >> 1, 2 * (pi & 1)
    A.I("v_mul_f32_dpp", vr(E), vr(va), vr(vidx), mods=bc(n0))
    A.I("v_mul_f32_dpp", vr(E + 1), vr(va), vr(vidx), mods=bc(n1))
    A.I("v_mul_f32_dpp", vr(S), vr(vb), vr(vidx), mods=bc(n0))
    A.I("v_mul_f32_dpp", vr(S + 1), vr(vb), vr(vidx), mods=bc(n1))
    A.I("v_exp_f32", vr(E), vr(E))
    A.I("v_exp_f32", vr(E + 1), vr(E + 1))
    A.I("v_cos_f32", vr(C), vr(S))
    A.I("v_cos_f32", vr(C + 1), vr(S + 1))
    A.I("v_sin_f32", vr(S), vr(S))
    A.I("v_sin_f32", vr(S + 1), vr(S + 1))
    for e in range(2): A.I("v_mul_f32", vr(R[0] + e), vr(E + e), vr(C + e))
    for e in range(2): A.I("v_mul_f32", vr(Im[0] + e), vr(E + e), vr(S + e))
    cur = 0; g = 0
    for s in range(7):
        r, im = R[cur], Im[cur]
        if s <= 3 or s == 6:
            t = ET[s] if s <= 3 else ET[4]
            A.I("v_cvt_pk_bf16_f32", vr(t + pos), vr(r), vr(r + 1))
            A.I("v_cvt_pk_bf16_f32", vr(t + pos + 1), f"-{vr(im)}", f"-{vr(im + 1)}")
        if s == 4:
            for e, n in ((0, n0), (1, n1)):
                A.I("v_mul_f32_dpp", vr(GR[0] + e), vr(vcr), vr(r + e), mods=bc(n))
                A.I("v_mul_f32_dpp", vr(GI[0] + e), vr(vcr), vr(im + e), mods=bc(n))
                A.I("v_fmac_f32_dpp", vr(GR[0] + e), f"-{vr(vci)}", vr(im + e), mods=bc(n))
                A.I("v_fmac_f32_dpp", vr(GI[0] + e), vr(vci), vr(r + e), mods=bc(n))
            A.I("v_cvt_pk_bf16_f32", vr(GT[0] + pos), vr(GR[0]), vr(GR[0] + 1))
            A.I("v_cvt_pk_bf16_f32", vr(GT[0] + pos + 1), vr(GI[0]), vr(GI[0] + 1))
        if s >= 4:
            a, b = g, 1 - g
            for e in range(2):
                A.I("v_mul_f32", vr(T + e), vr(GI[a] + e), vr(im + e))
                A.I("v_mul_f32", vr(GI[b] + e), vr(GI[a] + e), vr(r + e))
            for e in range(2):
                A.I("v_fma_f32", vr(GR[b] + e), vr(GR[a] + e), vr(r + e), f"-{vr(T + e)}")
                A.I("v_fmac_f32", vr(GI[b] + e), vr(GR[a] + e), vr(im + e))
            A.I("v_cvt_pk_bf16_f32", vr(GT[s - 3] + pos), vr(GR[b]), vr(GR[b] + 1))
            A.I("v_cvt_pk_bf16_f32", vr(GT[s - 3] + pos + 1), vr(GI[b]), vr(GI[b] + 1))
            g = b
        if s < 6:
            r2, im2 = R[1 - cur], Im[1 - cur]
            for e in range(2):
                A.I("v_mul_f32", vr(T + e), vr(im + e), vr(im + e))
                A.I("v_mul_f32_e64", vr(im2 + e), vr(r + e), vr(im + e), mods="mul:2")
            for e in range(2):
                A.I("v_fma_f32", vr(r2 + e), vr(r + e), vr(r + e), f"-{vr(T + e)}")
            cur = 1 - cur
    if pi & 1:
        for s in range(5):
            acc = vr(KACC + 4 * s, 4)
            A.I("v_mfma_f32_16x16x32_bf16", acc, vr(ET[s], 4), vr(GT[min(s, 3)], 4), acc if ks > 0 else "0")

def gen_kgen(A, P, vidx):
    gen_kgen_pair_setup(A, P)
    for pi in range(8): gen_kgen_pair(A, P, vidx, pi)

if __name__ == "__main__":
    print(gen_prep())
```

```python
from asmlib import *
from layout1 import *
from k_prep import srd, DPPM, reduce32, gen_kgen_pair_setup, gen_kgen_pair_np
import k_prep
def gen_kgen_pair(A, P, vidx, pi):
    lim = int(os.environ.get('NPFROM', 8))
    (gen_kgen_pair_np if pi >= lim else k_prep.gen_kgen_pair)(A, P, vidx, pi)
KC = 0
UL = 33280
KDT = UL + 9216
KTS = 5888
ACCX = KDT + 2 * KTS
PSET = [(0, 3, 5, 6), (1, 2, 4, 7)]

def spin_check(A, L, name, vflag, vtag, reissue, cnt="s70", first=False, wait_tag=None, sleep=2):
    if first: reissue()
    A.I("s_mov_b32", cnt, SPIN_LIMIT)
    if wait_tag: A.wait_vm(wait_tag)
    else: A.wait(vm=0)
    A.label(L(name))
    A.I("v_cmp_ne_u32", "vcc", vflag, vtag)
    A.I("s_cbranch_vccz", L(name + "_ok"))
    A.I("s_sub_u32", cnt, cnt, 1)
    A.I("s_cbranch_scc1", L(name + "_ok"))
    A.I("s_sleep", sleep)
    reissue(); A.vmq.pop()
    A.wait(vm=0)
    A.I("s_branch", L(name))
    A.label(L(name + "_ok"))

def get_tag(A, L, name, vtag, vzero, dbg, cnt="s70"):
    A.I("s_mov_b32", cnt, SPIN_LIMIT)
    A.label(L(name))
    A.I("v_cmp_eq_u32", "vcc", 0, vtag)
    A.I("s_cbranch_vccz", L(name + "_ok"))
    A.I("s_sub_u32", cnt, cnt, 1)
    A.I("s_cbranch_scc1", L(name + "_ok"))
    A.I("s_sleep", 2)
    A.I("global_load_dword", vtag, vzero, dbg, mods="sc1"); A.vmq.pop()
    A.wait(vm=0)
    A.I("s_branch", L(name))
    A.label(L(name + "_ok"))

def code_prefetch(A, start_label, nbytes, vtmp, vdst, L):
    A.I("s_getpc_b64", "s[74:75]")
    A.I("v_lshlrev_b32", vtmp, 7, "v0")
    assert nbytes <= 32768
    A.I("v_cmp_gt_u32", "vcc", nbytes - 256, vtmp)
    A.I("v_cndmask_b32", vtmp, 0, vtmp, "vcc")
    A.I("global_load_dword", vdst, vtmp, "s[74:75]")

def code_prefetch2(A, nbytes):
    per = ((nbytes - 256) // 128 + 31) // 32
    A.I("s_getpc_b64", "s[74:75]")
    A.I("s_bfe_u32", "s72", "s2", "0x50003")
    A.I("s_mul_i32", "s72", "s72", per * 128)
    A.I("v_lshlrev_b32", "v3", 7, "v0")
    A.I("v_add_u32", "v3", "s72", "v3")
    A.I("v_min_u32", "v3", nbytes - 256, "v3")
    A.I("v_cmp_gt_u32", "vcc", per, "v0")
    A.I("s_and_saveexec_b64", "s[72:73]", "vcc")
    A.I("global_load_dword", "v3", "v3", "s[74:75]")
    A.I("s_mov_b64", "exec", "s[72:73]")

def swarm(A, base, sid, sw):
    A.I("s_lshl_b32", "s96", sid, 2)
    A.I("s_add_u32", "s96", "s96", sw)
    A.I("s_mul_i32", "s96", "s96", 11 * 128)
    A.I("s_min_u32", "s96", "s96", 1376 * 1024 - 11 * 128)
    A.I("s_add_u32", "s96", "s96", base[:base.index(':')].replace('[', ''))
    A.I("s_addc_u32", "s97", "s" + base[base.index(':') + 1:-1], 0)
    for i in range(11):
        A.I("s_load_dword", "s99", "s[96:97]", 128 * i)

def gen_K(A, L, ksize):
    LNAT = int(os.environ.get("LNAT", 2)); PRIOAT = int(os.environ.get("PRIOAT", 8))
    A.label(L("K"))
    if "nok" in OPTS: A.I("s_endpgm")
    A.I("s_setprio", int(os.environ.get("KP0", 2)))
    A.I("s_memrealtime", "s[76:77]")
    A.I("s_load_dwordx16", "s[4:19]", "s[0:1]", 0)
    A.I("s_load_dwordx2", "s[20:21]", "s[0:1]", 64)
    A.I("s_load_dwordx4", "s[24:27]", "s[0:1]", 120)
    A.I("s_load_dwordx2", "s[22:23]", "s[0:1]", 96)
    A.I("s_load_dwordx2", "s[68:69]", "s[0:1]", 80)
    code_prefetch2(A, ksize)
    A.I("s_and_b32", "s3", "s2", 255)
    A.I("v_and_b32", "v1", 63, "v0")
    A.I("v_lshrrev_b32", "v2", 6, "v0")
    A.I("v_readfirstlane_b32", "s28", "v2")
    A.I("s_and_b32", "s29", "s3", 7)
    A.I("s_lshl_b32", "s29", "s29", 5)
    A.I("s_lshr_b32", "s30", "s3", 3)
    A.I("s_add_u32", "s29", "s29", "s30")
    A.I("s_lshr_b32", "s30", "s28", 1)
    A.I("s_and_b32", "s31", "s28", 1)
    A.I("s_lshl_b32", "s32", "s29", 1)
    A.I("s_add_u32", "s32", "s32", "s30")
    A.I("s_lshl_b32", "s33", "s31", 7)
    A.I("s_lshl_b32", "s34", "s32", 8)
    A.I("s_add_u32", "s33", "s33", "s34")
    A.I("v_and_b32", "v2", 7, "v1")
    A.I("v_lshl_add_u32", "v2", "v2", 4, "s33")
    A.I("v_lshrrev_b32", "v5", 5, "v1")
    A.I("v_and_b32", "v6", 31, "v1")
    A.I("v_mov_b32", "v122", 0)
    A.I("v_lshlrev_b32", "v7", 4, "v1")
    A.I("s_lshl_b32", "s33", "s29", 2)
    A.I("s_lshl_b32", "s57", "s3", 12)
    A.I("s_lshl_b32", "s58", "s28", 10)
    A.I("s_add_u32", "s57", "s57", "s58")
    A.I("s_add_u32", "s58", "s57", 1 << 20)
    A.wait(lgkm=0)
    P = 48; X = 160
    A.I("s_mov_b64", "exec", "0xff")
    for k, sb in enumerate((6, 8, 10, 12, 14, 16)):
        A.I("v_mov_b32", "v136", sr(sb))
        A.I("v_mov_b32", "v137", sr(sb + 1))
        if k < 5: A.I("s_lshl_b64", "exec", "exec", 8)
    A.I("s_mov_b32", "exec_lo", -1)
    A.I("s_mov_b32", "exec_hi", "0xffff")
    A.I("v_add_co_u32", "v136", "vcc", "v136", "v2")
    A.I("v_addc_co_u32", "v137", "vcc", 0, "v137", "vcc")
    A.I("global_load_dwordx4", "v[140:143]", "v[136:137]", "off", tag="par")
    A.I("s_mov_b64", "exec", -1)
    A.I("s_load_dword", "s36", "s[20:21]", "s33")
    A.I("s_load_dword", "s52", "s[18:19]", "s33")
    A.I("s_or_b32", "s76", "s76", 1)
    A.I("s_or_b32", "s61", "s3", "s28")
    A.I("s_cmp_lg_u32", "s61", 0)
    A.I("s_cbranch_scc1", L("K_notag"))
    A.I("v_mov_b32", "v123", "s76")
    A.I("s_mov_b64", "exec", 1)
    A.I("global_store_dword", "v122", "v123", "s[24:25]", mods="sc1"); A.vmq.pop()
    A.I("s_mov_b64", "exec", -1)
    A.label(L("K_notag"))
    srd(A, 44, 26, WS_SIZE)
    if "swarm" in OPTS:
        swarm(A, "s[68:69]", "s3", "s28")
    else:
        srd(A, 64, 68, 1376 * 1024)
        A.I("buffer_load_dwordx4", "v[60:63]", "v7", "s[64:67]", "s57", mods="offen")
        A.I("buffer_load_dwordx4", "v[60:63]", "v7", "s[64:67]", "s58", mods="offen")
        srd(A, 64, 22, 1376 * 1024)
        A.I("buffer_load_dwordx4", "v[60:63]", "v7", "s[64:67]", "s57", mods="offen")
        A.I("buffer_load_dwordx4", "v[60:63]", "v7", "s[64:67]", "s58", mods="offen")
    A.I("s_mov_b32", "s56", "0x3f803f80")
    A.I("s_mov_b32", "s59", "0xffff0000")
    A.I("v_and_b32", "v56", 15, "v1")
    A.I("v_cvt_f32_u32", "v56", "v56")
    A.I("s_lshl_b32", "s53", "s28", 10)
    A.I("s_add_u32", "s53", "s53", ACCX)
    A.I("v_add_u32", "v138", "s53", "v7")
    A.I("v_lshl_add_u32", "v139", "v1", 1, "s53")
    A.I("s_mul_i32", "s37", "s30", KTS)
    A.I("s_add_u32", "s37", "s37", KDT + 32)
    A.I("s_mov_b32", "s38", -17024)
    A.I("s_movk_i32", "s39", 127)
    A.I("s_lshl_b32", "s40", "s31", 10)
    A.I("v_lshl_add_u32", "v20", "v1", 3, "s40")
    AD = 200
    for rd in range(2):
        for ii in range(11):
            A.I("v_sub_u32", vr(AD + 11 * rd + ii), 2044 - 512 * rd - (ii - 3), "v20")
        for ii in range(11):
            if rd == 1 and ii >= 8:
                A.I("v_max_i32", vr(24 + ii), 0, vr(AD + 11 * rd + ii))
                A.I("v_cvt_f32_u32", vr(24 + ii), vr(24 + ii))
            else:
                A.I("v_cvt_f32_u32", vr(24 + ii), vr(AD + 11 * rd + ii))
        for ii in range(0, 11, 2):
            A.I("v_cvt_pk_bf16_f32", vr(36 + ii // 2), vr(24 + ii), vr(24 + min(ii + 1, 10)))
        for ii in range(11):
            A.I("v_mad_u32_u16", vr(24 + ii), vr(36 + ii // 2), 1, "s38", mods=("op_sel:[1,0,0,0]" if ii & 1 else ""))
        for ii in range(11):
            A.I("v_med3_i32", vr(24 + ii), vr(24 + ii), vr(AD + 11 * rd + ii), "s39")
        for ii in range(11):
            A.I("v_ashrrev_i32", vr(AD + 11 * rd + ii), 3, vr(24 + ii))
        for ii in range(11):
            A.I("v_add_u32", vr(24 + ii), vr(24 + ii), vr(AD + 11 * rd + ii))
        for ii in range(11):
            A.I("v_lshl_add_u32", vr(AD + 11 * rd + ii), vr(24 + ii), 3, "s37")
    for k in range(4): A.I("v_mov_b32", vr(24 + k), 0)
    A.I("s_mul_i32", "s43", "s30", 4608)
    A.I("s_add_u32", "s43", "s43", UL)
    A.I("v_lshl_add_u32", "v10", "v1", 3, "s43")
    A.I("ds_write_b64", "v10", "v[24:25]")
    A.I("s_mul_i32", "s48", "s30", 16640)
    A.I("v_and_b32", "v121", 1, "v1")
    A.I("v_lshrrev_b32", "v10", 1, "v1")
    A.I("v_mul_u32_u24", "v11", 4160, "v10")
    A.I("v_lshl_add_u32", "v11", "v121", 4, "v11")
    A.I("v_add_u32", "v11", "s48", "v11")
    A.I("s_sub_u32", "s50", "s37", 32)
    A.I("v_lshl_add_u32", "v12", "v121", 4, "s50")
    A.I("s_mov_b64", "exec", "0xff")
    A.I("ds_write_b128", "v11", "v[24:27]", mods="offset:4096")
    A.I("ds_write_b128", "v12", "v[24:27]")
    A.I("s_mov_b64", "exec", -1)
    A.I("v_lshlrev_b32", "v32", 13, "v10")
    A.I("v_lshl_add_u32", "v32", "v121", 4, "v32")
    A.I("v_mul_u32_u24", "v33", 4608, "v121")
    A.I("v_lshl_add_u32", "v33", "v10", 4, "v33")
    A.I("s_lshl_b32", "s49", "s28", 10)
    A.I("s_add_u32", "s49", "s49", UL + 512)
    A.I("v_add_u32", "v33", "s49", "v33")
    if "noagg" in OPTS:
        A.I("s_lshl_b32", "s71", "s28", F1SH + 6)
        A.I("v_lshl_add_u32", "v120", "v1", F1SH, "s71")
        A.I("s_mov_b32", "s41", hex(F1))
    else:
        A.I("v_mov_b32", "v120", 0)
        A.I("s_bfe_u32", "s41", "s3", "0x40001")
        A.I("s_lshl_b32", "s41", "s41", 7)
        A.I("s_add_u32", "s41", "s41", hex(FA))
    A.I("s_lshl_b32", "s42", "s31", 2)
    A.I("s_add_u32", "s42", "s42", "s37")
    A.I("v_and_b32", "v8", 15, "v1")
    A.I("v_lshrrev_b32", "v14", 4, "v1")
    A.I("v_mul_u32_u24", "v34", 144, "v8")
    A.I("v_lshl_add_u32", "v34", "v14", 5, "v34")
    A.I("v_lshl_add_u32", "v34", "v5", 3, "v34")
    A.I("v_add_u32", "v34", "s42", "v34")
    for sg in range(1, 4): A.I("v_add_u32", vr(34 + sg), 1152 * sg, "v34")
    A.I("v_mov_b32", "v39", "s42")
    A.I("s_lshl_b32", "s49", "s31", 11)
    A.I("s_add_u32", "s50", "s49", "s48")
    A.I("v_add_u32", "v40", "s50", "v7")
    A.I("v_and_b32", "v41", 3, "v1")
    A.I("v_mul_u32_u24", "v41", 4160, "v41")
    A.I("v_bfe_u32", "v13", "v1", 2, 2)
    A.I("v_lshlrev_b32", "v13", 3, "v13")
    A.I("v_lshl_add_u32", "v13", "v14", 4, "v13")
    A.I("v_sub_u32", "v41", "v41", "v13")
    A.I("s_add_u32", "s50", "s48", 2 * 2052 - 64 * 63)
    A.I("v_add_u32", "v41", "s50", "v41")
    A.I("v_lshlrev_b32", "v42", 5, "v8")
    A.I("v_lshlrev_b32", "v15", 4, "v14")
    A.I("v_sub_u32", "v42", "v42", "v15")
    A.I("s_add_u32", "s50", "s43", 512 + 16 - 448)
    A.I("v_add_u32", "v42", "s50", "v42")
    A.I("v_lshlrev_b32", "v43", 5, "v8")
    A.I("v_lshl_add_u32", "v43", "v14", 3, "v43")
    A.I("s_add_u32", "s50", "s43", "s49")
    A.I("s_add_u32", "s50", "s50", 512)
    A.I("v_add_u32", "v44", "s50", "v43")
    A.wait_vm("par", lgkm=0)
    stampn(A, "k_x")
    if "kx3" in OPTS: A.I("s_branch", L("K_end"))
    A.I("global_load_dword", "v123", "v122", "s[24:25]", mods="sc1", tag="tag")
    A.I("ds_write_b128", "v138", "v[140:143]")
    A.I("s_lshl_b32", "s53", "s30", 4)
    A.I("s_lshr_b32", "s52", "s52", "s53")
    A.I("v_mov_b32", vr(P + 6), "s52")
    A.wait(lgkm=0)
    for k in range(6): A.I("ds_read_u16", vr(P + k), "v139", mods=f"offset:{128 * k}")
    A.wait(lgkm=0)
    gen_kgen_pair_setup(A, P)
    def poll_issue():
        A.I("buffer_load_dword", "v121", "v120", "s[44:47]", "s41", mods="offen sc1")
    def gather(sfx=''):
        spin_check(A, L, "K_p1" + sfx, "v121", "v123", poll_issue, sleep=int(os.environ.get("KSLEEP", 4)))
        stampn(A, "k_poll")
        A.I("s_lshl_b32", "s62", "s28", 19)
        A.I("s_lshl_b32", "s63", "s29", 5)
        A.I("s_add_u32", "s62", "s62", "s63")
        A.I("s_add_u32", "s62", "s62", hex(XNT))
        A.I("s_add_u32", "s63", "s62", 32 * 8192)
        A.I("buffer_load_dwordx4", "v[8:11]", "v32", "s[44:47]", "s62", mods="offen sc1")
        A.I("buffer_load_dwordx4", "v[12:15]", "v32", "s[44:47]", "s63", mods="offen sc1")
    for pi in range(8):
        if pi == PRIOAT: A.I("s_setprio", 0)
        stampn(A, f"k_p{pi}")
        gen_kgen_pair(A, P, 56, pi)
    if PRIOAT == 8: A.I("s_setprio", 0)
    stampn(A, "k_kgen")
    if "midhi" in OPTS: A.I("s_setprio", 3)
    KACC = 100
    A.I("ds_write2_b32", "v34", vr(KACC), vr(KACC + 1), mods="offset0:0 offset1:2")
    A.I("ds_write2_b32", "v34", vr(KACC + 2), vr(KACC + 3), mods="offset0:4 offset1:6")
    A.I("s_mov_b32", "exec_lo", "0xff00ff00")
    A.I("s_mov_b32", "exec_hi", "0xff00ff00")
    for s in range(1, 4):
        A.I("ds_write2_b32", vr(34 + s), vr(KACC + 4 * s), vr(KACC + 4 * s + 1), mods="offset0:0 offset1:2")
        A.I("ds_write2_b32", vr(34 + s), vr(KACC + 4 * s + 2), vr(KACC + 4 * s + 3), mods="offset0:4 offset1:6")
    A.I("s_mov_b64", "exec", "0x8000")
    A.I("ds_write_b32", "v39", vr(KACC + 18), mods=f"offset:{8 * 720}")
    A.I("s_mov_b64", "exec", -1)
    A.wait(lgkm=0)
    A.I("s_barrier")

    stampn(A, "k_b1")
    for rd in range(2):
        for ii in range(11):
            A.I("ds_read_b64", vr(128 + 22 * rd + 2 * ii, 2), vr(AD + 11 * rd + ii), tag=f"e{rd}")
    for rd in range(2):
        A.wait_l(f"e{rd}")
        for ii in range(11):
            r = 128 + 22 * rd + 2 * ii
            A.I("v_add_f32", vr(r), vr(r), vr(r + 1))
        e = lambda ip: vr(128 + 22 * rd + 2 * (ip + 3))
        base = 64 + 16 * rd
        for sg in range(4):
            for dwi in range(4):
                lo = 2 * dwi - sg
                A.I("v_cvt_pk_bf16_f32", vr(base + 4 * sg + dwi), e(lo), e(lo + 1))
            A.I("ds_write_b128", "v40", vr(base + 4 * sg, 4), mods=f"offset:{sg * 4160 + rd * 1024}")
    A.wait(lgkm=0)
    A.I("s_barrier")
    stampn(A, "k_exp")
    if PRIOAT == 10: A.I("s_setprio", 0)
    KF = 128; UB = 96; CA = 64
    A.I("s_cmp_eq_u32", "s31", 1)
    A.I("s_cbranch_scc1", L("conv1"))
    for hw in range(2):
        if hw == 1: A.label(L("conv1"))
        Ps = PSET[hw]
        steps = [(Q, r) for Q in range(8 - min(Ps)) for r in range(8)]
        first = set()
        NB = 8
        def issueU(n):
            Q, r = steps[n]
            q = 8 * Q - r
            A.I("ds_read_b128", vr(UB + 4 * (n % NB), 4), "v42", mods=f"offset:{64 * (q + 7)}", tag=f"U{n}")
        def issueK(r):
            for si, P_ in enumerate(Ps):
                p = 8 * P_ + r
                reg = KF + 32 * si + 4 * r
                A.I("ds_read_b64", vr(reg, 2), "v41", mods=f"offset:{64 * (63 - p)}")
                A.I("ds_read_b64", vr(reg + 2, 2), "v41", mods=f"offset:{64 * (63 - p) + 8}", tag=f"K{r}")
        def mf(n):
            Q, r = steps[n]
            for si, P_ in enumerate(Ps):
                if P_ + Q > 7: continue
                acc = vr(CA + 4 * (P_ + Q), 4)
                c = acc if (P_ + Q) in first else "0"
                first.add(P_ + Q)
                A.I("v_mfma_f32_16x16x32_bf16", acc, vr(KF + 32 * si + 4 * r, 4), vr(UB + 4 * (n % NB), 4), c)
        for r in range(8): issueK(r)
        A.wait(vm=0)
        get_tag(A, L, f"K_tag{hw}", "v123", "v122", "s[24:25]")
        A.I("v_readfirstlane_b32", "s51", "v123")
        poll_issue()
        gather(f"_{hw}")
        A.wait(vm=0)
        stampn(A, "k_u")
        A.I("ds_write_b128", "v33", "v[8:11]")
        A.I("ds_write_b128", "v33", "v[12:15]", mods="offset:512")
        A.wait(lgkm=0)
        A.I("s_barrier")
        stampn(A, "k_q0")
        A.I("s_setprio", int(os.environ.get("KPRIO", 0)))
        for k in range(NB - 1): issueU(k)
        nxt = NB - 1
        for n in range(0, len(steps)):
            A.wait_l(f"U{n}")
            mf(n)
            if nxt < len(steps): issueU(nxt)
            nxt += 1
        stampn(A, "k_mf")
        oth = range(4, 8) if hw == 0 else range(1, 4)
        A.I("s_lshl_b32", "s41", "s30", 13)
        A.I("s_add_u32", "s41", "s41", ACCX)
        A.I("v_add_u32", "v45", "s41", "v7")
        for k in range(4):
            A.I("ds_read_b64", vr(16 + 2 * k, 2), "v44", mods=f"offset:{512 * k}")
        for Aa in oth:
            A.I("ds_write_b128", "v45", vr(CA + 4 * Aa, 4), mods=f"offset:{Aa * 1024}")
        own = range(0, 4) if hw == 0 else range(4, 8)
        A.I("s_lshl_b32", "s42", "s36", 16)
        A.I("s_and_b32", "s43", "s36", "0xffff0000")
        A.I("s_cmp_eq_u32", "s30", 0)
        A.I("s_cselect_b32", "s42", "s42", "s43")
        A.I("s_mov_b32", "s43", "s42")
        A.I("s_lshl_b32", "s48", "s32", 12)
        A.I("s_add_u32", "s48", "s48", "s49")
        A.I("s_add_u32", "s48", "s48", hex(ST))
        A.wait(lgkm=0)
        A.I("s_barrier")
        A.unpk = "cenp" in OPTS
        for k, Aa in enumerate(own):
            if hw == 0 and Aa == 0: continue
            A.I("ds_read_b128", vr(UB + 4 * k, 4), "v45", mods=f"offset:{Aa * 1024}", tag=f"X{k}")
        for k, Aa in enumerate(own):
            t = 48 + 4 * k; a = CA + 4 * Aa
            A.I("v_lshlrev_b32", vr(t), 16, vr(16 + 2 * k))
            A.I("v_and_b32", vr(t + 1), "s59", vr(16 + 2 * k))
            A.I("v_lshlrev_b32", vr(t + 2), 16, vr(17 + 2 * k))
            A.I("v_and_b32", vr(t + 3), "s59", vr(17 + 2 * k))
            A.I("v_pk_fma_f32", vr(a, 2), vr(t, 2), "s[42:43]", vr(a, 2))
            A.I("v_pk_fma_f32", vr(a + 2, 2), vr(t + 2, 2), "s[42:43]", vr(a + 2, 2))
        for k, Aa in enumerate(own):
            a = CA + 4 * Aa
            if not (hw == 0 and Aa == 0):
                A.wait_l(f"X{k}")
                A.I("v_pk_add_f32", vr(a, 2), vr(a, 2), vr(UB + 4 * k, 2))
                A.I("v_pk_add_f32", vr(a + 2, 2), vr(a + 2, 2), vr(UB + 4 * k + 2, 2))
            A.I("v_cvt_pk_bf16_f32", vr(a), vr(a), vr(a + 1))
            A.I("v_cvt_pk_bf16_f32", vr(a + 1), vr(a + 2), vr(a + 3))
            A.I("buffer_store_dwordx2", vr(a, 2), "v43", "s[44:47]", "s48", mods=f"offen offset:{512 * k} sc1")
        if hw == 0: A.I("s_branch", L("K_pub"))
    A.label(L("K_pub"))
    stampn(A, "k_conv")
    A.wait(vm=0)
    A.I("s_barrier")
    A.I("s_cmp_lg_u32", "s28", 0)
    A.I("s_cbranch_scc1", L("K_end"))
    A.I("s_lshl_b32", "s71", "s29", F3SH)
    A.I("s_add_u32", "s71", "s71", hex(F3))
    A.I("v_mov_b32", "v8", "s51")
    A.I("v_mov_b32", "v9", 0)
    A.I("s_mov_b64", "exec", 1)
    A.I("buffer_store_dword", "v8", "v9", "s[44:47]", "s71", mods="offen sc1")
    A.I("s_mov_b64", "exec", -1)
    A.unpk = False
    A.label(L("K_end"))
    stamp_flush(A, 0, "s[26:27]", 7)
    A.I("s_endpgm")
```

```python
import os
from asmlib import *
from layout1 import *
from k_prep import srd
from k_prep import reduce32
from t10_k import spin_check, code_prefetch2, get_tag, swarm

XB = 49152

def gen_csb(A, L, TAG):
    A.I("s_lshl_b32", "s71", "s49", 2)
    A.I("s_add_u32", "s71", "s71", "s22")
    A.I("global_load_dword", TAG, "v10", "s[18:19]", mods="sc1")
    A.I("s_cmp_ge_u32", "s71", 45)
    A.I("s_cbranch_scc1", L("M_csb_skip"))
    A.I("s_min_u32", "s72", "s71", 42)
    A.I("s_lshl_b32", "s72", "s72", 6)
    A.I("v_lshrrev_b32", "v16", 2, "v1")
    A.I("v_mul_u32_u24", "v16", 2752, "v16")
    A.I("v_and_b32", "v17", 3, "v1")
    A.I("v_lshl_add_u32", "v16", "v17", 4, "v16")
    A.I("s_mov_b32", "s73", "s72")
    for i in range(32):
        A.I("buffer_load_dwordx4", vr(128 + 4 * i - (0 if i < 28 else 0), 4) if i < 28 else vr(32 + 4 * (i - 28), 4), "v16", "s[28:31]", "s73", mods="offen", tag=f"c{i}")
        A.I("s_add_u32", "s73", "s73", 16 * 2752)
    A.I("v_lshl_add_u32", "v18", "v5", 1, "s72")
    A.I("global_load_ushort", "v19", "v18", "s[10:11]")
    A.I("s_mov_b32", "s74", "0x00003f80")
    A.I("s_mov_b32", "s75", "0x3f800000")
    for c in range(8): A.I("v_mov_b32", vr(20 + c), 0)
    for i in range(32):
        A.wait_vm(f"c{i}")
        b = 128 + 4 * i if i < 28 else 32 + 4 * (i - 28)
        for d in range(4):
            A.I("v_dot2_f32_bf16", vr(20 + 2 * d), vr(b + d), "s74", vr(20 + 2 * d))
            A.I("v_dot2_f32_bf16", vr(21 + 2 * d), vr(b + d), "s75", vr(21 + 2 * d))
    D = "row_mask:0xf bank_mask:0xf"
    for m in ("row_ror:4", "row_ror:8"):
        for c in range(8): A.I("v_add_f32_dpp", vr(20 + c), vr(20 + c), vr(20 + c), mods=f"{m} {D}")
    for sw in ("v_permlane16_swap_b32", "v_permlane32_swap_b32"):
        for c in range(8): A.I("v_mov_b32", vr(48 + c), vr(20 + c))
        for c in range(8): A.I(sw, vr(20 + c), vr(48 + c))
        for c in range(8): A.I("v_add_f32", vr(20 + c), vr(20 + c), vr(48 + c))
    A.I("v_lshlrev_b32", "v17", 5, "v17")
    A.I("v_add_u32", "v17", "s61", "v17")
    A.I("ds_write_b128", "v17", "v[20:23]")
    A.I("ds_write_b128", "v17", "v[24:27]", mods="offset:16")
    A.I("v_lshl_add_u32", "v17", "v5", 2, "s61")
    A.wait(lgkm=0)
    A.I("ds_read_b32", "v20", "v17")
    A.wait(vm=0, lgkm=0)
    get_tag(A, L, "M_tag15a", TAG, "v10", "s[18:19]")
    A.I("v_cvt_pk_bf16_f32", "v21", 0, "v20")
    A.I("v_sub_f32", "v20", "v20", "v21")
    A.I("v_cvt_pk_bf16_f32", "v22", 0, "v20")
    A.I("v_sub_f32", "v20", "v20", "v22")
    A.I("v_cvt_pk_bf16_f32", "v24", "v21", "v22")
    A.I("v_cvt_pk_bf16_f32", "v25", "v20", 0)
    A.I("v_lshl_or_b32", "v25", "v19", 16, "v25")
    A.I("v_mov_b32", "v26", TAG)
    A.I("v_mov_b32", "v27", TAG)
    A.I("s_lshl_b32", "s72", "s71", 9)
    A.I("s_add_u32", "s72", "s72", hex(CSB))
    A.I("v_lshlrev_b32", "v17", 4, "v5")
    A.I("s_mov_b64", "exec", "0xffffffff")
    A.I("buffer_store_dwordx4", "v[24:27]", "v17", "s[24:27]", "s72", mods="offen sc1")
    A.I("s_mov_b64", "exec", -1)
    stampn(A, "m_csb")
    A.label(L("M_csb_skip"))
    A.wait(vm=0)
    get_tag(A, L, "M_tag15", TAG, "v10", "s[18:19]")

def gen_M(A, L, msize):
    G1 = "g1only" in OPTS
    A.label(L("M"))
    if "nom" in OPTS: A.I("s_endpgm")
    A.I("s_setprio", int(os.environ.get("MP0", 0)))
    A.I("s_load_dwordx2", "s[4:5]", "s[0:1]", 0)
    A.I("s_load_dwordx8", "s[8:15]", "s[0:1]", 80)
    A.I("s_load_dwordx4", "s[16:19]", "s[0:1]", 112)
    A.I("s_load_dwordx2", "s[20:21]", "s[0:1]", 128)
    code_prefetch2(A, msize)
    A.I("v_and_b32", "v1", 63, "v0")
    A.I("v_lshrrev_b32", "v2", 6, "v0")
    A.I("v_readfirstlane_b32", "s22", "v2")
    A.I("s_and_b32", "s3", "s2", 255)
    A.I("s_and_b32", "s23", "s3", 7)
    A.I("s_lshr_b32", "s48", "s3", 3)
    A.I("s_lshr_b32", "s49", "s23", 1)
    A.I("s_lshl_b32", "s49", "s49", 2)
    A.I("s_lshr_b32", "s76", "s48", 3)
    A.I("s_add_u32", "s49", "s49", "s76")
    A.I("s_and_b32", "s50", "s23", 1)
    A.I("s_lshl_b32", "s50", "s50", 3)
    A.I("s_and_b32", "s52", "s48", 7)
    A.I("s_add_u32", "s50", "s50", "s52")
    A.I("s_lshl_b32", "s76", "s76", 1)
    if "rot1" not in OPTS: A.I("s_mov_b32", "s76", 0)
    A.I("s_lshl_b32", "s51", "s23", 2)
    A.I("s_lshr_b32", "s52", "s48", 3)
    A.I("s_add_u32", "s51", "s51", "s52")
    A.I("s_and_b32", "s52", "s48", 7)
    A.I("s_lshl_b32", "s53", "s49", 2)
    A.I("s_add_u32", "s53", "s53", "s22")
    A.I("v_lshlrev_b32", "v2", 4, "v1")
    A.I("v_lshrrev_b32", "v4", 5, "v1")
    A.I("v_and_b32", "v5", 31, "v1")
    A.I("v_lshrrev_b32", "v9", 3, "v1")
    A.I("v_lshrrev_b32", "v10", 4, "v1")
    A.I("v_and_b32", "v11", 7, "v1")
    A.I("v_xor_b32", "v10", "v10", "v11")
    A.I("v_lshlrev_b32", "v9", 10, "v9")
    A.I("v_lshl_add_u32", "v12", "v10", 4, "v9")
    A.I("v_xor_b32", "v13", 64, "v12")
    A.I("v_bfe_u32", "v10", "v1", 4, 1)
    A.I("v_lshlrev_b32", "v10", 2, "v10")
    A.I("v_xor_b32", "v10", "v10", "v11")
    A.I("v_lshl_add_u32", "v15", "v10", 4, "v9")
    A.I("s_mov_b32", "s54", 43691)
    for n in range(3):
        A.I("v_add_u32", "v9", 64 * n, "v1")
        A.I("v_mul_u32_u24", "v10", "s54", "v9")
        A.I("v_lshrrev_b32", "v10", 19, "v10")
        A.I("v_mul_u32_u24", "v11", 12, "v10")
        A.I("v_sub_u32", "v9", "v9", "v11")
        A.I("v_mul_u32_u24", "v10", 2752, "v10")
        A.I("v_lshl_add_u32", vr(6 + n), "v9", 4, "v10")
    A.I("v_lshlrev_b32", "v14", 7, "v5")
    A.I("s_mul_i32", "s55", "s50", 192)
    A.I("s_mul_i32", "s56", "s22", 16 * 2752)
    A.I("s_add_u32", "s56", "s56", "s55")
    A.I("s_mul_i32", "s57", "s22", 3072)
    A.I("s_lshl_b32", "s67", "s53", 15)
    A.I("s_lshl_b32", "s61", "s22", 12)
    A.I("s_add_u32", "s61", "s61", XB)
    A.I("s_lshl_b32", "s62", "s49", 17)
    A.I("s_lshl_b32", "s63", "s52", 14)
    A.I("s_add_u32", "s62", "s62", "s63")
    A.I("s_lshl_b32", "s63", "s22", 12)
    A.I("s_add_u32", "s62", "s62", "s63")
    stampn(A, "m_pre")
    A.wait(lgkm=0)
    stampn(A, "m_arg")
    srd(A, 40, 4, 2048 * 1024)
    srd(A, 28, 8, 512 * 2752)
    A.I("s_mov_b32", "exec_hi", 0)
    A.I("buffer_load_dword", "v3", "v14", "s[40:43]", "s62", mods="offen")
    A.I("s_mov_b64", "exec", -1)
    X = 16
    TAG = "v235"
    A.I("v_mov_b32", "v10", 0)
    A.I("s_lshl_b32", "s63", "s3", 13)
    A.I("s_lshl_b32", "s70", "s22", 11)
    A.I("s_add_u32", "s70", "s70", "s63")
    A.I("v_lshlrev_b32", "v24", 10, "v4")
    A.I("v_lshl_add_u32", "v24", "v5", 4, "v24")
    A.I("buffer_load_dwordx4", vr(X, 4), "v24", "s[40:43]", "s70", mods="offen")
    A.I("buffer_load_dwordx4", vr(X + 4, 4), "v24", "s[40:43]", "s70", mods="offen offset:512", tag="lx")
    def xdma1(s, b):
        A.I("s_add_u32", "m0", "s61", (s % 2) * 16384 + b * 1024)
        if b == 0:
            A.I("s_add_u32", "s77", "s76", s)
            A.I("s_and_b32", "s77", "s77", 7)
            A.I("s_lshl_b32", "s77", "s77", 7)
            A.I("s_add_u32", "s77", "s77", "s67")
        A.I("s_add_u32", "s63", "s77", b * 8192)
        A.I("buffer_load_dwordx4", "v12" if b % 2 == 0 else "v13", "s[40:43]", "s63", mods="offen lds", tag=f"x{s}")
    def wdma1(s, n):
        if n == 0:
            A.I("s_add_u32", "s78", "s76", s)
            A.I("s_and_b32", "s78", "s78", 7)
            A.I("s_mul_i32", "s78", "s78", 64 * 2752)
            A.I("s_add_u32", "s78", "s78", "s56")
        A.I("s_add_u32", "m0", "s57", (s % 4) * 12288 + n * 1024)
        A.I("buffer_load_dwordx4", vr(6 + n), "s[28:31]", "s78", mods="offen lds", tag=f"w{s}")
    A.I("s_cmp_eq_u32", "s50", 15)
    A.I("s_cbranch_scc1", L("M_now1"))
    for b in range(4): xdma1(0, b)
    srd(A, 36, 10, 2752)
    A.I("s_mov_b32", "m0", 36864)
    A.I("s_mov_b64", "exec", "0xfff")
    A.I("buffer_load_dwordx4", "v2", "s[36:39]", "s55", mods="offen lds")
    A.I("s_mov_b64", "exec", -1)
    for n in range(3): wdma1(0, n)
    PRO = int(os.environ.get("PRO", 3))
    if PRO >= 1:
        for b in range(4): xdma1(1, b)
    A.I("global_load_dword", TAG, "v10", "s[18:19]", mods="sc1", tag="tag")
    for s in (1, 2)[:max(PRO - 1, 0)]:
        for n in range(3): wdma1(s, n)
    A.label(L("M_now1"))
    if "swarm" in OPTS:
        swarm(A, "s[12:13]", "s3", "s22")
    stampn(A, "m_iss")
    srd(A, 24, 20, WS_SIZE)
    srd(A, 44, 16, 2048 * 1024)
    srd(A, 32, 12, 1376 * 1024)
    if "otouch" in OPTS:
        A.I("s_lshl_b32", "s63", "s3", 13)
        A.I("s_mov_b64", "exec", 1)
        A.I("buffer_load_dword", "v235", "v2", "s[44:47]", "s63", mods="offen")
        A.I("global_load_dword", "v234", "v2", "s[14:15]")
        A.I("s_mov_b64", "exec", -1)
    A.I("s_mov_b32", "s64", "0xffff0000")
    A.I("s_mov_b32", "s69", "0x3f803f80")
    A.I("s_mul_i32", "s58", "s22", 22)
    A.I("s_cmp_eq_u32", "s22", 3)
    A.I("s_cselect_b32", "s59", 1, 0)
    A.I("s_sub_u32", "s58", "s58", "s59")
    A.I("s_lshl_b32", "s59", "s58", 14)
    A.I("s_lshl_b32", "s60", "s52", 7)
    A.I("s_add_u32", "s59", "s59", "s60")
    A.I("s_cmp_lt_u32", "s22", 2)
    A.I("s_cselect_b32", "s48", 22, 21)
    A.I("s_mul_i32", "s79", "s52", 2)
    A.I("s_and_b32", "s63", "s51", 3)
    A.I("s_mul_i32", "s63", "s63", 5)
    A.I("s_add_u32", "s79", "s79", "s63")
    A.I("s_cmp_ge_u32", "s79", 21)
    A.I("s_cselect_b32", "s63", 21, 0)
    A.I("s_sub_u32", "s79", "s79", "s63")
    if "norot2" in OPTS: A.I("s_mov_b32", "s79", 0)
    A.I("v_and_b32", "v9", 1, "v1")
    A.I("v_lshl_add_u32", "v9", "v4", 2, "v9")
    A.I("v_lshlrev_b32", "v9", 10, "v9")
    A.I("v_lshrrev_b32", "v11", 1, "v5")
    A.I("v_lshl_add_u32", "v9", "v11", 2, "v9")
    XA = 244; WA = 248; TA_ = 252
    A.I("v_bfe_u32", "v14", "v1", 1, 3)
    A.I("v_xor_b32", "v14", "v14", "v4")
    A.I("s_lshl_b32", "s63", "s22", 1)
    A.I("v_xor_b32", "v14", "s63", "v14")
    A.I("v_lshlrev_b32", "v112", 7, "v5")
    A.I("v_add_u32", "v112", "s61", "v112")
    for k in range(4):
        if k: A.I("v_xor_b32", "v11", 2 * k, "v14")
        A.I("v_lshl_add_u32", vr(XA + k), "v14" if k == 0 else "v11", 4, "v112")
    A.I("v_bfe_u32", "v112", "v1", 2, 2)
    A.I("v_bfe_u32", "v113", "v1", 4, 1)
    A.I("v_and_b32", "v114", 3, "v1")
    A.I("v_lshlrev_b32", "v114", 3, "v114")
    A.I("v_lshl_add_u32", "v113", "v113", 5, "v114")
    A.I("v_lshl_add_u32", "v14", "v4", 3, "v112")
    A.I("v_mul_u32_u24", "v14", 192, "v14")
    A.I("v_add_u32", "v14", "v14", "v113")
    for k in range(4):
        A.I("s_xor_b32", "s63", "s22", k)
        A.I("s_mul_i32", "s63", "s63", 3072)
        A.I("v_add_u32", vr(WA + k), "s63", "v14")
    A.I("v_lshl_add_u32", "v14", "v4", 2, "v112")
    A.I("v_lshl_add_u32", "v14", "v14", 7, "v113")
    A.I("v_bfe_u32", "v112", "v1", 3, 1)
    A.I("v_lshl_add_u32", "v14", "v112", 6, "v14")
    A.I("v_xor_b32", "v112", 64, "v14")
    A.I("v_add_u32", vr(TA_), "s57", "v14")
    A.I("v_add_u32", vr(TA_ + 1), "s57", "v112")
    A.I("v_add_u32", vr(TA_ + 2), "s61", "v14")
    A.I("v_add_u32", vr(TA_ + 3), "s61", "v112")
    PF = "v11"
    def pollw():
        A.I("buffer_load_dword", PF, "v13", "s[24:27]", "s65", mods="offen sc1", tag="pw")
    Wb = lambda sl: [(sl * 12288 + i * 1024, 0) for i in range(3)]
    blocks = Wb(0) + [(i * 1024, 1) for i in (1, 2, 3)] + Wb(1) + [(16384 + i * 1024, 1) for i in range(4)] + Wb(2) + Wb(3) + [(0, 1)]
    KB = {k: k for k in range(8)}
    KB.update({8: 0, 9: 1, 10: 2, 11: 8, 12: 9, 13: 3, 14: 4, 15: 5, 16: 6, 17: 7, 18: 0, 19: 1, 20: 2, 21: 8})
    lastk = [None]
    def w2dma(k, hf):
        off, isx = blocks[2 * KB[k] + hf]
        if hf == 0 or lastk[0] != k:
            A.I("s_add_u32", "s23", "s79", k)
            A.I("s_cmp_ge_u32", "s23", "s48")
            A.I("s_cselect_b32", "s63", "s48", 0)
            A.I("s_sub_u32", "s23", "s23", "s63")
            A.I("s_lshl_b32", "s23", "s23", 14)
            A.I("s_add_u32", "s23", "s23", "s59")
        lastk[0] = k
        A.I("s_add_u32", "s63", "s23", hf * 8192)
        A.I("s_add_u32", "m0", "s61" if isx else "s57", off)
        A.I("buffer_load_dwordx4", "v15", "s[32:35]", "s63", mods="offen lds", tag=f"d{k}")
    WR = 16
    NWR = 12
    def wreg(k, e): return WR + 8 * (k % NWR) + 4 * e
    def w2read(k):
        for e in range(2):
            for hf in range(2):
                off, isx = blocks[2 * KB[k] + hf]
                A.I("ds_read_b64_tr_b16", vr(wreg(k, e) + 2 * hf, 2), vr(TA_ + 2 * isx + e), mods=f"offset:{off}", tag=f"S{k}")
    LNL = 36864 + 256
    A.I("s_mul_i32", "s63", "s22", 2 * 1088)
    A.I("s_add_u32", "s63", "s63", LNL)
    A.I("v_mul_u32_u24", "v40", 1088, "v4")
    A.I("v_lshl_add_u32", "v40", "v5", 4, "v40")
    A.I("v_add_u32", "v40", "s63", "v40")
    A.I("s_lshl_b32", "s63", "s22", 8)
    A.I("s_add_u32", "s63", "s63", LNL)
    A.I("v_mul_u32_u24", "v41", 1088, "v112")
    A.lines.pop(); A.hist.pop()
    A.I("v_bfe_u32", "v41", "v1", 2, 2)
    A.I("v_mul_u32_u24", "v41", 1088, "v41")
    A.I("v_lshrrev_b32", "v42", 4, "v1")
    A.I("v_lshl_add_u32", "v41", "v42", 5, "v41")
    A.I("v_and_b32", "v42", 3, "v1")
    A.I("v_lshl_add_u32", "v41", "v42", 3, "v41")
    A.I("v_add_u32", "v41", "s63", "v41")
    A.I("v_mov_b32", "v26", 0)
    A.I("v_mov_b32", "v27", 0)
    A.I("s_add_u32", "s70", "s70", hex(XNT))
    A.I("s_lshl_b32", "s71", "s3", 7)
    A.I("s_lshl_b32", "s72", "s22", 5)
    A.I("s_add_u32", "s71", "s71", "s72")
    A.I("s_add_u32", "s71", "s71", hex(STAT))
    A.I("v_lshlrev_b32", "v43", 4, "v4")
    A.I("s_cmp_eq_u32", "s50", 15)
    A.I("s_cbranch_scc0", L("M_lnw"))
    A.wait(vm=0)
    A.label(L("M_lnw"))
    A.I("s_setprio", 3)
    A.wait_vm("lx")
    for k in range(8):
        A.I("v_dot2_f32_bf16", "v26", vr(X + k), "s69", "v26")
        A.I("v_dot2_f32_bf16", "v27", vr(X + k), vr(X + k), "v27")
    reduce32(A, [26, 27], [28, 29])
    A.I("v_mul_f32", "v26", "0x3b000000", "v26")
    A.I("v_mul_f32", "v27", "0x3b000000", "v27")
    A.I("v_fma_f32", "v27", "-v26", "v26", "v27")
    A.I("v_max_f32", "v27", 0, "v27")
    A.I("v_cvt_pk_bf16_f32", "v44", 0, "v26")
    A.I("v_cvt_pk_bf16_f32", "v27", 0, "v27")
    A.I("v_add_f32", "v27", "0x3727c5ac", "v27")
    A.I("v_cvt_pk_bf16_f32", "v27", 0, "v27")
    A.I("v_sqrt_f32", "v27", "v27")
    A.I("v_cvt_pk_bf16_f32", "v46", 0, "v27")
    A.I("v_rcp_f32", "v30", "v46")
    for k in range(8):
        t = 32 + 2 * (k % 4)
        A.I("v_lshlrev_b32", vr(t), 16, vr(X + k))
        A.I("v_and_b32", vr(t + 1), "s64", vr(X + k))
        A.I("v_pk_add_f32", vr(t, 2), vr(t, 2), "v[44:45]", mods="op_sel_hi:[1,0] neg_lo:[0,1] neg_hi:[0,1]")
        A.I("v_pk_mul_f32", vr(t, 2), vr(t, 2), "v[30:31]", mods="op_sel_hi:[1,0]")
        A.I("v_cvt_pk_bf16_f32", vr(X + k), vr(t), vr(t + 1))
        if k == 3: A.I("ds_write_b128", "v40", vr(X, 4))
    A.I("ds_write_b128", "v40", vr(X + 4, 4), mods="offset:512")
    A.I("v_mov_b32", "v45", "v30")
    A.wait(lgkm=0)
    stampn(A, "m_ln")
    def ln_reads():
        A.I("ds_read_b64_tr_b16", "v[48:49]", "v41")
        A.I("ds_read_b64_tr_b16", "v[50:51]", "v41", mods=f"offset:{4*1088}")
        A.I("ds_read_b64_tr_b16", "v[52:53]", "v41", mods="offset:128")
        A.I("ds_read_b64_tr_b16", "v[54:55]", "v41", mods=f"offset:{4*1088+128}", tag="lnr")
    def ln_stores(sfx):
        A.wait_l("lnr")
        A.I("buffer_store_dwordx4", "v[48:51]", "v2", "s[24:27]", "s70", mods="offen sc1")
        A.I("buffer_store_dwordx4", "v[52:55]", "v2", "s[24:27]", "s70", mods="offen offset:1024 sc1", tag="xnt")
    def ln_stat(sfx):
        A.wait_vm("tag")
        get_tag(A, L, "M_tag" + sfx, TAG, "v10", "s[18:19]", cnt="s72")
        A.I("v_mov_b32", "v47", TAG)
        A.I("s_mov_b32", "exec_lo", 1)
        A.I("s_mov_b32", "exec_hi", 1)
        A.I("buffer_store_dwordx4", "v[44:47]", "v43", "s[24:27]", "s71", mods="offen sc1")
        A.I("s_mov_b64", "exec", -1)
    def ln_flag(sfx):
        A.I("s_cmp_lg_u32", "s22", 0)
        A.I("s_cbranch_scc1", L("M_f1d" + sfx))
        A.I("s_lshl_b32", "s71", "s3", F1SH)
        A.I("s_add_u32", "s71", "s71", hex(F1))
        A.I("s_mov_b64", "exec", 1)
        A.I("buffer_store_dword", TAG, "v10", "s[24:27]", "s71", mods="offen sc1")
        A.vmq.pop()
        A.I("s_mov_b64", "exec", -1)
        A.label(L("M_f1d" + sfx))
        stampn(A, "m_f1")
    A.I("s_cmp_eq_u32", "s50", 15)
    A.I("s_cbranch_scc1", L("M_g15"))
    ACC1 = 128; WB = 208; NW = 5; CP = 228; B1 = 231; ST_ = 232 + 4
    XFb = lambda s: 176 if s % 2 == 0 else 192
    CQ = 100
    A.I("v_mov_b32", "v98", "s69")
    A.I("v_mov_b32", "v99", "s69")
    def small(t, reg, first=False):
        A.I("v_mfma_f32_4x4x4_16b_bf16", vr(CQ + 4 * t, 4), "v[98:99]", vr(reg, 2), "0" if first else vr(CQ + 4 * t, 4))
    A.I("s_mul_i32", "s68", "s53", 86)
    A.I("s_mul_i32", "s63", "s50", 6)
    A.I("s_add_u32", "s68", "s68", "s63")
    A.I("s_lshl_b32", "s68", "s68", 10)
    A.I("s_add_u32", "s68", "s68", hex(HF))
    A.I("s_add_u32", "s66", "s68", 4096)
    A.I("s_cmp_eq_u32", "s50", 14)
    A.I("s_cselect_b32", "s66", "0x7f000000", "s66")
    A.I("s_cselect_b32", "s73", "0x7f000000", "s68")
    A.I("s_lshl_b32", "s74", "s53", 9)
    A.I("s_add_u32", "s74", "s74", hex(STAT))
    AX = 176
    def pollstat():
        A.I("buffer_load_dwordx4", vr(ST_, 4), "v3", "s[24:27]", "s74", mods="offen sc1", tag="st")
    def rdW(s, idx, buf):
        kk, t = idx
        o = (s % 4) * 12288 + t * 64
        r = WB + 4 * buf
        A.I("ds_read_b64_tr_b16", vr(r, 2), vr(WA + kk), mods=f"offset:{o}")
        A.I("ds_read_b64_tr_b16", vr(r + 2, 2), vr(WA + kk), mods=f"offset:{o + 768}", tag=f"W{s}_{kk}_{t}")
    def bar(s):
        tags = [f"x{s}", f"w{s}"] + (["xnt"] if s == 1 else [])
        A.wait_vm(min(tags, key=lambda t: A._after(A.vmq, t)))
        stampn(A, f"m_s{s}a")
        A.I("s_barrier")
        stampn(A, f"m_s{s}b")
    def xread(s, kk):
        A.I("ds_read_b128", vr(XFb(s) + 4 * kk, 4), vr(XA + kk), mods=f"offset:{(s % 2) * 16384}")
    def epi_ops(t):
        ops = []
        a = ACC1 + 16 * t
        for k in range(8):
            r = a + 2 * k
            for q in (r, r + 1):
                ops.append(("v_max_f32", [vr(q), 0, vr(q)], ""))
                ops.append(("v_mul_f32", [vr(q), vr(q), vr(ST_ + 1)], ""))
                ops.append(("v_mul_f32", [vr(q), vr(q), vr(q)], ""))
            ops.append(("v_cvt_pk_bf16_f32", [vr(a + k), vr(r), vr(r + 1)], ""))
            if k % 4 == 3:
                off = (2 * t + k // 4) * 1024
                ops.append(("buffer_store_dwordx4", [vr(a + k - 3, 4), "v2", "s[24:27]", ("s68", "s73", "s66")[t]], f"offen offset:{off % 4096} sc1"))
        return ops
    pend_e = []
    seq = []
    for s in range(8):
        order = [(kk, t) for kk in range(4) for t in range(3)] if s < 7 else [(kk, t) for t in range(3) for kk in range(4)]
        seq += [(s, o) for o in order]
    bar(0)
    ln_reads()
    for kk in range(4): xread(0, kk)
    A.I("v_lshlrev_b32", "v3", 1, "v5")
    for t in range(3): A.I("ds_read_u16", vr(B1 + t), "v3", mods=f"offset:{36864 + 64 * t}")
    A.I("v_lshlrev_b32", "v3", 4, "v5")
    for m in range(NW - 1): rdW(seq[m][0], seq[m][1], m)
    NEARLY = int(os.environ.get('NEARLY', 16))
    BN = 7; WPOS = (7, 9, 10); XPOS = (2, 3, 5, 6)
    XP0 = (6, 8, 9, 11)
    early = {(5, 7): 0, (5, 9): 1, (5, 10): 2, (6, 2): 3, (6, 3): 4, (6, 5): 5, (6, 7): 6, (6, 9): 7, (6, 10): 8, (7, 2): 9, (7, 3): 10, (7, 4): 11, (7, 5): 12, (7, 6): 13, (7, 7): 14, (7, 8): 15}
    for m, (s, (kk, t)) in enumerate(seq):
        n = m % 12
        if n == 0: stampn(A, f"m_s{s}")
        if G1 and m == 84: A.I("s_branch", L("M_exit"))
        A.wait_l(f"W{s}_{kk}_{t}")
        acc = vr(ACC1 + 16 * t, 16)
        if "nomfma" not in OPTS: A.I("v_mfma_f32_32x32x16_bf16", acc, vr(WB + 4 * (m % NW), 4), vr(XFb(s) + 4 * kk, 4), acc if (s or kk) else "0")
        stampn(A, f"m_s{s}n{n}")
        docs = kk == 0 and s < 7 and "nocs" not in OPTS
        if docs: small(t, WB + 4 * (m % NW), first=(s == 0))
        if n == BN and s < 7: bar(s + 1)
        if s < 7 and BN <= n < BN + 4: xread(s + 1, n - BN)
        if m + NW - 1 < 96: rdW(seq[m + NW - 1][0], seq[m + NW - 1][1], (m + NW - 1) % NW)
        if docs: small(t, WB + 4 * (m % NW) + 2)
        if "nodma" in OPTS:
            A.vmq += [f"w{s + 3}", f"x{s + 2}"] + [None] * 70
        else:
            if s == 0:
                pend = ([("x", b) for b in range(4)] if PRO < 1 else []) + ([("w1", i) for i in range(3)] if PRO < 2 else []) + ([("w2", i) for i in range(3)] if PRO < 3 else [])
                per = (len(pend) + 5) // 6
                for typ, i in pend[n * per:(n + 1) * per] if n < 6 else []:
                    if typ == "x": xdma1(1, i)
                    else: wdma1(int(typ[1]), i)
            if n in WPOS and s + 3 < 8 and "now" not in OPTS: wdma1(s + 3, WPOS.index(n))
            xp = XP0 if (s == 0 and PRO < 3) else XPOS
            if n in xp and s + 2 < 8 and "nox" not in OPTS: xdma1(s + 2, xp.index(n))
            if "now" in OPTS: A.vmq.insert(0, f"w{s + 3}")
            if "nox" in OPTS: A.vmq.insert(0, f"x{s + 2}")
        if s == 0 and n == 0: ln_stores("a")
        if s == 0 and n == 4: ln_stat("a")
        if s == 0 and n == BN: ln_flag("a")
        if s == 5 and n == 6:
            pollstat()
        if (s, n) in early and early[(s, n)] < NEARLY:
            b = early[(s, n)]
            w2dma(b // 2, b % 2)
        if s == 6 and n == BN:
            for t2 in range(3):
                o = 3 * 12288 + t2 * 64
                A.I("ds_read_b64_tr_b16", vr(112 + 4 * t2, 2), vr(WA), mods=f"offset:{o}")
                A.I("ds_read_b64_tr_b16", vr(114 + 4 * t2, 2), vr(WA), mods=f"offset:{o + 768}", tag=f"c7_{t2}")
        if s == 6 and n == 10:
            A.wait_l("c7_2")
            for hf in range(2):
                for t2 in range(3): small(t2, 112 + 4 * t2 + 2 * hf)
        if s == 6 and n == 11:
            A.I("v_lshl_add_u32", "v240", "v1", 2, "s61")
            A.I("v_lshlrev_b32", "v241", 2, "v1")
            for t2 in range(3): A.I("ds_write_b32", "v240", vr(CQ + 4 * t2), mods=f"offset:{256 * t2}", tag="cw")
        if s == 7 and n == 0:
            A.wait_l("cw")
            A.I("s_barrier")
            for t2 in range(3):
                for ww in range(4):
                    A.I("ds_read_b32", vr(112 + 4 * t2 + ww), "v241", mods=f"offset:{XB + 4096 * ww + 256 * t2}", tag="cr")
        if s == 7 and n == 1:
            A.wait_vm("st")
            spin_check(A, L, "M_st", vr(ST_ + 3), TAG, pollstat, wait_tag="st")
            A.I("v_cmp_gt_u32", "vcc", 32, "v1")
            A.I("v_cndmask_b32", vr(ST_ + 2), 0, vr(ST_ + 2), "vcc")
            A.I("v_cvt_pk_bf16_f32", "v188", f"-{vr(ST_)}", f"-{vr(ST_)}")
            A.I("v_cvt_pk_bf16_f32", "v189", f"-{vr(ST_)}", vr(ST_ + 2))
            A.I("v_mov_b32", "v190", 0)
            A.I("v_mov_b32", "v191", 0)
        if s == 7 and n in (2, 3, 4):
            t2 = n - 2
            if n == 2: A.wait_l("cr")
            c = 112 + 4 * t2; a = AX + 4 * t2
            A.I("v_add_f32", vr(c), vr(c), vr(c + 1))
            A.I("v_add_f32", vr(c + 2), vr(c + 2), vr(c + 3))
            A.I("v_add_f32", vr(c), vr(c), vr(c + 2))
            A.I("v_cvt_pk_bf16_f32", vr(c + 1), 0, vr(c))
            A.I("v_sub_f32", vr(c), vr(c), vr(c + 1))
            A.I("v_cvt_pk_bf16_f32", vr(c + 2), 0, vr(c))
            A.I("v_sub_f32", vr(c), vr(c), vr(c + 2))
            A.I("v_cvt_pk_bf16_f32", vr(a), vr(c + 1), vr(c + 2))
            A.I("v_cvt_pk_bf16_f32", vr(a + 1), vr(c), 0)
            A.I("v_lshl_or_b32", vr(a + 1), vr(B1 + t2), 16, vr(a + 1))
            A.I("v_mov_b32", vr(a + 2), 0)
            A.I("v_mov_b32", vr(a + 3), 0)
        if s == 7 and n in (3, 7, 11):
            t2 = n // 4
            acc2 = vr(ACC1 + 16 * t2, 16)
            A.I("v_mfma_f32_32x32x16_bf16", acc2, vr(AX + 4 * t2, 4), "v[188:191]", acc2)
        if s == 7 and n >= 5:
            if n == 5: pend_e = epi_ops(0)
            if n == 9: pend_e = pend_e + epi_ops(1)
            for _ in range(13):
                if pend_e:
                    mn, ops, mods = pend_e.pop(0); A.I(mn, *ops, mods=mods, tag="hf")
    stampn(A, "m_g1")
    if NEARLY >= 6:
        A.wait_vm("d2")
        for k in (0, 1, 2): w2read(k)
    for mn, ops, mods in pend_e + epi_ops(2): A.I(mn, *ops, mods=mods, tag="hf")
    A.unpk = "mpk2" not in OPTS
    stampn(A, "m_epi")
    for b in range(NEARLY, 16): w2dma(b // 2, b % 2)
    if NEARLY == 16:
        A.wait_vm("d7", lgkm=0)
        for k in (3, 4, 5, 6, 7): w2read(k)
        for k in (8, 9, 10):
            w2dma(k, 0); w2dma(k, 1)
    stampn(A, "m_e2")
    A.wait_vm("hf")
    stampn(A, "m_e3")
    A.I("s_barrier")
    A.I("s_cmp_lg_u32", "s22", 0)
    A.I("s_cbranch_scc1", L("M_nf2"))
    A.I("s_lshl_b32", "s71", "s49", F2SH + 4)
    A.I("s_lshl_b32", "s72", "s50", F2SH)
    A.I("s_add_u32", "s71", "s71", "s72")
    A.I("s_add_u32", "s71", "s71", hex(F2))
    A.I("s_mov_b64", "exec", 1)
    A.I("buffer_store_dword", TAG, "v10", "s[24:27]", "s71", mods="offen sc1")
    A.vmq.pop()
    A.I("s_mov_b64", "exec", -1)
    A.label(L("M_nf2"))
    if "touch" in OPTS:
        A.I("v_min_u32", "v240", 47, "v1")
        A.I("v_lshlrev_b32", "v240", 7, "v240")
        A.I("buffer_load_dword", "v241", "v240", "s[24:27]", "s68", mods="offen sc1")
    if NEARLY < 16:
        if NEARLY < 6:
            A.wait_vm("d2")
            for k in (0, 1, 2): w2read(k)
        A.wait_vm("d7", lgkm=0)
        for k in (3, 4, 5, 6, 7): w2read(k)
        for k in (8, 9, 10):
            w2dma(k, 0); w2dma(k, 1)
    A.I("s_branch", L("M_join"))
    A.label(L("M_g15"))
    lastk[0] = None
    if G1: A.I("s_branch", L("M_exit"))
    A.I("global_load_dword", TAG, "v10", "s[18:19]", mods="sc1", tag="tag")
    A.I("s_barrier")
    ln_reads()
    ln_stores("g")
    ln_stat("g")
    A.wait(vm=0)
    A.I("s_barrier")
    ln_flag("g")
    for b in range(16): w2dma(b // 2, b % 2)
    A.wait(vm=0)
    if "noagg" not in OPTS:
        A.I("v_lshlrev_b32", "v13", F1SH, "v1")
        A.I("s_lshl_b32", "s65", "s22", F1SH + 6)
        A.I("s_add_u32", "s65", "s65", hex(F1))
        spin_check(A, L, "M_agg", PF, TAG, pollw, first=True, sleep=1)
        A.I("s_barrier")
        A.I("s_cmp_lg_u32", "s22", 0)
        A.I("s_cbranch_scc1", L("M_agg2"))
        A.I("s_lshl_b32", "s65", "s49", 7)
        A.I("s_add_u32", "s65", "s65", hex(FA))
        A.I("s_mov_b64", "exec", 1)
        A.I("buffer_store_dword", TAG, "v10", "s[24:27]", "s65", mods="offen sc1")
        A.I("s_mov_b64", "exec", -1)
        A.label(L("M_agg2"))
        stampn(A, "m_agg")
    for k in range(8): w2read(k)
    A.wait(lgkm=0)
    for k in (8, 9, 10):
        w2dma(k, 0); w2dma(k, 1)
    A.label(L("M_join"))
    lastk[0] = None
    stampn(A, "m_f2pub")
    for k in (11, 12):
        w2dma(k, 0); w2dma(k, 1)
    A.wait(lgkm=0)
    for k in (13, 14, 15, 16, 17):
        w2dma(k, 0); w2dma(k, 1)
    stampn(A, "m_w1")
    A.wait(vm=14)
    stampn(A, "m_w2")
    for k in (8, 9, 10): w2read(k)
    A.I("v_mov_b32", "v14", TAG)
    TAG = "v14"
    A.I("v_min_u32", "v13", 14, "v1")
    A.I("v_lshlrev_b32", "v13", F2SH, "v13")
    A.I("s_lshr_b32", "s65", "s51", 1)
    A.I("s_lshl_b32", "s65", "s65", F2SH + 4)
    A.I("s_add_u32", "s65", "s65", hex(F2))
    A.I("s_lshl_b32", "s54", "s51", 16)
    A.I("s_lshl_b32", "s55", "s22", 14)
    A.I("s_add_u32", "s54", "s54", "s55")
    A.I("s_add_u32", "s54", "s54", "s60")
    A.I("s_add_u32", "s55", "s54", 8192)
    A.I("s_mul_i32", "s56", "s51", 172)
    A.I("s_add_u32", "s56", "s56", "s58")
    A.I("s_lshl_b32", "s56", "s56", 10)
    A.I("s_add_u32", "s56", "s56", hex(HF))
    A.I("s_add_u32", "s62", "s56", 86 * 1024)
    XR = 240
    def xo(e, gp, ip): return ("s54" if gp == 0 else "s55", ip * 2048 + e * 64)
    for qq in range(8):
        so, im = xo(qq >> 2, (qq >> 1) & 1, qq & 1)
        A.I("buffer_load_dword", vr(XR + qq), "v9", "s[40:43]", so, mods=f"offen offset:{im}")
    A.I("v_lshl_add_u32", "v6", "v5", 1, "s60")
    A.I("global_load_ushort", "v12", "v6", "s[14:15]")
    A.I("global_load_ushort", "v3", "v6", "s[14:15]", mods="offset:64")
    A.wait(lgkm=0)
    for k in (18, 19, 20):
        w2dma(k, 0); w2dma(k, 1)
    stampn(A, "m_w3")
    A.wait_vm("d11")
    w2read(11)
    A.wait(lgkm=0)
    w2dma(21, 0); w2dma(21, 1)
    stampn(A, "m_w4")
    A.I("s_cmp_lg_u32", "s22", 0)
    A.I("s_cbranch_scc1", L("M_p2w"))
    A.I("s_mov_b64", "exec", "0x7fff")
    spin_check(A, L, "M_p2", PF, TAG, pollw, first=True)
    A.I("s_mov_b64", "exec", -1)
    A.label(L("M_p2w"))
    A.I("s_barrier")
    stampn(A, "m_f2")
    ACC = 128; NH = 8
    HR = lambda k: (192 + 8 * (k % NH)) if (k % NH) < 6 else (112 + 8 * (k % NH - 6))
    def issueH(k):
        A.I("s_add_u32", "s23", "s79", k)
        A.I("s_cmp_ge_u32", "s23", "s48")
        A.I("s_cselect_b32", "s63", "s48", 0)
        A.I("s_sub_u32", "s23", "s23", "s63")
        A.I("s_lshl_b32", "s23", "s23", 10)
        A.I("s_add_u32", "s63", "s23", "s56")
        A.I("s_add_u32", "s23", "s23", "s62")
        A.I("buffer_load_dwordx4", vr(HR(k), 4), "v2", "s[24:27]", "s63", mods="offen sc1")
        A.I("buffer_load_dwordx4", vr(HR(k) + 4, 4), "v2", "s[24:27]", "s23", mods="offen sc1", tag=f"h{k}")
    for k in range(NH): issueH(k)
    A.I("v_and_b32", "v13", 7, "v1")
    A.I("v_lshlrev_b32", "v8", 4, "v13")
    A.I("v_lshlrev_b32", "v13", F3SH, "v13")
    A.I("s_lshl_b32", "s65", "s52", F3SH + 5)
    A.I("s_lshl_b32", "s71", "s22", F3SH + 3)
    A.I("s_add_u32", "s65", "s65", "s71")
    A.I("s_add_u32", "s65", "s65", hex(F3))
    A.I("v_lshrrev_b32", "v7", 3, "v1")
    A.I("v_lshl_add_u32", "v7", "v7", 12, "v8")
    A.I("s_lshl_b32", "s67", "s52", 18)
    A.I("s_lshl_b32", "s68", "s22", 16)
    A.I("s_add_u32", "s67", "s67", "s68")
    A.I("s_lshl_b32", "s68", "s51", 7)
    A.I("s_add_u32", "s67", "s67", "s68")
    A.I("s_add_u32", "s67", "s67", hex(ST))
    A.I("s_add_u32", "s68", "s67", 8 * 4096)
    A.I("s_mov_b32", "s75", 0)
    def sload():
        A.I("buffer_load_dwordx4", "v[96:99]", "v7", "s[24:27]", "s67", mods="offen sc1")
        A.I("buffer_load_dwordx4", "v[100:103]", "v7", "s[24:27]", "s68", mods="offen sc1")
    for k in range(22):
        if k == 21:
            A.I("s_cmp_ge_u32", "s22", 2)
            A.I("s_cbranch_scc1", L("M_skip21"))
        A.wait_vm(f"h{k}")
        stampn(A, f"m_k{k}")
        if k >= 12: A.wait_l(f"S{k}")
        for tj in range(2):
            for e in range(2):
                acc = vr(ACC + 32 * tj + 16 * e, 16)
                A.I("v_mfma_f32_32x32x16_bf16", acc, vr(HR(k) + 4 * tj, 4), vr(wreg(k, e), 4), acc if k else "0")
        if k + NH < 22: issueH(k + NH)
        if k < 10: w2read(k + 12)
        if k == 13: pollw()
        if k == 18 and "kx3" not in OPTS:
            A.wait_vm("pw")
            A.I("v_cmp_ne_u32", "vcc", PF, TAG)
            A.I("s_cbranch_vccnz", L("M_s_no"))
            sload(); A.vmq.pop(); A.vmq.pop()
            A.I("s_mov_b32", "s75", 1)
            A.label(L("M_s_no"))
    A.label(L("M_skip21"))
    stampn(A, "m_g2")
    A.I("s_cmp_eq_u32", "s75", 1)
    A.I("s_cbranch_scc1", L("M_s_have"))
    if "kx3" not in OPTS: spin_check(A, L, "M_p3", PF, TAG, pollw, first=True)
    sload()
    A.label(L("M_s_have"))
    stampn(A, "m_f3")
    A.I("v_add_u32", "v252", "s57", "v2")
    A.I("v_add_u32", "v253", "s61", "v2")
    OWN = 16
    A.I("s_nop", 7)
    for wd in range(4):
        src = [ACC + 32 * (wd >> 1) + 16 * e + 8 * (wd & 1) + 4 * q for e in range(2) for q in range(2)]
        A.I("s_cmp_eq_u32", "s22", wd)
        A.I("s_cbranch_scc1", L(f"own{wd}"))
        for q, r in enumerate(src):
            if q < 3: A.I("ds_write_b128", "v252", vr(r, 4), mods=f"offset:{wd * 12288 + q * 1024}")
            else: A.I("ds_write_b128", "v253", vr(r, 4), mods=f"offset:{16384 + wd * 1024}")
        A.I("s_branch", L(f"nxt{wd}"))
        A.label(L(f"own{wd}"))
        if wd == 0: A.I("s_nop", 3)
        for q, r in enumerate(src):
            for i in range(0, 4, 2):
                A.I("v_pk_mov_b32", vr(OWN + 4 * q + i, 2), vr(r + i, 2), vr(r + i, 2), mods="op_sel:[0,1]")
        A.label(L(f"nxt{wd}"))
    A.I("s_lshl_b32", "s71", "s22", 5)
    A.I("v_add_u32", "v63", "s71", "v253")
    A.wait(vm=0)
    A.I("ds_write_b128", "v63", "v[96:99]")
    A.I("ds_write_b128", "v63", "v[100:103]", mods="offset:1040")
    XU = 32
    for q in range(8):
        A.I("v_lshlrev_b32", vr(XU + 2 * q), 16, vr(XR + q))
        A.I("v_and_b32", vr(XU + 2 * q + 1), "s64", vr(XR + q))
    A.I("v_lshlrev_b32", "v124", 16, "v12")
    A.I("v_lshlrev_b32", "v126", 16, "v3")
    A.I("v_lshrrev_b32", "v56", 4, "v5")
    A.I("v_mul_u32_u24", "v56", 4128, "v56")
    A.I("v_bfe_u32", "v57", "v5", 3, 1)
    A.I("v_mul_u32_u24", "v57", 1040, "v57")
    A.I("v_add_u32", "v56", "v56", "v57")
    A.I("v_and_b32", "v57", 7, "v5")
    A.I("v_lshl_add_u32", "v56", "v57", 7, "v56")
    A.I("v_lshl_add_u32", "v56", "v4", 3, "v56")
    A.I("v_add_u32", "v56", "s71", "v56")
    for sl in range(3):
        A.I("s_add_u32", "s71", "s22", 1 + sl)
        A.I("s_and_b32", "s71", "s71", 3)
        A.I("s_mul_i32", "s72", "s71", 3072)
        A.I("s_mul_i32", "s73", "s22", 12288)
        A.I("s_add_u32", "s72", "s72", "s73")
        A.I("v_add_u32", vr(120 + sl), "s72", "v2")
        A.I("s_lshl_b32", "s71", "s71", 12)
        A.I("s_lshl_b32", "s72", "s22", 10)
        A.I("s_add_u32", "s71", "s71", "s72")
        A.I("s_add_u32", "s71", "s71", XB + 16384)
        A.I("v_add_u32", vr(58 + sl), "s71", "v2")
    for p in range(8):
        A.I("v_pk_add_f32", vr(OWN + 2 * p, 2), vr(OWN + 2 * p, 2), "v[124:125]" if p < 4 else "v[126:127]", mods="op_sel_hi:[1,0]")
    A.I("s_mov_b32", "s72", "0xbfb8aa3b")
    A.I("s_mov_b32", "s73", "0xbfb8aa3b")
    A.wait(lgkm=0)
    A.I("s_barrier")
    stampn(A, "m_red")
    RD = 64
    for sl in range(3):
        for q in range(4):
            if q < 3: A.I("ds_read_b128", vr(RD + 16 * sl + 4 * q, 4), vr(120 + sl), mods=f"offset:{q * 1024}")
            else: A.I("ds_read_b128", vr(RD + 16 * sl + 4 * q, 4), vr(58 + sl), tag=f"R{sl}")
    SV = 112
    for e in range(2):
        for gp in range(2):
            A.I("ds_read_b64", vr(SV + 4 * e + 2 * gp, 2), "v56", mods=f"offset:{XB + 2 * 4128 * e + 16 * gp}")
    for sl in range(3):
        A.wait_l(f"R{sl}")
        for p in range(8):
            A.I("v_pk_add_f32", vr(OWN + 2 * p, 2), vr(OWN + 2 * p, 2), vr(RD + 16 * sl + 2 * p, 2))
    T_ = 128; SU = 144
    for p in range(8): A.I("v_pk_mul_f32", vr(T_ + 2 * p, 2), vr(OWN + 2 * p, 2), "s[72:73]")
    for r in range(16): A.I("v_exp_f32", vr(T_ + r), vr(T_ + r))
    A.wait(lgkm=0)
    for k in range(8):
        A.I("v_lshlrev_b32", vr(SU + 2 * k), 16, vr(SV + k))
        A.I("v_and_b32", vr(SU + 2 * k + 1), "s64", vr(SV + k))
    for p in range(8): A.I("v_pk_add_f32", vr(T_ + 2 * p, 2), vr(T_ + 2 * p, 2), "1.0", mods="op_sel_hi:[1,0]")
    for p in range(8): A.I("v_pk_mul_f32", vr(SU + 2 * p, 2), vr(SU + 2 * p, 2), vr(OWN + 2 * p, 2))
    for r in range(16): A.I("v_rcp_f32", vr(T_ + r), vr(T_ + r))
    for p in range(8): A.I("v_pk_mul_f32", vr(T_ + 2 * p, 2), vr(T_ + 2 * p, 2), vr(SU + 2 * p, 2))
    A.I("s_mov_b32", "vcc_lo", "0x55555555")
    A.I("s_mov_b32", "vcc_hi", "0x55555555")
    QP = "quad_perm:[1,0,3,2] row_mask:0xf bank_mask:0xf"
    for p in range(8): A.I("v_cndmask_b32_dpp", vr(SU + 2 * p), vr(T_ + 2 * p + 1), vr(T_ + 2 * p), "vcc", mods=QP)
    A.I("s_not_b64", "vcc", "vcc")
    for p in range(8): A.I("v_cndmask_b32_dpp", vr(SU + 2 * p + 1), vr(T_ + 2 * p), vr(T_ + 2 * p + 1), "vcc", mods=QP)
    for p in range(8):
        A.I("v_pk_add_f32", vr(SU + 2 * p, 2), vr(SU + 2 * p, 2), vr(XU + 2 * p, 2))
        A.I("v_cvt_pk_bf16_f32", vr(64 + p), vr(SU + 2 * p), vr(SU + 2 * p + 1))
        so, im = xo(p >> 2, (p >> 1) & 1, p & 1)
        A.I("buffer_store_dword", vr(64 + p), "v9", "s[44:47]", so, mods=f"offen offset:{im}" + os.environ.get("OUTMOD", ""))
    A.unpk = False
    A.label(L("M_exit"))
    stamp_flush(A, 0, "s[20:21]", 7)
    A.I("s_endpgm")
```

```python
from asmlib import *
from layout1 import *
from k_prep import srd, DPPM, reduce32, gen_kgen_pair_setup, gen_kgen_pair_np
import k_prep
def gen_kgen_pair(A, P, vidx, pi):
    lim = int(os.environ.get('NPFROM', 8))
    (gen_kgen_pair_np if pi >= lim else k_prep.gen_kgen_pair)(A, P, vidx, pi)
KC = 0
UL = 33280
KDT = UL + 9216
KTS = 5888
ACCX = KDT + 2 * KTS
PSET = [(0, 3, 5, 6), (1, 2, 4, 7)]

def spin_check(A, L, name, vflag, vtag, reissue, cnt="s70", first=False, wait_tag=None, sleep=2):
    if first: reissue()
    A.I("s_mov_b32", cnt, SPIN_LIMIT)
    if wait_tag: A.wait_vm(wait_tag)
    else: A.wait(vm=0)
    A.label(L(name))
    A.I("v_cmp_ne_u32", "vcc", vflag, vtag)
    A.I("s_cbranch_vccz", L(name + "_ok"))
    A.I("s_sub_u32", cnt, cnt, 1)
    A.I("s_cbranch_scc1", L(name + "_ok"))
    A.I("s_sleep", sleep)
    reissue(); A.vmq.pop()
    A.wait(vm=0)
    A.I("s_branch", L(name))
    A.label(L(name + "_ok"))

def get_tag(A, L, name, vtag, vzero, dbg, cnt="s70"):
    A.I("s_mov_b32", cnt, SPIN_LIMIT)
    A.label(L(name))
    A.I("v_cmp_eq_u32", "vcc", 0, vtag)
    A.I("s_cbranch_vccz", L(name + "_ok"))
    A.I("s_sub_u32", cnt, cnt, 1)
    A.I("s_cbranch_scc1", L(name + "_ok"))
    A.I("s_sleep", 2)
    A.I("global_load_dword", vtag, vzero, dbg, mods="sc1"); A.vmq.pop()
    A.wait(vm=0)
    A.I("s_branch", L(name))
    A.label(L(name + "_ok"))

def code_prefetch(A, start_label, nbytes, vtmp, vdst, L):
    A.I("s_getpc_b64", "s[74:75]")
    A.I("v_lshlrev_b32", vtmp, 7, "v0")
    assert nbytes <= 32768
    A.I("v_cmp_gt_u32", "vcc", nbytes - 256, vtmp)
    A.I("v_cndmask_b32", vtmp, 0, vtmp, "vcc")
    A.I("global_load_dword", vdst, vtmp, "s[74:75]")

def code_prefetch2(A, nbytes):
    per = ((nbytes - 256) // 128 + 31) // 32
    A.I("s_getpc_b64", "s[74:75]")
    A.I("s_bfe_u32", "s72", "s2", "0x50003")
    A.I("s_mul_i32", "s72", "s72", per * 128)
    A.I("v_lshlrev_b32", "v3", 7, "v0")
    A.I("v_add_u32", "v3", "s72", "v3")
    A.I("v_min_u32", "v3", nbytes - 256, "v3")
    A.I("v_cmp_gt_u32", "vcc", per, "v0")
    A.I("s_and_saveexec_b64", "s[72:73]", "vcc")
    A.I("global_load_dword", "v3", "v3", "s[74:75]")
    A.I("s_mov_b64", "exec", "s[72:73]")

def swarm(A, base, sid, sw):
    A.I("s_lshl_b32", "s96", sid, 2)
    A.I("s_add_u32", "s96", "s96", sw)
    A.I("s_mul_i32", "s96", "s96", 11 * 128)
    A.I("s_min_u32", "s96", "s96", 1376 * 1024 - 11 * 128)
    A.I("s_add_u32", "s96", "s96", base[:base.index(':')].replace('[', ''))
    A.I("s_addc_u32", "s97", "s" + base[base.index(':') + 1:-1], 0)
    for i in range(11):
        A.I("s_load_dword", "s99", "s[96:97]", 128 * i)

def gen_K(A, L, ksize):
    LNAT = int(os.environ.get("LNAT", 2)); PRIOAT = int(os.environ.get("PRIOAT", 3))
    A.label(L("K"))
    if "nok" in OPTS: A.I("s_endpgm")
    A.I("s_setprio", 3)
    A.I("s_memrealtime", "s[76:77]")
    A.I("s_load_dwordx16", "s[4:19]", "s[0:1]", 0)
    A.I("s_load_dwordx2", "s[20:21]", "s[0:1]", 64)
    A.I("s_load_dwordx4", "s[24:27]", "s[0:1]", 120)
    A.I("s_load_dwordx2", "s[22:23]", "s[0:1]", 96)
    A.I("s_load_dwordx2", "s[68:69]", "s[0:1]", 80)
    code_prefetch2(A, ksize)
    A.I("s_and_b32", "s3", "s2", 255)
    A.I("v_and_b32", "v1", 63, "v0")
    A.I("v_lshrrev_b32", "v2", 6, "v0")
    A.I("v_readfirstlane_b32", "s28", "v2")
    A.I("s_and_b32", "s29", "s3", 7)
    A.I("s_lshl_b32", "s29", "s29", 5)
    A.I("s_lshr_b32", "s30", "s3", 3)
    A.I("s_add_u32", "s29", "s29", "s30")
    A.I("s_lshr_b32", "s30", "s28", 1)
    A.I("s_and_b32", "s31", "s28", 1)
    A.I("s_lshl_b32", "s32", "s29", 1)
    A.I("s_add_u32", "s32", "s32", "s30")
    A.I("s_lshl_b32", "s33", "s31", 7)
    A.I("s_lshl_b32", "s34", "s32", 8)
    A.I("s_add_u32", "s33", "s33", "s34")
    A.I("v_and_b32", "v2", 7, "v1")
    A.I("v_lshl_add_u32", "v2", "v2", 4, "s33")
    A.I("s_lshl_b32", "s34", "s3", 3)
    A.I("s_lshl_b32", "s35", "s28", 1)
    A.I("s_add_u32", "s34", "s34", "s35")
    A.I("s_lshl_b32", "s34", "s34", 10)
    A.I("v_lshrrev_b32", "v5", 5, "v1")
    A.I("v_and_b32", "v6", 31, "v1")
    A.I("v_lshlrev_b32", "v4", 10, "v5")
    A.I("v_lshl_add_u32", "v4", "v6", 4, "v4")
    A.I("v_add_u32", "v4", "s34", "v4")
    A.I("v_mov_b32", "v122", 0)
    A.I("v_lshlrev_b32", "v7", 4, "v1")
    A.I("s_lshl_b32", "s33", "s29", 2)
    A.I("s_lshl_b32", "s57", "s3", 12)
    A.I("s_lshl_b32", "s58", "s28", 10)
    A.I("s_add_u32", "s57", "s57", "s58")
    A.I("s_add_u32", "s58", "s57", 1 << 20)
    A.wait(lgkm=0)
    P = 48; X = 160
    A.I("s_mov_b64", "exec", "0xff")
    for k, sb in enumerate((6, 8, 10, 12, 14, 16)):
        A.I("v_mov_b32", "v136", sr(sb))
        A.I("v_mov_b32", "v137", sr(sb + 1))
        if k < 5: A.I("s_lshl_b64", "exec", "exec", 8)
    A.I("s_mov_b32", "exec_lo", -1)
    A.I("s_mov_b32", "exec_hi", "0xffff")
    A.I("v_add_co_u32", "v136", "vcc", "v136", "v2")
    A.I("v_addc_co_u32", "v137", "vcc", 0, "v137", "vcc")
    A.I("global_load_dwordx4", "v[140:143]", "v[136:137]", "off", tag="par")
    A.I("s_mov_b64", "exec", -1)
    A.I("s_load_dword", "s36", "s[20:21]", "s33")
    A.I("s_load_dword", "s52", "s[18:19]", "s33")
    A.I("s_or_b32", "s76", "s76", 1)
    A.I("s_or_b32", "s61", "s3", "s28")
    A.I("s_cmp_lg_u32", "s61", 0)
    A.I("s_cbranch_scc1", L("K_notag"))
    A.I("v_mov_b32", "v123", "s76")
    A.I("s_mov_b64", "exec", 1)
    A.I("global_store_dword", "v122", "v123", "s[24:25]", mods="sc1"); A.vmq.pop()
    A.I("s_mov_b64", "exec", -1)
    A.label(L("K_notag"))
    A.I("global_load_dwordx4", vr(X, 4), "v4", "s[4:5]")
    A.I("global_load_dwordx4", vr(X + 4, 4), "v4", "s[4:5]", mods="offset:512", tag="x")
    srd(A, 44, 26, WS_SIZE)
    W2AT = int(os.environ.get("W2AT", 3))
    def w2warm():
        srd(A, 64, 22, 1376 * 1024)
        A.I("buffer_load_dwordx4", "v[60:63]", "v7", "s[64:67]", "s57", mods="offen")
        A.I("buffer_load_dwordx4", "v[60:63]", "v7", "s[64:67]", "s58", mods="offen")
    if "swarm" in OPTS:
        swarm(A, "s[68:69]", "s3", "s28")
    else:
        srd(A, 64, 68, 1376 * 1024)
        A.I("buffer_load_dwordx4", "v[60:63]", "v7", "s[64:67]", "s57", mods="offen")
        A.I("buffer_load_dwordx4", "v[60:63]", "v7", "s[64:67]", "s58", mods="offen")
        if W2AT < 0: w2warm()
    A.I("s_mov_b32", "s56", "0x3f803f80")
    A.I("s_mov_b32", "s59", "0xffff0000")
    A.I("v_and_b32", "v56", 15, "v1")
    A.I("v_cvt_f32_u32", "v56", "v56")
    LNL = ACCX + 4096
    A.I("s_mul_i32", "s60", "s28", 2 * 1088)
    A.I("s_add_u32", "s60", "s60", LNL)
    A.I("v_mul_u32_u24", "v182", 1088, "v5")
    A.I("v_lshl_add_u32", "v182", "v6", 4, "v182")
    A.I("v_add_u32", "v182", "s60", "v182")
    A.I("v_mov_b32", "v168", 0)
    A.I("v_mov_b32", "v169", 0)
    A.I("s_lshl_b32", "s54", "s28", 8)
    A.I("s_add_u32", "s54", "s54", LNL)
    A.I("v_bfe_u32", "v183", "v1", 2, 2)
    A.I("v_mul_u32_u24", "v183", 1088, "v183")
    A.I("v_lshrrev_b32", "v18", 4, "v1")
    A.I("v_lshl_add_u32", "v183", "v18", 5, "v183")
    A.I("v_and_b32", "v18", 3, "v1")
    A.I("v_lshl_add_u32", "v183", "v18", 3, "v183")
    A.I("v_add_u32", "v183", "s54", "v183")
    A.I("s_lshl_b32", "s54", "s3", 13)
    A.I("s_lshl_b32", "s55", "s28", 11)
    A.I("s_add_u32", "s54", "s54", "s55")
    A.I("s_add_u32", "s55", "s54", hex(XNT))
    A.I("s_lshl_b32", "s53", "s28", 10)
    A.I("s_add_u32", "s53", "s53", ACCX)
    A.I("v_add_u32", "v138", "s53", "v7")
    A.I("v_lshl_add_u32", "v139", "v1", 1, "s53")
    A.I("s_mul_i32", "s37", "s30", KTS)
    A.I("s_add_u32", "s37", "s37", KDT + 32)
    A.I("s_mov_b32", "s38", -17024)
    A.I("s_movk_i32", "s39", 127)
    A.I("s_lshl_b32", "s40", "s31", 10)
    A.I("v_lshl_add_u32", "v20", "v1", 3, "s40")
    AD = 200
    for rd in range(2):
        for ii in range(11):
            A.I("v_sub_u32", vr(AD + 11 * rd + ii), 2044 - 512 * rd - (ii - 3), "v20")
        for ii in range(11):
            if rd == 1 and ii >= 8:
                A.I("v_max_i32", vr(24 + ii), 0, vr(AD + 11 * rd + ii))
                A.I("v_cvt_f32_u32", vr(24 + ii), vr(24 + ii))
            else:
                A.I("v_cvt_f32_u32", vr(24 + ii), vr(AD + 11 * rd + ii))
        for ii in range(0, 11, 2):
            A.I("v_cvt_pk_bf16_f32", vr(36 + ii // 2), vr(24 + ii), vr(24 + min(ii + 1, 10)))
        for ii in range(11):
            A.I("v_mad_u32_u16", vr(24 + ii), vr(36 + ii // 2), 1, "s38", mods=("op_sel:[1,0,0,0]" if ii & 1 else ""))
        for ii in range(11):
            A.I("v_med3_i32", vr(24 + ii), vr(24 + ii), vr(AD + 11 * rd + ii), "s39")
        for ii in range(11):
            A.I("v_ashrrev_i32", vr(AD + 11 * rd + ii), 3, vr(24 + ii))
        for ii in range(11):
            A.I("v_add_u32", vr(24 + ii), vr(24 + ii), vr(AD + 11 * rd + ii))
        for ii in range(11):
            A.I("v_lshl_add_u32", vr(AD + 11 * rd + ii), vr(24 + ii), 3, "s37")
    for k in range(4): A.I("v_mov_b32", vr(24 + k), 0)
    A.I("s_mul_i32", "s43", "s30", 4608)
    A.I("s_add_u32", "s43", "s43", UL)
    A.I("v_lshl_add_u32", "v10", "v1", 3, "s43")
    A.I("ds_write_b64", "v10", "v[24:25]")
    A.I("s_mul_i32", "s48", "s30", 16640)
    A.I("v_and_b32", "v121", 1, "v1")
    A.I("v_lshrrev_b32", "v10", 1, "v1")
    A.I("v_mul_u32_u24", "v11", 4160, "v10")
    A.I("v_lshl_add_u32", "v11", "v121", 4, "v11")
    A.I("v_add_u32", "v11", "s48", "v11")
    A.I("s_sub_u32", "s50", "s37", 32)
    A.I("v_lshl_add_u32", "v12", "v121", 4, "s50")
    A.I("s_mov_b64", "exec", "0xff")
    A.I("ds_write_b128", "v11", "v[24:27]", mods="offset:4096")
    A.I("ds_write_b128", "v12", "v[24:27]")
    A.I("s_mov_b64", "exec", -1)
    A.I("v_lshlrev_b32", "v32", 13, "v10")
    A.I("v_lshl_add_u32", "v32", "v121", 4, "v32")
    A.I("v_mul_u32_u24", "v33", 4608, "v121")
    A.I("v_lshl_add_u32", "v33", "v10", 4, "v33")
    A.I("s_lshl_b32", "s49", "s28", 10)
    A.I("s_add_u32", "s49", "s49", UL + 512)
    A.I("v_add_u32", "v33", "s49", "v33")
    if "agg" not in OPTS:
        A.I("s_lshl_b32", "s71", "s28", F1SH + 6)
        A.I("v_lshl_add_u32", "v120", "v1", F1SH, "s71")
        A.I("s_mov_b32", "s41", hex(F1))
    else:
        A.I("v_mov_b32", "v120", 0)
        A.I("s_bfe_u32", "s41", "s3", "0x40001")
        A.I("s_lshl_b32", "s41", "s41", 7)
        A.I("s_add_u32", "s41", "s41", hex(FA))
    A.I("s_lshl_b32", "s42", "s31", 2)
    A.I("s_add_u32", "s42", "s42", "s37")
    A.I("v_and_b32", "v8", 15, "v1")
    A.I("v_lshrrev_b32", "v14", 4, "v1")
    A.I("v_mul_u32_u24", "v34", 144, "v8")
    A.I("v_lshl_add_u32", "v34", "v14", 5, "v34")
    A.I("v_lshl_add_u32", "v34", "v5", 3, "v34")
    A.I("v_add_u32", "v34", "s42", "v34")
    for sg in range(1, 4): A.I("v_add_u32", vr(34 + sg), 1152 * sg, "v34")
    A.I("v_mov_b32", "v39", "s42")
    A.I("s_lshl_b32", "s49", "s31", 11)
    A.I("s_add_u32", "s50", "s49", "s48")
    A.I("v_add_u32", "v40", "s50", "v7")
    A.I("v_and_b32", "v41", 3, "v1")
    A.I("v_mul_u32_u24", "v41", 4160, "v41")
    A.I("v_bfe_u32", "v13", "v1", 2, 2)
    A.I("v_lshlrev_b32", "v13", 3, "v13")
    A.I("v_lshl_add_u32", "v13", "v14", 4, "v13")
    A.I("v_sub_u32", "v41", "v41", "v13")
    A.I("s_add_u32", "s50", "s48", 2 * 2052 - 64 * 63)
    A.I("v_add_u32", "v41", "s50", "v41")
    A.I("v_lshlrev_b32", "v42", 5, "v8")
    A.I("v_lshlrev_b32", "v15", 4, "v14")
    A.I("v_sub_u32", "v42", "v42", "v15")
    A.I("s_add_u32", "s50", "s43", 512 + 16 - 448)
    A.I("v_add_u32", "v42", "s50", "v42")
    A.I("v_lshlrev_b32", "v43", 5, "v8")
    A.I("v_lshl_add_u32", "v43", "v14", 3, "v43")
    A.I("s_add_u32", "s50", "s43", "s49")
    A.I("s_add_u32", "s50", "s50", 512)
    A.I("v_add_u32", "v44", "s50", "v43")
    A.wait_vm("par", lgkm=0)
    stampn(A, "k_x")
    A.I("global_load_dword", "v123", "v122", "s[24:25]", mods="sc1", tag="tag")
    A.I("ds_write_b128", "v138", "v[140:143]")
    A.I("s_lshl_b32", "s53", "s30", 4)
    A.I("s_lshr_b32", "s52", "s52", "s53")
    A.I("v_mov_b32", vr(P + 6), "s52")
    A.wait(lgkm=0)
    for k in range(6): A.I("ds_read_u16", vr(P + k), "v139", mods=f"offset:{128 * k}")
    A.wait(lgkm=0)
    gen_kgen_pair_setup(A, P)
    def ln_block():
        stampn(A, "k_ln")
        A.unpk = "lnnp" in OPTS
        A.wait_vm("x")
        for k in range(8):
            A.I("v_dot2_f32_bf16", "v168", vr(X + k), "s56", "v168")
            A.I("v_dot2_f32_bf16", "v169", vr(X + k), vr(X + k), "v169")
        reduce32(A, [168, 169], [170, 171])
        A.I("v_mul_f32", "v168", "0x3b000000", "v168")
        A.I("v_mul_f32", "v169", "0x3b000000", "v169")
        A.I("v_fma_f32", "v169", "-v168", "v168", "v169")
        A.I("v_max_f32", "v169", 0, "v169")
        A.I("v_cvt_pk_bf16_f32", "v192", 0, "v168")
        A.I("v_cvt_pk_bf16_f32", "v169", 0, "v169")
        A.I("v_add_f32", "v169", "0x3727c5ac", "v169")
        A.I("v_cvt_pk_bf16_f32", "v169", 0, "v169")
        A.I("v_sqrt_f32", "v169", "v169")
        A.I("v_cvt_pk_bf16_f32", "v194", 0, "v169")
        A.I("v_rcp_f32", "v172", "v194")
        for k in range(8):
            t = 174 + 2 * (k % 4)
            A.I("v_lshlrev_b32", vr(t), 16, vr(X + k))
            A.I("v_and_b32", vr(t + 1), "s59", vr(X + k))
            A.I("v_pk_add_f32", vr(t, 2), vr(t, 2), "v[192:193]", mods="op_sel_hi:[1,0] neg_lo:[0,1] neg_hi:[0,1]")
            if "lnmimic" in OPTS:
                A.I("v_cvt_pk_bf16_f32", vr(t), 0, vr(t))
                A.I("v_cvt_pk_bf16_f32", vr(t + 1), 0, vr(t + 1))
            A.I("v_pk_mul_f32", vr(t, 2), vr(t, 2), "v[172:173]", mods="op_sel_hi:[1,0]")
            A.I("v_cvt_pk_bf16_f32", vr(X + k), vr(t), vr(t + 1))
            if k == 3: A.I("ds_write_b128", "v182", vr(X, 4))
        A.I("ds_write_b128", "v182", vr(X + 4, 4), mods="offset:512")
        A.unpk = False
        A.I("v_mov_b32", "v193", "v172")
        A.I("v_lshlrev_b32", "v196", 4, "v5")
        A.I("s_lshl_b32", "s71", "s3", 7)
        A.I("s_lshl_b32", "s72", "s28", 5)
        A.I("s_add_u32", "s71", "s71", "s72")
        A.I("s_add_u32", "s71", "s71", hex(STAT))
        A.wait(lgkm=0)
        A.I("s_barrier")
        A.I("ds_read_b64_tr_b16", "v[184:185]", "v183")
        A.I("ds_read_b64_tr_b16", "v[186:187]", "v183", mods=f"offset:{4*1088}")
        A.I("ds_read_b64_tr_b16", "v[188:189]", "v183", mods="offset:128")
        A.I("ds_read_b64_tr_b16", "v[190:191]", "v183", mods=f"offset:{4*1088+128}")
        A.wait(lgkm=2)
        A.I("buffer_store_dwordx4", "v[184:187]", "v7", "s[44:47]", "s55", mods="offen sc1")
        A.wait(lgkm=0)
        A.I("buffer_store_dwordx4", "v[188:191]", "v7", "s[44:47]", "s55", mods="offen offset:1024 sc1")
        A.wait_vm("tag")
        get_tag(A, L, "K_tag", "v123", "v122", "s[24:25]")
        A.I("v_mov_b32", "v195", "v123")
        A.I("v_readfirstlane_b32", "s51", "v123")
        A.I("s_mov_b32", "exec_lo", 1)
        A.I("s_mov_b32", "exec_hi", 1)
        A.I("buffer_store_dwordx4", "v[192:195]", "v196", "s[44:47]", "s71", mods="offen sc1")
        A.I("s_mov_b64", "exec", -1)
        stampn(A, "k_st")
    def f1_block():
        A.wait(vm=1)
        A.I("s_barrier")
        A.I("s_cmp_lg_u32", "s28", 0)
        A.I("s_cbranch_scc1", L("K_f1done"))
        A.I("s_lshl_b32", "s71", "s3", F1SH)
        A.I("s_add_u32", "s71", "s71", hex(F1))
        A.I("s_mov_b64", "exec", 1)
        A.I("buffer_store_dword", "v123", "v122", "s[44:47]", "s71", mods="offen sc1")
        A.I("s_mov_b64", "exec", -1)
        A.label(L("K_f1done"))
        stampn(A, "k_f1")
        if "kx3" in OPTS: A.I("s_branch", L("K_end"))
    def poll_issue():
        A.I("buffer_load_dword", "v121", "v120", "s[44:47]", "s41", mods="offen sc1")
    def gather(sfx=''):
        spin_check(A, L, "K_p1" + sfx, "v121", "v123", poll_issue, sleep=int(os.environ.get("KSLEEP", 8)))
        A.I("s_lshl_b32", "s62", "s28", 19)
        A.I("s_lshl_b32", "s63", "s29", 5)
        A.I("s_add_u32", "s62", "s62", "s63")
        A.I("s_add_u32", "s62", "s62", hex(XNT))
        A.I("s_add_u32", "s63", "s62", 32 * 8192)
        A.I("buffer_load_dwordx4", "v[172:175]", "v32", "s[44:47]", "s62", mods="offen sc1")
        A.I("buffer_load_dwordx4", "v[176:179]", "v32", "s[44:47]", "s63", mods="offen sc1")
    F1AT = min(LNAT + 1, 8)
    POLLAT = int(os.environ.get('POLLAT', 9)); GATHAT = int(os.environ.get('GATHAT', 8))
    for pi in range(8):
        if pi == PRIOAT: A.I("s_setprio", 0)
        if pi == LNAT: ln_block()
        if pi == F1AT: f1_block()
        if pi == POLLAT: poll_issue()
        if pi == GATHAT: gather()
        if pi == W2AT: w2warm()
        stampn(A, f"k_p{pi}")
        gen_kgen_pair(A, P, 56, pi)
    if PRIOAT == 8: A.I("s_setprio", 0)
    if LNAT >= 8: ln_block()
    if PRIOAT == 9: A.I("s_setprio", 0)
    stampn(A, "k_kgen")
    if "midhi" in OPTS: A.I("s_setprio", 3)
    KACC = 100
    A.I("ds_write2_b32", "v34", vr(KACC), vr(KACC + 1), mods="offset0:0 offset1:2")
    A.I("ds_write2_b32", "v34", vr(KACC + 2), vr(KACC + 3), mods="offset0:4 offset1:6")
    A.I("s_mov_b32", "exec_lo", "0xff00ff00")
    A.I("s_mov_b32", "exec_hi", "0xff00ff00")
    for s in range(1, 4):
        A.I("ds_write2_b32", vr(34 + s), vr(KACC + 4 * s), vr(KACC + 4 * s + 1), mods="offset0:0 offset1:2")
        A.I("ds_write2_b32", vr(34 + s), vr(KACC + 4 * s + 2), vr(KACC + 4 * s + 3), mods="offset0:4 offset1:6")
    A.I("s_mov_b64", "exec", "0x8000")
    A.I("ds_write_b32", "v39", vr(KACC + 18), mods=f"offset:{8 * 720}")
    A.I("s_mov_b64", "exec", -1)
    if POLLAT <= 7 and GATHAT == 8: gather()
    A.wait(lgkm=0)
    A.I("s_barrier")
    if POLLAT > 7 and F1AT < 8: poll_issue()
    stampn(A, "k_b1")
    for rd in range(2):
        for ii in range(11):
            A.I("ds_read_b64", vr(128 + 22 * rd + 2 * ii, 2), vr(AD + 11 * rd + ii), tag=f"e{rd}")
    for rd in range(2):
        A.wait_l(f"e{rd}")
        for ii in range(11):
            r = 128 + 22 * rd + 2 * ii
            A.I("v_add_f32", vr(r), vr(r), vr(r + 1))
        e = lambda ip: vr(128 + 22 * rd + 2 * (ip + 3))
        base = 64 + 16 * rd
        for sg in range(4):
            for dwi in range(4):
                lo = 2 * dwi - sg
                A.I("v_cvt_pk_bf16_f32", vr(base + 4 * sg + dwi), e(lo), e(lo + 1))
            A.I("ds_write_b128", "v40", vr(base + 4 * sg, 4), mods=f"offset:{sg * 4160 + rd * 1024}")
    if F1AT >= 8:
        A.wait(lgkm=0)
        f1_block()
    else:
        if POLLAT > 7: gather()
        if "uearly" in OPTS:
            A.wait(vm=0)
            stampn(A, "k_u")
            A.I("ds_write_b128", "v33", "v[172:175]")
            A.I("ds_write_b128", "v33", "v[176:179]", mods="offset:512")
        A.wait(lgkm=0)
        A.I("s_barrier")
    stampn(A, "k_exp")
    if PRIOAT == 10: A.I("s_setprio", 0)
    KF = 128; UB = 96; CA = 64
    A.I("s_cmp_eq_u32", "s31", 1)
    A.I("s_cbranch_scc1", L("conv1"))
    for hw in range(2):
        if hw == 1: A.label(L("conv1"))
        Ps = PSET[hw]
        steps = [(Q, r) for Q in range(8 - min(Ps)) for r in range(8)]
        first = set()
        NB = 8
        def issueU(n):
            Q, r = steps[n]
            q = 8 * Q - r
            A.I("ds_read_b128", vr(UB + 4 * (n % NB), 4), "v42", mods=f"offset:{64 * (q + 7)}", tag=f"U{n}")
        def issueK(r):
            for si, P_ in enumerate(Ps):
                p = 8 * P_ + r
                reg = KF + 32 * si + 4 * r
                A.I("ds_read_b64", vr(reg, 2), "v41", mods=f"offset:{64 * (63 - p)}")
                A.I("ds_read_b64", vr(reg + 2, 2), "v41", mods=f"offset:{64 * (63 - p) + 8}", tag=f"K{r}")
        def mf(n):
            Q, r = steps[n]
            for si, P_ in enumerate(Ps):
                if P_ + Q > 7: continue
                acc = vr(CA + 4 * (P_ + Q), 4)
                c = acc if (P_ + Q) in first else "0"
                first.add(P_ + Q)
                A.I("v_mfma_f32_16x16x32_bf16", acc, vr(KF + 32 * si + 4 * r, 4), vr(UB + 4 * (n % NB), 4), c)
        if "uearly" in OPTS:
            pass
        else:
            A.I("v_mov_b32", "v8", "v8"); A.lines.pop(); A.hist.pop()
            A.wait(vm=0)
            stampn(A, "k_u")
            A.I("ds_write_b128", "v33", "v[172:175]")
            A.I("ds_write_b128", "v33", "v[176:179]", mods="offset:512")
            A.wait(lgkm=0)
            A.I("s_barrier")
        stampn(A, "k_q0")
        A.I("s_setprio", int(os.environ.get("KPRIO", 0)))
        issueU(0); issueK(0)
        for n in range(8):
            if n < 7:
                issueU(n + 1); issueK(n + 1)
            else:
                for k in range(8, 8 + NB - 2): issueU(k)
            A.wait_l(f"K{n}")
            mf(n)
        nxt = 8 + NB - 2
        issueU(nxt); nxt += 1
        for n in range(8, len(steps)):
            A.wait_l(f"U{n}")
            mf(n)
            if nxt < len(steps): issueU(nxt)
            nxt += 1
        stampn(A, "k_mf")
        oth = range(4, 8) if hw == 0 else range(1, 4)
        A.I("s_lshl_b32", "s41", "s30", 13)
        A.I("s_add_u32", "s41", "s41", ACCX)
        A.I("v_add_u32", "v45", "s41", "v7")
        for k in range(4):
            A.I("ds_read_b64", vr(16 + 2 * k, 2), "v44", mods=f"offset:{512 * k}")
        for Aa in oth:
            A.I("ds_write_b128", "v45", vr(CA + 4 * Aa, 4), mods=f"offset:{Aa * 1024}")
        own = range(0, 4) if hw == 0 else range(4, 8)
        A.I("s_lshl_b32", "s42", "s36", 16)
        A.I("s_and_b32", "s43", "s36", "0xffff0000")
        A.I("s_cmp_eq_u32", "s30", 0)
        A.I("s_cselect_b32", "s42", "s42", "s43")
        A.I("s_mov_b32", "s43", "s42")
        A.I("s_lshl_b32", "s48", "s32", 12)
        A.I("s_add_u32", "s48", "s48", "s49")
        A.I("s_add_u32", "s48", "s48", hex(ST))
        A.wait(lgkm=0)
        A.I("s_barrier")
        A.unpk = "cenp" in OPTS
        for k, Aa in enumerate(own):
            if hw == 0 and Aa == 0: continue
            A.I("ds_read_b128", vr(UB + 4 * k, 4), "v45", mods=f"offset:{Aa * 1024}", tag=f"X{k}")
        for k, Aa in enumerate(own):
            t = 48 + 4 * k; a = CA + 4 * Aa
            A.I("v_lshlrev_b32", vr(t), 16, vr(16 + 2 * k))
            A.I("v_and_b32", vr(t + 1), "s59", vr(16 + 2 * k))
            A.I("v_lshlrev_b32", vr(t + 2), 16, vr(17 + 2 * k))
            A.I("v_and_b32", vr(t + 3), "s59", vr(17 + 2 * k))
            A.I("v_pk_fma_f32", vr(a, 2), vr(t, 2), "s[42:43]", vr(a, 2))
            A.I("v_pk_fma_f32", vr(a + 2, 2), vr(t + 2, 2), "s[42:43]", vr(a + 2, 2))
        for k, Aa in enumerate(own):
            a = CA + 4 * Aa
            if not (hw == 0 and Aa == 0):
                A.wait_l(f"X{k}")
                A.I("v_pk_add_f32", vr(a, 2), vr(a, 2), vr(UB + 4 * k, 2))
                A.I("v_pk_add_f32", vr(a + 2, 2), vr(a + 2, 2), vr(UB + 4 * k + 2, 2))
            A.I("v_cvt_pk_bf16_f32", vr(a), vr(a), vr(a + 1))
            A.I("v_cvt_pk_bf16_f32", vr(a + 1), vr(a + 2), vr(a + 3))
            A.I("buffer_store_dwordx2", vr(a, 2), "v43", "s[44:47]", "s48", mods=f"offen offset:{512 * k} sc1")
        if hw == 0: A.I("s_branch", L("K_pub"))
    A.label(L("K_pub"))
    stampn(A, "k_conv")
    A.wait(vm=0)
    A.I("s_barrier")
    A.I("s_cmp_lg_u32", "s28", 0)
    A.I("s_cbranch_scc1", L("K_end"))
    A.I("s_lshl_b32", "s71", "s29", F3SH)
    A.I("s_add_u32", "s71", "s71", hex(F3))
    A.I("v_mov_b32", "v8", "s51")
    A.I("v_mov_b32", "v9", 0)
    A.I("s_mov_b64", "exec", 1)
    A.I("buffer_store_dword", "v8", "v9", "s[44:47]", "s71", mods="offen sc1")
    A.I("s_mov_b64", "exec", -1)
    A.unpk = False
    A.label(L("K_end"))
    stamp_flush(A, 0, "s[26:27]", 7)
    A.I("s_endpgm")
```

```python
from asmlib import *
from layout1 import *
from k_prep import srd, DPPM, reduce32, gen_kgen_pair_setup, gen_kgen_pair_np
import k_prep
def gen_kgen_pair(A, P, vidx, pi):
    lim = int(os.environ.get('NPFROM', 8))
    (gen_kgen_pair_np if pi >= lim else k_prep.gen_kgen_pair)(A, P, vidx, pi)
KC = 0
UL = 33280
KDT = UL + 9216
KTS = 5888
ACCX = KDT + 2 * KTS
PSET = [(0, 3, 5, 6), (1, 2, 4, 7)]

def spin_check(A, L, name, vflag, vtag, reissue, cnt="s70", first=False, wait_tag=None, sleep=2):
    if first: reissue()
    A.I("s_mov_b32", cnt, SPIN_LIMIT)
    if wait_tag: A.wait_vm(wait_tag)
    else: A.wait(vm=0)
    A.label(L(name))
    A.I("v_cmp_ne_u32", "vcc", vflag, vtag)
    A.I("s_cbranch_vccz", L(name + "_ok"))
    A.I("s_sub_u32", cnt, cnt, 1)
    A.I("s_cbranch_scc1", L(name + "_ok"))
    A.I("s_sleep", sleep)
    reissue(); A.vmq.pop()
    A.wait(vm=0)
    A.I("s_branch", L(name))
    A.label(L(name + "_ok"))

def get_tag(A, L, name, vtag, vzero, dbg, cnt="s70"):
    A.I("s_mov_b32", cnt, SPIN_LIMIT)
    A.label(L(name))
    A.I("v_cmp_eq_u32", "vcc", 0, vtag)
    A.I("s_cbranch_vccz", L(name + "_ok"))
    A.I("s_sub_u32", cnt, cnt, 1)
    A.I("s_cbranch_scc1", L(name + "_ok"))
    A.I("s_sleep", 2)
    A.I("global_load_dword", vtag, vzero, dbg, mods="sc1"); A.vmq.pop()
    A.wait(vm=0)
    A.I("s_branch", L(name))
    A.label(L(name + "_ok"))

def code_prefetch(A, start_label, nbytes, vtmp, vdst, L):
    A.I("s_getpc_b64", "s[74:75]")
    A.I("v_lshlrev_b32", vtmp, 7, "v0")
    assert nbytes <= 32768
    A.I("v_cmp_gt_u32", "vcc", nbytes - 256, vtmp)
    A.I("v_cndmask_b32", vtmp, 0, vtmp, "vcc")
    A.I("global_load_dword", vdst, vtmp, "s[74:75]")

def code_prefetch2(A, nbytes):
    per = ((nbytes - 256) // 128 + 31) // 32
    A.I("s_getpc_b64", "s[74:75]")
    A.I("s_bfe_u32", "s72", "s2", "0x50003")
    A.I("s_mul_i32", "s72", "s72", per * 128)
    A.I("v_lshlrev_b32", "v3", 7, "v0")
    A.I("v_add_u32", "v3", "s72", "v3")
    A.I("v_min_u32", "v3", nbytes - 256, "v3")
    A.I("v_cmp_gt_u32", "vcc", per, "v0")
    A.I("s_and_saveexec_b64", "s[72:73]", "vcc")
    A.I("global_load_dword", "v3", "v3", "s[74:75]")
    A.I("s_mov_b64", "exec", "s[72:73]")

def swarm(A, base, sid, sw):
    A.I("s_lshl_b32", "s96", sid, 2)
    A.I("s_add_u32", "s96", "s96", sw)
    A.I("s_mul_i32", "s96", "s96", 11 * 128)
    A.I("s_min_u32", "s96", "s96", 1376 * 1024 - 11 * 128)
    A.I("s_add_u32", "s96", "s96", base[:base.index(':')].replace('[', ''))
    A.I("s_addc_u32", "s97", "s" + base[base.index(':') + 1:-1], 0)
    for i in range(11):
        A.I("s_load_dword", "s99", "s[96:97]", 128 * i)

def gen_K(A, L, ksize):
    LNAT = int(os.environ.get("LNAT", 2)); PRIOAT = int(os.environ.get("PRIOAT", 11))
    A.label(L("K"))
    if "nok" in OPTS: A.I("s_endpgm")
    A.I("s_setprio", int(os.environ.get("KP0", 2)))
    A.I("s_memrealtime", "s[76:77]")
    A.I("s_load_dwordx16", "s[4:19]", "s[0:1]", 0)
    A.I("s_load_dwordx2", "s[20:21]", "s[0:1]", 64)
    A.I("s_load_dwordx4", "s[24:27]", "s[0:1]", 120)
    A.I("s_load_dwordx2", "s[22:23]", "s[0:1]", 96)
    A.I("s_load_dwordx2", "s[68:69]", "s[0:1]", 80)
    if 'nocp' not in OPTS: code_prefetch2(A, ksize)
    A.I("s_and_b32", "s3", "s2", 255)
    A.I("v_and_b32", "v1", 63, "v0")
    A.I("v_lshrrev_b32", "v2", 6, "v0")
    A.I("v_readfirstlane_b32", "s28", "v2")
    A.I("s_and_b32", "s29", "s3", 7)
    A.I("s_lshl_b32", "s29", "s29", 5)
    A.I("s_lshr_b32", "s30", "s3", 3)
    A.I("s_add_u32", "s29", "s29", "s30")
    A.I("s_lshr_b32", "s30", "s28", 1)
    A.I("s_and_b32", "s31", "s28", 1)
    A.I("s_lshl_b32", "s32", "s29", 1)
    A.I("s_add_u32", "s32", "s32", "s30")
    A.I("s_lshl_b32", "s33", "s31", 7)
    A.I("s_lshl_b32", "s34", "s32", 8)
    A.I("s_add_u32", "s33", "s33", "s34")
    A.I("v_and_b32", "v2", 7, "v1")
    A.I("v_lshl_add_u32", "v2", "v2", 4, "s33")
    A.I("s_lshl_b32", "s34", "s3", 3)
    A.I("s_lshl_b32", "s35", "s28", 1)
    A.I("s_add_u32", "s34", "s34", "s35")
    A.I("s_lshl_b32", "s34", "s34", 10)
    A.I("v_lshrrev_b32", "v5", 5, "v1")
    A.I("v_and_b32", "v6", 31, "v1")
    A.I("v_lshlrev_b32", "v4", 10, "v5")
    A.I("v_lshl_add_u32", "v4", "v6", 4, "v4")
    A.I("v_add_u32", "v4", "s34", "v4")
    A.I("v_mov_b32", "v122", 0)
    A.I("v_lshlrev_b32", "v7", 4, "v1")
    A.I("s_lshl_b32", "s33", "s29", 2)
    A.I("s_lshl_b32", "s57", "s3", 12)
    A.I("s_lshl_b32", "s58", "s28", 10)
    A.I("s_add_u32", "s57", "s57", "s58")
    A.I("s_add_u32", "s58", "s57", 1 << 20)
    A.wait(lgkm=0)
    P = 48; X = 160
    if "xfirst" in OPTS:
        A.I("global_load_dwordx4", vr(X, 4), "v4", "s[4:5]")
        A.I("global_load_dwordx4", vr(X + 4, 4), "v4", "s[4:5]", mods="offset:512", tag="x")
    if "w1first" in OPTS:
        srd(A, 64, 68, 1376 * 1024)
        A.I("buffer_load_dwordx4", "v[60:63]", "v7", "s[64:67]", "s57", mods="offen")
        A.I("buffer_load_dwordx4", "v[60:63]", "v7", "s[64:67]", "s58", mods="offen")
    A.I("s_mov_b64", "exec", "0xff")
    for k, sb in enumerate((6, 8, 10, 12, 14, 16)):
        A.I("v_mov_b32", "v136", sr(sb))
        A.I("v_mov_b32", "v137", sr(sb + 1))
        if k < 5: A.I("s_lshl_b64", "exec", "exec", 8)
    A.I("s_mov_b32", "exec_lo", -1)
    A.I("s_mov_b32", "exec_hi", "0xffff")
    A.I("v_add_co_u32", "v136", "vcc", "v136", "v2")
    A.I("v_addc_co_u32", "v137", "vcc", 0, "v137", "vcc")
    A.I("global_load_dwordx4", "v[140:143]", "v[136:137]", "off", tag="par")
    A.I("s_mov_b64", "exec", -1)
    A.I("s_load_dword", "s36", "s[20:21]", "s33")
    A.I("s_load_dword", "s52", "s[18:19]", "s33")
    A.I("s_or_b32", "s76", "s76", 1)
    A.I("s_or_b32", "s61", "s3", "s28")
    A.I("s_cmp_lg_u32", "s61", 0)
    A.I("s_cbranch_scc1", L("K_notag"))
    A.I("v_mov_b32", "v123", "s76")
    A.I("s_mov_b64", "exec", 1)
    A.I("global_store_dword", "v122", "v123", "s[24:25]", mods="sc1"); A.vmq.pop()
    A.I("s_mov_b64", "exec", -1)
    A.label(L("K_notag"))
    if "xfirst" not in OPTS:
        A.I("global_load_dwordx4", vr(X, 4), "v4", "s[4:5]")
        A.I("global_load_dwordx4", vr(X + 4, 4), "v4", "s[4:5]", mods="offset:512", tag="x")
    srd(A, 44, 26, WS_SIZE)
    W2AT = int(os.environ.get("W2AT", 3))
    def w2warm():
        srd(A, 64, 22, 1376 * 1024)
        A.I("buffer_load_dwordx4", "v[60:63]", "v7", "s[64:67]", "s57", mods="offen")
        A.I("buffer_load_dwordx4", "v[60:63]", "v7", "s[64:67]", "s58", mods="offen")
    if "swarm" in OPTS:
        swarm(A, "s[68:69]", "s3", "s28")
    else:
        srd(A, 64, 68, 1376 * 1024)
        if "w1part" in OPTS:
            A.I("s_add_u32", "s60", "s57", 516 * 1024)
            A.I("buffer_load_dwordx4", "v[60:63]", "v7", "s[64:67]", "s60", mods="offen")
        elif "now1" not in OPTS and "w1first" not in OPTS:
            A.I("buffer_load_dwordx4", "v[60:63]", "v7", "s[64:67]", "s57", mods="offen")
            A.I("buffer_load_dwordx4", "v[60:63]", "v7", "s[64:67]", "s58", mods="offen")
        if W2AT < 0: w2warm()
    A.I("s_mov_b32", "s56", "0x3f803f80")
    A.I("s_mov_b32", "s59", "0xffff0000")
    A.I("v_and_b32", "v56", 15, "v1")
    A.I("v_cvt_f32_u32", "v56", "v56")
    LNL = ACCX + 4096
    A.I("s_mul_i32", "s60", "s28", 2 * 1088)
    A.I("s_add_u32", "s60", "s60", LNL)
    A.I("v_mul_u32_u24", "v182", 1088, "v5")
    A.I("v_lshl_add_u32", "v182", "v6", 4, "v182")
    A.I("v_add_u32", "v182", "s60", "v182")
    A.I("v_mov_b32", "v168", 0)
    A.I("v_mov_b32", "v169", 0)
    A.I("s_lshl_b32", "s54", "s28", 8)
    A.I("s_add_u32", "s54", "s54", LNL)
    A.I("v_bfe_u32", "v183", "v1", 2, 2)
    A.I("v_mul_u32_u24", "v183", 1088, "v183")
    A.I("v_lshrrev_b32", "v18", 4, "v1")
    A.I("v_lshl_add_u32", "v183", "v18", 5, "v183")
    A.I("v_and_b32", "v18", 3, "v1")
    A.I("v_lshl_add_u32", "v183", "v18", 3, "v183")
    A.I("v_add_u32", "v183", "s54", "v183")
    A.I("s_lshl_b32", "s54", "s3", 13)
    A.I("s_lshl_b32", "s55", "s28", 11)
    A.I("s_add_u32", "s54", "s54", "s55")
    A.I("s_add_u32", "s55", "s54", hex(XNT))
    A.I("s_lshl_b32", "s53", "s28", 10)
    A.I("s_add_u32", "s53", "s53", ACCX)
    A.I("v_add_u32", "v138", "s53", "v7")
    A.I("v_lshl_add_u32", "v139", "v1", 1, "s53")
    A.I("s_mul_i32", "s37", "s30", KTS)
    A.I("s_add_u32", "s37", "s37", KDT + 32)
    A.I("s_mov_b32", "s38", -17024)
    A.I("s_movk_i32", "s39", 127)
    A.I("s_lshl_b32", "s40", "s31", 10)
    A.I("v_lshl_add_u32", "v20", "v1", 3, "s40")
    AD = 200
    for rd in range(2):
        for ii in range(11):
            A.I("v_sub_u32", vr(AD + 11 * rd + ii), 2044 - 512 * rd - (ii - 3), "v20")
        for ii in range(11):
            if rd == 1 and ii >= 8:
                A.I("v_max_i32", vr(24 + ii), 0, vr(AD + 11 * rd + ii))
                A.I("v_cvt_f32_u32", vr(24 + ii), vr(24 + ii))
            else:
                A.I("v_cvt_f32_u32", vr(24 + ii), vr(AD + 11 * rd + ii))
        for ii in range(0, 11, 2):
            A.I("v_cvt_pk_bf16_f32", vr(36 + ii // 2), vr(24 + ii), vr(24 + min(ii + 1, 10)))
        for ii in range(11):
            A.I("v_mad_u32_u16", vr(24 + ii), vr(36 + ii // 2), 1, "s38", mods=("op_sel:[1,0,0,0]" if ii & 1 else ""))
        for ii in range(11):
            A.I("v_med3_i32", vr(24 + ii), vr(24 + ii), vr(AD + 11 * rd + ii), "s39")
        for ii in range(11):
            A.I("v_ashrrev_i32", vr(AD + 11 * rd + ii), 3, vr(24 + ii))
        for ii in range(11):
            A.I("v_add_u32", vr(24 + ii), vr(24 + ii), vr(AD + 11 * rd + ii))
        for ii in range(11):
            A.I("v_lshl_add_u32", vr(AD + 11 * rd + ii), vr(24 + ii), 3, "s37")
    for k in range(4): A.I("v_mov_b32", vr(24 + k), 0)
    A.I("s_mul_i32", "s43", "s30", 4608)
    A.I("s_add_u32", "s43", "s43", UL)
    A.I("v_lshl_add_u32", "v10", "v1", 3, "s43")
    A.I("ds_write_b64", "v10", "v[24:25]")
    A.I("s_mul_i32", "s48", "s30", 16640)
    A.I("v_and_b32", "v121", 1, "v1")
    A.I("v_lshrrev_b32", "v10", 1, "v1")
    A.I("v_mul_u32_u24", "v11", 4160, "v10")
    A.I("v_lshl_add_u32", "v11", "v121", 4, "v11")
    A.I("v_add_u32", "v11", "s48", "v11")
    A.I("s_sub_u32", "s50", "s37", 32)
    A.I("v_lshl_add_u32", "v12", "v121", 4, "s50")
    A.I("s_mov_b64", "exec", "0xff")
    A.I("ds_write_b128", "v11", "v[24:27]", mods="offset:4096")
    A.I("ds_write_b128", "v12", "v[24:27]")
    A.I("s_mov_b64", "exec", -1)
    A.I("v_lshlrev_b32", "v32", 13, "v10")
    A.I("v_lshl_add_u32", "v32", "v121", 4, "v32")
    A.I("v_mul_u32_u24", "v33", 4608, "v121")
    A.I("v_lshl_add_u32", "v33", "v10", 4, "v33")
    A.I("s_lshl_b32", "s49", "s28", 10)
    A.I("s_add_u32", "s49", "s49", UL + 512)
    A.I("v_add_u32", "v33", "s49", "v33")
    if "agg" not in OPTS:
        A.I("s_lshl_b32", "s71", "s28", F1SH + 6)
        A.I("v_lshl_add_u32", "v120", "v1", F1SH, "s71")
        A.I("s_mov_b32", "s41", hex(F1))
    else:
        A.I("v_mov_b32", "v120", 0)
        A.I("s_bfe_u32", "s41", "s3", "0x40001")
        A.I("s_lshl_b32", "s41", "s41", 7)
        A.I("s_add_u32", "s41", "s41", hex(FA))
    A.I("s_lshl_b32", "s42", "s31", 2)
    A.I("s_add_u32", "s42", "s42", "s37")
    A.I("v_and_b32", "v8", 15, "v1")
    A.I("v_lshrrev_b32", "v14", 4, "v1")
    A.I("v_mul_u32_u24", "v34", 144, "v8")
    A.I("v_lshl_add_u32", "v34", "v14", 5, "v34")
    A.I("v_lshl_add_u32", "v34", "v5", 3, "v34")
    A.I("v_add_u32", "v34", "s42", "v34")
    for sg in range(1, 4): A.I("v_add_u32", vr(34 + sg), 1152 * sg, "v34")
    A.I("v_mov_b32", "v39", "s42")
    A.I("s_lshl_b32", "s49", "s31", 11)
    A.I("s_add_u32", "s50", "s49", "s48")
    A.I("v_add_u32", "v40", "s50", "v7")
    A.I("v_and_b32", "v41", 3, "v1")
    A.I("v_mul_u32_u24", "v41", 4160, "v41")
    A.I("v_bfe_u32", "v13", "v1", 2, 2)
    A.I("v_lshlrev_b32", "v13", 3, "v13")
    A.I("v_lshl_add_u32", "v13", "v14", 4, "v13")
    A.I("v_sub_u32", "v41", "v41", "v13")
    A.I("s_add_u32", "s50", "s48", 2 * 2052 - 64 * 63)
    A.I("v_add_u32", "v41", "s50", "v41")
    A.I("v_lshlrev_b32", "v42", 5, "v8")
    A.I("v_lshlrev_b32", "v15", 4, "v14")
    A.I("v_sub_u32", "v42", "v42", "v15")
    A.I("s_add_u32", "s50", "s43", 512 + 16 - 448)
    A.I("v_add_u32", "v42", "s50", "v42")
    A.I("v_lshlrev_b32", "v43", 5, "v8")
    A.I("v_lshl_add_u32", "v43", "v14", 3, "v43")
    A.I("s_add_u32", "s50", "s43", "s49")
    A.I("s_add_u32", "s50", "s50", 512)
    A.I("v_add_u32", "v44", "s50", "v43")
    A.wait_vm("par", lgkm=0)
    stampn(A, "k_x")
    A.I("global_load_dword", "v123", "v122", "s[24:25]", mods="sc1", tag="tag")
    A.I("ds_write_b128", "v138", "v[140:143]")
    A.I("s_lshl_b32", "s53", "s30", 4)
    A.I("s_lshr_b32", "s52", "s52", "s53")
    A.I("v_mov_b32", vr(P + 6), "s52")
    A.wait(lgkm=0)
    for k in range(6): A.I("ds_read_u16", vr(P + k), "v139", mods=f"offset:{128 * k}")
    A.wait(lgkm=0)
    gen_kgen_pair_setup(A, P)
    def ln_block():
        stampn(A, "k_ln")
        A.unpk = "lnnp" in OPTS
        A.wait_vm("x")
        for k in range(8):
            A.I("v_dot2_f32_bf16", "v168", vr(X + k), "s56", "v168")
            A.I("v_dot2_f32_bf16", "v169", vr(X + k), vr(X + k), "v169")
        reduce32(A, [168, 169], [170, 171])
        A.I("v_mul_f32", "v168", "0x3b000000", "v168")
        A.I("v_mul_f32", "v169", "0x3b000000", "v169")
        A.I("v_fma_f32", "v169", "-v168", "v168", "v169")
        A.I("v_max_f32", "v169", 0, "v169")
        A.I("v_cvt_pk_bf16_f32", "v192", 0, "v168")
        A.I("v_cvt_pk_bf16_f32", "v169", 0, "v169")
        A.I("v_add_f32", "v169", "0x3727c5ac", "v169")
        A.I("v_cvt_pk_bf16_f32", "v169", 0, "v169")
        A.I("v_sqrt_f32", "v169", "v169")
        A.I("v_cvt_pk_bf16_f32", "v194", 0, "v169")
        A.I("v_rcp_f32", "v172", "v194")
        for k in range(8):
            t = 174 + 2 * (k % 4)
            A.I("v_lshlrev_b32", vr(t), 16, vr(X + k))
            A.I("v_and_b32", vr(t + 1), "s59", vr(X + k))
            A.I("v_pk_add_f32", vr(t, 2), vr(t, 2), "v[192:193]", mods="op_sel_hi:[1,0] neg_lo:[0,1] neg_hi:[0,1]")
            if "lnmimic" in OPTS:
                A.I("v_cvt_pk_bf16_f32", vr(t), 0, vr(t))
                A.I("v_cvt_pk_bf16_f32", vr(t + 1), 0, vr(t + 1))
            A.I("v_pk_mul_f32", vr(t, 2), vr(t, 2), "v[172:173]", mods="op_sel_hi:[1,0]")
            A.I("v_cvt_pk_bf16_f32", vr(X + k), vr(t), vr(t + 1))
            if k == 3: A.I("ds_write_b128", "v182", vr(X, 4))
        A.I("ds_write_b128", "v182", vr(X + 4, 4), mods="offset:512")
        A.unpk = False
        A.I("v_mov_b32", "v193", "v172")
        A.I("v_lshlrev_b32", "v196", 4, "v5")
        A.I("s_lshl_b32", "s71", "s3", 7)
        A.I("s_lshl_b32", "s72", "s28", 5)
        A.I("s_add_u32", "s71", "s71", "s72")
        A.I("s_add_u32", "s71", "s71", hex(STAT))
        A.wait(lgkm=0)
        A.I("s_barrier")
        A.I("ds_read_b64_tr_b16", "v[184:185]", "v183")
        A.I("ds_read_b64_tr_b16", "v[186:187]", "v183", mods=f"offset:{4*1088}")
        A.I("ds_read_b64_tr_b16", "v[188:189]", "v183", mods="offset:128")
        A.I("ds_read_b64_tr_b16", "v[190:191]", "v183", mods=f"offset:{4*1088+128}")
        A.wait(lgkm=2)
        A.I("buffer_store_dwordx4", "v[184:187]", "v7", "s[44:47]", "s55", mods="offen sc1")
        A.wait(lgkm=0)
        A.I("buffer_store_dwordx4", "v[188:191]", "v7", "s[44:47]", "s55", mods="offen offset:1024 sc1")
        A.wait_vm("tag")
        get_tag(A, L, "K_tag", "v123", "v122", "s[24:25]")
        A.I("v_mov_b32", "v195", "v123")
        A.I("v_readfirstlane_b32", "s51", "v123")
        A.I("s_mov_b32", "exec_lo", 1)
        A.I("s_mov_b32", "exec_hi", 1)
        A.I("buffer_store_dwordx4", "v[192:195]", "v196", "s[44:47]", "s71", mods="offen sc1")
        A.I("s_mov_b64", "exec", -1)
        stampn(A, "k_st")
    def f1_block():
        A.wait(vm=1)
        A.I("s_barrier")
        A.I("s_cmp_lg_u32", "s28", 0)
        A.I("s_cbranch_scc1", L("K_f1done"))
        A.I("s_lshl_b32", "s71", "s3", F1SH)
        A.I("s_add_u32", "s71", "s71", hex(F1))
        A.I("s_mov_b64", "exec", 1)
        A.I("buffer_store_dword", "v123", "v122", "s[44:47]", "s71", mods="offen sc1")
        A.I("s_mov_b64", "exec", -1)
        A.label(L("K_f1done"))
        stampn(A, "k_f1")
        if "kx3" in OPTS: A.I("s_branch", L("K_end"))
    def poll_issue():
        A.I("buffer_load_dword", "v121", "v120", "s[44:47]", "s41", mods="offen sc1")
    def gather(sfx=''):
        spin_check(A, L, "K_p1" + sfx, "v121", "v123", poll_issue, sleep=int(os.environ.get("KSLEEP", 8)))
        A.I("s_lshl_b32", "s62", "s28", 19)
        A.I("s_lshl_b32", "s63", "s29", 5)
        A.I("s_add_u32", "s62", "s62", "s63")
        A.I("s_add_u32", "s62", "s62", hex(XNT))
        A.I("s_add_u32", "s63", "s62", 32 * 8192)
        A.I("buffer_load_dwordx4", "v[8:11]", "v32", "s[44:47]", "s62", mods="offen sc1")
        A.I("buffer_load_dwordx4", "v[12:15]", "v32", "s[44:47]", "s63", mods="offen sc1")
    F1AT = min(LNAT + 1, 8)
    POLLAT = int(os.environ.get('POLLAT', 9))
    for pi in range(8):
        if pi == PRIOAT: A.I("s_setprio", 0)
        if pi == LNAT: ln_block()
        if pi == F1AT: f1_block()
        if pi == POLLAT: poll_issue()
        if pi == W2AT: w2warm()
        stampn(A, f"k_p{pi}")
        gen_kgen_pair(A, P, 56, pi)
    if PRIOAT == 8: A.I("s_setprio", 0)
    if LNAT >= 8: ln_block()
    if PRIOAT == 9: A.I("s_setprio", 0)
    stampn(A, "k_kgen")
    if "midhi" in OPTS: A.I("s_setprio", 3)
    if "mid2" in OPTS: A.I("s_setprio", 2)
    KACC = 100
    A.I("ds_write2_b32", "v34", vr(KACC), vr(KACC + 1), mods="offset0:0 offset1:2")
    A.I("ds_write2_b32", "v34", vr(KACC + 2), vr(KACC + 3), mods="offset0:4 offset1:6")
    A.I("s_mov_b32", "exec_lo", "0xff00ff00")
    A.I("s_mov_b32", "exec_hi", "0xff00ff00")
    for s in range(1, 4):
        A.I("ds_write2_b32", vr(34 + s), vr(KACC + 4 * s), vr(KACC + 4 * s + 1), mods="offset0:0 offset1:2")
        A.I("ds_write2_b32", vr(34 + s), vr(KACC + 4 * s + 2), vr(KACC + 4 * s + 3), mods="offset0:4 offset1:6")
    A.I("s_mov_b64", "exec", "0x8000")
    A.I("ds_write_b32", "v39", vr(KACC + 18), mods=f"offset:{8 * 720}")
    A.I("s_mov_b64", "exec", -1)
    if POLLAT <= 7: gather()
    A.wait(lgkm=0)
    A.I("s_barrier")
    if POLLAT > 7 and F1AT < 8: poll_issue()
    stampn(A, "k_b1")
    for rd in range(2):
        for ii in range(11):
            A.I("ds_read_b64", vr(128 + 22 * rd + 2 * ii, 2), vr(AD + 11 * rd + ii), tag=f"e{rd}")
    for rd in range(2):
        A.wait_l(f"e{rd}")
        for ii in range(11):
            r = 128 + 22 * rd + 2 * ii
            A.I("v_add_f32", vr(r), vr(r), vr(r + 1))
        e = lambda ip: vr(128 + 22 * rd + 2 * (ip + 3))
        base = 64 + 16 * rd
        for sg in range(4):
            for dwi in range(4):
                lo = 2 * dwi - sg
                A.I("v_cvt_pk_bf16_f32", vr(base + 4 * sg + dwi), e(lo), e(lo + 1))
            A.I("ds_write_b128", "v40", vr(base + 4 * sg, 4), mods=f"offset:{sg * 4160 + rd * 1024}")
    if F1AT >= 8:
        A.wait(lgkm=0)
        f1_block()
    else:
        if POLLAT > 7: gather()
        A.wait(lgkm=0)
        A.I("s_barrier")
    stampn(A, "k_exp")
    if PRIOAT == 10: A.I("s_setprio", 0)
    KF = 128; UB = 96; CA = 64
    A.I("s_cmp_eq_u32", "s31", 1)
    A.I("s_cbranch_scc1", L("conv1"))
    for hw in range(2):
        if hw == 1: A.label(L("conv1"))
        Ps = PSET[hw]
        steps = [(Q, r) for Q in range(8 - min(Ps)) for r in range(8)]
        first = set()
        NB = 8
        def issueU(n):
            Q, r = steps[n]
            q = 8 * Q - r
            A.I("ds_read_b128", vr(UB + 4 * (n % NB), 4), "v42", mods=f"offset:{64 * (q + 7)}", tag=f"U{n}")
        def issueK(r):
            for si, P_ in enumerate(Ps):
                p = 8 * P_ + r
                reg = KF + 32 * si + 4 * r
                A.I("ds_read_b64", vr(reg, 2), "v41", mods=f"offset:{64 * (63 - p)}")
                A.I("ds_read_b64", vr(reg + 2, 2), "v41", mods=f"offset:{64 * (63 - p) + 8}", tag=f"K{r}")
        def mf(n):
            Q, r = steps[n]
            for si, P_ in enumerate(Ps):
                if P_ + Q > 7: continue
                acc = vr(CA + 4 * (P_ + Q), 4)
                c = acc if (P_ + Q) in first else "0"
                first.add(P_ + Q)
                A.I("v_mfma_f32_16x16x32_bf16", acc, vr(KF + 32 * si + 4 * r, 4), vr(UB + 4 * (n % NB), 4), c)
        for r in range(8): issueK(r)
        if F1AT >= 8:
            poll_issue()
            gather(f"_{hw}")
        A.wait(vm=0)
        stampn(A, "k_u")
        A.I("ds_write_b128", "v33", "v[8:11]")
        A.I("ds_write_b128", "v33", "v[12:15]", mods="offset:512")
        A.wait(lgkm=0)
        A.I("s_barrier")
        stampn(A, "k_q0")
        A.I("s_setprio", int(os.environ.get("KPRIO", 2)))
        A.I("s_lshl_b32", "s41", "s30", 13)
        A.I("s_add_u32", "s41", "s41", ACCX)
        A.I("v_add_u32", "v45", "s41", "v7")
        A.I("s_lshl_b32", "s42", "s36", 16)
        A.I("s_and_b32", "s43", "s36", "0xffff0000")
        A.I("s_cmp_eq_u32", "s30", 0)
        A.I("s_cselect_b32", "s42", "s42", "s43")
        A.I("s_lshl_b32", "s48", "s32", 12)
        A.I("s_add_u32", "s48", "s48", hex(ST) if hw == 1 else hex(ST + 2048))
        if hw == 0: A.I("v_add_u32", "v44", 2048, "v44")
        else: A.I("v_subrev_u32", "v44", 2048, "v44")
        own = list(range(4, 8)) if hw == 0 else list(range(0, 4))
        oth = list(range(0, 4)) if hw == 0 else list(range(4, 8))
        for k in range(4):
            A.I("ds_read_b64", vr(16 + 2 * k, 2), "v44", mods=f"offset:{512 * k}")
        XP = 8
        def fin_ops(k):
            Aa = own[k]; a = CA + 4 * Aa; x = 48 + 4 * k; t = 24 + 4 * (k & 1)
            ops = [("v_lshlrev_b32", [vr(t), 16, vr(16 + 2 * k)]), ("v_and_b32", [vr(t + 1), "s59", vr(16 + 2 * k)]),
                   ("v_lshlrev_b32", [vr(t + 2), 16, vr(17 + 2 * k)]), ("v_and_b32", [vr(t + 3), "s59", vr(17 + 2 * k)])]
            for i in range(4): ops.append(("v_fmac_f32", [vr(x + i), "s42", vr(t + i)]))
            if not (hw == 1 and Aa == 0):
                for i in range(4): ops.append(("v_add_f32", [vr(x + i), vr(x + i), vr(a + i)]))
            ops.append(("v_cvt_pk_bf16_f32", [vr(x), vr(x), vr(x + 1)]))
            ops.append(("v_cvt_pk_bf16_f32", [vr(x + 1), vr(x + 2), vr(x + 3)]))
            ops.append(("store", [k, x]))
            return ops
        def emit(op):
            mn, o = op
            if mn == "store": A.I("buffer_store_dwordx2", vr(o[1], 2), "v43", "s[44:47]", "s48", mods=f"offen offset:{512 * o[0]} sc1")
            else: A.I(mn, *o)
        def send():
            for Aa in oth: A.I("ds_write_b128", "v45", vr(CA + 4 * Aa, 4), mods=f"offset:{Aa * 1024}", tag="snd")
            A.wait_l("snd")
        def recv():
            for k, Aa in enumerate(own): A.I("ds_read_b128", vr(48 + 4 * k, 4), "v45", mods=f"offset:{Aa * 1024}", tag="rcv")
        for k in range(NB - 1): issueU(k)
        nxt = NB - 1
        pend = []
        for n in range(0, len(steps)):
            if n == 32:
                if hw == 0: send()
                A.I("s_barrier")
                if hw == 1: recv()
            if n == 56:
                A.I("s_barrier")
                recv()
            if hw == 1 and n == 36:
                A.wait_l("rcv")
                pend = fin_ops(0) + fin_ops(1) + fin_ops(2) + fin_ops(3)
            if hw == 0 and n == 59:
                A.wait_l("rcv")
                pend = fin_ops(0) + fin_ops(1) + fin_ops(2)
            A.wait_l(f"U{n}")
            mf(n)
            if nxt < len(steps): issueU(nxt)
            nxt += 1
            for _ in range(3 if hw == 1 else 9):
                if pend: emit(pend.pop(0))
        stampn(A, "k_mf")
        if hw == 1:
            send()
            A.I("s_barrier")
            for op in pend: emit(op)
        else:
            for op in pend + fin_ops(3): emit(op)
        if hw == 0: A.I("s_branch", L("K_pub"))
    A.label(L("K_pub"))
    stampn(A, "k_conv")
    A.wait(vm=0)
    A.I("s_barrier")
    A.I("s_cmp_lg_u32", "s28", 0)
    A.I("s_cbranch_scc1", L("K_end"))
    A.I("s_lshl_b32", "s71", "s29", F3SH)
    A.I("s_add_u32", "s71", "s71", hex(F3))
    A.I("v_mov_b32", "v8", "s51")
    A.I("v_mov_b32", "v9", 0)
    A.I("s_mov_b64", "exec", 1)
    A.I("buffer_store_dword", "v8", "v9", "s[44:47]", "s71", mods="offen sc1")
    A.I("s_mov_b64", "exec", -1)
    A.unpk = False
    A.label(L("K_end"))
    stamp_flush(A, 0, "s[26:27]", 7)
    A.I("s_endpgm")
```

```python
import os
from asmlib import *
from layout1 import *
from k_prep import srd
from t7_k import spin_check, code_prefetch2, get_tag, swarm

XB = 49152

def gen_csb(A, L, TAG):
    A.I("s_lshl_b32", "s71", "s49", 2)
    A.I("s_add_u32", "s71", "s71", "s22")
    A.I("global_load_dword", TAG, "v10", "s[18:19]", mods="sc1")
    A.I("s_cmp_ge_u32", "s71", 45)
    A.I("s_cbranch_scc1", L("M_csb_skip"))
    A.I("s_min_u32", "s72", "s71", 42)
    A.I("s_lshl_b32", "s72", "s72", 6)
    A.I("v_lshrrev_b32", "v16", 2, "v1")
    A.I("v_mul_u32_u24", "v16", 2752, "v16")
    A.I("v_and_b32", "v17", 3, "v1")
    A.I("v_lshl_add_u32", "v16", "v17", 4, "v16")
    A.I("s_mov_b32", "s73", "s72")
    for i in range(32):
        A.I("buffer_load_dwordx4", vr(128 + 4 * i - (0 if i < 28 else 0), 4) if i < 28 else vr(32 + 4 * (i - 28), 4), "v16", "s[28:31]", "s73", mods="offen", tag=f"c{i}")
        A.I("s_add_u32", "s73", "s73", 16 * 2752)
    A.I("v_lshl_add_u32", "v18", "v5", 1, "s72")
    A.I("global_load_ushort", "v19", "v18", "s[10:11]")
    A.I("s_mov_b32", "s74", "0x00003f80")
    A.I("s_mov_b32", "s75", "0x3f800000")
    for c in range(8): A.I("v_mov_b32", vr(20 + c), 0)
    for i in range(32):
        A.wait_vm(f"c{i}")
        b = 128 + 4 * i if i < 28 else 32 + 4 * (i - 28)
        for d in range(4):
            A.I("v_dot2_f32_bf16", vr(20 + 2 * d), vr(b + d), "s74", vr(20 + 2 * d))
            A.I("v_dot2_f32_bf16", vr(21 + 2 * d), vr(b + d), "s75", vr(21 + 2 * d))
    D = "row_mask:0xf bank_mask:0xf"
    for m in ("row_ror:4", "row_ror:8"):
        for c in range(8): A.I("v_add_f32_dpp", vr(20 + c), vr(20 + c), vr(20 + c), mods=f"{m} {D}")
    for sw in ("v_permlane16_swap_b32", "v_permlane32_swap_b32"):
        for c in range(8): A.I("v_mov_b32", vr(48 + c), vr(20 + c))
        for c in range(8): A.I(sw, vr(20 + c), vr(48 + c))
        for c in range(8): A.I("v_add_f32", vr(20 + c), vr(20 + c), vr(48 + c))
    A.I("v_lshlrev_b32", "v17", 5, "v17")
    A.I("v_add_u32", "v17", "s61", "v17")
    A.I("ds_write_b128", "v17", "v[20:23]")
    A.I("ds_write_b128", "v17", "v[24:27]", mods="offset:16")
    A.I("v_lshl_add_u32", "v17", "v5", 2, "s61")
    A.wait(lgkm=0)
    A.I("ds_read_b32", "v20", "v17")
    A.wait(vm=0, lgkm=0)
    get_tag(A, L, "M_tag15a", TAG, "v10", "s[18:19]")
    A.I("v_cvt_pk_bf16_f32", "v21", 0, "v20")
    A.I("v_sub_f32", "v20", "v20", "v21")
    A.I("v_cvt_pk_bf16_f32", "v22", 0, "v20")
    A.I("v_sub_f32", "v20", "v20", "v22")
    A.I("v_cvt_pk_bf16_f32", "v24", "v21", "v22")
    A.I("v_cvt_pk_bf16_f32", "v25", "v20", 0)
    A.I("v_lshl_or_b32", "v25", "v19", 16, "v25")
    A.I("v_mov_b32", "v26", TAG)
    A.I("v_mov_b32", "v27", TAG)
    A.I("s_lshl_b32", "s72", "s71", 9)
    A.I("s_add_u32", "s72", "s72", hex(CSB))
    A.I("v_lshlrev_b32", "v17", 4, "v5")
    A.I("s_mov_b64", "exec", "0xffffffff")
    A.I("buffer_store_dwordx4", "v[24:27]", "v17", "s[24:27]", "s72", mods="offen sc1")
    A.I("s_mov_b64", "exec", -1)
    stampn(A, "m_csb")
    A.label(L("M_csb_skip"))
    A.wait(vm=0)
    get_tag(A, L, "M_tag15", TAG, "v10", "s[18:19]")

def gen_M(A, L, msize):
    G1 = "g1only" in OPTS
    A.label(L("M"))
    if "nom" in OPTS: A.I("s_endpgm")
    A.I("s_setprio", int(os.environ.get("MP0", 1)))
    A.I("s_load_dwordx2", "s[4:5]", "s[0:1]", 0)
    A.I("s_load_dwordx8", "s[8:15]", "s[0:1]", 80)
    A.I("s_load_dwordx4", "s[16:19]", "s[0:1]", 112)
    A.I("s_load_dwordx2", "s[20:21]", "s[0:1]", 128)
    if 'nocp' not in OPTS: code_prefetch2(A, msize)
    A.I("v_and_b32", "v1", 63, "v0")
    A.I("v_lshrrev_b32", "v2", 6, "v0")
    A.I("v_readfirstlane_b32", "s22", "v2")
    A.I("s_and_b32", "s3", "s2", 255)
    A.I("s_and_b32", "s23", "s3", 7)
    A.I("s_lshr_b32", "s48", "s3", 3)
    A.I("s_lshr_b32", "s49", "s23", 1)
    A.I("s_lshl_b32", "s49", "s49", 2)
    A.I("s_lshr_b32", "s76", "s48", 3)
    A.I("s_add_u32", "s49", "s49", "s76")
    A.I("s_and_b32", "s50", "s23", 1)
    A.I("s_lshl_b32", "s50", "s50", 3)
    A.I("s_and_b32", "s52", "s48", 7)
    A.I("s_add_u32", "s50", "s50", "s52")
    A.I("s_lshl_b32", "s76", "s76", 1)
    if "rot1" not in OPTS: A.I("s_mov_b32", "s76", 0)
    A.I("s_lshl_b32", "s51", "s23", 2)
    A.I("s_lshr_b32", "s52", "s48", 3)
    A.I("s_add_u32", "s51", "s51", "s52")
    A.I("s_and_b32", "s52", "s48", 7)
    A.I("s_lshl_b32", "s53", "s49", 2)
    A.I("s_add_u32", "s53", "s53", "s22")
    A.I("v_lshlrev_b32", "v2", 4, "v1")
    A.I("v_lshrrev_b32", "v4", 5, "v1")
    A.I("v_and_b32", "v5", 31, "v1")
    A.I("v_lshrrev_b32", "v9", 3, "v1")
    A.I("v_lshrrev_b32", "v10", 4, "v1")
    A.I("v_and_b32", "v11", 7, "v1")
    A.I("v_xor_b32", "v10", "v10", "v11")
    A.I("v_lshlrev_b32", "v9", 10, "v9")
    A.I("v_lshl_add_u32", "v12", "v10", 4, "v9")
    A.I("v_xor_b32", "v13", 64, "v12")
    A.I("v_bfe_u32", "v10", "v1", 4, 1)
    A.I("v_lshlrev_b32", "v10", 2, "v10")
    A.I("v_xor_b32", "v10", "v10", "v11")
    A.I("v_lshl_add_u32", "v15", "v10", 4, "v9")
    A.I("s_mov_b32", "s54", 43691)
    for n in range(3):
        A.I("v_add_u32", "v9", 64 * n, "v1")
        A.I("v_mul_u32_u24", "v10", "s54", "v9")
        A.I("v_lshrrev_b32", "v10", 19, "v10")
        A.I("v_mul_u32_u24", "v11", 12, "v10")
        A.I("v_sub_u32", "v9", "v9", "v11")
        A.I("v_mul_u32_u24", "v10", 2752, "v10")
        A.I("v_lshl_add_u32", vr(6 + n), "v9", 4, "v10")
    A.I("v_lshlrev_b32", "v14", 7, "v5")
    A.I("s_mul_i32", "s55", "s50", 192)
    A.I("s_mul_i32", "s56", "s22", 16 * 2752)
    A.I("s_add_u32", "s56", "s56", "s55")
    A.I("s_mul_i32", "s57", "s22", 3072)
    A.I("s_lshl_b32", "s67", "s53", 15)
    A.I("s_lshl_b32", "s61", "s22", 12)
    A.I("s_add_u32", "s61", "s61", XB)
    A.I("s_lshl_b32", "s62", "s49", 17)
    A.I("s_lshl_b32", "s63", "s52", 14)
    A.I("s_add_u32", "s62", "s62", "s63")
    A.I("s_lshl_b32", "s63", "s22", 12)
    A.I("s_add_u32", "s62", "s62", "s63")
    stampn(A, "m_pre")
    A.wait(lgkm=0)
    stampn(A, "m_arg")
    srd(A, 40, 4, 2048 * 1024)
    srd(A, 28, 8, 512 * 2752)
    A.I("s_mov_b32", "exec_hi", 0)
    if "xt" in OPTS: A.I("buffer_load_dword", "v3", "v14", "s[40:43]", "s62", mods="offen")
    A.I("s_mov_b64", "exec", -1)
    def xdma1(s, b):
        A.I("s_add_u32", "m0", "s61", (s % 2) * 16384 + b * 1024)
        if b == 0:
            A.I("s_add_u32", "s77", "s76", s)
            A.I("s_and_b32", "s77", "s77", 7)
            A.I("s_lshl_b32", "s77", "s77", 7)
            A.I("s_add_u32", "s77", "s77", "s67")
        A.I("s_add_u32", "s63", "s77", b * 8192)
        A.I("buffer_load_dwordx4", "v12" if b % 2 == 0 else "v13", "s[40:43]", "s63", mods="offen lds", tag=f"x{s}")
    def wdma1(s, n):
        if n == 0:
            A.I("s_add_u32", "s78", "s76", s)
            A.I("s_and_b32", "s78", "s78", 7)
            A.I("s_mul_i32", "s78", "s78", 64 * 2752)
            A.I("s_add_u32", "s78", "s78", "s56")
        A.I("s_add_u32", "m0", "s57", (s % 4) * 12288 + n * 1024)
        A.I("buffer_load_dwordx4", vr(6 + n), "s[28:31]", "s78", mods="offen lds", tag=f"w{s}")
    A.I("s_cmp_eq_u32", "s50", 15)
    A.I("s_cbranch_scc1", L("M_now1"))
    for b in range(4): xdma1(0, b)
    PRO = int(os.environ.get("PRO", 3))
    if PRO < 4:
        srd(A, 36, 10, 2752)
        A.I("s_mov_b32", "m0", 36864)
        A.I("s_mov_b64", "exec", "0xfff")
        A.I("buffer_load_dwordx4", "v2", "s[36:39]", "s55", mods="offen lds")
        A.I("s_mov_b64", "exec", -1)
    for n in range(3): wdma1(0, n)
    if PRO >= 1:
        for b in range(4): xdma1(1, b)
    for s in (1, 2, 3)[:max(PRO - 1, 0)]:
        for n in range(3): wdma1(s, n)
    if PRO == 4:
        srd(A, 36, 10, 2752)
        A.I("v_lshlrev_b32", "v234", 1, "v5")
        for t in range(3):
            A.I("buffer_load_ushort", vr(231 + t), "v234", "s[36:39]", "s55", mods=f"offen offset:{64 * t}")
    A.label(L("M_now1"))
    if "swarm" in OPTS:
        swarm(A, "s[12:13]", "s3", "s22")
    stampn(A, "m_iss")
    srd(A, 24, 20, WS_SIZE)
    srd(A, 44, 16, 2048 * 1024)
    srd(A, 32, 12, 1376 * 1024)
    if "otouch" in OPTS:
        A.I("s_lshl_b32", "s63", "s3", 13)
        A.I("s_mov_b64", "exec", 1)
        A.I("buffer_load_dword", "v235", "v2", "s[44:47]", "s63", mods="offen")
        A.I("global_load_dword", "v234", "v2", "s[14:15]")
        A.I("s_mov_b64", "exec", -1)
    A.I("s_mov_b32", "s64", "0xffff0000")
    A.I("s_mov_b32", "s69", "0x3f803f80")
    A.I("v_mov_b32", "v10", 0)
    A.I("s_mul_i32", "s58", "s22", 22)
    A.I("s_cmp_eq_u32", "s22", 3)
    A.I("s_cselect_b32", "s59", 1, 0)
    A.I("s_sub_u32", "s58", "s58", "s59")
    A.I("s_lshl_b32", "s59", "s58", 14)
    A.I("s_lshl_b32", "s60", "s52", 7)
    A.I("s_add_u32", "s59", "s59", "s60")
    A.I("s_cmp_lt_u32", "s22", 2)
    A.I("s_cselect_b32", "s48", 22, 21)
    A.I("s_mul_i32", "s79", "s52", 2)
    A.I("s_and_b32", "s63", "s51", 3)
    A.I("s_mul_i32", "s63", "s63", 5)
    A.I("s_add_u32", "s79", "s79", "s63")
    A.I("s_cmp_ge_u32", "s79", 21)
    A.I("s_cselect_b32", "s63", 21, 0)
    A.I("s_sub_u32", "s79", "s79", "s63")
    if "norot2" in OPTS: A.I("s_mov_b32", "s79", 0)
    A.I("v_and_b32", "v9", 1, "v1")
    A.I("v_lshl_add_u32", "v9", "v4", 2, "v9")
    A.I("v_lshlrev_b32", "v9", 10, "v9")
    A.I("v_lshrrev_b32", "v11", 1, "v5")
    A.I("v_lshl_add_u32", "v9", "v11", 2, "v9")
    XA = 244; WA = 248; TA_ = 252
    A.I("v_bfe_u32", "v14", "v1", 1, 3)
    A.I("v_xor_b32", "v14", "v14", "v4")
    A.I("s_lshl_b32", "s63", "s22", 1)
    A.I("v_xor_b32", "v14", "s63", "v14")
    A.I("v_lshlrev_b32", "v16", 7, "v5")
    A.I("v_add_u32", "v16", "s61", "v16")
    for k in range(4):
        if k: A.I("v_xor_b32", "v11", 2 * k, "v14")
        A.I("v_lshl_add_u32", vr(XA + k), "v14" if k == 0 else "v11", 4, "v16")
    A.I("v_bfe_u32", "v16", "v1", 2, 2)
    A.I("v_bfe_u32", "v17", "v1", 4, 1)
    A.I("v_and_b32", "v18", 3, "v1")
    A.I("v_lshlrev_b32", "v18", 3, "v18")
    A.I("v_lshl_add_u32", "v17", "v17", 5, "v18")
    A.I("v_lshl_add_u32", "v14", "v4", 3, "v16")
    A.I("v_mul_u32_u24", "v14", 192, "v14")
    A.I("v_add_u32", "v14", "v14", "v17")
    for k in range(4):
        A.I("s_xor_b32", "s63", "s22", k)
        A.I("s_mul_i32", "s63", "s63", 3072)
        A.I("v_add_u32", vr(WA + k), "s63", "v14")
    A.I("v_lshl_add_u32", "v14", "v4", 2, "v16")
    A.I("v_lshl_add_u32", "v14", "v14", 7, "v17")
    A.I("v_bfe_u32", "v16", "v1", 3, 1)
    A.I("v_lshl_add_u32", "v14", "v16", 6, "v14")
    A.I("v_xor_b32", "v16", 64, "v14")
    A.I("v_add_u32", vr(TA_), "s57", "v14")
    A.I("v_add_u32", vr(TA_ + 1), "s57", "v16")
    A.I("v_add_u32", vr(TA_ + 2), "s61", "v14")
    A.I("v_add_u32", vr(TA_ + 3), "s61", "v16")
    TAG = "v14"; PF = "v11"
    def pollw():
        A.I("buffer_load_dword", PF, "v13", "s[24:27]", "s65", mods="offen sc1", tag="pw")
    Wb = lambda sl: [(sl * 12288 + i * 1024, 0) for i in range(3)]
    blocks = Wb(0) + [(i * 1024, 1) for i in (1, 2, 3)] + Wb(1) + [(16384 + i * 1024, 1) for i in range(4)] + Wb(2) + Wb(3) + [(0, 1)]
    KB = {k: k for k in range(8)}
    KB.update({8: 0, 9: 1, 10: 2, 11: 8, 12: 9, 13: 3, 14: 4, 15: 5, 16: 6, 17: 7, 18: 0, 19: 1, 20: 2, 21: 8})
    lastk = [None]
    def w2dma(k, hf):
        off, isx = blocks[2 * KB[k] + hf]
        if hf == 0 or lastk[0] != k:
            A.I("s_add_u32", "s23", "s79", k)
            A.I("s_cmp_ge_u32", "s23", "s48")
            A.I("s_cselect_b32", "s63", "s48", 0)
            A.I("s_sub_u32", "s23", "s23", "s63")
            A.I("s_lshl_b32", "s23", "s23", 14)
            A.I("s_add_u32", "s23", "s23", "s59")
        lastk[0] = k
        A.I("s_add_u32", "s63", "s23", hf * 8192)
        A.I("s_add_u32", "m0", "s61" if isx else "s57", off)
        A.I("buffer_load_dwordx4", "v15", "s[32:35]", "s63", mods="offen lds", tag=f"d{k}")
    WR = 16
    NWR = 12
    def wreg(k, e): return WR + 8 * (k % NWR) + 4 * e
    def w2read(k):
        for e in range(2):
            for hf in range(2):
                off, isx = blocks[2 * KB[k] + hf]
                A.I("ds_read_b64_tr_b16", vr(wreg(k, e) + 2 * hf, 2), vr(TA_ + 2 * isx + e), mods=f"offset:{off}", tag=f"S{k}")
    A.I("s_cmp_eq_u32", "s50", 15)
    A.I("s_cbranch_scc1", L("M_g15"))
    ACC1 = 128; WB = 208; NW = 5; CP = 228; B1 = 231; ST_ = 232 + 4
    XFb = lambda s: 176 if s % 2 == 0 else 192
    CQ = 100
    A.I("v_mov_b32", "v98", "s69")
    A.I("v_mov_b32", "v99", "s69")
    def small(t, reg, first=False):
        A.I("v_mfma_f32_4x4x4_16b_bf16", vr(CQ + 4 * t, 4), "v[98:99]", vr(reg, 2), "0" if first else vr(CQ + 4 * t, 4))
    A.I("s_mul_i32", "s68", "s53", 86)
    A.I("s_mul_i32", "s63", "s50", 6)
    A.I("s_add_u32", "s68", "s68", "s63")
    A.I("s_lshl_b32", "s68", "s68", 10)
    A.I("s_add_u32", "s68", "s68", hex(HF))
    A.I("s_add_u32", "s66", "s68", 4096)
    A.I("s_cmp_eq_u32", "s50", 14)
    A.I("s_cselect_b32", "s66", "0x7f000000", "s66")
    A.I("s_cselect_b32", "s73", "0x7f000000", "s68")
    A.I("s_lshl_b32", "s74", "s53", 9)
    A.I("s_add_u32", "s74", "s74", hex(STAT))
    AX = 64
    for r in (66, 67, 70, 71, 74, 75, 78, 79): A.I("v_mov_b32", vr(r), 0)
    def pollstat():
        A.I("buffer_load_dwordx4", vr(ST_, 4), "v3", "s[24:27]", "s74", mods="offen sc1", tag="st")
    def rdW(s, idx, buf):
        kk, t = idx
        o = (s % 4) * 12288 + t * 64
        r = WB + 4 * buf
        A.I("ds_read_b64_tr_b16", vr(r, 2), vr(WA + kk), mods=f"offset:{o}")
        A.I("ds_read_b64_tr_b16", vr(r + 2, 2), vr(WA + kk), mods=f"offset:{o + 768}", tag=f"W{s}_{kk}_{t}")
    def bar(s):
        A.wait_vm(f"x{s}" if A._after(A.vmq, f"x{s}") < A._after(A.vmq, f"w{s}") else f"w{s}")
        stampn(A, f"m_s{s}a")
        A.I("s_barrier")
        stampn(A, f"m_s{s}b")
    def xread(s, kk):
        A.I("ds_read_b128", vr(XFb(s) + 4 * kk, 4), vr(XA + kk), mods=f"offset:{(s % 2) * 16384}")
    def epi_ops(t, pk=False):
        ops = []
        a = ACC1 + 16 * t
        for k in range(8):
            r = a + 2 * k
            for q in (r, r + 1):
                ops.append(("v_max_f32", [vr(q), 0, vr(q)], ""))
                if not pk:
                    ops.append(("v_mul_f32", [vr(q), vr(q), vr(q)], ""))
            if pk:
                ops.append(("v_pk_mul_f32", [vr(r, 2), vr(r, 2), vr(r, 2)], ""))
            ops.append(("v_cvt_pk_bf16_f32", [vr(a + k), vr(r), vr(r + 1)], ""))
            if k % 4 == 3:
                off = (2 * t + k // 4) * 1024
                ops.append(("buffer_store_dwordx4", [vr(a + k - 3, 4), "v2", "s[24:27]", ("s68", "s73", "s66")[t]], f"offen offset:{off % 4096} sc1"))
        return ops
    pend_e = []
    seq = []
    for s in range(8):
        order = [(kk, t) for kk in range(4) for t in range(3)] if s < 7 else [(kk, t) for t in range(3) for kk in range(4)]
        seq += [(s, o) for o in order]
    bar(0)
    A.I("s_setprio", int(os.environ.get("MP1", 3)))
    for kk in range(4): xread(0, kk)
    A.I("v_lshlrev_b32", "v3", 1, "v5")
    if PRO < 4:
        for t in range(3): A.I("ds_read_u16", vr(B1 + t), "v3", mods=f"offset:{36864 + 64 * t}")
    A.I("v_lshlrev_b32", "v3", 4, "v5")
    for m in range(NW - 1): rdW(seq[m][0], seq[m][1], m)
    NEARLY = int(os.environ.get('NEARLY', 16))
    STATAT = tuple(int(x) for x in os.environ.get('STATAT', '5,6').split(','))
    BN = 7; WPOS = (7, 9, 10); XPOS = (2, 3, 5, 6)
    XP0 = (6, 8, 9, 11)
    early = {(5, 7): 0, (5, 9): 1, (5, 10): 2, (6, 2): 3, (6, 3): 4, (6, 5): 5, (6, 7): 6, (6, 9): 7, (6, 10): 8, (7, 2): 9, (7, 3): 10, (7, 4): 11, (7, 5): 12, (7, 6): 13, (7, 7): 14, (7, 8): 15}
    for m, (s, (kk, t)) in enumerate(seq):
        n = m % 12
        if n == 0: stampn(A, f"m_s{s}")
        if G1 and m == 84: A.I("s_branch", L("M_exit"))
        A.wait_l(f"W{s}_{kk}_{t}")
        acc = vr(ACC1 + 16 * t, 16)
        if "nomfma" not in OPTS: A.I("v_mfma_f32_32x32x16_bf16", acc, vr(WB + 4 * (m % NW), 4), vr(XFb(s) + 4 * kk, 4), acc if (s or kk) else "0")
        stampn(A, f"m_s{s}n{n}")
        docs = kk == 0 and s < 7 and "nocs" not in OPTS
        if docs: small(t, WB + 4 * (m % NW), first=(s == 0))
        if n == BN and s < 7: bar(s + 1)
        if s < 7 and BN <= n < BN + 4: xread(s + 1, n - BN)
        if m + NW - 1 < 96: rdW(seq[m + NW - 1][0], seq[m + NW - 1][1], (m + NW - 1) % NW)
        if docs: small(t, WB + 4 * (m % NW) + 2)
        if "nodma" in OPTS:
            A.vmq += [f"w{s + 3}", f"x{s + 2}"] + [None] * 70
        else:
            if s == 0:
                pend = ([("x", b) for b in range(4)] if PRO < 1 else []) + ([("w1", i) for i in range(3)] if PRO < 2 else []) + ([("w2", i) for i in range(3)] if PRO < 3 else [])
                per = (len(pend) + 5) // 6
                for typ, i in pend[n * per:(n + 1) * per] if n < 6 else []:
                    if typ == "x": xdma1(1, i)
                    else: wdma1(int(typ[1]), i)
            if n in WPOS and s + 3 < 8 and not (PRO == 4 and s == 0) and "now" not in OPTS: wdma1(s + 3, WPOS.index(n))
            xp = XP0 if (s == 0 and PRO < 3) else XPOS
            if n in xp and s + 2 < 8 and "nox" not in OPTS: xdma1(s + 2, xp.index(n))
            if "now" in OPTS: A.vmq.insert(0, f"w{s + 3}")
            if "nox" in OPTS: A.vmq.insert(0, f"x{s + 2}")
        if (s, n) == STATAT:
            A.I("global_load_dword", TAG, "v10", "s[18:19]", mods="sc1")
            pollstat()
        if (s, n) in early and early[(s, n)] < NEARLY:
            b = early[(s, n)]
            w2dma(b // 2, b % 2)
        if s == 6 and n == BN:
            for t2 in range(3):
                o = 3 * 12288 + t2 * 64
                A.I("ds_read_b64_tr_b16", vr(112 + 4 * t2, 2), vr(WA), mods=f"offset:{o}")
                A.I("ds_read_b64_tr_b16", vr(114 + 4 * t2, 2), vr(WA), mods=f"offset:{o + 768}", tag=f"c7_{t2}")
        if s == 6 and n == 10:
            A.wait_l("c7_2")
            for hf in range(2):
                for t2 in range(3): small(t2, 112 + 4 * t2 + 2 * hf)
        if s == 6 and n == 11:
            A.I("v_lshl_add_u32", "v240", "v1", 2, "s61")
            A.I("v_lshlrev_b32", "v241", 2, "v1")
            for t2 in range(3): A.I("ds_write_b32", "v240", vr(CQ + 4 * t2), mods=f"offset:{256 * t2}", tag="cw")
        if s == 7 and n == 0:
            A.wait_l("cw")
            A.I("s_barrier")
            for t2 in range(3):
                for ww in range(4):
                    A.I("ds_read_b32", vr(112 + 4 * t2 + ww), "v241", mods=f"offset:{XB + 4096 * ww + 256 * t2}", tag="cr")
        if s == 7 and n == 1:
            A.wait_vm("st")
            get_tag(A, L, "M_tag", TAG, "v10", "s[18:19]")
            spin_check(A, L, "M_st", vr(ST_ + 3), TAG, pollstat, wait_tag="st")
            A.I("v_cmp_gt_u32", "vcc", 32, "v1")
            A.I("v_cndmask_b32", vr(ST_ + 2), 0, vr(ST_ + 2), "vcc")
            A.I("v_cvt_pk_bf16_f32", "v76", f"-{vr(ST_)}", f"-{vr(ST_)}")
            A.I("v_cvt_pk_bf16_f32", "v77", f"-{vr(ST_)}", vr(ST_ + 2))
        if s == 7 and n in (2, 3, 4):
            t2 = n - 2
            if n == 2: A.wait_l("cr")
            c = 112 + 4 * t2; a = AX + 4 * t2
            A.I("v_add_f32", vr(c), vr(c), vr(c + 1))
            A.I("v_add_f32", vr(c + 2), vr(c + 2), vr(c + 3))
            A.I("v_add_f32", vr(c), vr(c), vr(c + 2))
            A.I("v_cvt_pk_bf16_f32", vr(c + 1), 0, vr(c))
            A.I("v_sub_f32", vr(c), vr(c), vr(c + 1))
            A.I("v_cvt_pk_bf16_f32", vr(c + 2), 0, vr(c))
            A.I("v_sub_f32", vr(c), vr(c), vr(c + 2))
            A.I("v_cvt_pk_bf16_f32", vr(a), vr(c + 1), vr(c + 2))
            A.I("v_cvt_pk_bf16_f32", vr(a + 1), vr(c), 0)
            A.I("v_lshl_or_b32", vr(a + 1), vr(B1 + t2), 16, vr(a + 1))
        if s == 7 and n in (3, 7, 11):
            t2 = n // 4
            acc2 = vr(ACC1 + 16 * t2, 16)
            A.I("v_mfma_f32_32x32x16_bf16", acc2, vr(AX + 4 * t2, 4), "v[76:79]", acc2)
        if s == 7 and n >= 5:
            if n == 5: pend_e = epi_ops(0)
            if n == 9: pend_e = pend_e + epi_ops(1)
            for _ in range(11):
                if pend_e:
                    mn, ops, mods = pend_e.pop(0); A.I(mn, *ops, mods=mods, tag="hf")
    stampn(A, "m_g1")
    if NEARLY >= 6:
        A.wait_vm("d2")
        for k in (0, 1, 2): w2read(k)
    for mn, ops, mods in pend_e + epi_ops(2, pk='noepk' not in OPTS): A.I(mn, *ops, mods=mods, tag="hf")
    A.unpk = "mnp2" in OPTS
    stampn(A, "m_epi")
    for b in range(NEARLY, 16): w2dma(b // 2, b % 2)
    if NEARLY == 16:
        A.wait(lgkm=0)
        for k in (8, 9, 10):
            w2dma(k, 0); w2dma(k, 1)
    stampn(A, "m_e2")
    A.wait_vm("hf")
    stampn(A, "m_e3")
    A.I("s_barrier")
    A.I("s_cmp_lg_u32", "s22", 0)
    A.I("s_cbranch_scc1", L("M_nf2"))
    A.I("s_lshl_b32", "s71", "s49", F2SH + 4)
    A.I("s_lshl_b32", "s72", "s50", F2SH)
    A.I("s_add_u32", "s71", "s71", "s72")
    A.I("s_add_u32", "s71", "s71", hex(F2))
    A.I("s_mov_b64", "exec", 1)
    A.I("buffer_store_dword", TAG, "v10", "s[24:27]", "s71", mods="offen sc1")
    A.vmq.pop()
    A.I("s_mov_b64", "exec", -1)
    A.label(L("M_nf2"))
    if "touch" in OPTS:
        A.I("v_min_u32", "v240", 47, "v1")
        A.I("v_lshlrev_b32", "v240", 7, "v240")
        A.I("buffer_load_dword", "v241", "v240", "s[24:27]", "s68", mods="offen sc1")
    if NEARLY == 16:
        for k in (3, 4, 5, 6, 7): w2read(k)
    if NEARLY < 16:
        if NEARLY < 6:
            A.wait_vm("d2")
            for k in (0, 1, 2): w2read(k)
        A.wait_vm("d7", lgkm=0)
        for k in (3, 4, 5, 6, 7): w2read(k)
        for k in (8, 9, 10):
            w2dma(k, 0); w2dma(k, 1)
    A.I("s_branch", L("M_join"))
    A.label(L("M_g15"))
    lastk[0] = None
    if G1: A.I("s_branch", L("M_exit"))
    for b in range(16): w2dma(b // 2, b % 2)
    A.I("global_load_dword", TAG, "v10", "s[18:19]", mods="sc1")
    A.wait(vm=0)
    get_tag(A, L, "M_tag15", TAG, "v10", "s[18:19]")
    if "agg" in OPTS:
        A.I("v_lshlrev_b32", "v13", F1SH, "v1")
        A.I("s_lshl_b32", "s65", "s22", F1SH + 6)
        A.I("s_add_u32", "s65", "s65", hex(F1))
        spin_check(A, L, "M_agg", PF, TAG, pollw, first=True, sleep=1)
        A.I("s_barrier")
        A.I("s_cmp_lg_u32", "s22", 0)
        A.I("s_cbranch_scc1", L("M_agg2"))
        A.I("s_lshl_b32", "s65", "s49", 7)
        A.I("s_add_u32", "s65", "s65", hex(FA))
        A.I("s_mov_b64", "exec", 1)
        A.I("buffer_store_dword", TAG, "v10", "s[24:27]", "s65", mods="offen sc1")
        A.I("s_mov_b64", "exec", -1)
        A.label(L("M_agg2"))
        stampn(A, "m_agg")
    for k in range(8): w2read(k)
    A.wait(lgkm=0)
    for k in (8, 9, 10):
        w2dma(k, 0); w2dma(k, 1)
    A.label(L("M_join"))
    lastk[0] = None
    stampn(A, "m_f2pub")
    for k in (11, 12):
        w2dma(k, 0); w2dma(k, 1)
    A.wait(lgkm=0)
    for k in (13, 14, 15, 16, 17):
        w2dma(k, 0); w2dma(k, 1)
    stampn(A, "m_w1")
    A.wait(vm=14)
    stampn(A, "m_w2")
    for k in (8, 9, 10): w2read(k)
    A.I("v_min_u32", "v13", 14, "v1")
    A.I("v_lshlrev_b32", "v13", F2SH, "v13")
    A.I("s_lshr_b32", "s65", "s51", 1)
    A.I("s_lshl_b32", "s65", "s65", F2SH + 4)
    A.I("s_add_u32", "s65", "s65", hex(F2))
    A.I("s_lshl_b32", "s54", "s51", 16)
    A.I("s_lshl_b32", "s55", "s22", 14)
    A.I("s_add_u32", "s54", "s54", "s55")
    A.I("s_add_u32", "s54", "s54", "s60")
    A.I("s_add_u32", "s55", "s54", 8192)
    A.I("s_mul_i32", "s56", "s51", 172)
    A.I("s_add_u32", "s56", "s56", "s58")
    A.I("s_lshl_b32", "s56", "s56", 10)
    A.I("s_add_u32", "s56", "s56", hex(HF))
    A.I("s_add_u32", "s62", "s56", 86 * 1024)
    XR = 240
    def xo(e, gp, ip): return ("s54" if gp == 0 else "s55", ip * 2048 + e * 64)
    A.I("v_lshl_add_u32", "v6", "v5", 1, "s60")
    A.wait(lgkm=0)
    for k in (18, 19, 20):
        w2dma(k, 0); w2dma(k, 1)
    stampn(A, "m_w3")
    A.wait_vm("d11")
    w2read(11)
    A.wait(lgkm=0)
    w2dma(21, 0); w2dma(21, 1)
    stampn(A, "m_w4")
    A.I("s_cmp_lg_u32", "s22", 0)
    A.I("s_cbranch_scc1", L("M_p2w"))
    A.I("s_mov_b64", "exec", "0x7fff")
    spin_check(A, L, "M_p2", PF, TAG, pollw, first=True)
    A.I("s_mov_b64", "exec", -1)
    A.label(L("M_p2w"))
    A.I("s_barrier")
    stampn(A, "m_f2")
    A.I("s_setprio", int(os.environ.get("MP2", 1)))
    ACC = 128; NH = 8
    HR = lambda k: (192 + 8 * (k % NH)) if (k % NH) < 6 else (112 + 8 * (k % NH - 6))
    def issueH(k):
        A.I("s_add_u32", "s23", "s79", k)
        A.I("s_cmp_ge_u32", "s23", "s48")
        A.I("s_cselect_b32", "s63", "s48", 0)
        A.I("s_sub_u32", "s23", "s23", "s63")
        A.I("s_lshl_b32", "s23", "s23", 10)
        A.I("s_add_u32", "s63", "s23", "s56")
        A.I("s_add_u32", "s23", "s23", "s62")
        A.I("buffer_load_dwordx4", vr(HR(k), 4), "v2", "s[24:27]", "s63", mods="offen sc1")
        A.I("buffer_load_dwordx4", vr(HR(k) + 4, 4), "v2", "s[24:27]", "s23", mods="offen sc1", tag=f"h{k}")
    for k in range(NH): issueH(k)
    A.I("v_and_b32", "v13", 7, "v1")
    A.I("v_lshlrev_b32", "v8", 4, "v13")
    A.I("v_lshlrev_b32", "v13", F3SH, "v13")
    A.I("s_lshl_b32", "s65", "s52", F3SH + 5)
    A.I("s_lshl_b32", "s71", "s22", F3SH + 3)
    A.I("s_add_u32", "s65", "s65", "s71")
    A.I("s_add_u32", "s65", "s65", hex(F3))
    A.I("v_lshrrev_b32", "v7", 3, "v1")
    A.I("v_lshl_add_u32", "v7", "v7", 12, "v8")
    A.I("s_lshl_b32", "s67", "s52", 18)
    A.I("s_lshl_b32", "s68", "s22", 16)
    A.I("s_add_u32", "s67", "s67", "s68")
    A.I("s_lshl_b32", "s68", "s51", 7)
    A.I("s_add_u32", "s67", "s67", "s68")
    A.I("s_add_u32", "s67", "s67", hex(ST))
    A.I("s_add_u32", "s68", "s67", 8 * 4096)
    A.I("s_mov_b32", "s75", 0)
    def sload():
        A.I("buffer_load_dwordx4", "v[248:251]", "v7", "s[24:27]", "s67", mods="offen sc1")
        A.I("buffer_load_dwordx4", "v[104:107]", "v7", "s[24:27]", "s68", mods="offen sc1")
    for k in range(22):
        if k == 21:
            A.I("s_cmp_ge_u32", "s22", 2)
            A.I("s_cbranch_scc1", L("M_skip21"))
        A.wait_vm(f"h{k}")
        stampn(A, f"m_k{k}")
        if k >= 12: A.wait_l(f"S{k}")
        for tj in range(2):
            for e in range(2):
                acc = vr(ACC + 32 * tj + 16 * e, 16)
                A.I("v_mfma_f32_32x32x16_bf16", acc, vr(HR(k) + 4 * tj, 4), vr(wreg(k, e), 4), acc if k else "0")
        if k + NH < 22: issueH(k + NH)
        if k < 10: w2read(k + 12)
        if k == 13: pollw()
        if k in (14, 15, 16, 17):
            for qq in (2 * (k - 14), 2 * (k - 14) + 1):
                so, im = xo(qq >> 2, (qq >> 1) & 1, qq & 1)
                A.I("buffer_load_dword", vr(XR + qq), "v9", "s[40:43]", so, mods=f"offen offset:{im}")
        if k == 14:
            A.I("s_lshl_b32", "s74", "s51", 10)
            A.I("s_lshl_b32", "s71", "s22", 8)
            A.I("s_add_u32", "s74", "s74", "s71")
            A.I("s_add_u32", "s74", "s74", hex(STAT + 4))
            A.I("v_lshlrev_b32", "v8", 6, "v4")
        if k in (14, 15, 16, 17):
            for qq in (2 * (k - 14), 2 * (k - 14) + 1):
                A.I("buffer_load_dword", vr(96 + qq), "v8", "s[24:27]", "s74", mods=f"offen offset:{(qq >> 2) * 128 + (qq & 3) * 16} sc1")
        if k == 17:
            A.I("global_load_ushort", "v12", "v6", "s[14:15]")
            A.I("global_load_ushort", "v3", "v6", "s[14:15]", mods="offset:64", tag="xb")
        if k == 18 and "kx3" not in OPTS:
            A.wait_vm("pw")
            A.I("v_cmp_ne_u32", "vcc", PF, TAG)
            A.I("s_cbranch_vccnz", L("M_s_no"))
            sload(); A.vmq.pop(); A.vmq.pop()
            A.I("s_mov_b32", "s75", 1)
            A.label(L("M_s_no"))
    A.label(L("M_skip21"))
    stampn(A, "m_g2")
    A.I("s_setprio", 3)
    if "kx3" not in OPTS:
        A.I("s_cmp_eq_u32", "s75", 1)
        A.I("s_cbranch_scc1", L("M_s_np"))
        pollw(); A.vmq.pop()
        A.label(L("M_s_np"))
    A.I("v_add_u32", "v252", "s57", "v2")
    A.I("v_add_u32", "v253", "s61", "v2")
    OWN = 16
    A.I("s_nop", 7)
    for wd in range(4):
        src = [ACC + 32 * (wd >> 1) + 16 * e + 8 * (wd & 1) + 4 * q for e in range(2) for q in range(2)]
        A.I("s_cmp_eq_u32", "s22", wd)
        A.I("s_cbranch_scc1", L(f"own{wd}"))
        for q, r in enumerate(src):
            if q < 3: A.I("ds_write_b128", "v252", vr(r, 4), mods=f"offset:{wd * 12288 + q * 1024}")
            else: A.I("ds_write_b128", "v253", vr(r, 4), mods=f"offset:{16384 + wd * 1024}")
        A.I("s_branch", L(f"nxt{wd}"))
        A.label(L(f"own{wd}"))
        if wd == 0: A.I("s_nop", 3)
        for q, r in enumerate(src):
            for i in range(0, 4, 2):
                A.I("v_pk_mov_b32", vr(OWN + 4 * q + i, 2), vr(r + i, 2), vr(r + i, 2), mods="op_sel:[0,1]")
        A.label(L(f"nxt{wd}"))
    A.I("s_lshl_b32", "s71", "s22", 5)
    A.I("v_add_u32", "v63", "s71", "v253")
    XU = 32
    A.wait(vm=0 if "kx3" in OPTS else 1)
    for q in range(8):
        A.I("v_lshlrev_b32", vr(XU + 2 * q), 16, vr(XR + q))
        A.I("v_and_b32", vr(XU + 2 * q + 1), "s64", vr(XR + q))
    A.I("v_lshlrev_b32", "v124", 16, "v12")
    A.I("v_lshlrev_b32", "v126", 16, "v3")
    A.I("v_lshrrev_b32", "v56", 4, "v5")
    A.I("v_mul_u32_u24", "v56", 4128, "v56")
    A.I("v_bfe_u32", "v57", "v5", 3, 1)
    A.I("v_mul_u32_u24", "v57", 1040, "v57")
    A.I("v_add_u32", "v56", "v56", "v57")
    A.I("v_and_b32", "v57", 7, "v5")
    A.I("v_lshl_add_u32", "v56", "v57", 7, "v56")
    A.I("v_lshl_add_u32", "v56", "v4", 3, "v56")
    A.I("v_add_u32", "v56", "s71", "v56")
    for sl in range(3):
        A.I("s_add_u32", "s71", "s22", 1 + sl)
        A.I("s_and_b32", "s71", "s71", 3)
        A.I("s_mul_i32", "s72", "s71", 3072)
        A.I("s_mul_i32", "s73", "s22", 12288)
        A.I("s_add_u32", "s72", "s72", "s73")
        A.I("v_add_u32", vr(120 + sl), "s72", "v2")
        A.I("s_lshl_b32", "s71", "s71", 12)
        A.I("s_lshl_b32", "s72", "s22", 10)
        A.I("s_add_u32", "s71", "s71", "s72")
        A.I("s_add_u32", "s71", "s71", XB + 16384)
        A.I("v_add_u32", vr(58 + sl), "s71", "v2")
    for p in range(4): A.I("v_pk_mul_f32", vr(96 + 2 * p, 2), vr(96 + 2 * p, 2), vr(96 + 2 * p, 2))
    A.I("s_mov_b32", "s72", "0xbfb8aa3b")
    A.I("s_mov_b32", "s73", "0xbfb8aa3b")
    A.wait(lgkm=0)
    A.I("s_barrier")
    stampn(A, "m_red")
    RD = 160
    for sl in range(3):
        for q in range(4):
            if q < 3: A.I("ds_read_b128", vr(RD + 16 * sl + 4 * q, 4), vr(120 + sl), mods=f"offset:{q * 1024}")
            else: A.I("ds_read_b128", vr(RD + 16 * sl + 4 * q, 4), vr(58 + sl), tag=f"R{sl}")
    SV = 112
    def s_stage():
        A.I("s_cmp_eq_u32", "s75", 1)
        A.I("s_cbranch_scc1", L("M_s_have"))
        if "kx3" not in OPTS: spin_check(A, L, "M_p3", PF, TAG, pollw)
        sload()
        A.label(L("M_s_have"))
        stampn(A, "m_f3")
    for sl in range(3):
        A.wait_l(f"R{sl}")
        for p in range(8):
            A.I("v_pk_add_f32", vr(OWN + 2 * p, 2), vr(OWN + 2 * p, 2), vr(RD + 16 * sl + 2 * p, 2))
    T_ = 128; SU = 144
    s_stage()
    for p in range(8):
        A.I("v_pk_fma_f32", vr(OWN + 2 * p, 2), vr(OWN + 2 * p, 2), vr(96 + 2 * (p & 3), 2), "v[124:125]" if p < 4 else "v[126:127]", mods="op_sel_hi:[1,1,0]")
    for p in range(8): A.I("v_pk_mul_f32", vr(T_ + 2 * p, 2), vr(OWN + 2 * p, 2), "s[72:73]")
    for r in range(16): A.I("v_exp_f32", vr(T_ + r), vr(T_ + r))
    for p in range(8): A.I("v_pk_add_f32", vr(T_ + 2 * p, 2), vr(T_ + 2 * p, 2), "1.0", mods="op_sel_hi:[1,0]")
    A.wait(vm=0)
    A.I("ds_write_b128", "v63", "v[248:251]")
    A.I("ds_write_b128", "v63", "v[104:107]", mods="offset:1040")
    for r in range(8): A.I("v_rcp_f32", vr(T_ + r), vr(T_ + r))
    A.wait(lgkm=0)
    A.I("s_barrier")
    for e in range(2):
        for gp in range(2):
            A.I("ds_read_b64", vr(SV + 4 * e + 2 * gp, 2), "v56", mods=f"offset:{XB + 2 * 4128 * e + 16 * gp}")
    for r in range(8, 16): A.I("v_rcp_f32", vr(T_ + r), vr(T_ + r))
    for p in range(8): A.I("v_pk_mul_f32", vr(T_ + 2 * p, 2), vr(T_ + 2 * p, 2), vr(OWN + 2 * p, 2))
    A.wait(lgkm=0)
    for k in range(8):
        A.I("v_lshlrev_b32", vr(SU + 2 * k), 16, vr(SV + k))
        A.I("v_and_b32", vr(SU + 2 * k + 1), "s64", vr(SV + k))
    for p in range(8): A.I("v_pk_mul_f32", vr(T_ + 2 * p, 2), vr(T_ + 2 * p, 2), vr(SU + 2 * p, 2))
    A.I("s_mov_b32", "vcc_lo", "0x55555555")
    A.I("s_mov_b32", "vcc_hi", "0x55555555")
    QP = "quad_perm:[1,0,3,2] row_mask:0xf bank_mask:0xf"
    for p in range(8): A.I("v_cndmask_b32_dpp", vr(SU + 2 * p), vr(T_ + 2 * p + 1), vr(T_ + 2 * p), "vcc", mods=QP)
    A.I("s_not_b64", "vcc", "vcc")
    for p in range(8): A.I("v_cndmask_b32_dpp", vr(SU + 2 * p + 1), vr(T_ + 2 * p), vr(T_ + 2 * p + 1), "vcc", mods=QP)
    for p in range(8):
        A.I("v_pk_add_f32", vr(SU + 2 * p, 2), vr(SU + 2 * p, 2), vr(XU + 2 * p, 2))
        A.I("v_cvt_pk_bf16_f32", vr(64 + p), vr(SU + 2 * p), vr(SU + 2 * p + 1))
        so, im = xo(p >> 2, (p >> 1) & 1, p & 1)
        A.I("buffer_store_dword", vr(64 + p), "v9", "s[44:47]", so, mods=f"offen offset:{im}" + os.environ.get("OUTMOD", ""))
    A.unpk = False
    A.label(L("M_exit"))
    stamp_flush(A, 0, "s[20:21]", 7)
    A.I("s_endpgm")
```

```python
from asmlib import *
from layout1 import *
from k_prep import srd, DPPM, reduce32, gen_kgen_pair_setup, gen_kgen_pair_np
import k_prep
def gen_kgen_pair(A, P, vidx, pi):
    lim = int(os.environ.get('NPFROM', 8))
    (gen_kgen_pair_np if pi >= lim else k_prep.gen_kgen_pair)(A, P, vidx, pi)
KC = 0
UL = 33280
KDT = UL + 9216
KTS = 5888
ACCX = KDT + 2 * KTS
PSET = [(0, 3, 5, 6), (1, 2, 4, 7)]

def spin_check(A, L, name, vflag, vtag, reissue, cnt="s70", first=False, wait_tag=None, sleep=2):
    if first: reissue()
    A.I("s_mov_b32", cnt, SPIN_LIMIT)
    if wait_tag: A.wait_vm(wait_tag)
    else: A.wait(vm=0)
    A.label(L(name))
    A.I("v_cmp_ne_u32", "vcc", vflag, vtag)
    A.I("s_cbranch_vccz", L(name + "_ok"))
    A.I("s_sub_u32", cnt, cnt, 1)
    A.I("s_cbranch_scc1", L(name + "_ok"))
    A.I("s_sleep", sleep)
    reissue(); A.vmq.pop()
    A.wait(vm=0)
    A.I("s_branch", L(name))
    A.label(L(name + "_ok"))

def get_tag(A, L, name, vtag, vzero, dbg, cnt="s70"):
    A.I("s_mov_b32", cnt, SPIN_LIMIT)
    A.label(L(name))
    A.I("v_cmp_eq_u32", "vcc", 0, vtag)
    A.I("s_cbranch_vccz", L(name + "_ok"))
    A.I("s_sub_u32", cnt, cnt, 1)
    A.I("s_cbranch_scc1", L(name + "_ok"))
    A.I("s_sleep", 2)
    A.I("global_load_dword", vtag, vzero, dbg, mods="sc1"); A.vmq.pop()
    A.wait(vm=0)
    A.I("s_branch", L(name))
    A.label(L(name + "_ok"))

def code_prefetch(A, start_label, nbytes, vtmp, vdst, L):
    A.I("s_getpc_b64", "s[74:75]")
    A.I("v_lshlrev_b32", vtmp, 7, "v0")
    assert nbytes <= 32768
    A.I("v_cmp_gt_u32", "vcc", nbytes - 256, vtmp)
    A.I("v_cndmask_b32", vtmp, 0, vtmp, "vcc")
    A.I("global_load_dword", vdst, vtmp, "s[74:75]")

def code_prefetch2(A, nbytes):
    per = ((nbytes - 256) // 128 + 31) // 32
    A.I("s_getpc_b64", "s[74:75]")
    A.I("s_bfe_u32", "s72", "s2", "0x50003")
    A.I("s_mul_i32", "s72", "s72", per * 128)
    A.I("v_lshlrev_b32", "v3", 7, "v0")
    A.I("v_add_u32", "v3", "s72", "v3")
    A.I("v_min_u32", "v3", nbytes - 256, "v3")
    A.I("v_cmp_gt_u32", "vcc", per, "v0")
    A.I("s_and_saveexec_b64", "s[72:73]", "vcc")
    A.I("global_load_dword", "v3", "v3", "s[74:75]")
    A.I("s_mov_b64", "exec", "s[72:73]")

def swarm(A, base, sid, sw):
    A.I("s_lshl_b32", "s96", sid, 2)
    A.I("s_add_u32", "s96", "s96", sw)
    A.I("s_mul_i32", "s96", "s96", 11 * 128)
    A.I("s_min_u32", "s96", "s96", 1376 * 1024 - 11 * 128)
    A.I("s_add_u32", "s96", "s96", base[:base.index(':')].replace('[', ''))
    A.I("s_addc_u32", "s97", "s" + base[base.index(':') + 1:-1], 0)
    for i in range(11):
        A.I("s_load_dword", "s99", "s[96:97]", 128 * i)

def gen_K(A, L, ksize):
    LNAT = int(os.environ.get("LNAT", 2)); PRIOAT = int(os.environ.get("PRIOAT", 11))
    A.label(L("K"))
    if "nok" in OPTS: A.I("s_endpgm")
    A.I("s_setprio", int(os.environ.get("KP0", 2)))
    A.I("s_memrealtime", "s[76:77]")
    A.I("s_load_dwordx16", "s[4:19]", "s[0:1]", 0)
    A.I("s_load_dwordx2", "s[20:21]", "s[0:1]", 64)
    A.I("s_load_dwordx4", "s[24:27]", "s[0:1]", 120)
    A.I("s_load_dwordx2", "s[22:23]", "s[0:1]", 96)
    A.I("s_load_dwordx2", "s[68:69]", "s[0:1]", 80)
    if 'nocp' not in OPTS: code_prefetch2(A, ksize)
    A.I("s_and_b32", "s3", "s2", 255)
    A.I("v_and_b32", "v1", 63, "v0")
    A.I("v_lshrrev_b32", "v2", 6, "v0")
    A.I("v_readfirstlane_b32", "s28", "v2")
    A.I("s_and_b32", "s29", "s3", 7)
    A.I("s_lshl_b32", "s29", "s29", 5)
    A.I("s_lshr_b32", "s30", "s3", 3)
    A.I("s_add_u32", "s29", "s29", "s30")
    A.I("s_lshr_b32", "s30", "s28", 1)
    A.I("s_and_b32", "s31", "s28", 1)
    A.I("s_lshl_b32", "s32", "s29", 1)
    A.I("s_add_u32", "s32", "s32", "s30")
    A.I("s_lshl_b32", "s33", "s31", 7)
    A.I("s_lshl_b32", "s34", "s32", 8)
    A.I("s_add_u32", "s33", "s33", "s34")
    A.I("v_and_b32", "v2", 7, "v1")
    A.I("v_lshl_add_u32", "v2", "v2", 4, "s33")
    A.I("v_lshrrev_b32", "v5", 5, "v1")
    A.I("v_and_b32", "v6", 31, "v1")
    A.I("v_mov_b32", "v122", 0)
    A.I("v_lshlrev_b32", "v7", 4, "v1")
    A.I("s_lshl_b32", "s33", "s29", 2)
    A.I("s_lshl_b32", "s57", "s3", 12)
    A.I("s_lshl_b32", "s58", "s28", 10)
    A.I("s_add_u32", "s57", "s57", "s58")
    A.I("s_add_u32", "s58", "s57", 1 << 20)
    A.wait(lgkm=0)
    P = 48; X = 160
    if "w1first" in OPTS:
        srd(A, 64, 68, 1376 * 1024)
        A.I("buffer_load_dwordx4", "v[60:63]", "v7", "s[64:67]", "s57", mods="offen")
        A.I("buffer_load_dwordx4", "v[60:63]", "v7", "s[64:67]", "s58", mods="offen")
    A.I("s_mov_b64", "exec", "0xff")
    for k, sb in enumerate((6, 8, 10, 12, 14, 16)):
        A.I("v_mov_b32", "v136", sr(sb))
        A.I("v_mov_b32", "v137", sr(sb + 1))
        if k < 5: A.I("s_lshl_b64", "exec", "exec", 8)
    A.I("s_mov_b32", "exec_lo", -1)
    A.I("s_mov_b32", "exec_hi", "0xffff")
    A.I("v_add_co_u32", "v136", "vcc", "v136", "v2")
    A.I("v_addc_co_u32", "v137", "vcc", 0, "v137", "vcc")
    A.I("global_load_dwordx4", "v[140:143]", "v[136:137]", "off", tag="par")
    A.I("s_mov_b64", "exec", -1)
    A.I("s_load_dword", "s36", "s[20:21]", "s33")
    A.I("s_load_dword", "s52", "s[18:19]", "s33")
    A.I("s_or_b32", "s76", "s76", 1)
    A.I("s_or_b32", "s61", "s3", "s28")
    A.I("s_cmp_lg_u32", "s61", 0)
    A.I("s_cbranch_scc1", L("K_notag"))
    A.I("v_mov_b32", "v123", "s76")
    A.I("s_mov_b64", "exec", 1)
    A.I("global_store_dword", "v122", "v123", "s[24:25]", mods="sc1"); A.vmq.pop()
    A.I("s_mov_b64", "exec", -1)
    A.label(L("K_notag"))
    srd(A, 44, 26, WS_SIZE)
    W2AT = int(os.environ.get("W2AT", 3))
    def w2warm():
        srd(A, 64, 22, 1376 * 1024)
        A.I("buffer_load_dwordx4", "v[60:63]", "v7", "s[64:67]", "s57", mods="offen")
        A.I("buffer_load_dwordx4", "v[60:63]", "v7", "s[64:67]", "s58", mods="offen")
    if "swarm" in OPTS:
        swarm(A, "s[68:69]", "s3", "s28")
    else:
        srd(A, 64, 68, 1376 * 1024)
        if "w1part" in OPTS:
            A.I("s_add_u32", "s60", "s57", 516 * 1024)
            A.I("buffer_load_dwordx4", "v[60:63]", "v7", "s[64:67]", "s60", mods="offen")
        elif "now1" not in OPTS and "w1first" not in OPTS:
            A.I("buffer_load_dwordx4", "v[60:63]", "v7", "s[64:67]", "s57", mods="offen")
            A.I("buffer_load_dwordx4", "v[60:63]", "v7", "s[64:67]", "s58", mods="offen")
        if W2AT < 0: w2warm()
    A.I("s_mov_b32", "s56", "0x3f803f80")
    A.I("s_mov_b32", "s59", "0xffff0000")
    A.I("v_and_b32", "v56", 15, "v1")
    A.I("v_cvt_f32_u32", "v56", "v56")
    A.I("s_lshl_b32", "s53", "s28", 10)
    A.I("s_add_u32", "s53", "s53", ACCX)
    A.I("v_add_u32", "v138", "s53", "v7")
    A.I("v_lshl_add_u32", "v139", "v1", 1, "s53")
    A.I("s_mul_i32", "s37", "s30", KTS)
    A.I("s_add_u32", "s37", "s37", KDT + 32)
    A.I("s_mov_b32", "s38", -17024)
    A.I("s_movk_i32", "s39", 127)
    A.I("s_lshl_b32", "s40", "s31", 10)
    A.I("v_lshl_add_u32", "v20", "v1", 3, "s40")
    AD = 200
    for rd in range(2):
        for ii in range(11):
            A.I("v_sub_u32", vr(AD + 11 * rd + ii), 2044 - 512 * rd - (ii - 3), "v20")
        for ii in range(11):
            if rd == 1 and ii >= 8:
                A.I("v_max_i32", vr(24 + ii), 0, vr(AD + 11 * rd + ii))
                A.I("v_cvt_f32_u32", vr(24 + ii), vr(24 + ii))
            else:
                A.I("v_cvt_f32_u32", vr(24 + ii), vr(AD + 11 * rd + ii))
        for ii in range(0, 11, 2):
            A.I("v_cvt_pk_bf16_f32", vr(36 + ii // 2), vr(24 + ii), vr(24 + min(ii + 1, 10)))
        for ii in range(11):
            A.I("v_mad_u32_u16", vr(24 + ii), vr(36 + ii // 2), 1, "s38", mods=("op_sel:[1,0,0,0]" if ii & 1 else ""))
        for ii in range(11):
            A.I("v_med3_i32", vr(24 + ii), vr(24 + ii), vr(AD + 11 * rd + ii), "s39")
        for ii in range(11):
            A.I("v_ashrrev_i32", vr(AD + 11 * rd + ii), 3, vr(24 + ii))
        for ii in range(11):
            A.I("v_add_u32", vr(24 + ii), vr(24 + ii), vr(AD + 11 * rd + ii))
        for ii in range(11):
            A.I("v_lshl_add_u32", vr(AD + 11 * rd + ii), vr(24 + ii), 3, "s37")
    for k in range(4): A.I("v_mov_b32", vr(24 + k), 0)
    A.I("s_mul_i32", "s43", "s30", 4608)
    A.I("s_add_u32", "s43", "s43", UL)
    A.I("v_lshl_add_u32", "v10", "v1", 3, "s43")
    A.I("ds_write_b64", "v10", "v[24:25]")
    A.I("s_mul_i32", "s48", "s30", 16640)
    A.I("v_and_b32", "v121", 1, "v1")
    A.I("v_lshrrev_b32", "v10", 1, "v1")
    A.I("v_mul_u32_u24", "v11", 4160, "v10")
    A.I("v_lshl_add_u32", "v11", "v121", 4, "v11")
    A.I("v_add_u32", "v11", "s48", "v11")
    A.I("s_sub_u32", "s50", "s37", 32)
    A.I("v_lshl_add_u32", "v12", "v121", 4, "s50")
    A.I("s_mov_b64", "exec", "0xff")
    A.I("ds_write_b128", "v11", "v[24:27]", mods="offset:4096")
    A.I("ds_write_b128", "v12", "v[24:27]")
    A.I("s_mov_b64", "exec", -1)
    A.I("v_lshlrev_b32", "v32", 13, "v10")
    A.I("v_lshl_add_u32", "v32", "v121", 4, "v32")
    A.I("v_mul_u32_u24", "v33", 4608, "v121")
    A.I("v_lshl_add_u32", "v33", "v10", 4, "v33")
    A.I("s_lshl_b32", "s49", "s28", 10)
    A.I("s_add_u32", "s49", "s49", UL + 512)
    A.I("v_add_u32", "v33", "s49", "v33")
    if "agg" not in OPTS:
        A.I("s_lshl_b32", "s71", "s28", F1SH + 6)
        A.I("v_lshl_add_u32", "v120", "v1", F1SH, "s71")
        A.I("s_mov_b32", "s41", hex(F1))
    else:
        A.I("v_mov_b32", "v120", 0)
        A.I("s_bfe_u32", "s41", "s3", "0x40001")
        A.I("s_lshl_b32", "s41", "s41", 7)
        A.I("s_add_u32", "s41", "s41", hex(FA))
    A.I("s_lshl_b32", "s42", "s31", 2)
    A.I("s_add_u32", "s42", "s42", "s37")
    A.I("v_and_b32", "v8", 15, "v1")
    A.I("v_lshrrev_b32", "v14", 4, "v1")
    A.I("v_mul_u32_u24", "v34", 144, "v8")
    A.I("v_lshl_add_u32", "v34", "v14", 5, "v34")
    A.I("v_lshl_add_u32", "v34", "v5", 3, "v34")
    A.I("v_add_u32", "v34", "s42", "v34")
    for sg in range(1, 4): A.I("v_add_u32", vr(34 + sg), 1152 * sg, "v34")
    A.I("v_mov_b32", "v39", "s42")
    A.I("s_lshl_b32", "s49", "s31", 11)
    A.I("s_add_u32", "s50", "s49", "s48")
    A.I("v_add_u32", "v40", "s50", "v7")
    A.I("v_and_b32", "v41", 3, "v1")
    A.I("v_mul_u32_u24", "v41", 4160, "v41")
    A.I("v_bfe_u32", "v13", "v1", 2, 2)
    A.I("v_lshlrev_b32", "v13", 3, "v13")
    A.I("v_lshl_add_u32", "v13", "v14", 4, "v13")
    A.I("v_sub_u32", "v41", "v41", "v13")
    A.I("s_add_u32", "s50", "s48", 2 * 2052 - 64 * 63)
    A.I("v_add_u32", "v41", "s50", "v41")
    A.I("v_lshlrev_b32", "v42", 5, "v8")
    A.I("v_lshlrev_b32", "v15", 4, "v14")
    A.I("v_sub_u32", "v42", "v42", "v15")
    A.I("s_add_u32", "s50", "s43", 512 + 16 - 448)
    A.I("v_add_u32", "v42", "s50", "v42")
    A.I("v_lshlrev_b32", "v43", 5, "v8")
    A.I("v_lshl_add_u32", "v43", "v14", 3, "v43")
    A.I("s_add_u32", "s50", "s43", "s49")
    A.I("s_add_u32", "s50", "s50", 512)
    A.I("v_add_u32", "v44", "s50", "v43")
    A.wait_vm("par", lgkm=0)
    stampn(A, "k_x")
    if "kx3" in OPTS: A.I("s_branch", L("K_end"))
    A.I("global_load_dword", "v123", "v122", "s[24:25]", mods="sc1", tag="tag")
    A.I("ds_write_b128", "v138", "v[140:143]")
    A.I("s_lshl_b32", "s53", "s30", 4)
    A.I("s_lshr_b32", "s52", "s52", "s53")
    A.I("v_mov_b32", vr(P + 6), "s52")
    A.wait(lgkm=0)
    for k in range(6): A.I("ds_read_u16", vr(P + k), "v139", mods=f"offset:{128 * k}")
    A.wait(lgkm=0)
    gen_kgen_pair_setup(A, P)
    def poll_issue():
        A.I("buffer_load_dword", "v121", "v120", "s[44:47]", "s41", mods="offen sc1")
    def gather(sfx=''):
        spin_check(A, L, "K_p1" + sfx, "v121", "v123", poll_issue, sleep=int(os.environ.get("KSLEEP", 8)))
        stampn(A, "k_poll")
        A.I("s_lshl_b32", "s62", "s28", 19)
        A.I("s_lshl_b32", "s63", "s29", 5)
        A.I("s_add_u32", "s62", "s62", "s63")
        A.I("s_add_u32", "s62", "s62", hex(XNT))
        A.I("s_add_u32", "s63", "s62", 32 * 8192)
        A.I("buffer_load_dwordx4", "v[8:11]", "v32", "s[44:47]", "s62", mods="offen sc1")
        A.I("buffer_load_dwordx4", "v[12:15]", "v32", "s[44:47]", "s63", mods="offen sc1")
    for pi in range(8):
        if pi == W2AT: w2warm()
        stampn(A, f"k_p{pi}")
        gen_kgen_pair(A, P, 56, pi)
    stampn(A, "k_kgen")
    if "midhi" in OPTS: A.I("s_setprio", 3)
    if "mid2" in OPTS: A.I("s_setprio", 2)
    KACC = 100
    A.I("ds_write2_b32", "v34", vr(KACC), vr(KACC + 1), mods="offset0:0 offset1:2")
    A.I("ds_write2_b32", "v34", vr(KACC + 2), vr(KACC + 3), mods="offset0:4 offset1:6")
    A.I("s_mov_b32", "exec_lo", "0xff00ff00")
    A.I("s_mov_b32", "exec_hi", "0xff00ff00")
    for s in range(1, 4):
        A.I("ds_write2_b32", vr(34 + s), vr(KACC + 4 * s), vr(KACC + 4 * s + 1), mods="offset0:0 offset1:2")
        A.I("ds_write2_b32", vr(34 + s), vr(KACC + 4 * s + 2), vr(KACC + 4 * s + 3), mods="offset0:4 offset1:6")
    A.I("s_mov_b64", "exec", "0x8000")
    A.I("ds_write_b32", "v39", vr(KACC + 18), mods=f"offset:{8 * 720}")
    A.I("s_mov_b64", "exec", -1)
    A.wait(lgkm=0)
    A.I("s_barrier")

    stampn(A, "k_b1")
    for rd in range(2):
        for ii in range(11):
            A.I("ds_read_b64", vr(128 + 22 * rd + 2 * ii, 2), vr(AD + 11 * rd + ii), tag=f"e{rd}")
    for rd in range(2):
        A.wait_l(f"e{rd}")
        for ii in range(11):
            r = 128 + 22 * rd + 2 * ii
            A.I("v_add_f32", vr(r), vr(r), vr(r + 1))
        e = lambda ip: vr(128 + 22 * rd + 2 * (ip + 3))
        base = 64 + 16 * rd
        for sg in range(4):
            for dwi in range(4):
                lo = 2 * dwi - sg
                A.I("v_cvt_pk_bf16_f32", vr(base + 4 * sg + dwi), e(lo), e(lo + 1))
            A.I("ds_write_b128", "v40", vr(base + 4 * sg, 4), mods=f"offset:{sg * 4160 + rd * 1024}")
    A.wait(lgkm=0)
    A.I("s_barrier")
    stampn(A, "k_exp")
    if PRIOAT == 10: A.I("s_setprio", 0)
    KF = 128; UB = 96; CA = 64
    A.I("s_cmp_eq_u32", "s31", 1)
    A.I("s_cbranch_scc1", L("conv1"))
    for hw in range(2):
        if hw == 1: A.label(L("conv1"))
        Ps = PSET[hw]
        steps = [(Q, r) for Q in range(8 - min(Ps)) for r in range(8)]
        first = set()
        NB = 8
        def issueU(n):
            Q, r = steps[n]
            q = 8 * Q - r
            A.I("ds_read_b128", vr(UB + 4 * (n % NB), 4), "v42", mods=f"offset:{64 * (q + 7)}", tag=f"U{n}")
        def issueK(r):
            for si, P_ in enumerate(Ps):
                p = 8 * P_ + r
                reg = KF + 32 * si + 4 * r
                A.I("ds_read_b64", vr(reg, 2), "v41", mods=f"offset:{64 * (63 - p)}")
                A.I("ds_read_b64", vr(reg + 2, 2), "v41", mods=f"offset:{64 * (63 - p) + 8}", tag=f"K{r}")
        def mf(n):
            Q, r = steps[n]
            for si, P_ in enumerate(Ps):
                if P_ + Q > 7: continue
                acc = vr(CA + 4 * (P_ + Q), 4)
                c = acc if (P_ + Q) in first else "0"
                first.add(P_ + Q)
                A.I("v_mfma_f32_16x16x32_bf16", acc, vr(KF + 32 * si + 4 * r, 4), vr(UB + 4 * (n % NB), 4), c)
        for r in range(8): issueK(r)
        A.wait(vm=0)
        get_tag(A, L, f"K_tag{hw}", "v123", "v122", "s[24:25]")
        A.I("v_readfirstlane_b32", "s51", "v123")
        poll_issue()
        gather(f"_{hw}")
        A.wait(vm=0)
        stampn(A, "k_u")
        A.I("ds_write_b128", "v33", "v[8:11]")
        A.I("ds_write_b128", "v33", "v[12:15]", mods="offset:512")
        A.wait(lgkm=0)
        A.I("s_barrier")
        stampn(A, "k_q0")
        A.I("s_setprio", int(os.environ.get("KPRIO", 2)))
        A.I("s_lshl_b32", "s41", "s30", 13)
        A.I("s_add_u32", "s41", "s41", ACCX)
        A.I("v_add_u32", "v45", "s41", "v7")
        A.I("s_lshl_b32", "s42", "s36", 16)
        A.I("s_and_b32", "s43", "s36", "0xffff0000")
        A.I("s_cmp_eq_u32", "s30", 0)
        A.I("s_cselect_b32", "s42", "s42", "s43")
        A.I("s_lshl_b32", "s48", "s32", 12)
        A.I("s_add_u32", "s48", "s48", hex(ST) if hw == 1 else hex(ST + 2048))
        if hw == 0: A.I("v_add_u32", "v44", 2048, "v44")
        else: A.I("v_subrev_u32", "v44", 2048, "v44")
        own = list(range(4, 8)) if hw == 0 else list(range(0, 4))
        oth = list(range(0, 4)) if hw == 0 else list(range(4, 8))
        for k in range(4):
            A.I("ds_read_b64", vr(16 + 2 * k, 2), "v44", mods=f"offset:{512 * k}")
        XP = 8
        def fin_ops(k):
            Aa = own[k]; a = CA + 4 * Aa; x = 48 + 4 * k; t = 24 + 4 * (k & 1)
            ops = [("v_lshlrev_b32", [vr(t), 16, vr(16 + 2 * k)]), ("v_and_b32", [vr(t + 1), "s59", vr(16 + 2 * k)]),
                   ("v_lshlrev_b32", [vr(t + 2), 16, vr(17 + 2 * k)]), ("v_and_b32", [vr(t + 3), "s59", vr(17 + 2 * k)])]
            for i in range(4): ops.append(("v_fmac_f32", [vr(x + i), "s42", vr(t + i)]))
            if not (hw == 1 and Aa == 0):
                for i in range(4): ops.append(("v_add_f32", [vr(x + i), vr(x + i), vr(a + i)]))
            ops.append(("v_cvt_pk_bf16_f32", [vr(x), vr(x), vr(x + 1)]))
            ops.append(("v_cvt_pk_bf16_f32", [vr(x + 1), vr(x + 2), vr(x + 3)]))
            ops.append(("store", [k, x]))
            return ops
        def emit(op):
            mn, o = op
            if mn == "store": A.I("buffer_store_dwordx2", vr(o[1], 2), "v43", "s[44:47]", "s48", mods=f"offen offset:{512 * o[0]} sc1")
            else: A.I(mn, *o)
        def send():
            for Aa in oth: A.I("ds_write_b128", "v45", vr(CA + 4 * Aa, 4), mods=f"offset:{Aa * 1024}", tag="snd")
            A.wait_l("snd")
        def recv():
            for k, Aa in enumerate(own): A.I("ds_read_b128", vr(48 + 4 * k, 4), "v45", mods=f"offset:{Aa * 1024}", tag="rcv")
        for k in range(NB - 1): issueU(k)
        nxt = NB - 1
        pend = []
        for n in range(0, len(steps)):
            if n == 32:
                if hw == 0: send()
                A.I("s_barrier")
                if hw == 1: recv()
            if n == 56:
                A.I("s_barrier")
                recv()
            if hw == 1 and n == 36:
                A.wait_l("rcv")
                pend = fin_ops(0) + fin_ops(1) + fin_ops(2) + fin_ops(3)
            if hw == 0 and n == 59:
                A.wait_l("rcv")
                pend = fin_ops(0) + fin_ops(1) + fin_ops(2)
            A.wait_l(f"U{n}")
            mf(n)
            if nxt < len(steps): issueU(nxt)
            nxt += 1
            for _ in range(3 if hw == 1 else 9):
                if pend: emit(pend.pop(0))
        stampn(A, "k_mf")
        if hw == 1:
            send()
            A.I("s_barrier")
            for op in pend: emit(op)
        else:
            for op in pend + fin_ops(3): emit(op)
        if hw == 0: A.I("s_branch", L("K_pub"))
    A.label(L("K_pub"))
    stampn(A, "k_conv")
    A.wait(vm=0)
    A.I("s_barrier")
    A.I("s_cmp_lg_u32", "s28", 0)
    A.I("s_cbranch_scc1", L("K_end"))
    A.I("s_lshl_b32", "s71", "s29", F3SH)
    A.I("s_add_u32", "s71", "s71", hex(F3))
    A.I("v_mov_b32", "v8", "s51")
    A.I("v_mov_b32", "v9", 0)
    A.I("s_mov_b64", "exec", 1)
    A.I("buffer_store_dword", "v8", "v9", "s[44:47]", "s71", mods="offen sc1")
    A.I("s_mov_b64", "exec", -1)
    A.unpk = False
    A.label(L("K_end"))
    stamp_flush(A, 0, "s[26:27]", 7)
    A.I("s_endpgm")
```

```python
import os
from asmlib import *
from layout1 import *
from k_prep import srd
from k_prep import reduce32
from t14_k import spin_check, code_prefetch2, get_tag, swarm

XB = 49152

def gen_csb(A, L, TAG):
    A.I("s_lshl_b32", "s71", "s49", 2)
    A.I("s_add_u32", "s71", "s71", "s22")
    A.I("global_load_dword", TAG, "v10", "s[18:19]", mods="sc1")
    A.I("s_cmp_ge_u32", "s71", 45)
    A.I("s_cbranch_scc1", L("M_csb_skip"))
    A.I("s_min_u32", "s72", "s71", 42)
    A.I("s_lshl_b32", "s72", "s72", 6)
    A.I("v_lshrrev_b32", "v16", 2, "v1")
    A.I("v_mul_u32_u24", "v16", 2752, "v16")
    A.I("v_and_b32", "v17", 3, "v1")
    A.I("v_lshl_add_u32", "v16", "v17", 4, "v16")
    A.I("s_mov_b32", "s73", "s72")
    for i in range(32):
        A.I("buffer_load_dwordx4", vr(128 + 4 * i - (0 if i < 28 else 0), 4) if i < 28 else vr(32 + 4 * (i - 28), 4), "v16", "s[28:31]", "s73", mods="offen", tag=f"c{i}")
        A.I("s_add_u32", "s73", "s73", 16 * 2752)
    A.I("v_lshl_add_u32", "v18", "v5", 1, "s72")
    A.I("global_load_ushort", "v19", "v18", "s[10:11]")
    A.I("s_mov_b32", "s74", "0x00003f80")
    A.I("s_mov_b32", "s75", "0x3f800000")
    for c in range(8): A.I("v_mov_b32", vr(20 + c), 0)
    for i in range(32):
        A.wait_vm(f"c{i}")
        b = 128 + 4 * i if i < 28 else 32 + 4 * (i - 28)
        for d in range(4):
            A.I("v_dot2_f32_bf16", vr(20 + 2 * d), vr(b + d), "s74", vr(20 + 2 * d))
            A.I("v_dot2_f32_bf16", vr(21 + 2 * d), vr(b + d), "s75", vr(21 + 2 * d))
    D = "row_mask:0xf bank_mask:0xf"
    for m in ("row_ror:4", "row_ror:8"):
        for c in range(8): A.I("v_add_f32_dpp", vr(20 + c), vr(20 + c), vr(20 + c), mods=f"{m} {D}")
    for sw in ("v_permlane16_swap_b32", "v_permlane32_swap_b32"):
        for c in range(8): A.I("v_mov_b32", vr(48 + c), vr(20 + c))
        for c in range(8): A.I(sw, vr(20 + c), vr(48 + c))
        for c in range(8): A.I("v_add_f32", vr(20 + c), vr(20 + c), vr(48 + c))
    A.I("v_lshlrev_b32", "v17", 5, "v17")
    A.I("v_add_u32", "v17", "s61", "v17")
    A.I("ds_write_b128", "v17", "v[20:23]")
    A.I("ds_write_b128", "v17", "v[24:27]", mods="offset:16")
    A.I("v_lshl_add_u32", "v17", "v5", 2, "s61")
    A.wait(lgkm=0)
    A.I("ds_read_b32", "v20", "v17")
    A.wait(vm=0, lgkm=0)
    get_tag(A, L, "M_tag15a", TAG, "v10", "s[18:19]")
    A.I("v_cvt_pk_bf16_f32", "v21", 0, "v20")
    A.I("v_sub_f32", "v20", "v20", "v21")
    A.I("v_cvt_pk_bf16_f32", "v22", 0, "v20")
    A.I("v_sub_f32", "v20", "v20", "v22")
    A.I("v_cvt_pk_bf16_f32", "v24", "v21", "v22")
    A.I("v_cvt_pk_bf16_f32", "v25", "v20", 0)
    A.I("v_lshl_or_b32", "v25", "v19", 16, "v25")
    A.I("v_mov_b32", "v26", TAG)
    A.I("v_mov_b32", "v27", TAG)
    A.I("s_lshl_b32", "s72", "s71", 9)
    A.I("s_add_u32", "s72", "s72", hex(CSB))
    A.I("v_lshlrev_b32", "v17", 4, "v5")
    A.I("s_mov_b64", "exec", "0xffffffff")
    A.I("buffer_store_dwordx4", "v[24:27]", "v17", "s[24:27]", "s72", mods="offen sc1")
    A.I("s_mov_b64", "exec", -1)
    stampn(A, "m_csb")
    A.label(L("M_csb_skip"))
    A.wait(vm=0)
    get_tag(A, L, "M_tag15", TAG, "v10", "s[18:19]")

def gen_M(A, L, msize):
    G1 = "g1only" in OPTS
    A.label(L("M"))
    if "nom" in OPTS: A.I("s_endpgm")
    A.I("s_setprio", int(os.environ.get("MP0", 1)))
    A.I("s_load_dwordx2", "s[4:5]", "s[0:1]", 0)
    A.I("s_load_dwordx8", "s[8:15]", "s[0:1]", 80)
    A.I("s_load_dwordx4", "s[16:19]", "s[0:1]", 112)
    A.I("s_load_dwordx2", "s[20:21]", "s[0:1]", 128)
    if 'nocp' not in OPTS: code_prefetch2(A, msize)
    A.I("v_and_b32", "v1", 63, "v0")
    A.I("v_lshrrev_b32", "v2", 6, "v0")
    A.I("v_readfirstlane_b32", "s22", "v2")
    A.I("s_and_b32", "s3", "s2", 255)
    A.I("s_and_b32", "s23", "s3", 7)
    A.I("s_lshr_b32", "s48", "s3", 3)
    A.I("s_lshr_b32", "s49", "s23", 1)
    A.I("s_lshl_b32", "s49", "s49", 2)
    A.I("s_lshr_b32", "s76", "s48", 3)
    A.I("s_add_u32", "s49", "s49", "s76")
    A.I("s_and_b32", "s50", "s23", 1)
    A.I("s_lshl_b32", "s50", "s50", 3)
    A.I("s_and_b32", "s52", "s48", 7)
    A.I("s_add_u32", "s50", "s50", "s52")
    A.I("s_lshl_b32", "s76", "s76", 1)
    if "rot1" not in OPTS: A.I("s_mov_b32", "s76", 0)
    A.I("s_lshl_b32", "s51", "s23", 2)
    A.I("s_lshr_b32", "s52", "s48", 3)
    A.I("s_add_u32", "s51", "s51", "s52")
    A.I("s_and_b32", "s52", "s48", 7)
    A.I("s_lshl_b32", "s53", "s49", 2)
    A.I("s_add_u32", "s53", "s53", "s22")
    A.I("v_lshlrev_b32", "v2", 4, "v1")
    A.I("v_lshrrev_b32", "v4", 5, "v1")
    A.I("v_and_b32", "v5", 31, "v1")
    A.I("v_lshrrev_b32", "v9", 3, "v1")
    A.I("v_lshrrev_b32", "v10", 4, "v1")
    A.I("v_and_b32", "v11", 7, "v1")
    A.I("v_xor_b32", "v10", "v10", "v11")
    A.I("v_lshlrev_b32", "v9", 10, "v9")
    A.I("v_lshl_add_u32", "v12", "v10", 4, "v9")
    A.I("v_xor_b32", "v13", 64, "v12")
    A.I("v_bfe_u32", "v10", "v1", 4, 1)
    A.I("v_lshlrev_b32", "v10", 2, "v10")
    A.I("v_xor_b32", "v10", "v10", "v11")
    A.I("v_lshl_add_u32", "v15", "v10", 4, "v9")
    A.I("s_mov_b32", "s54", 43691)
    for n in range(3):
        A.I("v_add_u32", "v9", 64 * n, "v1")
        A.I("v_mul_u32_u24", "v10", "s54", "v9")
        A.I("v_lshrrev_b32", "v10", 19, "v10")
        A.I("v_mul_u32_u24", "v11", 12, "v10")
        A.I("v_sub_u32", "v9", "v9", "v11")
        A.I("v_mul_u32_u24", "v10", 2752, "v10")
        A.I("v_lshl_add_u32", vr(6 + n), "v9", 4, "v10")
    A.I("v_lshlrev_b32", "v14", 7, "v5")
    A.I("s_mul_i32", "s55", "s50", 192)
    A.I("s_mul_i32", "s56", "s22", 16 * 2752)
    A.I("s_add_u32", "s56", "s56", "s55")
    A.I("s_mul_i32", "s57", "s22", 3072)
    A.I("s_lshl_b32", "s67", "s53", 15)
    A.I("s_lshl_b32", "s61", "s22", 12)
    A.I("s_add_u32", "s61", "s61", XB)
    A.I("s_lshl_b32", "s62", "s49", 17)
    A.I("s_lshl_b32", "s63", "s52", 14)
    A.I("s_add_u32", "s62", "s62", "s63")
    A.I("s_lshl_b32", "s63", "s22", 12)
    A.I("s_add_u32", "s62", "s62", "s63")
    stampn(A, "m_pre")
    A.wait(lgkm=0)
    stampn(A, "m_arg")
    srd(A, 40, 4, 2048 * 1024)
    srd(A, 28, 8, 512 * 2752)
    X = 16
    TAG = "v235"
    A.I("v_mov_b32", "v10", 0)
    A.I("s_lshl_b32", "s63", "s3", 13)
    A.I("s_lshl_b32", "s70", "s22", 11)
    A.I("s_add_u32", "s70", "s70", "s63")
    A.I("v_lshlrev_b32", "v24", 10, "v4")
    A.I("v_lshl_add_u32", "v24", "v5", 4, "v24")
    A.I("buffer_load_dwordx4", vr(X, 4), "v24", "s[40:43]", "s70", mods="offen")
    A.I("buffer_load_dwordx4", vr(X + 4, 4), "v24", "s[40:43]", "s70", mods="offen offset:512", tag="lx")
    def xdma1(s, b):
        A.I("s_add_u32", "m0", "s61", (s % 2) * 16384 + b * 1024)
        if b == 0:
            A.I("s_add_u32", "s77", "s76", s)
            A.I("s_and_b32", "s77", "s77", 7)
            A.I("s_lshl_b32", "s77", "s77", 7)
            A.I("s_add_u32", "s77", "s77", "s67")
        A.I("s_add_u32", "s63", "s77", b * 8192)
        A.I("buffer_load_dwordx4", "v12" if b % 2 == 0 else "v13", "s[40:43]", "s63", mods="offen lds", tag=f"x{s}")
    def wdma1(s, n):
        if n == 0:
            A.I("s_add_u32", "s78", "s76", s)
            A.I("s_and_b32", "s78", "s78", 7)
            A.I("s_mul_i32", "s78", "s78", 64 * 2752)
            A.I("s_add_u32", "s78", "s78", "s56")
        A.I("s_add_u32", "m0", "s57", (s % 4) * 12288 + n * 1024)
        A.I("buffer_load_dwordx4", vr(6 + n), "s[28:31]", "s78", mods="offen lds", tag=f"w{s}")
    A.I("s_cmp_eq_u32", "s50", 15)
    A.I("s_cbranch_scc1", L("M_now1"))
    for b in range(4): xdma1(0, b)
    PRO = int(os.environ.get("PRO", 3))
    if PRO < 4:
        srd(A, 36, 10, 2752)
        A.I("s_mov_b32", "m0", 36864)
        A.I("s_mov_b64", "exec", "0xfff")
        A.I("buffer_load_dwordx4", "v2", "s[36:39]", "s55", mods="offen lds")
        A.I("s_mov_b64", "exec", -1)
    for n in range(3): wdma1(0, n)
    NA = int(os.environ.get("NA", 1))
    rest = [("x", 1), ("w", 1), ("w", 2)]
    def batch(items):
        for typ, st in items:
            if typ == "x":
                for b in range(4): xdma1(st, b)
            else:
                for n in range(3): wdma1(st, n)
    batch(rest[:NA])
    A.label(L("M_now1"))
    if "swarm" in OPTS:
        swarm(A, "s[12:13]", "s3", "s22")
    stampn(A, "m_iss")
    srd(A, 24, 20, WS_SIZE)
    srd(A, 44, 16, 2048 * 1024)
    srd(A, 32, 12, 1376 * 1024)
    if "otouch" in OPTS:
        A.I("s_lshl_b32", "s63", "s3", 13)
        A.I("s_mov_b64", "exec", 1)
        A.I("buffer_load_dword", "v235", "v2", "s[44:47]", "s63", mods="offen")
        A.I("global_load_dword", "v234", "v2", "s[14:15]")
        A.I("s_mov_b64", "exec", -1)
    A.I("s_mov_b32", "s64", "0xffff0000")
    A.I("s_mov_b32", "s69", "0x3f803f80")
    A.I("s_mul_i32", "s58", "s22", 22)
    A.I("s_cmp_eq_u32", "s22", 3)
    A.I("s_cselect_b32", "s59", 1, 0)
    A.I("s_sub_u32", "s58", "s58", "s59")
    A.I("s_lshl_b32", "s59", "s58", 14)
    A.I("s_lshl_b32", "s60", "s52", 7)
    A.I("s_add_u32", "s59", "s59", "s60")
    A.I("s_cmp_lt_u32", "s22", 2)
    A.I("s_cselect_b32", "s48", 22, 21)
    A.I("s_mul_i32", "s79", "s52", 2)
    A.I("s_and_b32", "s63", "s51", 3)
    A.I("s_mul_i32", "s63", "s63", 5)
    A.I("s_add_u32", "s79", "s79", "s63")
    A.I("s_cmp_ge_u32", "s79", 21)
    A.I("s_cselect_b32", "s63", 21, 0)
    A.I("s_sub_u32", "s79", "s79", "s63")
    if "norot2" in OPTS: A.I("s_mov_b32", "s79", 0)
    A.I("v_and_b32", "v9", 1, "v1")
    A.I("v_lshl_add_u32", "v9", "v4", 2, "v9")
    A.I("v_lshlrev_b32", "v9", 10, "v9")
    A.I("v_lshrrev_b32", "v11", 1, "v5")
    A.I("v_lshl_add_u32", "v9", "v11", 2, "v9")
    XA = 244; WA = 248; TA_ = 252
    A.I("v_bfe_u32", "v14", "v1", 1, 3)
    A.I("v_xor_b32", "v14", "v14", "v4")
    A.I("s_lshl_b32", "s63", "s22", 1)
    A.I("v_xor_b32", "v14", "s63", "v14")
    A.I("v_lshlrev_b32", "v112", 7, "v5")
    A.I("v_add_u32", "v112", "s61", "v112")
    for k in range(4):
        if k: A.I("v_xor_b32", "v11", 2 * k, "v14")
        A.I("v_lshl_add_u32", vr(XA + k), "v14" if k == 0 else "v11", 4, "v112")
    A.I("v_bfe_u32", "v112", "v1", 2, 2)
    A.I("v_bfe_u32", "v113", "v1", 4, 1)
    A.I("v_and_b32", "v114", 3, "v1")
    A.I("v_lshlrev_b32", "v114", 3, "v114")
    A.I("v_lshl_add_u32", "v113", "v113", 5, "v114")
    A.I("v_lshl_add_u32", "v14", "v4", 3, "v112")
    A.I("v_mul_u32_u24", "v14", 192, "v14")
    A.I("v_add_u32", "v14", "v14", "v113")
    for k in range(4):
        A.I("s_xor_b32", "s63", "s22", k)
        A.I("s_mul_i32", "s63", "s63", 3072)
        A.I("v_add_u32", vr(WA + k), "s63", "v14")
    A.I("v_lshl_add_u32", "v14", "v4", 2, "v112")
    A.I("v_lshl_add_u32", "v14", "v14", 7, "v113")
    A.I("v_bfe_u32", "v112", "v1", 3, 1)
    A.I("v_lshl_add_u32", "v14", "v112", 6, "v14")
    A.I("v_xor_b32", "v112", 64, "v14")
    A.I("v_add_u32", vr(TA_), "s57", "v14")
    A.I("v_add_u32", vr(TA_ + 1), "s57", "v112")
    A.I("v_add_u32", vr(TA_ + 2), "s61", "v14")
    A.I("v_add_u32", vr(TA_ + 3), "s61", "v112")
    PF = "v11"
    def pollw():
        A.I("buffer_load_dword", PF, "v13", "s[24:27]", "s65", mods="offen sc1", tag="pw")
    Wb = lambda sl: [(sl * 12288 + i * 1024, 0) for i in range(3)]
    blocks = Wb(0) + [(i * 1024, 1) for i in (1, 2, 3)] + Wb(1) + [(16384 + i * 1024, 1) for i in range(4)] + Wb(2) + Wb(3) + [(0, 1)]
    KB = {k: k for k in range(8)}
    KB.update({8: 0, 9: 1, 10: 2, 11: 8, 12: 9, 13: 3, 14: 4, 15: 5, 16: 6, 17: 7, 18: 0, 19: 1, 20: 2, 21: 8})
    lastk = [None]
    def w2dma(k, hf):
        off, isx = blocks[2 * KB[k] + hf]
        if hf == 0 or lastk[0] != k:
            A.I("s_add_u32", "s23", "s79", k)
            A.I("s_cmp_ge_u32", "s23", "s48")
            A.I("s_cselect_b32", "s63", "s48", 0)
            A.I("s_sub_u32", "s23", "s23", "s63")
            A.I("s_lshl_b32", "s23", "s23", 14)
            A.I("s_add_u32", "s23", "s23", "s59")
        lastk[0] = k
        A.I("s_add_u32", "s63", "s23", hf * 8192)
        A.I("s_add_u32", "m0", "s61" if isx else "s57", off)
        A.I("buffer_load_dwordx4", "v15", "s[32:35]", "s63", mods="offen lds", tag=f"d{k}")
    WR = 16
    NWR = 12
    def wreg(k, e): return WR + 8 * (k % NWR) + 4 * e
    def w2read(k):
        for e in range(2):
            for hf in range(2):
                off, isx = blocks[2 * KB[k] + hf]
                A.I("ds_read_b64_tr_b16", vr(wreg(k, e) + 2 * hf, 2), vr(TA_ + 2 * isx + e), mods=f"offset:{off}", tag=f"S{k}")
    LNL = 36864 + 256
    A.I("global_load_dword", TAG, "v10", "s[18:19]", mods="sc1", tag="tag")
    A.I("s_mul_i32", "s63", "s22", 2 * 1088)
    A.I("s_add_u32", "s63", "s63", LNL)
    A.I("v_mul_u32_u24", "v40", 1088, "v4")
    A.I("v_lshl_add_u32", "v40", "v5", 4, "v40")
    A.I("v_add_u32", "v40", "s63", "v40")
    A.I("s_lshl_b32", "s63", "s22", 8)
    A.I("s_add_u32", "s63", "s63", LNL)
    A.I("v_mul_u32_u24", "v41", 1088, "v112")
    A.lines.pop(); A.hist.pop()
    A.I("v_bfe_u32", "v41", "v1", 2, 2)
    A.I("v_mul_u32_u24", "v41", 1088, "v41")
    A.I("v_lshrrev_b32", "v42", 4, "v1")
    A.I("v_lshl_add_u32", "v41", "v42", 5, "v41")
    A.I("v_and_b32", "v42", 3, "v1")
    A.I("v_lshl_add_u32", "v41", "v42", 3, "v41")
    A.I("v_add_u32", "v41", "s63", "v41")
    A.I("v_mov_b32", "v26", 0)
    A.I("v_mov_b32", "v27", 0)
    A.I("s_add_u32", "s70", "s70", hex(XNT))
    A.I("s_lshl_b32", "s71", "s3", 7)
    A.I("s_lshl_b32", "s72", "s22", 5)
    A.I("s_add_u32", "s71", "s71", "s72")
    A.I("s_add_u32", "s71", "s71", hex(STAT))
    A.I("v_lshlrev_b32", "v43", 4, "v4")
    A.I("s_cmp_eq_u32", "s50", 15)
    A.I("s_cbranch_scc0", L("M_lnw"))
    A.wait(vm=0)
    A.label(L("M_lnw"))
    A.I("s_setprio", 3)
    A.wait_vm("lx")
    for k in range(8):
        A.I("v_dot2_f32_bf16", "v26", vr(X + k), "s69", "v26")
        A.I("v_dot2_f32_bf16", "v27", vr(X + k), vr(X + k), "v27")
    reduce32(A, [26, 27], [28, 29])
    A.I("v_mul_f32", "v26", "0x3b000000", "v26")
    A.I("v_mul_f32", "v27", "0x3b000000", "v27")
    A.I("v_fma_f32", "v27", "-v26", "v26", "v27")
    A.I("v_max_f32", "v27", 0, "v27")
    A.I("v_cvt_pk_bf16_f32", "v44", 0, "v26")
    A.I("v_cvt_pk_bf16_f32", "v27", 0, "v27")
    A.I("v_add_f32", "v27", "0x3727c5ac", "v27")
    A.I("v_cvt_pk_bf16_f32", "v27", 0, "v27")
    A.I("v_sqrt_f32", "v27", "v27")
    A.I("v_cvt_pk_bf16_f32", "v46", 0, "v27")
    A.I("v_rcp_f32", "v30", "v46")
    for k in range(8):
        t = 32 + 2 * (k % 4)
        A.I("v_lshlrev_b32", vr(t), 16, vr(X + k))
        A.I("v_and_b32", vr(t + 1), "s64", vr(X + k))
        A.I("v_pk_add_f32", vr(t, 2), vr(t, 2), "v[44:45]", mods="op_sel_hi:[1,0] neg_lo:[0,1] neg_hi:[0,1]")
        A.I("v_pk_mul_f32", vr(t, 2), vr(t, 2), "v[30:31]", mods="op_sel_hi:[1,0]")
        A.I("v_cvt_pk_bf16_f32", vr(X + k), vr(t), vr(t + 1))
        if k == 3: A.I("ds_write_b128", "v40", vr(X, 4))
    A.I("ds_write_b128", "v40", vr(X + 4, 4), mods="offset:512")
    A.I("v_mov_b32", "v45", "v30")
    A.wait(lgkm=0)
    stampn(A, "m_ln")
    def ln_reads():
        A.I("ds_read_b64_tr_b16", "v[48:49]", "v41")
        A.I("ds_read_b64_tr_b16", "v[50:51]", "v41", mods=f"offset:{4*1088}")
        A.I("ds_read_b64_tr_b16", "v[52:53]", "v41", mods="offset:128")
        A.I("ds_read_b64_tr_b16", "v[54:55]", "v41", mods=f"offset:{4*1088+128}", tag="lnr")
    def ln_stores(sfx):
        A.wait_l("lnr")
        A.I("buffer_store_dwordx4", "v[48:51]", "v2", "s[24:27]", "s70", mods="offen sc1")
        A.I("buffer_store_dwordx4", "v[52:55]", "v2", "s[24:27]", "s70", mods="offen offset:1024 sc1", tag="xnt")
    def ln_stat(sfx):
        A.wait_vm("tag")
        get_tag(A, L, "M_tag" + sfx, TAG, "v10", "s[18:19]", cnt="s72")
        A.I("v_mov_b32", "v47", TAG)
        A.I("s_mov_b32", "exec_lo", 1)
        A.I("s_mov_b32", "exec_hi", 1)
        A.I("buffer_store_dwordx4", "v[44:47]", "v43", "s[24:27]", "s71", mods="offen sc1")
        A.I("s_mov_b64", "exec", -1)
    def ln_flag(sfx):
        A.I("s_cmp_lg_u32", "s22", 0)
        A.I("s_cbranch_scc1", L("M_f1d" + sfx))
        A.I("s_lshl_b32", "s71", "s3", F1SH)
        A.I("s_add_u32", "s71", "s71", hex(F1))
        A.I("s_mov_b64", "exec", 1)
        A.I("buffer_store_dword", TAG, "v10", "s[24:27]", "s71", mods="offen sc1")
        A.vmq.pop()
        A.I("s_mov_b64", "exec", -1)
        A.label(L("M_f1d" + sfx))
        stampn(A, "m_f1")
    A.I("s_barrier")
    ln_reads()
    ln_stores("a")
    A.I("s_setprio", int(os.environ.get("MP0", 1)))
    A.I("s_cmp_eq_u32", "s50", 15)
    A.I("s_cbranch_scc1", L("M_g15"))
    batch(rest[NA:])
    ln_stat("a")
    F1BAR = int(os.environ.get("F1BAR", 1))
    ACC1 = 128; WB = 208; NW = 5; CP = 228; B1 = 231; ST_ = 232 + 4
    XFb = lambda s: 176 if s % 2 == 0 else 192
    CQ = 100
    A.I("v_mov_b32", "v98", "s69")
    A.I("v_mov_b32", "v99", "s69")
    def small(t, reg, first=False):
        A.I("v_mfma_f32_4x4x4_16b_bf16", vr(CQ + 4 * t, 4), "v[98:99]", vr(reg, 2), "0" if first else vr(CQ + 4 * t, 4))
    A.I("s_mul_i32", "s68", "s53", 86)
    A.I("s_mul_i32", "s63", "s50", 6)
    A.I("s_add_u32", "s68", "s68", "s63")
    A.I("s_lshl_b32", "s68", "s68", 10)
    A.I("s_add_u32", "s68", "s68", hex(HF))
    A.I("s_add_u32", "s66", "s68", 4096)
    A.I("s_cmp_eq_u32", "s50", 14)
    A.I("s_cselect_b32", "s66", "0x7f000000", "s66")
    A.I("s_cselect_b32", "s73", "0x7f000000", "s68")
    A.I("s_lshl_b32", "s74", "s53", 9)
    A.I("s_add_u32", "s74", "s74", hex(STAT))
    AX = 64
    for r in (66, 67, 70, 71, 74, 75, 78, 79): A.I("v_mov_b32", vr(r), 0)
    def pollstat():
        A.I("buffer_load_dwordx4", vr(ST_, 4), "v3", "s[24:27]", "s74", mods="offen sc1", tag="st")
    def rdW(s, idx, buf):
        kk, t = idx
        o = (s % 4) * 12288 + t * 64
        r = WB + 4 * buf
        A.I("ds_read_b64_tr_b16", vr(r, 2), vr(WA + kk), mods=f"offset:{o}")
        A.I("ds_read_b64_tr_b16", vr(r + 2, 2), vr(WA + kk), mods=f"offset:{o + 768}", tag=f"W{s}_{kk}_{t}")
    def bar(s):
        tags = [f"x{s}", f"w{s}"] + (["xnt"] if s == F1BAR else [])
        A.wait_vm(min(tags, key=lambda t: A._after(A.vmq, t)))
        stampn(A, f"m_s{s}a")
        A.I("s_barrier")
        stampn(A, f"m_s{s}b")
        if s == F1BAR: ln_flag("a")
    def xread(s, kk):
        A.I("ds_read_b128", vr(XFb(s) + 4 * kk, 4), vr(XA + kk), mods=f"offset:{(s % 2) * 16384}")
    def epi_ops(t, pk=False):
        ops = []
        a = ACC1 + 16 * t
        for k in range(8):
            r = a + 2 * k
            for q in (r, r + 1):
                ops.append(("v_max_f32", [vr(q), 0, vr(q)], ""))
                if not pk:
                    ops.append(("v_mul_f32", [vr(q), vr(q), vr(q)], ""))
            if pk:
                ops.append(("v_pk_mul_f32", [vr(r, 2), vr(r, 2), vr(r, 2)], ""))
            ops.append(("v_cvt_pk_bf16_f32", [vr(a + k), vr(r), vr(r + 1)], ""))
            if k % 4 == 3:
                off = (2 * t + k // 4) * 1024
                ops.append(("buffer_store_dwordx4", [vr(a + k - 3, 4), "v2", "s[24:27]", ("s68", "s73", "s66")[t]], f"offen offset:{off % 4096} sc1"))
        return ops
    pend_e = []
    seq = []
    for s in range(8):
        order = [(kk, t) for kk in range(4) for t in range(3)] if s < 7 else [(kk, t) for t in range(3) for kk in range(4)]
        seq += [(s, o) for o in order]
    bar(0)
    A.I("s_setprio", int(os.environ.get("MP1", 3)))
    for kk in range(4): xread(0, kk)
    A.I("v_lshlrev_b32", "v3", 1, "v5")
    if PRO < 4:
        for t in range(3): A.I("ds_read_u16", vr(B1 + t), "v3", mods=f"offset:{36864 + 64 * t}")
    A.I("v_lshlrev_b32", "v3", 4, "v5")
    for m in range(NW - 1): rdW(seq[m][0], seq[m][1], m)
    NEARLY = int(os.environ.get('NEARLY', 16))
    STATAT = tuple(int(x) for x in os.environ.get('STATAT', '5,6').split(','))
    BN = 7; WPOS = (7, 9, 10); XPOS = (2, 3, 5, 6)
    XP0 = (6, 8, 9, 11)
    early = {(5, 7): 0, (5, 9): 1, (5, 10): 2, (6, 2): 3, (6, 3): 4, (6, 5): 5, (6, 7): 6, (6, 9): 7, (6, 10): 8, (7, 2): 9, (7, 3): 10, (7, 4): 11, (7, 5): 12, (7, 6): 13, (7, 7): 14, (7, 8): 15}
    for m, (s, (kk, t)) in enumerate(seq):
        n = m % 12
        if n == 0: stampn(A, f"m_s{s}")
        if G1 and m == 84: A.I("s_branch", L("M_exit"))
        A.wait_l(f"W{s}_{kk}_{t}")
        acc = vr(ACC1 + 16 * t, 16)
        if "nomfma" not in OPTS: A.I("v_mfma_f32_32x32x16_bf16", acc, vr(WB + 4 * (m % NW), 4), vr(XFb(s) + 4 * kk, 4), acc if (s or kk) else "0")
        stampn(A, f"m_s{s}n{n}")
        docs = kk == 0 and s < 7 and "nocs" not in OPTS
        if docs: small(t, WB + 4 * (m % NW), first=(s == 0))
        if n == BN and s < 7: bar(s + 1)
        if s < 7 and BN <= n < BN + 4: xread(s + 1, n - BN)
        if m + NW - 1 < 96: rdW(seq[m + NW - 1][0], seq[m + NW - 1][1], (m + NW - 1) % NW)
        if docs: small(t, WB + 4 * (m % NW) + 2)
        if "nodma" in OPTS:
            A.vmq += [f"w{s + 3}", f"x{s + 2}"] + [None] * 70
        else:
            if False:
                pend = ([("x", b) for b in range(4)] if PRO < 1 else []) + ([("w1", i) for i in range(3)] if PRO < 2 else []) + ([("w2", i) for i in range(3)] if PRO < 3 else [])
                per = (len(pend) + 5) // 6
                for typ, i in pend[n * per:(n + 1) * per] if n < 6 else []:
                    if typ == "x": xdma1(1, i)
                    else: wdma1(int(typ[1]), i)
            if n in WPOS and s + 3 < 8 and not (PRO == 4 and s == 0) and "now" not in OPTS: wdma1(s + 3, WPOS.index(n))
            xp = XP0 if False else XPOS
            if n in xp and s + 2 < 8 and "nox" not in OPTS: xdma1(s + 2, xp.index(n))
            if "now" in OPTS: A.vmq.insert(0, f"w{s + 3}")
            if "nox" in OPTS: A.vmq.insert(0, f"x{s + 2}")
        if (s, n) == STATAT:
            pollstat()
        if (s, n) in early and early[(s, n)] < NEARLY:
            b = early[(s, n)]
            w2dma(b // 2, b % 2)
        if s == 6 and n == BN:
            for t2 in range(3):
                o = 3 * 12288 + t2 * 64
                A.I("ds_read_b64_tr_b16", vr(112 + 4 * t2, 2), vr(WA), mods=f"offset:{o}")
                A.I("ds_read_b64_tr_b16", vr(114 + 4 * t2, 2), vr(WA), mods=f"offset:{o + 768}", tag=f"c7_{t2}")
        if s == 6 and n == 10:
            A.wait_l("c7_2")
            for hf in range(2):
                for t2 in range(3): small(t2, 112 + 4 * t2 + 2 * hf)
        if s == 6 and n == 11:
            A.I("v_lshl_add_u32", "v240", "v1", 2, "s61")
            A.I("v_lshlrev_b32", "v241", 2, "v1")
            for t2 in range(3): A.I("ds_write_b32", "v240", vr(CQ + 4 * t2), mods=f"offset:{256 * t2}", tag="cw")
        if s == 7 and n == 0:
            A.wait_l("cw")
            A.I("s_barrier")
            for t2 in range(3):
                for ww in range(4):
                    A.I("ds_read_b32", vr(112 + 4 * t2 + ww), "v241", mods=f"offset:{XB + 4096 * ww + 256 * t2}", tag="cr")
        if s == 7 and n == 1:
            A.wait_vm("st")
            spin_check(A, L, "M_st", vr(ST_ + 3), TAG, pollstat, wait_tag="st")
            A.I("v_cmp_gt_u32", "vcc", 32, "v1")
            A.I("v_cndmask_b32", vr(ST_ + 2), 0, vr(ST_ + 2), "vcc")
            A.I("v_cvt_pk_bf16_f32", "v76", f"-{vr(ST_)}", f"-{vr(ST_)}")
            A.I("v_cvt_pk_bf16_f32", "v77", f"-{vr(ST_)}", vr(ST_ + 2))
        if s == 7 and n in (2, 3, 4):
            t2 = n - 2
            if n == 2: A.wait_l("cr")
            c = 112 + 4 * t2; a = AX + 4 * t2
            A.I("v_add_f32", vr(c), vr(c), vr(c + 1))
            A.I("v_add_f32", vr(c + 2), vr(c + 2), vr(c + 3))
            A.I("v_add_f32", vr(c), vr(c), vr(c + 2))
            A.I("v_cvt_pk_bf16_f32", vr(c + 1), 0, vr(c))
            A.I("v_sub_f32", vr(c), vr(c), vr(c + 1))
            A.I("v_cvt_pk_bf16_f32", vr(c + 2), 0, vr(c))
            A.I("v_sub_f32", vr(c), vr(c), vr(c + 2))
            A.I("v_cvt_pk_bf16_f32", vr(a), vr(c + 1), vr(c + 2))
            A.I("v_cvt_pk_bf16_f32", vr(a + 1), vr(c), 0)
            A.I("v_lshl_or_b32", vr(a + 1), vr(B1 + t2), 16, vr(a + 1))
        if s == 7 and n in (3, 7, 11):
            t2 = n // 4
            acc2 = vr(ACC1 + 16 * t2, 16)
            A.I("v_mfma_f32_32x32x16_bf16", acc2, vr(AX + 4 * t2, 4), "v[76:79]", acc2)
        if s == 7 and n >= 5:
            if n == 5: pend_e = epi_ops(0)
            if n == 9: pend_e = pend_e + epi_ops(1)
            for _ in range(11):
                if pend_e:
                    mn, ops, mods = pend_e.pop(0); A.I(mn, *ops, mods=mods, tag="hf")
    stampn(A, "m_g1")
    if NEARLY >= 6:
        A.wait_vm("d2")
        for k in (0, 1, 2): w2read(k)
    for mn, ops, mods in pend_e + epi_ops(2, pk='noepk' not in OPTS): A.I(mn, *ops, mods=mods, tag="hf")
    A.unpk = "mnp2" in OPTS
    stampn(A, "m_epi")
    for b in range(NEARLY, 16): w2dma(b // 2, b % 2)
    if NEARLY == 16:
        A.wait(lgkm=0)
        for k in (8, 9, 10):
            w2dma(k, 0); w2dma(k, 1)
    stampn(A, "m_e2")
    A.wait_vm("hf")
    stampn(A, "m_e3")
    A.I("s_barrier")
    A.I("s_cmp_lg_u32", "s22", 0)
    A.I("s_cbranch_scc1", L("M_nf2"))
    A.I("s_lshl_b32", "s71", "s49", F2SH + 4)
    A.I("s_lshl_b32", "s72", "s50", F2SH)
    A.I("s_add_u32", "s71", "s71", "s72")
    A.I("s_add_u32", "s71", "s71", hex(F2))
    A.I("s_mov_b64", "exec", 1)
    A.I("buffer_store_dword", TAG, "v10", "s[24:27]", "s71", mods="offen sc1")
    A.vmq.pop()
    A.I("s_mov_b64", "exec", -1)
    A.label(L("M_nf2"))
    if "touch" in OPTS:
        A.I("v_min_u32", "v240", 47, "v1")
        A.I("v_lshlrev_b32", "v240", 7, "v240")
        A.I("buffer_load_dword", "v241", "v240", "s[24:27]", "s68", mods="offen sc1")
    if NEARLY == 16:
        for k in (3, 4, 5, 6, 7): w2read(k)
    if NEARLY < 16:
        if NEARLY < 6:
            A.wait_vm("d2")
            for k in (0, 1, 2): w2read(k)
        A.wait_vm("d7", lgkm=0)
        for k in (3, 4, 5, 6, 7): w2read(k)
        for k in (8, 9, 10):
            w2dma(k, 0); w2dma(k, 1)
    A.I("s_branch", L("M_join"))
    A.label(L("M_g15"))
    lastk[0] = None
    if G1: A.I("s_branch", L("M_exit"))
    A.vmq.append("tag")
    ln_stat("g")
    A.wait(vm=0)
    A.I("s_barrier")
    ln_flag("g")
    for b in range(16): w2dma(b // 2, b % 2)
    A.wait(vm=0)
    if "agg" in OPTS:
        A.I("v_lshlrev_b32", "v13", F1SH, "v1")
        A.I("s_lshl_b32", "s65", "s22", F1SH + 6)
        A.I("s_add_u32", "s65", "s65", hex(F1))
        spin_check(A, L, "M_agg", PF, TAG, pollw, first=True, sleep=1)
        A.I("s_barrier")
        A.I("s_cmp_lg_u32", "s22", 0)
        A.I("s_cbranch_scc1", L("M_agg2"))
        A.I("s_lshl_b32", "s65", "s49", 7)
        A.I("s_add_u32", "s65", "s65", hex(FA))
        A.I("s_mov_b64", "exec", 1)
        A.I("buffer_store_dword", TAG, "v10", "s[24:27]", "s65", mods="offen sc1")
        A.I("s_mov_b64", "exec", -1)
        A.label(L("M_agg2"))
        stampn(A, "m_agg")
    for k in range(8): w2read(k)
    A.wait(lgkm=0)
    for k in (8, 9, 10):
        w2dma(k, 0); w2dma(k, 1)
    A.label(L("M_join"))
    lastk[0] = None
    stampn(A, "m_f2pub")
    for k in (11, 12):
        w2dma(k, 0); w2dma(k, 1)
    A.wait(lgkm=0)
    for k in (13, 14, 15, 16, 17):
        w2dma(k, 0); w2dma(k, 1)
    stampn(A, "m_w1")
    A.wait(vm=14)
    stampn(A, "m_w2")
    for k in (8, 9, 10): w2read(k)
    A.I("v_mov_b32", "v14", TAG)
    TAG = "v14"
    A.I("v_min_u32", "v13", 14, "v1")
    A.I("v_lshlrev_b32", "v13", F2SH, "v13")
    A.I("s_lshr_b32", "s65", "s51", 1)
    A.I("s_lshl_b32", "s65", "s65", F2SH + 4)
    A.I("s_add_u32", "s65", "s65", hex(F2))
    A.I("s_lshl_b32", "s54", "s51", 16)
    A.I("s_lshl_b32", "s55", "s22", 14)
    A.I("s_add_u32", "s54", "s54", "s55")
    A.I("s_add_u32", "s54", "s54", "s60")
    A.I("s_add_u32", "s55", "s54", 8192)
    A.I("s_mul_i32", "s56", "s51", 172)
    A.I("s_add_u32", "s56", "s56", "s58")
    A.I("s_lshl_b32", "s56", "s56", 10)
    A.I("s_add_u32", "s56", "s56", hex(HF))
    A.I("s_add_u32", "s62", "s56", 86 * 1024)
    XR = 240
    def xo(e, gp, ip): return ("s54" if gp == 0 else "s55", ip * 2048 + e * 64)
    A.I("v_lshl_add_u32", "v6", "v5", 1, "s60")
    A.wait(lgkm=0)
    for k in (18, 19, 20):
        w2dma(k, 0); w2dma(k, 1)
    stampn(A, "m_w3")
    A.wait_vm("d11")
    w2read(11)
    A.wait(lgkm=0)
    w2dma(21, 0); w2dma(21, 1)
    stampn(A, "m_w4")
    A.I("s_cmp_lg_u32", "s22", 0)
    A.I("s_cbranch_scc1", L("M_p2w"))
    A.I("s_mov_b64", "exec", "0x7fff")
    spin_check(A, L, "M_p2", PF, TAG, pollw, first=True)
    A.I("s_mov_b64", "exec", -1)
    A.label(L("M_p2w"))
    A.I("s_barrier")
    stampn(A, "m_f2")
    A.I("s_setprio", int(os.environ.get("MP2", 1)))
    ACC = 128; NH = 8
    HR = lambda k: (192 + 8 * (k % NH)) if (k % NH) < 6 else (112 + 8 * (k % NH - 6))
    def issueH(k):
        A.I("s_add_u32", "s23", "s79", k)
        A.I("s_cmp_ge_u32", "s23", "s48")
        A.I("s_cselect_b32", "s63", "s48", 0)
        A.I("s_sub_u32", "s23", "s23", "s63")
        A.I("s_lshl_b32", "s23", "s23", 10)
        A.I("s_add_u32", "s63", "s23", "s56")
        A.I("s_add_u32", "s23", "s23", "s62")
        A.I("buffer_load_dwordx4", vr(HR(k), 4), "v2", "s[24:27]", "s63", mods="offen sc1")
        A.I("buffer_load_dwordx4", vr(HR(k) + 4, 4), "v2", "s[24:27]", "s23", mods="offen sc1", tag=f"h{k}")
    for k in range(NH): issueH(k)
    A.I("v_and_b32", "v13", 7, "v1")
    A.I("v_lshlrev_b32", "v8", 4, "v13")
    A.I("v_lshlrev_b32", "v13", F3SH, "v13")
    A.I("s_lshl_b32", "s65", "s52", F3SH + 5)
    A.I("s_lshl_b32", "s71", "s22", F3SH + 3)
    A.I("s_add_u32", "s65", "s65", "s71")
    A.I("s_add_u32", "s65", "s65", hex(F3))
    A.I("v_lshrrev_b32", "v7", 3, "v1")
    A.I("v_lshl_add_u32", "v7", "v7", 12, "v8")
    A.I("s_lshl_b32", "s67", "s52", 18)
    A.I("s_lshl_b32", "s68", "s22", 16)
    A.I("s_add_u32", "s67", "s67", "s68")
    A.I("s_lshl_b32", "s68", "s51", 7)
    A.I("s_add_u32", "s67", "s67", "s68")
    A.I("s_add_u32", "s67", "s67", hex(ST))
    A.I("s_add_u32", "s68", "s67", 8 * 4096)
    A.I("s_mov_b32", "s75", 0)
    def sload():
        A.I("buffer_load_dwordx4", "v[248:251]", "v7", "s[24:27]", "s67", mods="offen sc1")
        A.I("buffer_load_dwordx4", "v[104:107]", "v7", "s[24:27]", "s68", mods="offen sc1")
    for k in range(22):
        if k == 21:
            A.I("s_cmp_ge_u32", "s22", 2)
            A.I("s_cbranch_scc1", L("M_skip21"))
        A.wait_vm(f"h{k}")
        stampn(A, f"m_k{k}")
        if k >= 12: A.wait_l(f"S{k}")
        for tj in range(2):
            for e in range(2):
                acc = vr(ACC + 32 * tj + 16 * e, 16)
                A.I("v_mfma_f32_32x32x16_bf16", acc, vr(HR(k) + 4 * tj, 4), vr(wreg(k, e), 4), acc if k else "0")
        if k + NH < 22: issueH(k + NH)
        if k < 10: w2read(k + 12)
        if k == 13: pollw()
        if k in (14, 15, 16, 17):
            for qq in (2 * (k - 14), 2 * (k - 14) + 1):
                so, im = xo(qq >> 2, (qq >> 1) & 1, qq & 1)
                A.I("buffer_load_dword", vr(XR + qq), "v9", "s[40:43]", so, mods=f"offen offset:{im}")
        if k == 14:
            A.I("s_lshl_b32", "s74", "s51", 10)
            A.I("s_lshl_b32", "s71", "s22", 8)
            A.I("s_add_u32", "s74", "s74", "s71")
            A.I("s_add_u32", "s74", "s74", hex(STAT + 4))
            A.I("v_lshlrev_b32", "v8", 6, "v4")
        if k in (14, 15, 16, 17):
            for qq in (2 * (k - 14), 2 * (k - 14) + 1):
                A.I("buffer_load_dword", vr(96 + qq), "v8", "s[24:27]", "s74", mods=f"offen offset:{(qq >> 2) * 128 + (qq & 3) * 16} sc1")
        if k == 17:
            A.I("global_load_ushort", "v12", "v6", "s[14:15]")
            A.I("global_load_ushort", "v3", "v6", "s[14:15]", mods="offset:64", tag="xb")
        if k == 18 and "kx3" not in OPTS:
            A.wait_vm("pw")
            A.I("v_cmp_ne_u32", "vcc", PF, TAG)
            A.I("s_cbranch_vccnz", L("M_s_no"))
            sload(); A.vmq.pop(); A.vmq.pop()
            A.I("s_mov_b32", "s75", 1)
            A.label(L("M_s_no"))
    A.label(L("M_skip21"))
    stampn(A, "m_g2")
    A.I("s_setprio", 3)
    if "kx3" not in OPTS:
        A.I("s_cmp_eq_u32", "s75", 1)
        A.I("s_cbranch_scc1", L("M_s_np"))
        pollw(); A.vmq.pop()
        A.label(L("M_s_np"))
    A.I("v_add_u32", "v252", "s57", "v2")
    A.I("v_add_u32", "v253", "s61", "v2")
    OWN = 16
    A.I("s_nop", 7)
    for wd in range(4):
        src = [ACC + 32 * (wd >> 1) + 16 * e + 8 * (wd & 1) + 4 * q for e in range(2) for q in range(2)]
        A.I("s_cmp_eq_u32", "s22", wd)
        A.I("s_cbranch_scc1", L(f"own{wd}"))
        for q, r in enumerate(src):
            if q < 3: A.I("ds_write_b128", "v252", vr(r, 4), mods=f"offset:{wd * 12288 + q * 1024}")
            else: A.I("ds_write_b128", "v253", vr(r, 4), mods=f"offset:{16384 + wd * 1024}")
        A.I("s_branch", L(f"nxt{wd}"))
        A.label(L(f"own{wd}"))
        if wd == 0: A.I("s_nop", 3)
        for q, r in enumerate(src):
            for i in range(0, 4, 2):
                A.I("v_pk_mov_b32", vr(OWN + 4 * q + i, 2), vr(r + i, 2), vr(r + i, 2), mods="op_sel:[0,1]")
        A.label(L(f"nxt{wd}"))
    A.I("s_lshl_b32", "s71", "s22", 5)
    A.I("v_add_u32", "v63", "s71", "v253")
    XU = 32
    A.wait(vm=0 if "kx3" in OPTS else 1)
    for q in range(8):
        A.I("v_lshlrev_b32", vr(XU + 2 * q), 16, vr(XR + q))
        A.I("v_and_b32", vr(XU + 2 * q + 1), "s64", vr(XR + q))
    A.I("v_lshlrev_b32", "v124", 16, "v12")
    A.I("v_lshlrev_b32", "v126", 16, "v3")
    A.I("v_lshrrev_b32", "v56", 4, "v5")
    A.I("v_mul_u32_u24", "v56", 4128, "v56")
    A.I("v_bfe_u32", "v57", "v5", 3, 1)
    A.I("v_mul_u32_u24", "v57", 1040, "v57")
    A.I("v_add_u32", "v56", "v56", "v57")
    A.I("v_and_b32", "v57", 7, "v5")
    A.I("v_lshl_add_u32", "v56", "v57", 7, "v56")
    A.I("v_lshl_add_u32", "v56", "v4", 3, "v56")
    A.I("v_add_u32", "v56", "s71", "v56")
    for sl in range(3):
        A.I("s_add_u32", "s71", "s22", 1 + sl)
        A.I("s_and_b32", "s71", "s71", 3)
        A.I("s_mul_i32", "s72", "s71", 3072)
        A.I("s_mul_i32", "s73", "s22", 12288)
        A.I("s_add_u32", "s72", "s72", "s73")
        A.I("v_add_u32", vr(120 + sl), "s72", "v2")
        A.I("s_lshl_b32", "s71", "s71", 12)
        A.I("s_lshl_b32", "s72", "s22", 10)
        A.I("s_add_u32", "s71", "s71", "s72")
        A.I("s_add_u32", "s71", "s71", XB + 16384)
        A.I("v_add_u32", vr(58 + sl), "s71", "v2")
    for p in range(4): A.I("v_pk_mul_f32", vr(96 + 2 * p, 2), vr(96 + 2 * p, 2), vr(96 + 2 * p, 2))
    A.I("s_mov_b32", "s72", "0xbfb8aa3b")
    A.I("s_mov_b32", "s73", "0xbfb8aa3b")
    A.wait(lgkm=0)
    A.I("s_barrier")
    stampn(A, "m_red")
    RD = 160
    for sl in range(3):
        for q in range(4):
            if q < 3: A.I("ds_read_b128", vr(RD + 16 * sl + 4 * q, 4), vr(120 + sl), mods=f"offset:{q * 1024}")
            else: A.I("ds_read_b128", vr(RD + 16 * sl + 4 * q, 4), vr(58 + sl), tag=f"R{sl}")
    SV = 112
    def s_stage():
        A.I("s_cmp_eq_u32", "s75", 1)
        A.I("s_cbranch_scc1", L("M_s_have"))
        if "kx3" not in OPTS: spin_check(A, L, "M_p3", PF, TAG, pollw)
        sload()
        A.label(L("M_s_have"))
        stampn(A, "m_f3")
    for sl in range(3):
        A.wait_l(f"R{sl}")
        for p in range(8):
            A.I("v_pk_add_f32", vr(OWN + 2 * p, 2), vr(OWN + 2 * p, 2), vr(RD + 16 * sl + 2 * p, 2))
    T_ = 128; SU = 144
    s_stage()
    for p in range(8):
        A.I("v_pk_fma_f32", vr(OWN + 2 * p, 2), vr(OWN + 2 * p, 2), vr(96 + 2 * (p & 3), 2), "v[124:125]" if p < 4 else "v[126:127]", mods="op_sel_hi:[1,1,0]")
    for p in range(8): A.I("v_pk_mul_f32", vr(T_ + 2 * p, 2), vr(OWN + 2 * p, 2), "s[72:73]")
    for r in range(16): A.I("v_exp_f32", vr(T_ + r), vr(T_ + r))
    for p in range(8): A.I("v_pk_add_f32", vr(T_ + 2 * p, 2), vr(T_ + 2 * p, 2), "1.0", mods="op_sel_hi:[1,0]")
    A.wait(vm=0)
    A.I("ds_write_b128", "v63", "v[248:251]")
    A.I("ds_write_b128", "v63", "v[104:107]", mods="offset:1040")
    for r in range(8): A.I("v_rcp_f32", vr(T_ + r), vr(T_ + r))
    A.wait(lgkm=0)
    A.I("s_barrier")
    for e in range(2):
        for gp in range(2):
            A.I("ds_read_b64", vr(SV + 4 * e + 2 * gp, 2), "v56", mods=f"offset:{XB + 2 * 4128 * e + 16 * gp}")
    for r in range(8, 16): A.I("v_rcp_f32", vr(T_ + r), vr(T_ + r))
    for p in range(8): A.I("v_pk_mul_f32", vr(T_ + 2 * p, 2), vr(T_ + 2 * p, 2), vr(OWN + 2 * p, 2))
    A.wait(lgkm=0)
    for k in range(8):
        A.I("v_lshlrev_b32", vr(SU + 2 * k), 16, vr(SV + k))
        A.I("v_and_b32", vr(SU + 2 * k + 1), "s64", vr(SV + k))
    for p in range(8): A.I("v_pk_mul_f32", vr(T_ + 2 * p, 2), vr(T_ + 2 * p, 2), vr(SU + 2 * p, 2))
    A.I("s_mov_b32", "vcc_lo", "0x55555555")
    A.I("s_mov_b32", "vcc_hi", "0x55555555")
    QP = "quad_perm:[1,0,3,2] row_mask:0xf bank_mask:0xf"
    for p in range(8): A.I("v_cndmask_b32_dpp", vr(SU + 2 * p), vr(T_ + 2 * p + 1), vr(T_ + 2 * p), "vcc", mods=QP)
    A.I("s_not_b64", "vcc", "vcc")
    for p in range(8): A.I("v_cndmask_b32_dpp", vr(SU + 2 * p + 1), vr(T_ + 2 * p), vr(T_ + 2 * p + 1), "vcc", mods=QP)
    for p in range(8):
        A.I("v_pk_add_f32", vr(SU + 2 * p, 2), vr(SU + 2 * p, 2), vr(XU + 2 * p, 2))
        A.I("v_cvt_pk_bf16_f32", vr(64 + p), vr(SU + 2 * p), vr(SU + 2 * p + 1))
        so, im = xo(p >> 2, (p >> 1) & 1, p & 1)
        A.I("buffer_store_dword", vr(64 + p), "v9", "s[44:47]", so, mods=f"offen offset:{im}" + os.environ.get("OUTMOD", ""))
    A.unpk = False
    A.label(L("M_exit"))
    stamp_flush(A, 0, "s[20:21]", 7)
    A.I("s_endpgm")
```

```python
from asmlib import *
from layout1 import *
from k_prep import srd, DPPM, reduce32, gen_kgen_pair_setup, gen_kgen_pair_np
import k_prep
def gen_kgen_pair(A, P, vidx, pi):
    lim = int(os.environ.get('NPFROM', 8))
    (gen_kgen_pair_np if pi >= lim else k_prep.gen_kgen_pair)(A, P, vidx, pi)
KC = 0
UL = 33280
KDT = UL + 9216
KTS = 5888
ACCX = KDT + 2 * KTS
PSET = [(0, 3, 5, 6), (1, 2, 4, 7)]

def spin_check(A, L, name, vflag, vtag, reissue, cnt="s70", first=False, wait_tag=None, sleep=2):
    if first: reissue()
    A.I("s_mov_b32", cnt, SPIN_LIMIT)
    if wait_tag: A.wait_vm(wait_tag)
    else: A.wait(vm=0)
    A.label(L(name))
    A.I("v_cmp_ne_u32", "vcc", vflag, vtag)
    A.I("s_cbranch_vccz", L(name + "_ok"))
    A.I("s_sub_u32", cnt, cnt, 1)
    A.I("s_cbranch_scc1", L(name + "_ok"))
    A.I("s_sleep", sleep)
    reissue(); A.vmq.pop()
    A.wait(vm=0)
    A.I("s_branch", L(name))
    A.label(L(name + "_ok"))

def get_tag(A, L, name, vtag, vzero, dbg, cnt="s70"):
    A.I("s_mov_b32", cnt, SPIN_LIMIT)
    A.label(L(name))
    A.I("v_cmp_eq_u32", "vcc", 0, vtag)
    A.I("s_cbranch_vccz", L(name + "_ok"))
    A.I("s_sub_u32", cnt, cnt, 1)
    A.I("s_cbranch_scc1", L(name + "_ok"))
    A.I("s_sleep", 2)
    A.I("global_load_dword", vtag, vzero, dbg, mods="sc1"); A.vmq.pop()
    A.wait(vm=0)
    A.I("s_branch", L(name))
    A.label(L(name + "_ok"))

def code_prefetch(A, start_label, nbytes, vtmp, vdst, L):
    A.I("s_getpc_b64", "s[74:75]")
    A.I("v_lshlrev_b32", vtmp, 7, "v0")
    assert nbytes <= 32768
    A.I("v_cmp_gt_u32", "vcc", nbytes - 256, vtmp)
    A.I("v_cndmask_b32", vtmp, 0, vtmp, "vcc")
    A.I("global_load_dword", vdst, vtmp, "s[74:75]")

def code_prefetch2(A, nbytes):
    per = ((nbytes - 256) // 128 + 31) // 32
    A.I("s_getpc_b64", "s[74:75]")
    A.I("s_bfe_u32", "s72", "s2", "0x50003")
    A.I("s_mul_i32", "s72", "s72", per * 128)
    A.I("v_lshlrev_b32", "v3", 7, "v0")
    A.I("v_add_u32", "v3", "s72", "v3")
    A.I("v_min_u32", "v3", nbytes - 256, "v3")
    A.I("v_cmp_gt_u32", "vcc", per, "v0")
    A.I("s_and_saveexec_b64", "s[72:73]", "vcc")
    A.I("global_load_dword", "v3", "v3", "s[74:75]")
    A.I("s_mov_b64", "exec", "s[72:73]")

def swarm(A, base, sid, sw):
    A.I("s_lshl_b32", "s96", sid, 2)
    A.I("s_add_u32", "s96", "s96", sw)
    A.I("s_mul_i32", "s96", "s96", 11 * 128)
    A.I("s_min_u32", "s96", "s96", 1376 * 1024 - 11 * 128)
    A.I("s_add_u32", "s96", "s96", base[:base.index(':')].replace('[', ''))
    A.I("s_addc_u32", "s97", "s" + base[base.index(':') + 1:-1], 0)
    for i in range(11):
        A.I("s_load_dword", "s99", "s[96:97]", 128 * i)

def gen_K(A, L, ksize):
    LNAT = int(os.environ.get("LNAT", 2)); PRIOAT = int(os.environ.get("PRIOAT", 3))
    A.label(L("K"))
    if "nok" in OPTS: A.I("s_endpgm")
    A.I("s_setprio", 3)
    A.I("s_memrealtime", "s[76:77]")
    A.I("s_load_dwordx16", "s[4:19]", "s[0:1]", 0)
    A.I("s_load_dwordx2", "s[20:21]", "s[0:1]", 64)
    A.I("s_load_dwordx4", "s[24:27]", "s[0:1]", 120)
    A.I("s_load_dwordx2", "s[22:23]", "s[0:1]", 96)
    A.I("s_load_dwordx2", "s[68:69]", "s[0:1]", 80)
    code_prefetch2(A, ksize)
    A.I("s_and_b32", "s3", "s2", 255)
    A.I("v_and_b32", "v1", 63, "v0")
    A.I("v_lshrrev_b32", "v2", 6, "v0")
    A.I("v_readfirstlane_b32", "s28", "v2")
    A.I("s_and_b32", "s29", "s3", 7)
    A.I("s_lshl_b32", "s29", "s29", 5)
    A.I("s_lshr_b32", "s30", "s3", 3)
    A.I("s_add_u32", "s29", "s29", "s30")
    A.I("s_lshr_b32", "s30", "s28", 1)
    A.I("s_and_b32", "s31", "s28", 1)
    A.I("s_lshl_b32", "s32", "s29", 1)
    A.I("s_add_u32", "s32", "s32", "s30")
    A.I("s_lshl_b32", "s33", "s31", 7)
    A.I("s_lshl_b32", "s34", "s32", 8)
    A.I("s_add_u32", "s33", "s33", "s34")
    A.I("v_and_b32", "v2", 7, "v1")
    A.I("v_lshl_add_u32", "v2", "v2", 4, "s33")
    A.I("s_lshl_b32", "s34", "s3", 3)
    A.I("s_lshl_b32", "s35", "s28", 1)
    A.I("s_add_u32", "s34", "s34", "s35")
    A.I("s_lshl_b32", "s34", "s34", 10)
    A.I("v_lshrrev_b32", "v5", 5, "v1")
    A.I("v_and_b32", "v6", 31, "v1")
    A.I("v_lshlrev_b32", "v4", 10, "v5")
    A.I("v_lshl_add_u32", "v4", "v6", 4, "v4")
    A.I("v_add_u32", "v4", "s34", "v4")
    A.I("v_mov_b32", "v122", 0)
    A.I("v_lshlrev_b32", "v7", 4, "v1")
    A.I("s_lshl_b32", "s33", "s29", 2)
    A.I("s_lshl_b32", "s57", "s3", 12)
    A.I("s_lshl_b32", "s58", "s28", 10)
    A.I("s_add_u32", "s57", "s57", "s58")
    A.I("s_add_u32", "s58", "s57", 1 << 20)
    A.wait(lgkm=0)
    P = 48; X = 160
    A.I("s_mov_b64", "exec", "0xff")
    for k, sb in enumerate((6, 8, 10, 12, 14, 16)):
        A.I("v_mov_b32", "v136", sr(sb))
        A.I("v_mov_b32", "v137", sr(sb + 1))
        if k < 5: A.I("s_lshl_b64", "exec", "exec", 8)
    A.I("s_mov_b32", "exec_lo", -1)
    A.I("s_mov_b32", "exec_hi", "0xffff")
    A.I("v_add_co_u32", "v136", "vcc", "v136", "v2")
    A.I("v_addc_co_u32", "v137", "vcc", 0, "v137", "vcc")
    A.I("global_load_dwordx4", "v[140:143]", "v[136:137]", "off", tag="par")
    A.I("s_mov_b64", "exec", -1)
    A.I("s_load_dword", "s36", "s[20:21]", "s33")
    A.I("s_load_dword", "s52", "s[18:19]", "s33")
    A.I("s_or_b32", "s76", "s76", 1)
    A.I("s_or_b32", "s61", "s3", "s28")
    A.I("s_cmp_lg_u32", "s61", 0)
    A.I("s_cbranch_scc1", L("K_notag"))
    A.I("v_mov_b32", "v123", "s76")
    A.I("s_mov_b64", "exec", 1)
    A.I("global_store_dword", "v122", "v123", "s[24:25]", mods="sc1"); A.vmq.pop()
    A.I("s_mov_b64", "exec", -1)
    A.label(L("K_notag"))
    A.I("global_load_dwordx4", vr(X, 4), "v4", "s[4:5]")
    A.I("global_load_dwordx4", vr(X + 4, 4), "v4", "s[4:5]", mods="offset:512", tag="x")
    srd(A, 44, 26, WS_SIZE)
    W2AT = int(os.environ.get("W2AT", 3))
    def w2warm():
        srd(A, 64, 22, 1376 * 1024)
        A.I("buffer_load_dwordx4", "v[60:63]", "v7", "s[64:67]", "s57", mods="offen")
        A.I("buffer_load_dwordx4", "v[60:63]", "v7", "s[64:67]", "s58", mods="offen")
    if "swarm" in OPTS:
        swarm(A, "s[68:69]", "s3", "s28")
    else:
        srd(A, 64, 68, 1376 * 1024)
        A.I("buffer_load_dwordx4", "v[60:63]", "v7", "s[64:67]", "s57", mods="offen")
        A.I("buffer_load_dwordx4", "v[60:63]", "v7", "s[64:67]", "s58", mods="offen")
        if W2AT < 0: w2warm()
    A.I("s_mov_b32", "s56", "0x3f803f80")
    A.I("s_mov_b32", "s59", "0xffff0000")
    A.I("v_and_b32", "v56", 15, "v1")
    A.I("v_cvt_f32_u32", "v56", "v56")
    LNL = ACCX + 4096
    A.I("s_mul_i32", "s60", "s28", 2 * 1088)
    A.I("s_add_u32", "s60", "s60", LNL)
    A.I("v_mul_u32_u24", "v182", 1088, "v5")
    A.I("v_lshl_add_u32", "v182", "v6", 4, "v182")
    A.I("v_add_u32", "v182", "s60", "v182")
    A.I("v_mov_b32", "v168", 0)
    A.I("v_mov_b32", "v169", 0)
    A.I("s_lshl_b32", "s54", "s28", 8)
    A.I("s_add_u32", "s54", "s54", LNL)
    A.I("v_bfe_u32", "v183", "v1", 2, 2)
    A.I("v_mul_u32_u24", "v183", 1088, "v183")
    A.I("v_lshrrev_b32", "v18", 4, "v1")
    A.I("v_lshl_add_u32", "v183", "v18", 5, "v183")
    A.I("v_and_b32", "v18", 3, "v1")
    A.I("v_lshl_add_u32", "v183", "v18", 3, "v183")
    A.I("v_add_u32", "v183", "s54", "v183")
    A.I("s_lshl_b32", "s54", "s3", 13)
    A.I("s_lshl_b32", "s55", "s28", 11)
    A.I("s_add_u32", "s54", "s54", "s55")
    A.I("s_add_u32", "s55", "s54", hex(XNT))
    A.I("s_lshl_b32", "s53", "s28", 10)
    A.I("s_add_u32", "s53", "s53", ACCX)
    A.I("v_add_u32", "v138", "s53", "v7")
    A.I("v_lshl_add_u32", "v139", "v1", 1, "s53")
    A.I("s_mul_i32", "s37", "s30", KTS)
    A.I("s_add_u32", "s37", "s37", KDT + 32)
    A.I("s_mov_b32", "s38", -17024)
    A.I("s_movk_i32", "s39", 127)
    A.I("s_lshl_b32", "s40", "s31", 10)
    A.I("v_lshl_add_u32", "v20", "v1", 3, "s40")
    AD = 200
    for rd in range(2):
        for ii in range(11):
            A.I("v_sub_u32", vr(AD + 11 * rd + ii), 2044 - 512 * rd - (ii - 3), "v20")
        for ii in range(11):
            if rd == 1 and ii >= 8:
                A.I("v_max_i32", vr(24 + ii), 0, vr(AD + 11 * rd + ii))
                A.I("v_cvt_f32_u32", vr(24 + ii), vr(24 + ii))
            else:
                A.I("v_cvt_f32_u32", vr(24 + ii), vr(AD + 11 * rd + ii))
        for ii in range(0, 11, 2):
            A.I("v_cvt_pk_bf16_f32", vr(36 + ii // 2), vr(24 + ii), vr(24 + min(ii + 1, 10)))
        for ii in range(11):
            A.I("v_mad_u32_u16", vr(24 + ii), vr(36 + ii // 2), 1, "s38", mods=("op_sel:[1,0,0,0]" if ii & 1 else ""))
        for ii in range(11):
            A.I("v_med3_i32", vr(24 + ii), vr(24 + ii), vr(AD + 11 * rd + ii), "s39")
        for ii in range(11):
            A.I("v_ashrrev_i32", vr(AD + 11 * rd + ii), 3, vr(24 + ii))
        for ii in range(11):
            A.I("v_add_u32", vr(24 + ii), vr(24 + ii), vr(AD + 11 * rd + ii))
        for ii in range(11):
            A.I("v_lshl_add_u32", vr(AD + 11 * rd + ii), vr(24 + ii), 3, "s37")
    for k in range(4): A.I("v_mov_b32", vr(24 + k), 0)
    A.I("s_mul_i32", "s43", "s30", 4608)
    A.I("s_add_u32", "s43", "s43", UL)
    A.I("v_lshl_add_u32", "v10", "v1", 3, "s43")
    A.I("ds_write_b64", "v10", "v[24:25]")
    A.I("s_mul_i32", "s48", "s30", 16640)
    A.I("v_and_b32", "v121", 1, "v1")
    A.I("v_lshrrev_b32", "v10", 1, "v1")
    A.I("v_mul_u32_u24", "v11", 4160, "v10")
    A.I("v_lshl_add_u32", "v11", "v121", 4, "v11")
    A.I("v_add_u32", "v11", "s48", "v11")
    A.I("s_sub_u32", "s50", "s37", 32)
    A.I("v_lshl_add_u32", "v12", "v121", 4, "s50")
    A.I("s_mov_b64", "exec", "0xff")
    A.I("ds_write_b128", "v11", "v[24:27]", mods="offset:4096")
    A.I("ds_write_b128", "v12", "v[24:27]")
    A.I("s_mov_b64", "exec", -1)
    A.I("v_lshlrev_b32", "v32", 13, "v10")
    A.I("v_lshl_add_u32", "v32", "v121", 4, "v32")
    A.I("v_mul_u32_u24", "v33", 4608, "v121")
    A.I("v_lshl_add_u32", "v33", "v10", 4, "v33")
    A.I("s_lshl_b32", "s49", "s28", 10)
    A.I("s_add_u32", "s49", "s49", UL + 512)
    A.I("v_add_u32", "v33", "s49", "v33")
    if "agg" not in OPTS:
        A.I("s_lshl_b32", "s71", "s28", F1SH + 6)
        A.I("v_lshl_add_u32", "v120", "v1", F1SH, "s71")
        A.I("s_mov_b32", "s41", hex(F1))
    else:
        A.I("v_mov_b32", "v120", 0)
        A.I("s_bfe_u32", "s41", "s3", "0x40001")
        A.I("s_lshl_b32", "s41", "s41", 7)
        A.I("s_add_u32", "s41", "s41", hex(FA))
    A.I("s_lshl_b32", "s42", "s31", 2)
    A.I("s_add_u32", "s42", "s42", "s37")
    A.I("v_and_b32", "v8", 15, "v1")
    A.I("v_lshrrev_b32", "v14", 4, "v1")
    A.I("v_mul_u32_u24", "v34", 144, "v8")
    A.I("v_lshl_add_u32", "v34", "v14", 5, "v34")
    A.I("v_lshl_add_u32", "v34", "v5", 3, "v34")
    A.I("v_add_u32", "v34", "s42", "v34")
    for sg in range(1, 4): A.I("v_add_u32", vr(34 + sg), 1152 * sg, "v34")
    A.I("v_mov_b32", "v39", "s42")
    A.I("s_lshl_b32", "s49", "s31", 11)
    A.I("s_add_u32", "s50", "s49", "s48")
    A.I("v_add_u32", "v40", "s50", "v7")
    A.I("v_and_b32", "v41", 3, "v1")
    A.I("v_mul_u32_u24", "v41", 4160, "v41")
    A.I("v_bfe_u32", "v13", "v1", 2, 2)
    A.I("v_lshlrev_b32", "v13", 3, "v13")
    A.I("v_lshl_add_u32", "v13", "v14", 4, "v13")
    A.I("v_sub_u32", "v41", "v41", "v13")
    A.I("s_add_u32", "s50", "s48", 2 * 2052 - 64 * 63)
    A.I("v_add_u32", "v41", "s50", "v41")
    A.I("v_lshlrev_b32", "v42", 5, "v8")
    A.I("v_lshlrev_b32", "v15", 4, "v14")
    A.I("v_sub_u32", "v42", "v42", "v15")
    A.I("s_add_u32", "s50", "s43", 512 + 16 - 448)
    A.I("v_add_u32", "v42", "s50", "v42")
    A.I("v_lshlrev_b32", "v43", 5, "v8")
    A.I("v_lshl_add_u32", "v43", "v14", 3, "v43")
    A.I("s_add_u32", "s50", "s43", "s49")
    A.I("s_add_u32", "s50", "s50", 512)
    A.I("v_add_u32", "v44", "s50", "v43")
    A.wait_vm("par", lgkm=0)
    stampn(A, "k_x")
    A.I("global_load_dword", "v123", "v122", "s[24:25]", mods="sc1", tag="tag")
    A.I("ds_write_b128", "v138", "v[140:143]")
    A.I("s_lshl_b32", "s53", "s30", 4)
    A.I("s_lshr_b32", "s52", "s52", "s53")
    A.I("v_mov_b32", vr(P + 6), "s52")
    A.wait(lgkm=0)
    for k in range(6): A.I("ds_read_u16", vr(P + k), "v139", mods=f"offset:{128 * k}")
    A.wait(lgkm=0)
    gen_kgen_pair_setup(A, P)
    def ln_block():
        stampn(A, "k_ln")
        A.unpk = "lnnp" in OPTS
        A.wait_vm("x")
        for k in range(8):
            A.I("v_dot2_f32_bf16", "v168", vr(X + k), "s56", "v168")
            A.I("v_dot2_f32_bf16", "v169", vr(X + k), vr(X + k), "v169")
        reduce32(A, [168, 169], [170, 171])
        A.I("v_mul_f32", "v168", "0x3b000000", "v168")
        A.I("v_mul_f32", "v169", "0x3b000000", "v169")
        A.I("v_fma_f32", "v169", "-v168", "v168", "v169")
        A.I("v_max_f32", "v169", 0, "v169")
        A.I("v_cvt_pk_bf16_f32", "v192", 0, "v168")
        A.I("v_cvt_pk_bf16_f32", "v169", 0, "v169")
        A.I("v_add_f32", "v169", "0x3727c5ac", "v169")
        A.I("v_cvt_pk_bf16_f32", "v169", 0, "v169")
        A.I("v_sqrt_f32", "v169", "v169")
        A.I("v_cvt_pk_bf16_f32", "v194", 0, "v169")
        A.I("v_rcp_f32", "v172", "v194")
        for k in range(8):
            t = 174 + 2 * (k % 4)
            A.I("v_lshlrev_b32", vr(t), 16, vr(X + k))
            A.I("v_and_b32", vr(t + 1), "s59", vr(X + k))
            A.I("v_pk_add_f32", vr(t, 2), vr(t, 2), "v[192:193]", mods="op_sel_hi:[1,0] neg_lo:[0,1] neg_hi:[0,1]")
            if "lnmimic" in OPTS:
                A.I("v_cvt_pk_bf16_f32", vr(t), 0, vr(t))
                A.I("v_cvt_pk_bf16_f32", vr(t + 1), 0, vr(t + 1))
            A.I("v_pk_mul_f32", vr(t, 2), vr(t, 2), "v[172:173]", mods="op_sel_hi:[1,0]")
            A.I("v_cvt_pk_bf16_f32", vr(X + k), vr(t), vr(t + 1))
            if k == 3: A.I("ds_write_b128", "v182", vr(X, 4))
        A.I("ds_write_b128", "v182", vr(X + 4, 4), mods="offset:512")
        A.unpk = False
        A.I("v_mov_b32", "v193", "v172")
        A.I("v_lshlrev_b32", "v196", 4, "v5")
        A.I("s_lshl_b32", "s71", "s3", 7)
        A.I("s_lshl_b32", "s72", "s28", 5)
        A.I("s_add_u32", "s71", "s71", "s72")
        A.I("s_add_u32", "s71", "s71", hex(STAT))
        A.wait(lgkm=0)
        A.I("s_barrier")
        A.I("ds_read_b64_tr_b16", "v[184:185]", "v183")
        A.I("ds_read_b64_tr_b16", "v[186:187]", "v183", mods=f"offset:{4*1088}")
        A.I("ds_read_b64_tr_b16", "v[188:189]", "v183", mods="offset:128")
        A.I("ds_read_b64_tr_b16", "v[190:191]", "v183", mods=f"offset:{4*1088+128}")
        A.wait(lgkm=2)
        A.I("buffer_store_dwordx4", "v[184:187]", "v7", "s[44:47]", "s55", mods="offen sc1")
        A.wait(lgkm=0)
        A.I("buffer_store_dwordx4", "v[188:191]", "v7", "s[44:47]", "s55", mods="offen offset:1024 sc1")
        A.wait_vm("tag")
        get_tag(A, L, "K_tag", "v123", "v122", "s[24:25]")
        A.I("v_mov_b32", "v195", "v123")
        A.I("v_readfirstlane_b32", "s51", "v123")
        A.I("s_mov_b32", "exec_lo", 1)
        A.I("s_mov_b32", "exec_hi", 1)
        A.I("buffer_store_dwordx4", "v[192:195]", "v196", "s[44:47]", "s71", mods="offen sc1")
        A.I("s_mov_b64", "exec", -1)
        stampn(A, "k_st")
    def f1_block():
        A.wait(vm=1)
        A.I("s_barrier")
        A.I("s_cmp_lg_u32", "s28", 0)
        A.I("s_cbranch_scc1", L("K_f1done"))
        A.I("s_lshl_b32", "s71", "s3", F1SH)
        A.I("s_add_u32", "s71", "s71", hex(F1))
        A.I("s_mov_b64", "exec", 1)
        A.I("buffer_store_dword", "v123", "v122", "s[44:47]", "s71", mods="offen sc1")
        A.I("s_mov_b64", "exec", -1)
        A.label(L("K_f1done"))
        stampn(A, "k_f1")
        if "kx3" in OPTS: A.I("s_branch", L("K_end"))
    def poll_issue():
        A.I("buffer_load_dword", "v121", "v120", "s[44:47]", "s41", mods="offen sc1")
    def gather(sfx=''):
        spin_check(A, L, "K_p1" + sfx, "v121", "v123", poll_issue, sleep=int(os.environ.get("KSLEEP", 8)))
        A.I("s_lshl_b32", "s62", "s28", 19)
        A.I("s_lshl_b32", "s63", "s29", 5)
        A.I("s_add_u32", "s62", "s62", "s63")
        A.I("s_add_u32", "s62", "s62", hex(XNT))
        A.I("s_add_u32", "s63", "s62", 32 * 8192)
        A.I("buffer_load_dwordx4", "v[8:11]", "v32", "s[44:47]", "s62", mods="offen sc1")
        A.I("buffer_load_dwordx4", "v[12:15]", "v32", "s[44:47]", "s63", mods="offen sc1")
    F1AT = min(LNAT + 1, 8)
    POLLAT = int(os.environ.get('POLLAT', 9))
    for pi in range(8):
        if pi == PRIOAT: A.I("s_setprio", 0)
        if pi == LNAT: ln_block()
        if pi == F1AT: f1_block()
        if pi == POLLAT: poll_issue()
        if pi == W2AT: w2warm()
        stampn(A, f"k_p{pi}")
        gen_kgen_pair(A, P, 56, pi)
    if PRIOAT == 8: A.I("s_setprio", 0)
    if LNAT >= 8: ln_block()
    if PRIOAT == 9: A.I("s_setprio", 0)
    stampn(A, "k_kgen")
    if "midhi" in OPTS: A.I("s_setprio", 3)
    KACC = 100
    A.I("ds_write2_b32", "v34", vr(KACC), vr(KACC + 1), mods="offset0:0 offset1:2")
    A.I("ds_write2_b32", "v34", vr(KACC + 2), vr(KACC + 3), mods="offset0:4 offset1:6")
    A.I("s_mov_b32", "exec_lo", "0xff00ff00")
    A.I("s_mov_b32", "exec_hi", "0xff00ff00")
    for s in range(1, 4):
        A.I("ds_write2_b32", vr(34 + s), vr(KACC + 4 * s), vr(KACC + 4 * s + 1), mods="offset0:0 offset1:2")
        A.I("ds_write2_b32", vr(34 + s), vr(KACC + 4 * s + 2), vr(KACC + 4 * s + 3), mods="offset0:4 offset1:6")
    A.I("s_mov_b64", "exec", "0x8000")
    A.I("ds_write_b32", "v39", vr(KACC + 18), mods=f"offset:{8 * 720}")
    A.I("s_mov_b64", "exec", -1)
    if POLLAT <= 7: gather()
    A.wait(lgkm=0)
    A.I("s_barrier")
    if POLLAT > 7 and F1AT < 8: poll_issue()
    stampn(A, "k_b1")
    for rd in range(2):
        for ii in range(11):
            A.I("ds_read_b64", vr(128 + 22 * rd + 2 * ii, 2), vr(AD + 11 * rd + ii), tag=f"e{rd}")
    for rd in range(2):
        A.wait_l(f"e{rd}")
        for ii in range(11):
            r = 128 + 22 * rd + 2 * ii
            A.I("v_add_f32", vr(r), vr(r), vr(r + 1))
        e = lambda ip: vr(128 + 22 * rd + 2 * (ip + 3))
        base = 64 + 16 * rd
        for sg in range(4):
            for dwi in range(4):
                lo = 2 * dwi - sg
                A.I("v_cvt_pk_bf16_f32", vr(base + 4 * sg + dwi), e(lo), e(lo + 1))
            A.I("ds_write_b128", "v40", vr(base + 4 * sg, 4), mods=f"offset:{sg * 4160 + rd * 1024}")
    if F1AT >= 8:
        A.wait(lgkm=0)
        f1_block()
    else:
        if POLLAT > 7: gather()
        A.wait(lgkm=0)
        A.I("s_barrier")
    stampn(A, "k_exp")
    if PRIOAT == 10: A.I("s_setprio", 0)
    KF = 128; UB = 96; CA = 64
    A.I("s_cmp_eq_u32", "s31", 1)
    A.I("s_cbranch_scc1", L("conv1"))
    for hw in range(2):
        if hw == 1: A.label(L("conv1"))
        Ps = PSET[hw]
        steps = [(Q, r) for Q in range(8 - min(Ps)) for r in range(8)]
        first = set()
        NB = 8
        def issueU(n):
            Q, r = steps[n]
            q = 8 * Q - r
            A.I("ds_read_b128", vr(UB + 4 * (n % NB), 4), "v42", mods=f"offset:{64 * (q + 7)}", tag=f"U{n}")
        def issueK(r):
            for si, P_ in enumerate(Ps):
                p = 8 * P_ + r
                reg = KF + 32 * si + 4 * r
                A.I("ds_read_b64", vr(reg, 2), "v41", mods=f"offset:{64 * (63 - p)}")
                A.I("ds_read_b64", vr(reg + 2, 2), "v41", mods=f"offset:{64 * (63 - p) + 8}", tag=f"K{r}")
        def mf(n):
            Q, r = steps[n]
            for si, P_ in enumerate(Ps):
                if P_ + Q > 7: continue
                acc = vr(CA + 4 * (P_ + Q), 4)
                c = acc if (P_ + Q) in first else "0"
                first.add(P_ + Q)
                A.I("v_mfma_f32_16x16x32_bf16", acc, vr(KF + 32 * si + 4 * r, 4), vr(UB + 4 * (n % NB), 4), c)
        for r in range(8): issueK(r)
        if F1AT >= 8:
            poll_issue()
            gather(f"_{hw}")
        A.wait(vm=0)
        stampn(A, "k_u")
        A.I("ds_write_b128", "v33", "v[8:11]")
        A.I("ds_write_b128", "v33", "v[12:15]", mods="offset:512")
        A.wait(lgkm=0)
        A.I("s_barrier")
        stampn(A, "k_q0")
        A.I("s_setprio", int(os.environ.get("KPRIO", 3)))
        for k in range(NB - 1): issueU(k)
        nxt = NB - 1
        for n in range(0, len(steps)):
            A.wait_l(f"U{n}")
            mf(n)
            if nxt < len(steps): issueU(nxt)
            nxt += 1
        stampn(A, "k_mf")
        oth = range(4, 8) if hw == 0 else range(1, 4)
        A.I("s_lshl_b32", "s41", "s30", 13)
        A.I("s_add_u32", "s41", "s41", ACCX)
        A.I("v_add_u32", "v45", "s41", "v7")
        for k in range(4):
            A.I("ds_read_b64", vr(16 + 2 * k, 2), "v44", mods=f"offset:{512 * k}")
        for Aa in oth:
            A.I("ds_write_b128", "v45", vr(CA + 4 * Aa, 4), mods=f"offset:{Aa * 1024}")
        own = range(0, 4) if hw == 0 else range(4, 8)
        A.I("s_lshl_b32", "s42", "s36", 16)
        A.I("s_and_b32", "s43", "s36", "0xffff0000")
        A.I("s_cmp_eq_u32", "s30", 0)
        A.I("s_cselect_b32", "s42", "s42", "s43")
        A.I("s_mov_b32", "s43", "s42")
        A.I("s_lshl_b32", "s48", "s32", 12)
        A.I("s_add_u32", "s48", "s48", "s49")
        A.I("s_add_u32", "s48", "s48", hex(ST))
        A.wait(lgkm=0)
        A.I("s_barrier")
        A.unpk = "cenp" in OPTS
        for k, Aa in enumerate(own):
            if hw == 0 and Aa == 0: continue
            A.I("ds_read_b128", vr(UB + 4 * k, 4), "v45", mods=f"offset:{Aa * 1024}", tag=f"X{k}")
        for k, Aa in enumerate(own):
            t = 48 + 4 * k; a = CA + 4 * Aa
            A.I("v_lshlrev_b32", vr(t), 16, vr(16 + 2 * k))
            A.I("v_and_b32", vr(t + 1), "s59", vr(16 + 2 * k))
            A.I("v_lshlrev_b32", vr(t + 2), 16, vr(17 + 2 * k))
            A.I("v_and_b32", vr(t + 3), "s59", vr(17 + 2 * k))
            A.I("v_pk_fma_f32", vr(a, 2), vr(t, 2), "s[42:43]", vr(a, 2))
            A.I("v_pk_fma_f32", vr(a + 2, 2), vr(t + 2, 2), "s[42:43]", vr(a + 2, 2))
        for k, Aa in enumerate(own):
            a = CA + 4 * Aa
            if not (hw == 0 and Aa == 0):
                A.wait_l(f"X{k}")
                A.I("v_pk_add_f32", vr(a, 2), vr(a, 2), vr(UB + 4 * k, 2))
                A.I("v_pk_add_f32", vr(a + 2, 2), vr(a + 2, 2), vr(UB + 4 * k + 2, 2))
            A.I("v_cvt_pk_bf16_f32", vr(a), vr(a), vr(a + 1))
            A.I("v_cvt_pk_bf16_f32", vr(a + 1), vr(a + 2), vr(a + 3))
            A.I("buffer_store_dwordx2", vr(a, 2), "v43", "s[44:47]", "s48", mods=f"offen offset:{512 * k} sc1")
        if hw == 0: A.I("s_branch", L("K_pub"))
    A.label(L("K_pub"))
    stampn(A, "k_conv")
    A.wait(vm=0)
    A.I("s_barrier")
    A.I("s_cmp_lg_u32", "s28", 0)
    A.I("s_cbranch_scc1", L("K_end"))
    A.I("s_lshl_b32", "s71", "s29", F3SH)
    A.I("s_add_u32", "s71", "s71", hex(F3))
    A.I("v_mov_b32", "v8", "s51")
    A.I("v_mov_b32", "v9", 0)
    A.I("s_mov_b64", "exec", 1)
    A.I("buffer_store_dword", "v8", "v9", "s[44:47]", "s71", mods="offen sc1")
    A.I("s_mov_b64", "exec", -1)
    A.unpk = False
    A.label(L("K_end"))
    stamp_flush(A, 0, "s[26:27]", 7)
    A.I("s_endpgm")
```

```python
import os
from asmlib import *
from layout1 import *
from k_prep import srd
from t7_k import spin_check, code_prefetch2, get_tag, swarm

XB = 49152

def gen_csb(A, L, TAG):
    A.I("s_lshl_b32", "s71", "s49", 2)
    A.I("s_add_u32", "s71", "s71", "s22")
    A.I("global_load_dword", TAG, "v10", "s[18:19]", mods="sc1")
    A.I("s_cmp_ge_u32", "s71", 45)
    A.I("s_cbranch_scc1", L("M_csb_skip"))
    A.I("s_min_u32", "s72", "s71", 42)
    A.I("s_lshl_b32", "s72", "s72", 6)
    A.I("v_lshrrev_b32", "v16", 2, "v1")
    A.I("v_mul_u32_u24", "v16", 2752, "v16")
    A.I("v_and_b32", "v17", 3, "v1")
    A.I("v_lshl_add_u32", "v16", "v17", 4, "v16")
    A.I("s_mov_b32", "s73", "s72")
    for i in range(32):
        A.I("buffer_load_dwordx4", vr(128 + 4 * i - (0 if i < 28 else 0), 4) if i < 28 else vr(32 + 4 * (i - 28), 4), "v16", "s[28:31]", "s73", mods="offen", tag=f"c{i}")
        A.I("s_add_u32", "s73", "s73", 16 * 2752)
    A.I("v_lshl_add_u32", "v18", "v5", 1, "s72")
    A.I("global_load_ushort", "v19", "v18", "s[10:11]")
    A.I("s_mov_b32", "s74", "0x00003f80")
    A.I("s_mov_b32", "s75", "0x3f800000")
    for c in range(8): A.I("v_mov_b32", vr(20 + c), 0)
    for i in range(32):
        A.wait_vm(f"c{i}")
        b = 128 + 4 * i if i < 28 else 32 + 4 * (i - 28)
        for d in range(4):
            A.I("v_dot2_f32_bf16", vr(20 + 2 * d), vr(b + d), "s74", vr(20 + 2 * d))
            A.I("v_dot2_f32_bf16", vr(21 + 2 * d), vr(b + d), "s75", vr(21 + 2 * d))
    D = "row_mask:0xf bank_mask:0xf"
    for m in ("row_ror:4", "row_ror:8"):
        for c in range(8): A.I("v_add_f32_dpp", vr(20 + c), vr(20 + c), vr(20 + c), mods=f"{m} {D}")
    for sw in ("v_permlane16_swap_b32", "v_permlane32_swap_b32"):
        for c in range(8): A.I("v_mov_b32", vr(48 + c), vr(20 + c))
        for c in range(8): A.I(sw, vr(20 + c), vr(48 + c))
        for c in range(8): A.I("v_add_f32", vr(20 + c), vr(20 + c), vr(48 + c))
    A.I("v_lshlrev_b32", "v17", 5, "v17")
    A.I("v_add_u32", "v17", "s61", "v17")
    A.I("ds_write_b128", "v17", "v[20:23]")
    A.I("ds_write_b128", "v17", "v[24:27]", mods="offset:16")
    A.I("v_lshl_add_u32", "v17", "v5", 2, "s61")
    A.wait(lgkm=0)
    A.I("ds_read_b32", "v20", "v17")
    A.wait(vm=0, lgkm=0)
    get_tag(A, L, "M_tag15a", TAG, "v10", "s[18:19]")
    A.I("v_cvt_pk_bf16_f32", "v21", 0, "v20")
    A.I("v_sub_f32", "v20", "v20", "v21")
    A.I("v_cvt_pk_bf16_f32", "v22", 0, "v20")
    A.I("v_sub_f32", "v20", "v20", "v22")
    A.I("v_cvt_pk_bf16_f32", "v24", "v21", "v22")
    A.I("v_cvt_pk_bf16_f32", "v25", "v20", 0)
    A.I("v_lshl_or_b32", "v25", "v19", 16, "v25")
    A.I("v_mov_b32", "v26", TAG)
    A.I("v_mov_b32", "v27", TAG)
    A.I("s_lshl_b32", "s72", "s71", 9)
    A.I("s_add_u32", "s72", "s72", hex(CSB))
    A.I("v_lshlrev_b32", "v17", 4, "v5")
    A.I("s_mov_b64", "exec", "0xffffffff")
    A.I("buffer_store_dwordx4", "v[24:27]", "v17", "s[24:27]", "s72", mods="offen sc1")
    A.I("s_mov_b64", "exec", -1)
    stampn(A, "m_csb")
    A.label(L("M_csb_skip"))
    A.wait(vm=0)
    get_tag(A, L, "M_tag15", TAG, "v10", "s[18:19]")

def gen_M(A, L, msize):
    G1 = "g1only" in OPTS
    A.label(L("M"))
    if "nom" in OPTS: A.I("s_endpgm")
    A.I("s_setprio", int(os.environ.get("MP0", 2)))
    A.I("s_load_dwordx2", "s[4:5]", "s[0:1]", 0)
    A.I("s_load_dwordx8", "s[8:15]", "s[0:1]", 80)
    A.I("s_load_dwordx4", "s[16:19]", "s[0:1]", 112)
    A.I("s_load_dwordx2", "s[20:21]", "s[0:1]", 128)
    code_prefetch2(A, msize)
    A.I("v_and_b32", "v1", 63, "v0")
    A.I("v_lshrrev_b32", "v2", 6, "v0")
    A.I("v_readfirstlane_b32", "s22", "v2")
    A.I("s_and_b32", "s3", "s2", 255)
    A.I("s_and_b32", "s23", "s3", 7)
    A.I("s_lshr_b32", "s48", "s3", 3)
    A.I("s_lshr_b32", "s49", "s23", 1)
    A.I("s_lshl_b32", "s49", "s49", 2)
    A.I("s_lshr_b32", "s76", "s48", 3)
    A.I("s_add_u32", "s49", "s49", "s76")
    A.I("s_and_b32", "s50", "s23", 1)
    A.I("s_lshl_b32", "s50", "s50", 3)
    A.I("s_and_b32", "s52", "s48", 7)
    A.I("s_add_u32", "s50", "s50", "s52")
    A.I("s_lshl_b32", "s76", "s76", 1)
    if "rot1" not in OPTS: A.I("s_mov_b32", "s76", 0)
    A.I("s_lshl_b32", "s51", "s23", 2)
    A.I("s_lshr_b32", "s52", "s48", 3)
    A.I("s_add_u32", "s51", "s51", "s52")
    A.I("s_and_b32", "s52", "s48", 7)
    A.I("s_lshl_b32", "s53", "s49", 2)
    A.I("s_add_u32", "s53", "s53", "s22")
    A.I("v_lshlrev_b32", "v2", 4, "v1")
    A.I("v_lshrrev_b32", "v4", 5, "v1")
    A.I("v_and_b32", "v5", 31, "v1")
    A.I("v_lshrrev_b32", "v9", 3, "v1")
    A.I("v_lshrrev_b32", "v10", 4, "v1")
    A.I("v_and_b32", "v11", 7, "v1")
    A.I("v_xor_b32", "v10", "v10", "v11")
    A.I("v_lshlrev_b32", "v9", 10, "v9")
    A.I("v_lshl_add_u32", "v12", "v10", 4, "v9")
    A.I("v_xor_b32", "v13", 64, "v12")
    A.I("v_bfe_u32", "v10", "v1", 4, 1)
    A.I("v_lshlrev_b32", "v10", 2, "v10")
    A.I("v_xor_b32", "v10", "v10", "v11")
    A.I("v_lshl_add_u32", "v15", "v10", 4, "v9")
    A.I("s_mov_b32", "s54", 43691)
    for n in range(3):
        A.I("v_add_u32", "v9", 64 * n, "v1")
        A.I("v_mul_u32_u24", "v10", "s54", "v9")
        A.I("v_lshrrev_b32", "v10", 19, "v10")
        A.I("v_mul_u32_u24", "v11", 12, "v10")
        A.I("v_sub_u32", "v9", "v9", "v11")
        A.I("v_mul_u32_u24", "v10", 2752, "v10")
        A.I("v_lshl_add_u32", vr(6 + n), "v9", 4, "v10")
    A.I("v_lshlrev_b32", "v14", 7, "v5")
    A.I("s_mul_i32", "s55", "s50", 192)
    A.I("s_mul_i32", "s56", "s22", 16 * 2752)
    A.I("s_add_u32", "s56", "s56", "s55")
    A.I("s_mul_i32", "s57", "s22", 3072)
    A.I("s_lshl_b32", "s67", "s53", 15)
    A.I("s_lshl_b32", "s61", "s22", 12)
    A.I("s_add_u32", "s61", "s61", XB)
    A.I("s_lshl_b32", "s62", "s49", 17)
    A.I("s_lshl_b32", "s63", "s52", 14)
    A.I("s_add_u32", "s62", "s62", "s63")
    A.I("s_lshl_b32", "s63", "s22", 12)
    A.I("s_add_u32", "s62", "s62", "s63")
    stampn(A, "m_pre")
    A.wait(lgkm=0)
    stampn(A, "m_arg")
    srd(A, 40, 4, 2048 * 1024)
    srd(A, 28, 8, 512 * 2752)
    A.I("s_mov_b32", "exec_hi", 0)
    A.I("buffer_load_dword", "v3", "v14", "s[40:43]", "s62", mods="offen")
    A.I("s_mov_b64", "exec", -1)
    def xdma1(s, b):
        A.I("s_add_u32", "m0", "s61", (s % 2) * 16384 + b * 1024)
        if b == 0:
            A.I("s_add_u32", "s77", "s76", s)
            A.I("s_and_b32", "s77", "s77", 7)
            A.I("s_lshl_b32", "s77", "s77", 7)
            A.I("s_add_u32", "s77", "s77", "s67")
        A.I("s_add_u32", "s63", "s77", b * 8192)
        A.I("buffer_load_dwordx4", "v12" if b % 2 == 0 else "v13", "s[40:43]", "s63", mods="offen lds", tag=f"x{s}")
    def wdma1(s, n):
        if n == 0:
            A.I("s_add_u32", "s78", "s76", s)
            A.I("s_and_b32", "s78", "s78", 7)
            A.I("s_mul_i32", "s78", "s78", 64 * 2752)
            A.I("s_add_u32", "s78", "s78", "s56")
        A.I("s_add_u32", "m0", "s57", (s % 4) * 12288 + n * 1024)
        A.I("buffer_load_dwordx4", vr(6 + n), "s[28:31]", "s78", mods="offen lds", tag=f"w{s}")
    A.I("s_cmp_eq_u32", "s50", 15)
    A.I("s_cbranch_scc1", L("M_now1"))
    for b in range(4): xdma1(0, b)
    PRO = int(os.environ.get("PRO", 3))
    if PRO < 4:
        srd(A, 36, 10, 2752)
        A.I("s_mov_b32", "m0", 36864)
        A.I("s_mov_b64", "exec", "0xfff")
        A.I("buffer_load_dwordx4", "v2", "s[36:39]", "s55", mods="offen lds")
        A.I("s_mov_b64", "exec", -1)
    for n in range(3): wdma1(0, n)
    if PRO >= 1:
        for b in range(4): xdma1(1, b)
    for s in (1, 2, 3)[:max(PRO - 1, 0)]:
        for n in range(3): wdma1(s, n)
    if PRO == 4:
        srd(A, 36, 10, 2752)
        A.I("v_lshlrev_b32", "v234", 1, "v5")
        for t in range(3):
            A.I("buffer_load_ushort", vr(231 + t), "v234", "s[36:39]", "s55", mods=f"offen offset:{64 * t}")
    A.label(L("M_now1"))
    if "swarm" in OPTS:
        swarm(A, "s[12:13]", "s3", "s22")
    stampn(A, "m_iss")
    srd(A, 24, 20, WS_SIZE)
    srd(A, 44, 16, 2048 * 1024)
    srd(A, 32, 12, 1376 * 1024)
    if "otouch" in OPTS:
        A.I("s_lshl_b32", "s63", "s3", 13)
        A.I("s_mov_b64", "exec", 1)
        A.I("buffer_load_dword", "v235", "v2", "s[44:47]", "s63", mods="offen")
        A.I("global_load_dword", "v234", "v2", "s[14:15]")
        A.I("s_mov_b64", "exec", -1)
    A.I("s_mov_b32", "s64", "0xffff0000")
    A.I("s_mov_b32", "s69", "0x3f803f80")
    A.I("v_mov_b32", "v10", 0)
    A.I("s_mul_i32", "s58", "s22", 22)
    A.I("s_cmp_eq_u32", "s22", 3)
    A.I("s_cselect_b32", "s59", 1, 0)
    A.I("s_sub_u32", "s58", "s58", "s59")
    A.I("s_lshl_b32", "s59", "s58", 14)
    A.I("s_lshl_b32", "s60", "s52", 7)
    A.I("s_add_u32", "s59", "s59", "s60")
    A.I("s_cmp_lt_u32", "s22", 2)
    A.I("s_cselect_b32", "s48", 22, 21)
    A.I("s_mul_i32", "s79", "s52", 2)
    A.I("s_and_b32", "s63", "s51", 3)
    A.I("s_mul_i32", "s63", "s63", 5)
    A.I("s_add_u32", "s79", "s79", "s63")
    A.I("s_cmp_ge_u32", "s79", 21)
    A.I("s_cselect_b32", "s63", 21, 0)
    A.I("s_sub_u32", "s79", "s79", "s63")
    if "norot2" in OPTS: A.I("s_mov_b32", "s79", 0)
    A.I("v_and_b32", "v9", 1, "v1")
    A.I("v_lshl_add_u32", "v9", "v4", 2, "v9")
    A.I("v_lshlrev_b32", "v9", 10, "v9")
    A.I("v_lshrrev_b32", "v11", 1, "v5")
    A.I("v_lshl_add_u32", "v9", "v11", 2, "v9")
    XA = 244; WA = 248; TA_ = 252
    A.I("v_bfe_u32", "v14", "v1", 1, 3)
    A.I("v_xor_b32", "v14", "v14", "v4")
    A.I("s_lshl_b32", "s63", "s22", 1)
    A.I("v_xor_b32", "v14", "s63", "v14")
    A.I("v_lshlrev_b32", "v16", 7, "v5")
    A.I("v_add_u32", "v16", "s61", "v16")
    for k in range(4):
        if k: A.I("v_xor_b32", "v11", 2 * k, "v14")
        A.I("v_lshl_add_u32", vr(XA + k), "v14" if k == 0 else "v11", 4, "v16")
    A.I("v_bfe_u32", "v16", "v1", 2, 2)
    A.I("v_bfe_u32", "v17", "v1", 4, 1)
    A.I("v_and_b32", "v18", 3, "v1")
    A.I("v_lshlrev_b32", "v18", 3, "v18")
    A.I("v_lshl_add_u32", "v17", "v17", 5, "v18")
    A.I("v_lshl_add_u32", "v14", "v4", 3, "v16")
    A.I("v_mul_u32_u24", "v14", 192, "v14")
    A.I("v_add_u32", "v14", "v14", "v17")
    for k in range(4):
        A.I("s_xor_b32", "s63", "s22", k)
        A.I("s_mul_i32", "s63", "s63", 3072)
        A.I("v_add_u32", vr(WA + k), "s63", "v14")
    A.I("v_lshl_add_u32", "v14", "v4", 2, "v16")
    A.I("v_lshl_add_u32", "v14", "v14", 7, "v17")
    A.I("v_bfe_u32", "v16", "v1", 3, 1)
    A.I("v_lshl_add_u32", "v14", "v16", 6, "v14")
    A.I("v_xor_b32", "v16", 64, "v14")
    A.I("v_add_u32", vr(TA_), "s57", "v14")
    A.I("v_add_u32", vr(TA_ + 1), "s57", "v16")
    A.I("v_add_u32", vr(TA_ + 2), "s61", "v14")
    A.I("v_add_u32", vr(TA_ + 3), "s61", "v16")
    TAG = "v14"; PF = "v11"
    def pollw():
        A.I("buffer_load_dword", PF, "v13", "s[24:27]", "s65", mods="offen sc1", tag="pw")
    Wb = lambda sl: [(sl * 12288 + i * 1024, 0) for i in range(3)]
    blocks = Wb(0) + [(i * 1024, 1) for i in (1, 2, 3)] + Wb(1) + [(16384 + i * 1024, 1) for i in range(4)] + Wb(2) + Wb(3) + [(0, 1)]
    KB = {k: k for k in range(8)}
    KB.update({8: 0, 9: 1, 10: 2, 11: 8, 12: 9, 13: 3, 14: 4, 15: 5, 16: 6, 17: 7, 18: 0, 19: 1, 20: 2, 21: 8})
    lastk = [None]
    def w2dma(k, hf):
        off, isx = blocks[2 * KB[k] + hf]
        if hf == 0 or lastk[0] != k:
            A.I("s_add_u32", "s23", "s79", k)
            A.I("s_cmp_ge_u32", "s23", "s48")
            A.I("s_cselect_b32", "s63", "s48", 0)
            A.I("s_sub_u32", "s23", "s23", "s63")
            A.I("s_lshl_b32", "s23", "s23", 14)
            A.I("s_add_u32", "s23", "s23", "s59")
        lastk[0] = k
        A.I("s_add_u32", "s63", "s23", hf * 8192)
        A.I("s_add_u32", "m0", "s61" if isx else "s57", off)
        A.I("buffer_load_dwordx4", "v15", "s[32:35]", "s63", mods="offen lds", tag=f"d{k}")
    WR = 16
    NWR = 12
    def wreg(k, e): return WR + 8 * (k % NWR) + 4 * e
    def w2read(k):
        for e in range(2):
            for hf in range(2):
                off, isx = blocks[2 * KB[k] + hf]
                A.I("ds_read_b64_tr_b16", vr(wreg(k, e) + 2 * hf, 2), vr(TA_ + 2 * isx + e), mods=f"offset:{off}", tag=f"S{k}")
    A.I("s_cmp_eq_u32", "s50", 15)
    A.I("s_cbranch_scc1", L("M_g15"))
    ACC1 = 128; WB = 208; NW = 5; CP = 228; B1 = 231; ST_ = 232 + 4
    XFb = lambda s: 176 if s % 2 == 0 else 192
    CQ = 100
    A.I("v_mov_b32", "v98", "s69")
    A.I("v_mov_b32", "v99", "s69")
    def small(t, reg, first=False):
        A.I("v_mfma_f32_4x4x4_16b_bf16", vr(CQ + 4 * t, 4), "v[98:99]", vr(reg, 2), "0" if first else vr(CQ + 4 * t, 4))
    A.I("s_mul_i32", "s68", "s53", 86)
    A.I("s_mul_i32", "s63", "s50", 6)
    A.I("s_add_u32", "s68", "s68", "s63")
    A.I("s_lshl_b32", "s68", "s68", 10)
    A.I("s_add_u32", "s68", "s68", hex(HF))
    A.I("s_add_u32", "s66", "s68", 4096)
    A.I("s_cmp_eq_u32", "s50", 14)
    A.I("s_cselect_b32", "s66", "0x7f000000", "s66")
    A.I("s_cselect_b32", "s73", "0x7f000000", "s68")
    A.I("s_lshl_b32", "s74", "s53", 9)
    A.I("s_add_u32", "s74", "s74", hex(STAT))
    AX = 176
    def pollstat():
        A.I("buffer_load_dwordx4", vr(ST_, 4), "v3", "s[24:27]", "s74", mods="offen sc1", tag="st")
    def rdW(s, idx, buf):
        kk, t = idx
        o = (s % 4) * 12288 + t * 64
        r = WB + 4 * buf
        A.I("ds_read_b64_tr_b16", vr(r, 2), vr(WA + kk), mods=f"offset:{o}")
        A.I("ds_read_b64_tr_b16", vr(r + 2, 2), vr(WA + kk), mods=f"offset:{o + 768}", tag=f"W{s}_{kk}_{t}")
    def bar(s):
        A.wait_vm(f"x{s}" if A._after(A.vmq, f"x{s}") < A._after(A.vmq, f"w{s}") else f"w{s}")
        stampn(A, f"m_s{s}a")
        A.I("s_barrier")
        stampn(A, f"m_s{s}b")
    def xread(s, kk):
        A.I("ds_read_b128", vr(XFb(s) + 4 * kk, 4), vr(XA + kk), mods=f"offset:{(s % 2) * 16384}")
    def epi_ops(t, pk=False):
        ops = []
        a = ACC1 + 16 * t
        for k in range(8):
            r = a + 2 * k
            for q in (r, r + 1):
                ops.append(("v_max_f32", [vr(q), 0, vr(q)], ""))
                if not pk:
                    ops.append(("v_mul_f32", [vr(q), vr(q), vr(ST_ + 1)], ""))
                    ops.append(("v_mul_f32", [vr(q), vr(q), vr(q)], ""))
            if pk:
                ops.append(("v_pk_mul_f32", [vr(r, 2), vr(r, 2), vr(ST_, 2)], "op_sel:[0,1] op_sel_hi:[1,1]"))
                ops.append(("v_pk_mul_f32", [vr(r, 2), vr(r, 2), vr(r, 2)], ""))
            ops.append(("v_cvt_pk_bf16_f32", [vr(a + k), vr(r), vr(r + 1)], ""))
            if k % 4 == 3:
                off = (2 * t + k // 4) * 1024
                ops.append(("buffer_store_dwordx4", [vr(a + k - 3, 4), "v2", "s[24:27]", ("s68", "s73", "s66")[t]], f"offen offset:{off % 4096} sc1"))
        return ops
    pend_e = []
    seq = []
    for s in range(8):
        order = [(kk, t) for kk in range(4) for t in range(3)] if s < 7 else [(kk, t) for t in range(3) for kk in range(4)]
        seq += [(s, o) for o in order]
    bar(0)
    A.I("s_setprio", 2)
    for kk in range(4): xread(0, kk)
    A.I("v_lshlrev_b32", "v3", 1, "v5")
    if PRO < 4:
        for t in range(3): A.I("ds_read_u16", vr(B1 + t), "v3", mods=f"offset:{36864 + 64 * t}")
    A.I("v_lshlrev_b32", "v3", 4, "v5")
    for m in range(NW - 1): rdW(seq[m][0], seq[m][1], m)
    NEARLY = int(os.environ.get('NEARLY', 16))
    BN = 7; WPOS = (7, 9, 10); XPOS = (2, 3, 5, 6)
    XP0 = (6, 8, 9, 11)
    early = {(5, 7): 0, (5, 9): 1, (5, 10): 2, (6, 2): 3, (6, 3): 4, (6, 5): 5, (6, 7): 6, (6, 9): 7, (6, 10): 8, (7, 2): 9, (7, 3): 10, (7, 4): 11, (7, 5): 12, (7, 6): 13, (7, 7): 14, (7, 8): 15}
    for m, (s, (kk, t)) in enumerate(seq):
        n = m % 12
        if n == 0: stampn(A, f"m_s{s}")
        if G1 and m == 84: A.I("s_branch", L("M_exit"))
        A.wait_l(f"W{s}_{kk}_{t}")
        acc = vr(ACC1 + 16 * t, 16)
        if "nomfma" not in OPTS: A.I("v_mfma_f32_32x32x16_bf16", acc, vr(WB + 4 * (m % NW), 4), vr(XFb(s) + 4 * kk, 4), acc if (s or kk) else "0")
        stampn(A, f"m_s{s}n{n}")
        docs = kk == 0 and s < 7 and "nocs" not in OPTS
        if docs: small(t, WB + 4 * (m % NW), first=(s == 0))
        if n == BN and s < 7: bar(s + 1)
        if s < 7 and BN <= n < BN + 4: xread(s + 1, n - BN)
        if m + NW - 1 < 96: rdW(seq[m + NW - 1][0], seq[m + NW - 1][1], (m + NW - 1) % NW)
        if docs: small(t, WB + 4 * (m % NW) + 2)
        if "nodma" in OPTS:
            A.vmq += [f"w{s + 3}", f"x{s + 2}"] + [None] * 70
        else:
            if s == 0:
                pend = ([("x", b) for b in range(4)] if PRO < 1 else []) + ([("w1", i) for i in range(3)] if PRO < 2 else []) + ([("w2", i) for i in range(3)] if PRO < 3 else [])
                per = (len(pend) + 5) // 6
                for typ, i in pend[n * per:(n + 1) * per] if n < 6 else []:
                    if typ == "x": xdma1(1, i)
                    else: wdma1(int(typ[1]), i)
            if n in WPOS and s + 3 < 8 and not (PRO == 4 and s == 0) and "now" not in OPTS: wdma1(s + 3, WPOS.index(n))
            xp = XP0 if (s == 0 and PRO < 3) else XPOS
            if n in xp and s + 2 < 8 and "nox" not in OPTS: xdma1(s + 2, xp.index(n))
            if "now" in OPTS: A.vmq.insert(0, f"w{s + 3}")
            if "nox" in OPTS: A.vmq.insert(0, f"x{s + 2}")
        if s == 5 and n == 6:
            A.I("global_load_dword", TAG, "v10", "s[18:19]", mods="sc1")
            pollstat()
        if (s, n) in early and early[(s, n)] < NEARLY:
            b = early[(s, n)]
            w2dma(b // 2, b % 2)
        if s == 6 and n == BN:
            for t2 in range(3):
                o = 3 * 12288 + t2 * 64
                A.I("ds_read_b64_tr_b16", vr(112 + 4 * t2, 2), vr(WA), mods=f"offset:{o}")
                A.I("ds_read_b64_tr_b16", vr(114 + 4 * t2, 2), vr(WA), mods=f"offset:{o + 768}", tag=f"c7_{t2}")
        if s == 6 and n == 10:
            A.wait_l("c7_2")
            for hf in range(2):
                for t2 in range(3): small(t2, 112 + 4 * t2 + 2 * hf)
        if s == 6 and n == 11:
            A.I("v_lshl_add_u32", "v240", "v1", 2, "s61")
            A.I("v_lshlrev_b32", "v241", 2, "v1")
            for t2 in range(3): A.I("ds_write_b32", "v240", vr(CQ + 4 * t2), mods=f"offset:{256 * t2}", tag="cw")
        if s == 7 and n == 0:
            A.wait_l("cw")
            A.I("s_barrier")
            for t2 in range(3):
                for ww in range(4):
                    A.I("ds_read_b32", vr(112 + 4 * t2 + ww), "v241", mods=f"offset:{XB + 4096 * ww + 256 * t2}", tag="cr")
        if s == 7 and n == 1:
            A.wait_vm("st")
            get_tag(A, L, "M_tag", TAG, "v10", "s[18:19]")
            spin_check(A, L, "M_st", vr(ST_ + 3), TAG, pollstat, wait_tag="st")
            A.I("v_cmp_gt_u32", "vcc", 32, "v1")
            A.I("v_cndmask_b32", vr(ST_ + 2), 0, vr(ST_ + 2), "vcc")
            A.I("v_cvt_pk_bf16_f32", "v188", f"-{vr(ST_)}", f"-{vr(ST_)}")
            A.I("v_cvt_pk_bf16_f32", "v189", f"-{vr(ST_)}", vr(ST_ + 2))
            A.I("v_mov_b32", "v190", 0)
            A.I("v_mov_b32", "v191", 0)
        if s == 7 and n in (2, 3, 4):
            t2 = n - 2
            if n == 2: A.wait_l("cr")
            c = 112 + 4 * t2; a = AX + 4 * t2
            A.I("v_add_f32", vr(c), vr(c), vr(c + 1))
            A.I("v_add_f32", vr(c + 2), vr(c + 2), vr(c + 3))
            A.I("v_add_f32", vr(c), vr(c), vr(c + 2))
            A.I("v_cvt_pk_bf16_f32", vr(c + 1), 0, vr(c))
            A.I("v_sub_f32", vr(c), vr(c), vr(c + 1))
            A.I("v_cvt_pk_bf16_f32", vr(c + 2), 0, vr(c))
            A.I("v_sub_f32", vr(c), vr(c), vr(c + 2))
            A.I("v_cvt_pk_bf16_f32", vr(a), vr(c + 1), vr(c + 2))
            A.I("v_cvt_pk_bf16_f32", vr(a + 1), vr(c), 0)
            A.I("v_lshl_or_b32", vr(a + 1), vr(B1 + t2), 16, vr(a + 1))
            A.I("v_mov_b32", vr(a + 2), 0)
            A.I("v_mov_b32", vr(a + 3), 0)
        if s == 7 and n in (3, 7, 11):
            t2 = n // 4
            acc2 = vr(ACC1 + 16 * t2, 16)
            A.I("v_mfma_f32_32x32x16_bf16", acc2, vr(AX + 4 * t2, 4), "v[188:191]", acc2)
        if s == 7 and n >= 5:
            if n == 5: pend_e = epi_ops(0)
            if n == 9: pend_e = pend_e + epi_ops(1)
            for _ in range(13):
                if pend_e:
                    mn, ops, mods = pend_e.pop(0); A.I(mn, *ops, mods=mods, tag="hf")
    stampn(A, "m_g1")
    if NEARLY >= 6:
        A.wait_vm("d2")
        for k in (0, 1, 2): w2read(k)
    for mn, ops, mods in pend_e + epi_ops(2, pk='epk' in OPTS): A.I(mn, *ops, mods=mods, tag="hf")
    A.unpk = "mnp2" in OPTS
    stampn(A, "m_epi")
    for b in range(NEARLY, 16): w2dma(b // 2, b % 2)
    if NEARLY == 16:
        A.wait(lgkm=0)
        for k in (8, 9, 10):
            w2dma(k, 0); w2dma(k, 1)
    stampn(A, "m_e2")
    A.wait_vm("hf")
    stampn(A, "m_e3")
    A.I("s_barrier")
    A.I("s_cmp_lg_u32", "s22", 0)
    A.I("s_cbranch_scc1", L("M_nf2"))
    A.I("s_lshl_b32", "s71", "s49", F2SH + 4)
    A.I("s_lshl_b32", "s72", "s50", F2SH)
    A.I("s_add_u32", "s71", "s71", "s72")
    A.I("s_add_u32", "s71", "s71", hex(F2))
    A.I("s_mov_b64", "exec", 1)
    A.I("buffer_store_dword", TAG, "v10", "s[24:27]", "s71", mods="offen sc1")
    A.vmq.pop()
    A.I("s_mov_b64", "exec", -1)
    A.label(L("M_nf2"))
    if "touch" in OPTS:
        A.I("v_min_u32", "v240", 47, "v1")
        A.I("v_lshlrev_b32", "v240", 7, "v240")
        A.I("buffer_load_dword", "v241", "v240", "s[24:27]", "s68", mods="offen sc1")
    if NEARLY == 16:
        for k in (3, 4, 5, 6, 7): w2read(k)
    if NEARLY < 16:
        if NEARLY < 6:
            A.wait_vm("d2")
            for k in (0, 1, 2): w2read(k)
        A.wait_vm("d7", lgkm=0)
        for k in (3, 4, 5, 6, 7): w2read(k)
        for k in (8, 9, 10):
            w2dma(k, 0); w2dma(k, 1)
    A.I("s_branch", L("M_join"))
    A.label(L("M_g15"))
    lastk[0] = None
    if G1: A.I("s_branch", L("M_exit"))
    for b in range(16): w2dma(b // 2, b % 2)
    A.I("global_load_dword", TAG, "v10", "s[18:19]", mods="sc1")
    A.wait(vm=0)
    get_tag(A, L, "M_tag15", TAG, "v10", "s[18:19]")
    if "agg" in OPTS:
        A.I("v_lshlrev_b32", "v13", F1SH, "v1")
        A.I("s_lshl_b32", "s65", "s22", F1SH + 6)
        A.I("s_add_u32", "s65", "s65", hex(F1))
        spin_check(A, L, "M_agg", PF, TAG, pollw, first=True, sleep=1)
        A.I("s_barrier")
        A.I("s_cmp_lg_u32", "s22", 0)
        A.I("s_cbranch_scc1", L("M_agg2"))
        A.I("s_lshl_b32", "s65", "s49", 7)
        A.I("s_add_u32", "s65", "s65", hex(FA))
        A.I("s_mov_b64", "exec", 1)
        A.I("buffer_store_dword", TAG, "v10", "s[24:27]", "s65", mods="offen sc1")
        A.I("s_mov_b64", "exec", -1)
        A.label(L("M_agg2"))
        stampn(A, "m_agg")
    for k in range(8): w2read(k)
    A.wait(lgkm=0)
    for k in (8, 9, 10):
        w2dma(k, 0); w2dma(k, 1)
    A.label(L("M_join"))
    lastk[0] = None
    stampn(A, "m_f2pub")
    for k in (11, 12):
        w2dma(k, 0); w2dma(k, 1)
    A.wait(lgkm=0)
    for k in (13, 14, 15, 16, 17):
        w2dma(k, 0); w2dma(k, 1)
    stampn(A, "m_w1")
    A.wait(vm=14)
    stampn(A, "m_w2")
    for k in (8, 9, 10): w2read(k)
    A.I("v_min_u32", "v13", 14, "v1")
    A.I("v_lshlrev_b32", "v13", F2SH, "v13")
    A.I("s_lshr_b32", "s65", "s51", 1)
    A.I("s_lshl_b32", "s65", "s65", F2SH + 4)
    A.I("s_add_u32", "s65", "s65", hex(F2))
    A.I("s_lshl_b32", "s54", "s51", 16)
    A.I("s_lshl_b32", "s55", "s22", 14)
    A.I("s_add_u32", "s54", "s54", "s55")
    A.I("s_add_u32", "s54", "s54", "s60")
    A.I("s_add_u32", "s55", "s54", 8192)
    A.I("s_mul_i32", "s56", "s51", 172)
    A.I("s_add_u32", "s56", "s56", "s58")
    A.I("s_lshl_b32", "s56", "s56", 10)
    A.I("s_add_u32", "s56", "s56", hex(HF))
    A.I("s_add_u32", "s62", "s56", 86 * 1024)
    XR = 240
    def xo(e, gp, ip): return ("s54" if gp == 0 else "s55", ip * 2048 + e * 64)
    A.I("v_lshl_add_u32", "v6", "v5", 1, "s60")
    A.wait(lgkm=0)
    for k in (18, 19, 20):
        w2dma(k, 0); w2dma(k, 1)
    stampn(A, "m_w3")
    A.wait_vm("d11")
    w2read(11)
    A.wait(lgkm=0)
    w2dma(21, 0); w2dma(21, 1)
    stampn(A, "m_w4")
    A.I("s_cmp_lg_u32", "s22", 0)
    A.I("s_cbranch_scc1", L("M_p2w"))
    A.I("s_mov_b64", "exec", "0x7fff")
    spin_check(A, L, "M_p2", PF, TAG, pollw, first=True)
    A.I("s_mov_b64", "exec", -1)
    A.label(L("M_p2w"))
    A.I("s_barrier")
    stampn(A, "m_f2")
    ACC = 128; NH = 8
    HR = lambda k: (192 + 8 * (k % NH)) if (k % NH) < 6 else (112 + 8 * (k % NH - 6))
    def issueH(k):
        A.I("s_add_u32", "s23", "s79", k)
        A.I("s_cmp_ge_u32", "s23", "s48")
        A.I("s_cselect_b32", "s63", "s48", 0)
        A.I("s_sub_u32", "s23", "s23", "s63")
        A.I("s_lshl_b32", "s23", "s23", 10)
        A.I("s_add_u32", "s63", "s23", "s56")
        A.I("s_add_u32", "s23", "s23", "s62")
        A.I("buffer_load_dwordx4", vr(HR(k), 4), "v2", "s[24:27]", "s63", mods="offen sc1")
        A.I("buffer_load_dwordx4", vr(HR(k) + 4, 4), "v2", "s[24:27]", "s23", mods="offen sc1", tag=f"h{k}")
    for k in range(NH): issueH(k)
    A.I("v_and_b32", "v13", 7, "v1")
    A.I("v_lshlrev_b32", "v8", 4, "v13")
    A.I("v_lshlrev_b32", "v13", F3SH, "v13")
    A.I("s_lshl_b32", "s65", "s52", F3SH + 5)
    A.I("s_lshl_b32", "s71", "s22", F3SH + 3)
    A.I("s_add_u32", "s65", "s65", "s71")
    A.I("s_add_u32", "s65", "s65", hex(F3))
    A.I("v_lshrrev_b32", "v7", 3, "v1")
    A.I("v_lshl_add_u32", "v7", "v7", 12, "v8")
    A.I("s_lshl_b32", "s67", "s52", 18)
    A.I("s_lshl_b32", "s68", "s22", 16)
    A.I("s_add_u32", "s67", "s67", "s68")
    A.I("s_lshl_b32", "s68", "s51", 7)
    A.I("s_add_u32", "s67", "s67", "s68")
    A.I("s_add_u32", "s67", "s67", hex(ST))
    A.I("s_add_u32", "s68", "s67", 8 * 4096)
    A.I("s_mov_b32", "s75", 0)
    def sload():
        A.I("buffer_load_dwordx4", "v[248:251]", "v7", "s[24:27]", "s67", mods="offen sc1")
        A.I("buffer_load_dwordx4", "v[104:107]", "v7", "s[24:27]", "s68", mods="offen sc1")
    for k in range(22):
        if k == 21:
            A.I("s_cmp_ge_u32", "s22", 2)
            A.I("s_cbranch_scc1", L("M_skip21"))
        A.wait_vm(f"h{k}")
        stampn(A, f"m_k{k}")
        if k >= 12: A.wait_l(f"S{k}")
        for tj in range(2):
            for e in range(2):
                acc = vr(ACC + 32 * tj + 16 * e, 16)
                A.I("v_mfma_f32_32x32x16_bf16", acc, vr(HR(k) + 4 * tj, 4), vr(wreg(k, e), 4), acc if k else "0")
        if k + NH < 22: issueH(k + NH)
        if k < 10: w2read(k + 12)
        if k == 13: pollw()
        if k in (14, 15, 16, 17):
            for qq in (2 * (k - 14), 2 * (k - 14) + 1):
                so, im = xo(qq >> 2, (qq >> 1) & 1, qq & 1)
                A.I("buffer_load_dword", vr(XR + qq), "v9", "s[40:43]", so, mods=f"offen offset:{im}")
        if k == 17:
            A.I("global_load_ushort", "v12", "v6", "s[14:15]")
            A.I("global_load_ushort", "v3", "v6", "s[14:15]", mods="offset:64", tag="xb")
        if k == 18 and "kx3" not in OPTS:
            A.wait_vm("pw")
            A.I("v_cmp_ne_u32", "vcc", PF, TAG)
            A.I("s_cbranch_vccnz", L("M_s_no"))
            sload(); A.vmq.pop(); A.vmq.pop()
            A.I("s_mov_b32", "s75", 1)
            A.label(L("M_s_no"))
    A.label(L("M_skip21"))
    stampn(A, "m_g2")
    if "kx3" not in OPTS:
        A.I("s_cmp_eq_u32", "s75", 1)
        A.I("s_cbranch_scc1", L("M_s_np"))
        pollw(); A.vmq.pop()
        A.label(L("M_s_np"))
    A.I("v_add_u32", "v252", "s57", "v2")
    A.I("v_add_u32", "v253", "s61", "v2")
    OWN = 16
    A.I("s_nop", 7)
    for wd in range(4):
        src = [ACC + 32 * (wd >> 1) + 16 * e + 8 * (wd & 1) + 4 * q for e in range(2) for q in range(2)]
        A.I("s_cmp_eq_u32", "s22", wd)
        A.I("s_cbranch_scc1", L(f"own{wd}"))
        for q, r in enumerate(src):
            if q < 3: A.I("ds_write_b128", "v252", vr(r, 4), mods=f"offset:{wd * 12288 + q * 1024}")
            else: A.I("ds_write_b128", "v253", vr(r, 4), mods=f"offset:{16384 + wd * 1024}")
        A.I("s_branch", L(f"nxt{wd}"))
        A.label(L(f"own{wd}"))
        if wd == 0: A.I("s_nop", 3)
        for q, r in enumerate(src):
            for i in range(0, 4, 2):
                A.I("v_pk_mov_b32", vr(OWN + 4 * q + i, 2), vr(r + i, 2), vr(r + i, 2), mods="op_sel:[0,1]")
        A.label(L(f"nxt{wd}"))
    A.I("s_lshl_b32", "s71", "s22", 5)
    A.I("v_add_u32", "v63", "s71", "v253")
    XU = 32
    A.wait(vm=0 if "kx3" in OPTS else 1)
    for q in range(8):
        A.I("v_lshlrev_b32", vr(XU + 2 * q), 16, vr(XR + q))
        A.I("v_and_b32", vr(XU + 2 * q + 1), "s64", vr(XR + q))
    A.I("v_lshlrev_b32", "v124", 16, "v12")
    A.I("v_lshlrev_b32", "v126", 16, "v3")
    A.I("v_lshrrev_b32", "v56", 4, "v5")
    A.I("v_mul_u32_u24", "v56", 4128, "v56")
    A.I("v_bfe_u32", "v57", "v5", 3, 1)
    A.I("v_mul_u32_u24", "v57", 1040, "v57")
    A.I("v_add_u32", "v56", "v56", "v57")
    A.I("v_and_b32", "v57", 7, "v5")
    A.I("v_lshl_add_u32", "v56", "v57", 7, "v56")
    A.I("v_lshl_add_u32", "v56", "v4", 3, "v56")
    A.I("v_add_u32", "v56", "s71", "v56")
    for sl in range(3):
        A.I("s_add_u32", "s71", "s22", 1 + sl)
        A.I("s_and_b32", "s71", "s71", 3)
        A.I("s_mul_i32", "s72", "s71", 3072)
        A.I("s_mul_i32", "s73", "s22", 12288)
        A.I("s_add_u32", "s72", "s72", "s73")
        A.I("v_add_u32", vr(120 + sl), "s72", "v2")
        A.I("s_lshl_b32", "s71", "s71", 12)
        A.I("s_lshl_b32", "s72", "s22", 10)
        A.I("s_add_u32", "s71", "s71", "s72")
        A.I("s_add_u32", "s71", "s71", XB + 16384)
        A.I("v_add_u32", vr(58 + sl), "s71", "v2")
    for p in range(8):
        A.I("v_pk_add_f32", vr(OWN + 2 * p, 2), vr(OWN + 2 * p, 2), "v[124:125]" if p < 4 else "v[126:127]", mods="op_sel_hi:[1,0]")
    A.I("s_mov_b32", "s72", "0xbfb8aa3b")
    A.I("s_mov_b32", "s73", "0xbfb8aa3b")
    A.wait(lgkm=0)
    A.I("s_barrier")
    stampn(A, "m_red")
    RD = 160
    for sl in range(3):
        for q in range(4):
            if q < 3: A.I("ds_read_b128", vr(RD + 16 * sl + 4 * q, 4), vr(120 + sl), mods=f"offset:{q * 1024}")
            else: A.I("ds_read_b128", vr(RD + 16 * sl + 4 * q, 4), vr(58 + sl), tag=f"R{sl}")
    SV = 112
    def s_stage():
        A.I("s_cmp_eq_u32", "s75", 1)
        A.I("s_cbranch_scc1", L("M_s_have"))
        if "kx3" not in OPTS: spin_check(A, L, "M_p3", PF, TAG, pollw)
        sload()
        A.label(L("M_s_have"))
        stampn(A, "m_f3")
    for sl in range(3):
        A.wait_l(f"R{sl}")
        for p in range(8):
            A.I("v_pk_add_f32", vr(OWN + 2 * p, 2), vr(OWN + 2 * p, 2), vr(RD + 16 * sl + 2 * p, 2))
    T_ = 128; SU = 144
    s_stage()
    for p in range(8): A.I("v_pk_mul_f32", vr(T_ + 2 * p, 2), vr(OWN + 2 * p, 2), "s[72:73]")
    for r in range(16): A.I("v_exp_f32", vr(T_ + r), vr(T_ + r))
    for p in range(8): A.I("v_pk_add_f32", vr(T_ + 2 * p, 2), vr(T_ + 2 * p, 2), "1.0", mods="op_sel_hi:[1,0]")
    A.wait(vm=0)
    A.I("ds_write_b128", "v63", "v[248:251]")
    A.I("ds_write_b128", "v63", "v[104:107]", mods="offset:1040")
    for r in range(8): A.I("v_rcp_f32", vr(T_ + r), vr(T_ + r))
    A.wait(lgkm=0)
    A.I("s_barrier")
    for e in range(2):
        for gp in range(2):
            A.I("ds_read_b64", vr(SV + 4 * e + 2 * gp, 2), "v56", mods=f"offset:{XB + 2 * 4128 * e + 16 * gp}")
    for r in range(8, 16): A.I("v_rcp_f32", vr(T_ + r), vr(T_ + r))
    for p in range(8): A.I("v_pk_mul_f32", vr(T_ + 2 * p, 2), vr(T_ + 2 * p, 2), vr(OWN + 2 * p, 2))
    A.wait(lgkm=0)
    for k in range(8):
        A.I("v_lshlrev_b32", vr(SU + 2 * k), 16, vr(SV + k))
        A.I("v_and_b32", vr(SU + 2 * k + 1), "s64", vr(SV + k))
    for p in range(8): A.I("v_pk_mul_f32", vr(T_ + 2 * p, 2), vr(T_ + 2 * p, 2), vr(SU + 2 * p, 2))
    A.I("s_mov_b32", "vcc_lo", "0x55555555")
    A.I("s_mov_b32", "vcc_hi", "0x55555555")
    QP = "quad_perm:[1,0,3,2] row_mask:0xf bank_mask:0xf"
    for p in range(8): A.I("v_cndmask_b32_dpp", vr(SU + 2 * p), vr(T_ + 2 * p + 1), vr(T_ + 2 * p), "vcc", mods=QP)
    A.I("s_not_b64", "vcc", "vcc")
    for p in range(8): A.I("v_cndmask_b32_dpp", vr(SU + 2 * p + 1), vr(T_ + 2 * p), vr(T_ + 2 * p + 1), "vcc", mods=QP)
    for p in range(8):
        A.I("v_pk_add_f32", vr(SU + 2 * p, 2), vr(SU + 2 * p, 2), vr(XU + 2 * p, 2))
        A.I("v_cvt_pk_bf16_f32", vr(64 + p), vr(SU + 2 * p), vr(SU + 2 * p + 1))
        so, im = xo(p >> 2, (p >> 1) & 1, p & 1)
        A.I("buffer_store_dword", vr(64 + p), "v9", "s[44:47]", so, mods=f"offen offset:{im}" + os.environ.get("OUTMOD", ""))
    A.unpk = False
    A.label(L("M_exit"))
    stamp_flush(A, 0, "s[20:21]", 7)
    A.I("s_endpgm")
```

```python
import os
from asmlib import *
from layout1 import *
from k_prep import srd
from t7_k import spin_check, code_prefetch2, get_tag, swarm

XB = 49152

def gen_csb(A, L, TAG):
    A.I("s_lshl_b32", "s71", "s49", 2)
    A.I("s_add_u32", "s71", "s71", "s22")
    A.I("global_load_dword", TAG, "v10", "s[18:19]", mods="sc1")
    A.I("s_cmp_ge_u32", "s71", 45)
    A.I("s_cbranch_scc1", L("M_csb_skip"))
    A.I("s_min_u32", "s72", "s71", 42)
    A.I("s_lshl_b32", "s72", "s72", 6)
    A.I("v_lshrrev_b32", "v16", 2, "v1")
    A.I("v_mul_u32_u24", "v16", 2752, "v16")
    A.I("v_and_b32", "v17", 3, "v1")
    A.I("v_lshl_add_u32", "v16", "v17", 4, "v16")
    A.I("s_mov_b32", "s73", "s72")
    for i in range(32):
        A.I("buffer_load_dwordx4", vr(128 + 4 * i - (0 if i < 28 else 0), 4) if i < 28 else vr(32 + 4 * (i - 28), 4), "v16", "s[28:31]", "s73", mods="offen", tag=f"c{i}")
        A.I("s_add_u32", "s73", "s73", 16 * 2752)
    A.I("v_lshl_add_u32", "v18", "v5", 1, "s72")
    A.I("global_load_ushort", "v19", "v18", "s[10:11]")
    A.I("s_mov_b32", "s74", "0x00003f80")
    A.I("s_mov_b32", "s75", "0x3f800000")
    for c in range(8): A.I("v_mov_b32", vr(20 + c), 0)
    for i in range(32):
        A.wait_vm(f"c{i}")
        b = 128 + 4 * i if i < 28 else 32 + 4 * (i - 28)
        for d in range(4):
            A.I("v_dot2_f32_bf16", vr(20 + 2 * d), vr(b + d), "s74", vr(20 + 2 * d))
            A.I("v_dot2_f32_bf16", vr(21 + 2 * d), vr(b + d), "s75", vr(21 + 2 * d))
    D = "row_mask:0xf bank_mask:0xf"
    for m in ("row_ror:4", "row_ror:8"):
        for c in range(8): A.I("v_add_f32_dpp", vr(20 + c), vr(20 + c), vr(20 + c), mods=f"{m} {D}")
    for sw in ("v_permlane16_swap_b32", "v_permlane32_swap_b32"):
        for c in range(8): A.I("v_mov_b32", vr(48 + c), vr(20 + c))
        for c in range(8): A.I(sw, vr(20 + c), vr(48 + c))
        for c in range(8): A.I("v_add_f32", vr(20 + c), vr(20 + c), vr(48 + c))
    A.I("v_lshlrev_b32", "v17", 5, "v17")
    A.I("v_add_u32", "v17", "s61", "v17")
    A.I("ds_write_b128", "v17", "v[20:23]")
    A.I("ds_write_b128", "v17", "v[24:27]", mods="offset:16")
    A.I("v_lshl_add_u32", "v17", "v5", 2, "s61")
    A.wait(lgkm=0)
    A.I("ds_read_b32", "v20", "v17")
    A.wait(vm=0, lgkm=0)
    get_tag(A, L, "M_tag15a", TAG, "v10", "s[18:19]")
    A.I("v_cvt_pk_bf16_f32", "v21", 0, "v20")
    A.I("v_sub_f32", "v20", "v20", "v21")
    A.I("v_cvt_pk_bf16_f32", "v22", 0, "v20")
    A.I("v_sub_f32", "v20", "v20", "v22")
    A.I("v_cvt_pk_bf16_f32", "v24", "v21", "v22")
    A.I("v_cvt_pk_bf16_f32", "v25", "v20", 0)
    A.I("v_lshl_or_b32", "v25", "v19", 16, "v25")
    A.I("v_mov_b32", "v26", TAG)
    A.I("v_mov_b32", "v27", TAG)
    A.I("s_lshl_b32", "s72", "s71", 9)
    A.I("s_add_u32", "s72", "s72", hex(CSB))
    A.I("v_lshlrev_b32", "v17", 4, "v5")
    A.I("s_mov_b64", "exec", "0xffffffff")
    A.I("buffer_store_dwordx4", "v[24:27]", "v17", "s[24:27]", "s72", mods="offen sc1")
    A.I("s_mov_b64", "exec", -1)
    stampn(A, "m_csb")
    A.label(L("M_csb_skip"))
    A.wait(vm=0)
    get_tag(A, L, "M_tag15", TAG, "v10", "s[18:19]")

def gen_M(A, L, msize):
    G1 = "g1only" in OPTS
    A.label(L("M"))
    if "nom" in OPTS: A.I("s_endpgm")
    A.I("s_setprio", int(os.environ.get("MP0", 1)))
    A.I("s_load_dwordx2", "s[4:5]", "s[0:1]", 0)
    A.I("s_load_dwordx8", "s[8:15]", "s[0:1]", 80)
    A.I("s_load_dwordx4", "s[16:19]", "s[0:1]", 112)
    A.I("s_load_dwordx2", "s[20:21]", "s[0:1]", 128)
    if 'nocp' not in OPTS: code_prefetch2(A, msize)
    A.I("v_and_b32", "v1", 63, "v0")
    A.I("v_lshrrev_b32", "v2", 6, "v0")
    A.I("v_readfirstlane_b32", "s22", "v2")
    A.I("s_and_b32", "s3", "s2", 255)
    A.I("s_and_b32", "s23", "s3", 7)
    A.I("s_lshr_b32", "s48", "s3", 3)
    A.I("s_lshr_b32", "s49", "s23", 1)
    A.I("s_lshl_b32", "s49", "s49", 2)
    A.I("s_lshr_b32", "s76", "s48", 3)
    A.I("s_add_u32", "s49", "s49", "s76")
    A.I("s_and_b32", "s50", "s23", 1)
    A.I("s_lshl_b32", "s50", "s50", 3)
    A.I("s_and_b32", "s52", "s48", 7)
    A.I("s_add_u32", "s50", "s50", "s52")
    A.I("s_lshl_b32", "s76", "s76", 1)
    if "rot1" not in OPTS: A.I("s_mov_b32", "s76", 0)
    A.I("s_lshl_b32", "s51", "s23", 2)
    A.I("s_lshr_b32", "s52", "s48", 3)
    A.I("s_add_u32", "s51", "s51", "s52")
    A.I("s_and_b32", "s52", "s48", 7)
    A.I("s_lshl_b32", "s53", "s49", 2)
    A.I("s_add_u32", "s53", "s53", "s22")
    A.I("v_lshlrev_b32", "v2", 4, "v1")
    A.I("v_lshrrev_b32", "v4", 5, "v1")
    A.I("v_and_b32", "v5", 31, "v1")
    A.I("v_lshrrev_b32", "v9", 3, "v1")
    A.I("v_lshrrev_b32", "v10", 4, "v1")
    A.I("v_and_b32", "v11", 7, "v1")
    A.I("v_xor_b32", "v10", "v10", "v11")
    A.I("v_lshlrev_b32", "v9", 10, "v9")
    A.I("v_lshl_add_u32", "v12", "v10", 4, "v9")
    A.I("v_xor_b32", "v13", 64, "v12")
    A.I("v_bfe_u32", "v10", "v1", 4, 1)
    A.I("v_lshlrev_b32", "v10", 2, "v10")
    A.I("v_xor_b32", "v10", "v10", "v11")
    A.I("v_lshl_add_u32", "v15", "v10", 4, "v9")
    A.I("s_mov_b32", "s54", 43691)
    for n in range(3):
        A.I("v_add_u32", "v9", 64 * n, "v1")
        A.I("v_mul_u32_u24", "v10", "s54", "v9")
        A.I("v_lshrrev_b32", "v10", 19, "v10")
        A.I("v_mul_u32_u24", "v11", 12, "v10")
        A.I("v_sub_u32", "v9", "v9", "v11")
        A.I("v_mul_u32_u24", "v10", 2752, "v10")
        A.I("v_lshl_add_u32", vr(6 + n), "v9", 4, "v10")
    A.I("v_lshlrev_b32", "v14", 7, "v5")
    A.I("s_mul_i32", "s55", "s50", 192)
    A.I("s_mul_i32", "s56", "s22", 16 * 2752)
    A.I("s_add_u32", "s56", "s56", "s55")
    A.I("s_mul_i32", "s57", "s22", 3072)
    A.I("s_lshl_b32", "s67", "s53", 15)
    A.I("s_lshl_b32", "s61", "s22", 12)
    A.I("s_add_u32", "s61", "s61", XB)
    A.I("s_lshl_b32", "s62", "s49", 17)
    A.I("s_lshl_b32", "s63", "s52", 14)
    A.I("s_add_u32", "s62", "s62", "s63")
    A.I("s_lshl_b32", "s63", "s22", 12)
    A.I("s_add_u32", "s62", "s62", "s63")
    stampn(A, "m_pre")
    A.wait(lgkm=0)
    stampn(A, "m_arg")
    srd(A, 40, 4, 2048 * 1024)
    srd(A, 28, 8, 512 * 2752)
    A.I("s_mov_b32", "exec_hi", 0)
    if "xt" in OPTS: A.I("buffer_load_dword", "v3", "v14", "s[40:43]", "s62", mods="offen")
    A.I("s_mov_b64", "exec", -1)
    def xdma1(s, b):
        A.I("s_add_u32", "m0", "s61", (s % 2) * 16384 + b * 1024)
        if b == 0:
            A.I("s_add_u32", "s77", "s76", s)
            A.I("s_and_b32", "s77", "s77", 7)
            A.I("s_lshl_b32", "s77", "s77", 7)
            A.I("s_add_u32", "s77", "s77", "s67")
        A.I("s_add_u32", "s63", "s77", b * 8192)
        A.I("buffer_load_dwordx4", "v12" if b % 2 == 0 else "v13", "s[40:43]", "s63", mods="offen lds", tag=f"x{s}")
    def wdma1(s, n):
        if n == 0:
            A.I("s_add_u32", "s78", "s76", s)
            A.I("s_and_b32", "s78", "s78", 7)
            A.I("s_mul_i32", "s78", "s78", 64 * 2752)
            A.I("s_add_u32", "s78", "s78", "s56")
        A.I("s_add_u32", "m0", "s57", (s % 4) * 12288 + n * 1024)
        A.I("buffer_load_dwordx4", vr(6 + n), "s[28:31]", "s78", mods="offen lds", tag=f"w{s}")
    A.I("s_cmp_eq_u32", "s50", 15)
    A.I("s_cbranch_scc1", L("M_now1"))
    for b in range(4): xdma1(0, b)
    PRO = int(os.environ.get("PRO", 3))
    if PRO < 4:
        srd(A, 36, 10, 2752)
        A.I("s_mov_b32", "m0", 36864)
        A.I("s_mov_b64", "exec", "0xfff")
        A.I("buffer_load_dwordx4", "v2", "s[36:39]", "s55", mods="offen lds")
        A.I("s_mov_b64", "exec", -1)
    for n in range(3): wdma1(0, n)
    if PRO >= 1:
        for b in range(4): xdma1(1, b)
    for s in (1, 2, 3)[:max(PRO - 1, 0)]:
        for n in range(3): wdma1(s, n)
    if PRO == 4:
        srd(A, 36, 10, 2752)
        A.I("v_lshlrev_b32", "v234", 1, "v5")
        for t in range(3):
            A.I("buffer_load_ushort", vr(231 + t), "v234", "s[36:39]", "s55", mods=f"offen offset:{64 * t}")
    A.label(L("M_now1"))
    if "swarm" in OPTS:
        swarm(A, "s[12:13]", "s3", "s22")
    stampn(A, "m_iss")
    srd(A, 24, 20, WS_SIZE)
    srd(A, 44, 16, 2048 * 1024)
    srd(A, 32, 12, 1376 * 1024)
    if "otouch" in OPTS:
        A.I("s_lshl_b32", "s63", "s3", 13)
        A.I("s_mov_b64", "exec", 1)
        A.I("buffer_load_dword", "v235", "v2", "s[44:47]", "s63", mods="offen")
        A.I("global_load_dword", "v234", "v2", "s[14:15]")
        A.I("s_mov_b64", "exec", -1)
    A.I("s_mov_b32", "s64", "0xffff0000")
    A.I("s_mov_b32", "s69", "0x3f803f80")
    A.I("v_mov_b32", "v10", 0)
    A.I("s_mul_i32", "s58", "s22", 22)
    A.I("s_cmp_eq_u32", "s22", 3)
    A.I("s_cselect_b32", "s59", 1, 0)
    A.I("s_sub_u32", "s58", "s58", "s59")
    A.I("s_lshl_b32", "s59", "s58", 14)
    A.I("s_lshl_b32", "s60", "s52", 7)
    A.I("s_add_u32", "s59", "s59", "s60")
    A.I("s_cmp_lt_u32", "s22", 2)
    A.I("s_cselect_b32", "s48", 22, 21)
    A.I("s_mul_i32", "s79", "s52", 2)
    A.I("s_and_b32", "s63", "s51", 3)
    A.I("s_mul_i32", "s63", "s63", 5)
    A.I("s_add_u32", "s79", "s79", "s63")
    A.I("s_cmp_ge_u32", "s79", 21)
    A.I("s_cselect_b32", "s63", 21, 0)
    A.I("s_sub_u32", "s79", "s79", "s63")
    if "norot2" in OPTS: A.I("s_mov_b32", "s79", 0)
    A.I("v_and_b32", "v9", 1, "v1")
    A.I("v_lshl_add_u32", "v9", "v4", 2, "v9")
    A.I("v_lshlrev_b32", "v9", 10, "v9")
    A.I("v_lshrrev_b32", "v11", 1, "v5")
    A.I("v_lshl_add_u32", "v9", "v11", 2, "v9")
    XA = 244; WA = 248; TA_ = 252
    A.I("v_bfe_u32", "v14", "v1", 1, 3)
    A.I("v_xor_b32", "v14", "v14", "v4")
    A.I("s_lshl_b32", "s63", "s22", 1)
    A.I("v_xor_b32", "v14", "s63", "v14")
    A.I("v_lshlrev_b32", "v16", 7, "v5")
    A.I("v_add_u32", "v16", "s61", "v16")
    for k in range(4):
        if k: A.I("v_xor_b32", "v11", 2 * k, "v14")
        A.I("v_lshl_add_u32", vr(XA + k), "v14" if k == 0 else "v11", 4, "v16")
    A.I("v_bfe_u32", "v16", "v1", 2, 2)
    A.I("v_bfe_u32", "v17", "v1", 4, 1)
    A.I("v_and_b32", "v18", 3, "v1")
    A.I("v_lshlrev_b32", "v18", 3, "v18")
    A.I("v_lshl_add_u32", "v17", "v17", 5, "v18")
    A.I("v_lshl_add_u32", "v14", "v4", 3, "v16")
    A.I("v_mul_u32_u24", "v14", 192, "v14")
    A.I("v_add_u32", "v14", "v14", "v17")
    for k in range(4):
        A.I("s_xor_b32", "s63", "s22", k)
        A.I("s_mul_i32", "s63", "s63", 3072)
        A.I("v_add_u32", vr(WA + k), "s63", "v14")
    A.I("v_lshl_add_u32", "v14", "v4", 2, "v16")
    A.I("v_lshl_add_u32", "v14", "v14", 7, "v17")
    A.I("v_bfe_u32", "v16", "v1", 3, 1)
    A.I("v_lshl_add_u32", "v14", "v16", 6, "v14")
    A.I("v_xor_b32", "v16", 64, "v14")
    A.I("v_add_u32", vr(TA_), "s57", "v14")
    A.I("v_add_u32", vr(TA_ + 1), "s57", "v16")
    A.I("v_add_u32", vr(TA_ + 2), "s61", "v14")
    A.I("v_add_u32", vr(TA_ + 3), "s61", "v16")
    TAG = "v14"; PF = "v11"
    def pollw():
        A.I("buffer_load_dword", PF, "v13", "s[24:27]", "s65", mods="offen sc1", tag="pw")
    Wb = lambda sl: [(sl * 12288 + i * 1024, 0) for i in range(3)]
    blocks = Wb(0) + [(i * 1024, 1) for i in (1, 2, 3)] + Wb(1) + [(16384 + i * 1024, 1) for i in range(4)] + Wb(2) + Wb(3) + [(0, 1)]
    KB = {k: k for k in range(8)}
    KB.update({8: 0, 9: 1, 10: 2, 11: 8, 12: 9, 13: 3, 14: 4, 15: 5, 16: 6, 17: 7, 18: 0, 19: 1, 20: 2, 21: 8})
    lastk = [None]
    def w2dma(k, hf):
        off, isx = blocks[2 * KB[k] + hf]
        if hf == 0 or lastk[0] != k:
            A.I("s_add_u32", "s23", "s79", k)
            A.I("s_cmp_ge_u32", "s23", "s48")
            A.I("s_cselect_b32", "s63", "s48", 0)
            A.I("s_sub_u32", "s23", "s23", "s63")
            A.I("s_lshl_b32", "s23", "s23", 14)
            A.I("s_add_u32", "s23", "s23", "s59")
        lastk[0] = k
        A.I("s_add_u32", "s63", "s23", hf * 8192)
        A.I("s_add_u32", "m0", "s61" if isx else "s57", off)
        A.I("buffer_load_dwordx4", "v15", "s[32:35]", "s63", mods="offen lds", tag=f"d{k}")
    WR = 16
    NWR = 12
    def wreg(k, e): return WR + 8 * (k % NWR) + 4 * e
    def w2read(k):
        for e in range(2):
            for hf in range(2):
                off, isx = blocks[2 * KB[k] + hf]
                A.I("ds_read_b64_tr_b16", vr(wreg(k, e) + 2 * hf, 2), vr(TA_ + 2 * isx + e), mods=f"offset:{off}", tag=f"S{k}")
    A.I("s_cmp_eq_u32", "s50", 15)
    A.I("s_cbranch_scc1", L("M_g15"))
    ACC1 = 128; WB = 208; NW = 5; CP = 228; B1 = 231; ST_ = 232 + 4
    XFb = lambda s: 176 if s % 2 == 0 else 192
    CQ = 100
    A.I("v_mov_b32", "v98", "s69")
    A.I("v_mov_b32", "v99", "s69")
    def small(t, reg, first=False):
        A.I("v_mfma_f32_4x4x4_16b_bf16", vr(CQ + 4 * t, 4), "v[98:99]", vr(reg, 2), "0" if first else vr(CQ + 4 * t, 4))
    A.I("s_mul_i32", "s68", "s53", 86)
    A.I("s_mul_i32", "s63", "s50", 6)
    A.I("s_add_u32", "s68", "s68", "s63")
    A.I("s_lshl_b32", "s68", "s68", 10)
    A.I("s_add_u32", "s68", "s68", hex(HF))
    A.I("s_add_u32", "s66", "s68", 4096)
    A.I("s_cmp_eq_u32", "s50", 14)
    A.I("s_cselect_b32", "s66", "0x7f000000", "s66")
    A.I("s_cselect_b32", "s73", "0x7f000000", "s68")
    A.I("s_lshl_b32", "s74", "s53", 9)
    A.I("s_add_u32", "s74", "s74", hex(STAT))
    AX = 64
    for r in (66, 67, 70, 71, 74, 75, 78, 79): A.I("v_mov_b32", vr(r), 0)
    def pollstat():
        A.I("buffer_load_dwordx4", vr(ST_, 4), "v3", "s[24:27]", "s74", mods="offen sc1", tag="st")
    def rdW(s, idx, buf):
        kk, t = idx
        o = (s % 4) * 12288 + t * 64
        r = WB + 4 * buf
        A.I("ds_read_b64_tr_b16", vr(r, 2), vr(WA + kk), mods=f"offset:{o}")
        A.I("ds_read_b64_tr_b16", vr(r + 2, 2), vr(WA + kk), mods=f"offset:{o + 768}", tag=f"W{s}_{kk}_{t}")
    def bar(s):
        A.wait_vm(f"x{s}" if A._after(A.vmq, f"x{s}") < A._after(A.vmq, f"w{s}") else f"w{s}")
        stampn(A, f"m_s{s}a")
        A.I("s_barrier")
        stampn(A, f"m_s{s}b")
    def xread(s, kk):
        A.I("ds_read_b128", vr(XFb(s) + 4 * kk, 4), vr(XA + kk), mods=f"offset:{(s % 2) * 16384}")
    def epi_ops(t, pk=False):
        ops = []
        a = ACC1 + 16 * t
        for k in range(8):
            r = a + 2 * k
            for q in (r, r + 1):
                ops.append(("v_max_f32", [vr(q), 0, vr(q)], ""))
                if not pk:
                    ops.append(("v_mul_f32", [vr(q), vr(q), vr(q)], ""))
            if pk:
                ops.append(("v_pk_mul_f32", [vr(r, 2), vr(r, 2), vr(r, 2)], ""))
            ops.append(("v_cvt_pk_bf16_f32", [vr(a + k), vr(r), vr(r + 1)], ""))
            if k % 4 == 3:
                off = (2 * t + k // 4) * 1024
                ops.append(("buffer_store_dwordx4", [vr(a + k - 3, 4), "v2", "s[24:27]", ("s68", "s73", "s66")[t]], f"offen offset:{off % 4096} sc1"))
        return ops
    pend_e = []
    seq = []
    for s in range(8):
        order = [(kk, t) for kk in range(4) for t in range(3)] if s < 7 else [(kk, t) for t in range(3) for kk in range(4)]
        seq += [(s, o) for o in order]
    bar(0)
    A.I("s_setprio", int(os.environ.get("MP1", 3)))
    for kk in range(4): xread(0, kk)
    A.I("v_lshlrev_b32", "v3", 1, "v5")
    if PRO < 4:
        for t in range(3): A.I("ds_read_u16", vr(B1 + t), "v3", mods=f"offset:{36864 + 64 * t}")
    A.I("v_lshlrev_b32", "v3", 4, "v5")
    for m in range(NW - 1): rdW(seq[m][0], seq[m][1], m)
    NEARLY = int(os.environ.get('NEARLY', 16))
    STATAT = tuple(int(x) for x in os.environ.get('STATAT', '5,6').split(','))
    ER = 'noer' not in OPTS
    BN = 7; WPOS = (7, 9, 10); XPOS = (2, 3, 5, 6)
    XP0 = (6, 8, 9, 11)
    early = {(5, 7): 0, (5, 9): 1, (5, 10): 2, (6, 2): 3, (6, 3): 4, (6, 5): 5, (6, 7): 6, (6, 9): 7, (6, 10): 8, (7, 2): 9, (7, 3): 10, (7, 4): 11, (7, 5): 12, (7, 6): 13, (7, 7): 14, (7, 8): 15}
    for m, (s, (kk, t)) in enumerate(seq):
        n = m % 12
        if n == 0: stampn(A, f"m_s{s}")
        if G1 and m == 84: A.I("s_branch", L("M_exit"))
        A.wait_l(f"W{s}_{kk}_{t}")
        acc = vr(ACC1 + 16 * t, 16)
        if "nomfma" not in OPTS: A.I("v_mfma_f32_32x32x16_bf16", acc, vr(WB + 4 * (m % NW), 4), vr(XFb(s) + 4 * kk, 4), acc if (s or kk) else "0")
        stampn(A, f"m_s{s}n{n}")
        docs = kk == 0 and s < 7 and "nocs" not in OPTS
        if docs: small(t, WB + 4 * (m % NW), first=(s == 0))
        if n == BN and s < 7: bar(s + 1)
        if s < 7 and BN <= n < BN + 4: xread(s + 1, n - BN)
        if m + NW - 1 < 96: rdW(seq[m + NW - 1][0], seq[m + NW - 1][1], (m + NW - 1) % NW)
        if docs: small(t, WB + 4 * (m % NW) + 2)
        if "nodma" in OPTS:
            A.vmq += [f"w{s + 3}", f"x{s + 2}"] + [None] * 70
        else:
            if s == 0:
                pend = ([("x", b) for b in range(4)] if PRO < 1 else []) + ([("w1", i) for i in range(3)] if PRO < 2 else []) + ([("w2", i) for i in range(3)] if PRO < 3 else [])
                per = (len(pend) + 5) // 6
                for typ, i in pend[n * per:(n + 1) * per] if n < 6 else []:
                    if typ == "x": xdma1(1, i)
                    else: wdma1(int(typ[1]), i)
            if n in WPOS and s + 3 < 8 and not (PRO == 4 and s == 0) and "now" not in OPTS: wdma1(s + 3, WPOS.index(n))
            xp = XP0 if (s == 0 and PRO < 3) else XPOS
            if n in xp and s + 2 < 8 and "nox" not in OPTS: xdma1(s + 2, xp.index(n))
            if "now" in OPTS: A.vmq.insert(0, f"w{s + 3}")
            if "nox" in OPTS: A.vmq.insert(0, f"x{s + 2}")
        if (s, n) == STATAT:
            A.I("global_load_dword", TAG, "v10", "s[18:19]", mods="sc1")
            pollstat()
        if (s, n) in early and early[(s, n)] < NEARLY:
            b = early[(s, n)]
            w2dma(b // 2, b % 2)
        if s == 6 and n == BN:
            for t2 in range(3):
                o = 3 * 12288 + t2 * 64
                A.I("ds_read_b64_tr_b16", vr(112 + 4 * t2, 2), vr(WA), mods=f"offset:{o}")
                A.I("ds_read_b64_tr_b16", vr(114 + 4 * t2, 2), vr(WA), mods=f"offset:{o + 768}", tag=f"c7_{t2}")
        if s == 6 and n == 10:
            A.wait_l("c7_2")
            for hf in range(2):
                for t2 in range(3): small(t2, 112 + 4 * t2 + 2 * hf)
        if s == 6 and n == 11:
            A.I("v_lshl_add_u32", "v240", "v1", 2, "s61")
            A.I("v_lshlrev_b32", "v241", 2, "v1")
            for t2 in range(3): A.I("ds_write_b32", "v240", vr(CQ + 4 * t2), mods=f"offset:{256 * t2}", tag="cw")
        if s == 7 and n == 0:
            A.wait_l("cw")
            A.I("s_barrier")
            for t2 in range(3):
                for ww in range(4):
                    A.I("ds_read_b32", vr(112 + 4 * t2 + ww), "v241", mods=f"offset:{XB + 4096 * ww + 256 * t2}", tag="cr")
        if s == 7 and n == 1:
            A.wait_vm("st")
            get_tag(A, L, "M_tag", TAG, "v10", "s[18:19]")
            spin_check(A, L, "M_st", vr(ST_ + 3), TAG, pollstat, wait_tag="st")
            A.I("v_cmp_gt_u32", "vcc", 32, "v1")
            A.I("v_cndmask_b32", vr(ST_ + 2), 0, vr(ST_ + 2), "vcc")
            A.I("v_cvt_pk_bf16_f32", "v76", f"-{vr(ST_)}", f"-{vr(ST_)}")
            A.I("v_cvt_pk_bf16_f32", "v77", f"-{vr(ST_)}", vr(ST_ + 2))
        if s == 7 and n in (2, 3, 4):
            t2 = n - 2
            if n == 2: A.wait_l("cr")
            c = 112 + 4 * t2; a = AX + 4 * t2
            A.I("v_add_f32", vr(c), vr(c), vr(c + 1))
            A.I("v_add_f32", vr(c + 2), vr(c + 2), vr(c + 3))
            A.I("v_add_f32", vr(c), vr(c), vr(c + 2))
            A.I("v_cvt_pk_bf16_f32", vr(c + 1), 0, vr(c))
            A.I("v_sub_f32", vr(c), vr(c), vr(c + 1))
            A.I("v_cvt_pk_bf16_f32", vr(c + 2), 0, vr(c))
            A.I("v_sub_f32", vr(c), vr(c), vr(c + 2))
            A.I("v_cvt_pk_bf16_f32", vr(a), vr(c + 1), vr(c + 2))
            A.I("v_cvt_pk_bf16_f32", vr(a + 1), vr(c), 0)
            A.I("v_lshl_or_b32", vr(a + 1), vr(B1 + t2), 16, vr(a + 1))
        if s == 7 and n in (3, 7, 11):
            t2 = n // 4
            acc2 = vr(ACC1 + 16 * t2, 16)
            A.I("v_mfma_f32_32x32x16_bf16", acc2, vr(AX + 4 * t2, 4), "v[76:79]", acc2)
        if ER:
            if (s, n) == (6, 11):
                A.wait_vm("d0"); w2read(0)
            if (s, n) == (7, 2):
                A.wait_vm("d2"); w2read(1); w2read(2)
            if (s, n) == (7, 9):
                A.wait_l("S2"); w2dma(8, 0); w2dma(8, 1)
            if (s, n) == (7, 10): w2dma(9, 0); w2dma(9, 1)
            if (s, n) == (7, 11): w2dma(10, 0); w2dma(10, 1)
        if s == 7 and n >= 5:
            if n == 5: pend_e = epi_ops(0)
            if n == 9: pend_e = pend_e + epi_ops(1)
            for _ in range(11):
                if pend_e:
                    mn, ops, mods = pend_e.pop(0); A.I(mn, *ops, mods=mods, tag="hf")
    stampn(A, "m_g1")
    if ER:
        A.wait_vm("d4")
        w2read(3); w2read(4)
    elif NEARLY >= 6:
        A.wait_vm("d2")
        for k in (0, 1, 2): w2read(k)
    for mn, ops, mods in pend_e + epi_ops(2, pk='noepk' not in OPTS): A.I(mn, *ops, mods=mods, tag="hf")
    A.unpk = "mnp2" in OPTS
    stampn(A, "m_epi")
    for b in range(NEARLY, 16): w2dma(b // 2, b % 2)
    if ER:
        A.wait(lgkm=0)
        for k in (13, 14):
            w2dma(k, 0); w2dma(k, 1)
    elif NEARLY == 16:
        A.wait(lgkm=0)
        for k in (8, 9, 10):
            w2dma(k, 0); w2dma(k, 1)
    stampn(A, "m_e2")
    A.wait_vm("hf")
    stampn(A, "m_e3")
    A.I("s_barrier")
    A.I("s_cmp_lg_u32", "s22", 0)
    A.I("s_cbranch_scc1", L("M_nf2"))
    A.I("s_lshl_b32", "s71", "s49", F2SH + 4)
    A.I("s_lshl_b32", "s72", "s50", F2SH)
    A.I("s_add_u32", "s71", "s71", "s72")
    A.I("s_add_u32", "s71", "s71", hex(F2))
    A.I("s_mov_b64", "exec", 1)
    A.I("buffer_store_dword", TAG, "v10", "s[24:27]", "s71", mods="offen sc1")
    A.vmq.pop()
    A.I("s_mov_b64", "exec", -1)
    A.label(L("M_nf2"))
    if "touch" in OPTS:
        A.I("v_min_u32", "v240", 47, "v1")
        A.I("v_lshlrev_b32", "v240", 7, "v240")
        A.I("buffer_load_dword", "v241", "v240", "s[24:27]", "s68", mods="offen sc1")
    if ER:
        for k in (5, 6, 7, 8, 9, 10): w2read(k)
    elif NEARLY == 16:
        for k in (3, 4, 5, 6, 7): w2read(k)
    if NEARLY < 16:
        if NEARLY < 6:
            A.wait_vm("d2")
            for k in (0, 1, 2): w2read(k)
        A.wait_vm("d7", lgkm=0)
        for k in (3, 4, 5, 6, 7): w2read(k)
        for k in (8, 9, 10):
            w2dma(k, 0); w2dma(k, 1)
    A.I("s_branch", L("M_join"))
    A.label(L("M_g15"))
    lastk[0] = None
    if G1: A.I("s_branch", L("M_exit"))
    for b in range(16): w2dma(b // 2, b % 2)
    A.I("global_load_dword", TAG, "v10", "s[18:19]", mods="sc1")
    A.wait(vm=0)
    get_tag(A, L, "M_tag15", TAG, "v10", "s[18:19]")
    if "agg" in OPTS:
        A.I("v_lshlrev_b32", "v13", F1SH, "v1")
        A.I("s_lshl_b32", "s65", "s22", F1SH + 6)
        A.I("s_add_u32", "s65", "s65", hex(F1))
        spin_check(A, L, "M_agg", PF, TAG, pollw, first=True, sleep=1)
        A.I("s_barrier")
        A.I("s_cmp_lg_u32", "s22", 0)
        A.I("s_cbranch_scc1", L("M_agg2"))
        A.I("s_lshl_b32", "s65", "s49", 7)
        A.I("s_add_u32", "s65", "s65", hex(FA))
        A.I("s_mov_b64", "exec", 1)
        A.I("buffer_store_dword", TAG, "v10", "s[24:27]", "s65", mods="offen sc1")
        A.I("s_mov_b64", "exec", -1)
        A.label(L("M_agg2"))
        stampn(A, "m_agg")
    for k in range(8): w2read(k)
    A.wait(lgkm=0)
    for k in (8, 9, 10):
        w2dma(k, 0); w2dma(k, 1)
    if ER:
        for k in (13, 14):
            w2dma(k, 0); w2dma(k, 1)
        A.wait(vm=4)
        for k in (8, 9, 10): w2read(k)
    A.label(L("M_join"))
    lastk[0] = None
    stampn(A, "m_f2pub")
    for k in (11, 12):
        w2dma(k, 0); w2dma(k, 1)
    A.wait(lgkm=0)
    for k in ((15, 16, 17, 18, 19, 20) if ER else (13, 14, 15, 16, 17)):
        w2dma(k, 0); w2dma(k, 1)
    if not ER:
        A.wait(vm=14)
        for k in (8, 9, 10): w2read(k)
    A.I("v_min_u32", "v13", 14, "v1")
    A.I("v_lshlrev_b32", "v13", F2SH, "v13")
    A.I("s_lshr_b32", "s65", "s51", 1)
    A.I("s_lshl_b32", "s65", "s65", F2SH + 4)
    A.I("s_add_u32", "s65", "s65", hex(F2))
    A.I("s_lshl_b32", "s54", "s51", 16)
    A.I("s_lshl_b32", "s55", "s22", 14)
    A.I("s_add_u32", "s54", "s54", "s55")
    A.I("s_add_u32", "s54", "s54", "s60")
    A.I("s_add_u32", "s55", "s54", 8192)
    A.I("s_mul_i32", "s56", "s51", 172)
    A.I("s_add_u32", "s56", "s56", "s58")
    A.I("s_lshl_b32", "s56", "s56", 10)
    A.I("s_add_u32", "s56", "s56", hex(HF))
    A.I("s_add_u32", "s62", "s56", 86 * 1024)
    XR = 240
    def xo(e, gp, ip): return ("s54" if gp == 0 else "s55", ip * 2048 + e * 64)
    A.I("v_lshl_add_u32", "v6", "v5", 1, "s60")
    if not ER:
        A.wait(lgkm=0)
        for k in (18, 19, 20):
            w2dma(k, 0); w2dma(k, 1)
    stampn(A, "m_w3")
    A.wait_vm("d11")
    w2read(11)
    A.wait(lgkm=0)
    w2dma(21, 0); w2dma(21, 1)
    stampn(A, "m_w4")
    if "wpoll" in OPTS:
        A.I("s_mul_i32", "s71", "s58", 43691)
        A.I("s_lshr_b32", "s71", "s71", 18)
        A.I("s_and_b32", "s72", "s22", 1)
        A.I("s_add_u32", "s72", "s72", 3)
        A.I("v_min_u32", "v13", "s72", "v1")
        A.I("v_add_u32", "v13", "s71", "v13")
        A.I("v_lshlrev_b32", "v13", F2SH, "v13")
        A.I("s_mov_b64", "exec", "0x1f")
        spin_check(A, L, "M_p2", PF, TAG, pollw, first=True, sleep=int(os.environ.get("F2SLEEP", 2)))
        A.I("s_mov_b64", "exec", -1)
    else:
        A.I("s_cmp_lg_u32", "s22", 0)
        A.I("s_cbranch_scc1", L("M_p2w"))
        A.I("s_mov_b64", "exec", "0x7fff")
        if "nof2" not in OPTS: spin_check(A, L, "M_p2", PF, TAG, pollw, first=True)
        A.I("s_mov_b64", "exec", -1)
        A.label(L("M_p2w"))
        A.I("s_barrier")
    stampn(A, "m_f2")
    A.I("s_setprio", int(os.environ.get("MP2", 1)))
    ACC = 128; NH = 8
    HR = lambda k: (192 + 8 * (k % NH)) if (k % NH) < 6 else (112 + 8 * (k % NH - 6))
    def issueH(k):
        A.I("s_add_u32", "s23", "s79", k)
        A.I("s_cmp_ge_u32", "s23", "s48")
        A.I("s_cselect_b32", "s63", "s48", 0)
        A.I("s_sub_u32", "s23", "s23", "s63")
        A.I("s_lshl_b32", "s23", "s23", 10)
        A.I("s_add_u32", "s63", "s23", "s56")
        A.I("s_add_u32", "s23", "s23", "s62")
        A.I("buffer_load_dwordx4", vr(HR(k), 4), "v2", "s[24:27]", "s63", mods="offen sc1")
        A.I("buffer_load_dwordx4", vr(HR(k) + 4, 4), "v2", "s[24:27]", "s23", mods="offen sc1", tag=f"h{k}")
    for k in range(NH): issueH(k)
    A.I("v_and_b32", "v13", 7, "v1")
    A.I("v_lshlrev_b32", "v8", 4, "v13")
    A.I("v_lshlrev_b32", "v13", F3SH, "v13")
    A.I("s_lshl_b32", "s65", "s52", F3SH + 5)
    A.I("s_lshl_b32", "s71", "s22", F3SH + 3)
    A.I("s_add_u32", "s65", "s65", "s71")
    A.I("s_add_u32", "s65", "s65", hex(F3))
    A.I("v_lshrrev_b32", "v7", 3, "v1")
    A.I("v_lshl_add_u32", "v7", "v7", 12, "v8")
    A.I("s_lshl_b32", "s67", "s52", 18)
    A.I("s_lshl_b32", "s68", "s22", 16)
    A.I("s_add_u32", "s67", "s67", "s68")
    A.I("s_lshl_b32", "s68", "s51", 7)
    A.I("s_add_u32", "s67", "s67", "s68")
    A.I("s_add_u32", "s67", "s67", hex(ST))
    A.I("s_add_u32", "s68", "s67", 8 * 4096)
    A.I("s_mov_b32", "s75", 0)
    def sload():
        A.I("buffer_load_dwordx4", "v[248:251]", "v7", "s[24:27]", "s67", mods="offen sc1")
        A.I("buffer_load_dwordx4", "v[104:107]", "v7", "s[24:27]", "s68", mods="offen sc1")
    for k in range(22):
        if k == 21:
            A.I("s_cmp_ge_u32", "s22", 2)
            A.I("s_cbranch_scc1", L("M_skip21"))
        A.wait_vm(f"h{k}")
        stampn(A, f"m_k{k}")
        if k >= 12: A.wait_l(f"S{k}")
        for tj in range(2):
            for e in range(2):
                acc = vr(ACC + 32 * tj + 16 * e, 16)
                if "nomfma2" not in OPTS: A.I("v_mfma_f32_32x32x16_bf16", acc, vr(HR(k) + 4 * tj, 4), vr(wreg(k, e), 4), acc if k else "0")
        if k + NH < 22: issueH(k + NH)
        if k < 10: w2read(k + 12)
        if k == 13: pollw()
        if k in (14, 15, 16, 17):
            for qq in (2 * (k - 14), 2 * (k - 14) + 1):
                so, im = xo(qq >> 2, (qq >> 1) & 1, qq & 1)
                A.I("buffer_load_dword", vr(XR + qq), "v9", "s[40:43]", so, mods=f"offen offset:{im}")
        if k == 14:
            A.I("s_lshl_b32", "s74", "s51", 10)
            A.I("s_lshl_b32", "s71", "s22", 8)
            A.I("s_add_u32", "s74", "s74", "s71")
            A.I("s_add_u32", "s74", "s74", hex(STAT + 4))
            A.I("v_lshlrev_b32", "v8", 6, "v4")
        if k in (14, 15, 16, 17):
            for qq in (2 * (k - 14), 2 * (k - 14) + 1):
                A.I("buffer_load_dword", vr(96 + qq), "v8", "s[24:27]", "s74", mods=f"offen offset:{(qq >> 2) * 128 + (qq & 3) * 16} sc1")
        if k == 17:
            A.I("global_load_ushort", "v12", "v6", "s[14:15]")
            A.I("global_load_ushort", "v3", "v6", "s[14:15]", mods="offset:64", tag="xb")
        if k == 18 and "kx3" not in OPTS:
            A.wait_vm("pw")
            A.I("v_cmp_ne_u32", "vcc", PF, TAG)
            A.I("s_cbranch_vccnz", L("M_s_no"))
            sload(); A.vmq.pop(); A.vmq.pop()
            A.I("s_mov_b32", "s75", 1)
            A.label(L("M_s_no"))
    A.label(L("M_skip21"))
    stampn(A, "m_g2")
    A.I("s_setprio", 3)
    if "kx3" not in OPTS:
        A.I("s_cmp_eq_u32", "s75", 1)
        A.I("s_cbranch_scc1", L("M_s_np"))
        pollw(); A.vmq.pop()
        A.label(L("M_s_np"))
    A.I("v_add_u32", "v252", "s57", "v2")
    A.I("v_add_u32", "v253", "s61", "v2")
    OWN = 16
    A.I("s_nop", 7)
    for wd in range(4):
        src = [ACC + 32 * (wd >> 1) + 16 * e + 8 * (wd & 1) + 4 * q for e in range(2) for q in range(2)]
        A.I("s_cmp_eq_u32", "s22", wd)
        A.I("s_cbranch_scc1", L(f"own{wd}"))
        for q, r in enumerate(src):
            if q < 3: A.I("ds_write_b128", "v252", vr(r, 4), mods=f"offset:{wd * 12288 + q * 1024}")
            else: A.I("ds_write_b128", "v253", vr(r, 4), mods=f"offset:{16384 + wd * 1024}")
        A.I("s_branch", L(f"nxt{wd}"))
        A.label(L(f"own{wd}"))
        if wd == 0: A.I("s_nop", 3)
        for q, r in enumerate(src):
            for i in range(0, 4, 2):
                A.I("v_pk_mov_b32", vr(OWN + 4 * q + i, 2), vr(r + i, 2), vr(r + i, 2), mods="op_sel:[0,1]")
        A.label(L(f"nxt{wd}"))
    A.I("s_lshl_b32", "s71", "s22", 5)
    A.I("v_add_u32", "v63", "s71", "v253")
    stampn(A, "m_t1")
    XU = 32
    A.wait(vm=0 if "kx3" in OPTS else 1)
    for q in range(8):
        A.I("v_lshlrev_b32", vr(XU + 2 * q), 16, vr(XR + q))
        A.I("v_and_b32", vr(XU + 2 * q + 1), "s64", vr(XR + q))
    A.I("v_lshlrev_b32", "v124", 16, "v12")
    A.I("v_lshlrev_b32", "v126", 16, "v3")
    A.I("v_lshrrev_b32", "v56", 4, "v5")
    A.I("v_mul_u32_u24", "v56", 4128, "v56")
    A.I("v_bfe_u32", "v57", "v5", 3, 1)
    A.I("v_mul_u32_u24", "v57", 1040, "v57")
    A.I("v_add_u32", "v56", "v56", "v57")
    A.I("v_and_b32", "v57", 7, "v5")
    A.I("v_lshl_add_u32", "v56", "v57", 7, "v56")
    A.I("v_lshl_add_u32", "v56", "v4", 3, "v56")
    A.I("v_add_u32", "v56", "s71", "v56")
    for sl in range(3):
        A.I("s_add_u32", "s71", "s22", 1 + sl)
        A.I("s_and_b32", "s71", "s71", 3)
        A.I("s_mul_i32", "s72", "s71", 3072)
        A.I("s_mul_i32", "s73", "s22", 12288)
        A.I("s_add_u32", "s72", "s72", "s73")
        A.I("v_add_u32", vr(120 + sl), "s72", "v2")
        A.I("s_lshl_b32", "s71", "s71", 12)
        A.I("s_lshl_b32", "s72", "s22", 10)
        A.I("s_add_u32", "s71", "s71", "s72")
        A.I("s_add_u32", "s71", "s71", XB + 16384)
        A.I("v_add_u32", vr(58 + sl), "s71", "v2")
    for p in range(4): A.I("v_pk_mul_f32", vr(96 + 2 * p, 2), vr(96 + 2 * p, 2), vr(96 + 2 * p, 2))
    A.I("s_mov_b32", "s72", "0xbfb8aa3b")
    A.I("s_mov_b32", "s73", "0xbfb8aa3b")
    if "narrow" not in OPTS:
        A.I("v_and_b32", "v72", 1, "v1")
        A.I("v_lshl_add_u32", "v72", "v4", 2, "v72")
        A.I("v_mul_u32_u24", "v72", 144, "v72")
        A.I("v_lshrrev_b32", "v73", 1, "v5")
        A.I("v_lshl_add_u32", "v72", "v73", 2, "v72")
        A.I("v_add_u32", "v72", "s57", "v72")
        A.I("v_lshrrev_b32", "v75", 3, "v1")
        A.I("v_and_b32", "v74", 7, "v1")
        A.I("v_lshlrev_b32", "v74", 4, "v74")
        A.I("v_mul_u32_u24", "v73", 144, "v75")
        A.I("v_add_u32", "v73", "v73", "v74")
        A.I("v_add_u32", "v73", "s57", "v73")
        A.I("v_lshl_add_u32", "v74", "v75", 10, "v74")
    stampn(A, "m_t2")
    A.wait(lgkm=0)
    stampn(A, "m_t3")
    A.I("s_barrier")
    stampn(A, "m_red")
    RD = 160
    for sl in range(3):
        for q in range(4):
            if q < 3: A.I("ds_read_b128", vr(RD + 16 * sl + 4 * q, 4), vr(120 + sl), mods=f"offset:{q * 1024}")
            else: A.I("ds_read_b128", vr(RD + 16 * sl + 4 * q, 4), vr(58 + sl), tag=f"R{sl}")
    SV = 112
    def s_stage():
        A.I("s_cmp_eq_u32", "s75", 1)
        A.I("s_cbranch_scc1", L("M_s_have"))
        if "kx3" not in OPTS and "nof3" not in OPTS: spin_check(A, L, "M_p3", PF, TAG, pollw)
        sload()
        A.label(L("M_s_have"))
        stampn(A, "m_f3")
    for sl in range(3):
        A.wait_l(f"R{sl}")
        for p in range(8):
            A.I("v_pk_add_f32", vr(OWN + 2 * p, 2), vr(OWN + 2 * p, 2), vr(RD + 16 * sl + 2 * p, 2))
    T_ = 128; SU = 144
    stampn(A, "m_t4")
    s_stage()
    for p in range(8):
        A.I("v_pk_fma_f32", vr(OWN + 2 * p, 2), vr(OWN + 2 * p, 2), vr(96 + 2 * (p & 3), 2), "v[124:125]" if p < 4 else "v[126:127]", mods="op_sel_hi:[1,1,0]")
    for p in range(8): A.I("v_pk_mul_f32", vr(T_ + 2 * p, 2), vr(OWN + 2 * p, 2), "s[72:73]")
    for r in range(16): A.I("v_exp_f32", vr(T_ + r), vr(T_ + r))
    for p in range(8): A.I("v_pk_add_f32", vr(T_ + 2 * p, 2), vr(T_ + 2 * p, 2), "1.0", mods="op_sel_hi:[1,0]")
    stampn(A, "m_t5")
    A.wait(vm=0)
    stampn(A, "m_t6")
    A.I("ds_write_b128", "v63", "v[248:251]")
    A.I("ds_write_b128", "v63", "v[104:107]", mods="offset:1040")
    for r in range(8): A.I("v_rcp_f32", vr(T_ + r), vr(T_ + r))
    A.wait(lgkm=0)
    A.I("s_barrier")
    stampn(A, "m_t7")
    for e in range(2):
        for gp in range(2):
            A.I("ds_read_b64", vr(SV + 4 * e + 2 * gp, 2), "v56", mods=f"offset:{XB + 2 * 4128 * e + 16 * gp}")
    for r in range(8, 16): A.I("v_rcp_f32", vr(T_ + r), vr(T_ + r))
    for p in range(8): A.I("v_pk_mul_f32", vr(T_ + 2 * p, 2), vr(T_ + 2 * p, 2), vr(OWN + 2 * p, 2))
    A.wait(lgkm=0)
    for k in range(8):
        A.I("v_lshlrev_b32", vr(SU + 2 * k), 16, vr(SV + k))
        A.I("v_and_b32", vr(SU + 2 * k + 1), "s64", vr(SV + k))
    for p in range(8): A.I("v_pk_mul_f32", vr(T_ + 2 * p, 2), vr(T_ + 2 * p, 2), vr(SU + 2 * p, 2))
    stampn(A, "m_t8")
    A.I("s_mov_b32", "vcc_lo", "0x55555555")
    A.I("s_mov_b32", "vcc_hi", "0x55555555")
    QP = "quad_perm:[1,0,3,2] row_mask:0xf bank_mask:0xf"
    for p in range(8): A.I("v_cndmask_b32_dpp", vr(SU + 2 * p), vr(T_ + 2 * p + 1), vr(T_ + 2 * p), "vcc", mods=QP)
    A.I("s_not_b64", "vcc", "vcc")
    for p in range(8): A.I("v_cndmask_b32_dpp", vr(SU + 2 * p + 1), vr(T_ + 2 * p), vr(T_ + 2 * p + 1), "vcc", mods=QP)
    OM = os.environ.get("OUTMOD", " sc1")
    if "narrow" not in OPTS:
        for p in range(8):
            A.I("v_pk_add_f32", vr(SU + 2 * p, 2), vr(SU + 2 * p, 2), vr(XU + 2 * p, 2))
            A.I("v_cvt_pk_bf16_f32", vr(64 + p), vr(SU + 2 * p), vr(SU + 2 * p + 1))
            A.I("ds_write_b32", "v72", vr(64 + p), mods=f"offset:{((p >> 1) & 1) * 8 * 144 + (p & 1) * 2 * 144 + (p >> 2) * 64}")
        A.wait(lgkm=0)
        A.I("ds_read_b128", "v[76:79]", "v73")
        A.I("ds_read_b128", "v[80:83]", "v73", mods=f"offset:{8 * 144}")
        A.wait(lgkm=1)
        A.I("buffer_store_dwordx4", "v[76:79]", "v74", "s[44:47]", "s54", mods="offen" + OM)
        A.wait(lgkm=0)
        A.I("buffer_store_dwordx4", "v[80:83]", "v74", "s[44:47]", "s55", mods="offen" + OM)
    else:
        for p in range(8):
            A.I("v_pk_add_f32", vr(SU + 2 * p, 2), vr(SU + 2 * p, 2), vr(XU + 2 * p, 2))
            A.I("v_cvt_pk_bf16_f32", vr(64 + p), vr(SU + 2 * p), vr(SU + 2 * p + 1))
            so, im = xo(p >> 2, (p >> 1) & 1, p & 1)
            A.I("buffer_store_dword", vr(64 + p), "v9", "s[44:47]", so, mods=f"offen offset:{im}" + OM)
    stampn(A, "m_t9")
    A.unpk = False
    A.label(L("M_exit"))
    stamp_flush(A, 0, "s[20:21]", 7)
    A.I("s_endpgm")
```

```python
import os
from asmlib import *
from layout1 import *
from k_prep import srd
from t12_k import spin_check, code_prefetch2, get_tag

XB = 0
WB0 = 32768

def gen_M(A, L, msize):
    A.label(L("M"))
    if "nom" in OPTS: A.I("s_endpgm")
    A.I("s_setprio", int(os.environ.get("MP0", 1)))
    A.I("s_load_dwordx2", "s[4:5]", "s[0:1]", 0)
    A.I("s_load_dwordx8", "s[8:15]", "s[0:1]", 80)
    A.I("s_load_dwordx4", "s[16:19]", "s[0:1]", 112)
    A.I("s_load_dwordx2", "s[20:21]", "s[0:1]", 128)
    code_prefetch2(A, msize)
    A.I("v_and_b32", "v1", 63, "v0")
    A.I("v_lshrrev_b32", "v2", 6, "v0")
    A.I("v_readfirstlane_b32", "s22", "v2")
    A.I("s_and_b32", "s3", "s2", 255)
    A.I("s_and_b32", "s23", "s3", 7)
    A.I("s_lshr_b32", "s48", "s3", 3)
    A.I("s_lshl_b32", "s50", "s23", 5)
    A.I("s_add_u32", "s50", "s50", "s48")
    A.I("s_mul_i32", "s49", "s50", 5958)
    A.I("s_lshr_b32", "s49", "s49", 16)
    A.I("s_mul_i32", "s53", "s49", 11)
    A.I("s_sub_u32", "s50", "s50", "s53")
    A.I("s_lshl_b32", "s51", "s23", 2)
    A.I("s_lshr_b32", "s52", "s48", 3)
    A.I("s_add_u32", "s51", "s51", "s52")
    A.I("s_and_b32", "s52", "s48", 7)
    A.I("s_mul_i32", "s53", "s49", 3)
    A.I("v_lshlrev_b32", "v2", 4, "v1")
    A.I("v_lshrrev_b32", "v4", 5, "v1")
    A.I("v_and_b32", "v5", 31, "v1")
    A.I("v_lshrrev_b32", "v9", 3, "v1")
    A.I("v_lshrrev_b32", "v10", 4, "v1")
    A.I("v_and_b32", "v11", 7, "v1")
    A.I("v_xor_b32", "v12", "v10", "v11")
    A.I("s_and_b32", "s63", "s22", 1)
    A.I("s_lshl_b32", "s63", "s63", 2)
    A.I("v_xor_b32", "v12", "s63", "v12")
    A.I("v_lshlrev_b32", "v9", 10, "v9")
    A.I("v_lshl_add_u32", "v12", "v12", 4, "v9")
    A.I("v_bfe_u32", "v13", "v1", 4, 1)
    A.I("v_lshlrev_b32", "v13", 2, "v13")
    A.I("v_xor_b32", "v13", "v13", "v11")
    A.I("v_lshl_add_u32", "v15", "v13", 4, "v9")
    A.I("v_bfe_u32", "v6", "v1", 2, 2)
    A.I("v_xor_b32", "v6", "v6", "v10")
    A.I("v_lshlrev_b32", "v6", 6, "v6")
    A.I("v_and_b32", "v7", 3, "v1")
    A.I("v_lshl_add_u32", "v6", "v7", 4, "v6")
    A.I("v_mul_u32_u24", "v8", 2752, "v10")
    A.I("v_add_u32", "v6", "v6", "v8")
    A.I("s_lshl_b32", "s55", "s50", 8)
    A.I("s_mul_i32", "s56", "s22", 16 * 2752)
    A.I("s_add_u32", "s56", "s56", "s55")
    A.I("s_lshl_b32", "s57", "s22", 12)
    A.I("s_lshl_b32", "s61", "s22", 10)
    A.I("s_lshl_b32", "s62", "s22", 13)
    for p in range(3):
        A.I("s_add_u32", "s63", "s53", p)
        A.I("s_min_u32", "s63", "s63", 63)
        A.I("s_lshl_b32", "s63", "s63", 15)
        A.I("s_add_u32", sr(36 + p), "s63", "s62")
    A.wait(lgkm=0)
    stampn(A, "m_arg")
    srd(A, 40, 4, 2048 * 1024)
    srd(A, 28, 8, 512 * 2752)
    XBASE = [XB, XB, WB0]
    def xdma(p, s):
        A.I("s_add_u32", "m0", "s61", XBASE[p] + s * 4096)
        A.I("buffer_load_dwordx4", "v12", "s[40:43]", sr(36 + p), mods="offen lds", tag=f"x{p}_{s}")
        A.I("s_add_u32", sr(36 + p), sr(36 + p), 128)
    def wdma(s, n):
        A.I("s_add_u32", "m0", "s57", WB0 + (s % 3) * 16384 + n * 1024)
        A.I("buffer_load_dwordx4", "v6", "s[28:31]", "s56", mods="offen lds", tag=f"w{s}")
        A.I("s_add_u32", "s56", "s56", 4 * 2752 if n < 3 else 52 * 2752)
    A.I("s_cmp_ge_u32", "s49", 22)
    A.I("s_cbranch_scc1", L("M_now1"))
    for s in range(3):
        xdma(0, s)
        for n in range(4): wdma(s, n)
    for s in range(3, 8): xdma(0, s)
    A.label(L("M_now1"))
    srd(A, 24, 20, WS_SIZE)
    srd(A, 44, 16, 2048 * 1024)
    srd(A, 32, 12, 1376 * 1024)
    A.I("s_mov_b32", "s64", "0xffff0000")
    A.I("s_mov_b32", "s69", "0x3f803f80")
    A.I("v_mov_b32", "v10", 0)
    A.I("s_mul_i32", "s58", "s22", 22)
    A.I("s_cmp_eq_u32", "s22", 3)
    A.I("s_cselect_b32", "s59", 1, 0)
    A.I("s_sub_u32", "s58", "s58", "s59")
    A.I("s_lshl_b32", "s59", "s58", 14)
    A.I("s_lshl_b32", "s60", "s52", 7)
    A.I("s_add_u32", "s59", "s59", "s60")
    A.I("s_cmp_lt_u32", "s22", 2)
    A.I("s_cselect_b32", "s48", 22, 21)
    A.I("s_mul_i32", "s79", "s52", 2)
    A.I("s_and_b32", "s63", "s51", 3)
    A.I("s_mul_i32", "s63", "s63", 5)
    A.I("s_add_u32", "s79", "s79", "s63")
    A.I("s_cmp_ge_u32", "s79", 21)
    A.I("s_cselect_b32", "s63", 21, 0)
    A.I("s_sub_u32", "s79", "s79", "s63")
    A.I("v_and_b32", "v9", 1, "v1")
    A.I("v_lshl_add_u32", "v9", "v4", 2, "v9")
    A.I("v_lshlrev_b32", "v9", 10, "v9")
    A.I("v_lshrrev_b32", "v11", 1, "v5")
    A.I("v_lshl_add_u32", "v9", "v11", 2, "v9")
    XA = 244; WA = 248; TA_ = 252
    A.I("v_bfe_u32", "v14", "v1", 1, 3)
    A.I("v_xor_b32", "v14", "v14", "v4")
    A.I("v_lshlrev_b32", "v16", 7, "v5")
    for k in range(4):
        if k: A.I("v_xor_b32", "v11", 2 * k, "v14")
        A.I("v_lshl_add_u32", vr(XA + k), "v14" if k == 0 else "v11", 4, "v16")
    A.I("v_bfe_u32", "v16", "v1", 2, 2)
    A.I("v_bfe_u32", "v17", "v1", 4, 1)
    A.I("v_lshlrev_b32", "v18", 3, "v7")
    A.I("v_lshl_add_u32", "v17", "v17", 5, "v18")
    A.I("v_lshl_add_u32", "v14", "v4", 3, "v16")
    A.I("v_lshl_add_u32", "v14", "v14", 8, "v17")
    A.I("v_xor_b32", "v18", "s22", "v16")
    A.I("v_lshl_add_u32", vr(WA), "v18", 6, "v14")
    A.I("v_add_u32", vr(WA), WB0, vr(WA))
    A.I("s_add_u32", "s39", "s57", 65536)
    A.I("v_lshl_add_u32", "v14", "v4", 2, "v16")
    A.I("v_lshl_add_u32", "v14", "v14", 7, "v17")
    A.I("v_bfe_u32", "v16", "v1", 3, 1)
    A.I("v_lshl_add_u32", "v14", "v16", 6, "v14")
    A.I("v_xor_b32", "v16", 64, "v14")
    A.I("v_add_u32", vr(TA_), "s39", "v14")
    A.I("v_add_u32", vr(TA_ + 1), "s39", "v16")
    A.I("v_add_u32", vr(TA_ + 2), "s62", "v14")
    A.I("v_add_u32", vr(TA_ + 3), "s62", "v16")
    TAG = "v14"; PF = "v11"
    PO = ["v3"]
    def pollw():
        A.I("buffer_load_dword", PF, PO[0], "s[24:27]", "s65", mods="offen sc1", tag="pw")
    def poll11():
        A.I("s_mov_b64", "exec", "0x7ff"); pollw(); A.I("s_mov_b64", "exec", -1)
    def early_setup():
        A.I("s_lshl_b32", "s65", "s51", 1)
        A.I("s_mul_i32", "s63", "s65", 43691)
        A.I("s_lshr_b32", "s63", "s63", 17)
        A.I("s_mul_i32", "s63", "s63", 3)
        A.I("s_sub_u32", "s63", "s65", "s63")
        A.I("s_cmp_eq_u32", "s63", 2)
        A.I("s_cselect_b32", "s63", 1, 0)
        A.I("s_add_u32", "s75", "s65", "s63")
        A.I("s_lshr_b32", "s63", "s58", 1)
        A.I("s_mul_i32", "s65", "s75", 44)
        A.I("s_add_u32", "s65", "s65", "s63")
        A.I("s_lshl_b32", "s65", "s65", 7)
        A.I("s_add_u32", "s65", "s65", hex(F2W))
        A.I("v_min_u32", "v3", 10, "v1")
        A.I("v_lshlrev_b32", "v3", 7, "v3")

    blocks = [(i * 1024, 0) for i in range(4)] + [(XB + i * 1024, 1) for i in range(8)] + [(WB0 + i * 1024, 1) for i in range(8)]
    KB = {0: 0, 1: 1, 2: 2, 3: 3, 4: 4, 5: 5, 6: 0, 7: 1, 8: 6, 9: 7, 10: 8, 11: 9, 12: 2, 13: 3, 14: 4, 15: 5, 16: 0, 17: 1, 18: 6, 19: 7, 20: 8, 21: 9}
    def kidx(k, sh, dst):
        A.I("s_add_u32", dst, "s79", k)
        A.I("s_cmp_ge_u32", dst, "s48")
        A.I("s_cselect_b32", "s63", "s48", 0)
        A.I("s_sub_u32", dst, dst, "s63")
        A.I("s_lshl_b32", dst, dst, sh)
    A.I("s_lshl_b32", "s55", "s79", 14)
    A.I("s_add_u32", "s55", "s55", "s59")
    A.I("s_lshl_b32", "s54", "s48", 14)
    A.I("s_add_u32", "s54", "s54", "s59")
    nextu = [0]
    def w2half(k, hf):
        assert nextu[0] == 2 * k + hf, (nextu[0], k, hf)
        nextu[0] += 1
        off, b = blocks[2 * KB[k] + hf]
        A.I("s_add_u32", "m0", "s62" if b else "s39", off)
        A.I("buffer_load_dwordx4", "v15", "s[32:35]", W2S[0], mods="offen lds", tag=f"d{k}")
        A.I("s_add_u32", W2S[0], W2S[0], 8192)
        if hf:
            A.I("s_cmp_eq_u32", W2S[0], W2S[1])
            A.I("s_cselect_b32", W2S[0], "s59", W2S[0])
    W2S = ["s55", "s54"]
    def w2dma(k):
        w2half(k, 0); w2half(k, 1)
    WR = 16
    WT = [112, 120, 128]
    def wreg(k, e): return (WR + 8 * k + 4 * e) if k < 12 else (WT[k % 3] + 4 * e)
    def w2read(k, tg=""):
        for e in range(2):
            for hf in range(2):
                off, b = blocks[2 * KB[k] + hf]
                A.I("ds_read_b64_tr_b16", vr(wreg(k, e) + 2 * hf, 2), vr(TA_ + 2 * b + e), mods=f"offset:{off}", tag=f"S{k}{tg}")
    ACC = 144; NH = 10
    HR = lambda j: (136 + 4 * (j % NH)) if (j % NH) < 2 else (208 + 4 * (j % NH - 2))
    def issueH(j):
        if j == 22:
            A.I("s_lshl_b32", "s23", "s79", 10)
            A.I("s_add_u32", "s23", "s23", "s53")
            A.I("s_add_u32", "s77", "s77", "s78")
            A.I("s_mov_b32", "s56", "s53")
        A.I("buffer_load_dwordx4", vr(HR(j), 4), "v2", "s[24:27]", "s23", mods="offen sc1", tag=f"h{j}")
        A.I("s_add_u32", "s23", "s23", 1024)
        A.I("s_cmp_eq_u32", "s23", "s77")
        A.I("s_cselect_b32", "s23", "s56", "s23")
    XR = 240
    def xo(e, gp, ip): return ("s36" if gp == 0 else "s37", ip * 2048 + e * 64)
    def late_setup():
        A.I("s_mov_b32", "s67", "s75")
        A.I("s_xor_b32", "s50", "s67", 1)
        A.I("s_cmp_lt_u32", "s22", 2)
        A.I("s_cselect_b32", "s70", "s67", "s50")
        A.I("s_and_b32", "s63", "s22", 1)
        A.I("s_lshl_b32", "s63", "s63", 4)
        A.I("s_lshl_b32", "s70", "s70", 5)
        A.I("s_add_u32", "s70", "s70", "s63")
        A.I("s_lshl_b32", "s36", "s70", 10)
        A.I("s_add_u32", "s36", "s36", "s60")
        A.I("s_add_u32", "s37", "s36", 8192)
        for so, t in (("s56", "s67"), ("s53", "s50")):
            A.I("s_mul_i32", so, t, 86)
            A.I("s_add_u32", so, so, "s58")
            A.I("s_lshl_b32", so, so, 10)
            A.I("s_add_u32", so, so, hex(HF))
        A.I("s_lshr_b32", "s63", "s58", 1)
        A.I("s_mul_i32", "s66", "s50", 44)
        A.I("s_add_u32", "s66", "s66", "s63")
        A.I("s_lshl_b32", "s66", "s66", 7)
        A.I("s_add_u32", "s66", "s66", hex(F2W))
        A.I("v_lshl_add_u32", "v6", "v5", 1, "s60")
        A.I("s_lshl_b32", "s23", "s79", 10)
        A.I("s_add_u32", "s23", "s23", "s56")
        A.I("s_lshl_b32", "s77", "s48", 10)
        A.I("s_add_u32", "s77", "s77", "s56")
        A.I("s_sub_u32", "s78", "s53", "s56")
    A.I("s_cmp_ge_u32", "s49", 22)
    A.I("s_cbranch_scc1", L("M_idle"))
    W1 = 16; AC = [144, 160, 144]; XF = 176; NXF = 6; CQ = 200; AX = 204; BX = 208; ST_ = 212; ONES = 224; B1 = 226
    A.I("v_mov_b32", vr(ONES), "s69")
    A.I("v_mov_b32", vr(ONES + 1), "s69")
    for r in (AX + 2, AX + 3, BX + 2, BX + 3): A.I("v_mov_b32", vr(r), 0)
    A.I("s_lshl_b32", "s73", "s50", 2)
    A.I("s_add_u32", "s73", "s73", "s22")
    for p in range(3):
        A.I("s_add_u32", "s63", "s53", p)
        A.I("s_mul_i32", sr(66 + p), "s63", 86)
        A.I("s_lshl_b32", "s76", "s73", 1)
        A.I("s_add_u32", sr(66 + p), sr(66 + p), "s76")
        A.I("s_lshl_b32", sr(66 + p), sr(66 + p), 10)
        A.I("s_add_u32", sr(66 + p), sr(66 + p), hex(HF))
        A.I("s_mul_i32", sr(70 + p), "s63", 44)
        A.I("s_add_u32", sr(70 + p), sr(70 + p), "s73")
        A.I("s_lshl_b32", sr(70 + p), sr(70 + p), 7)
        A.I("s_add_u32", sr(70 + p), sr(70 + p), hex(F2W))
        A.I("s_cmp_ge_u32", "s63", 64)
        A.I("s_cselect_b32", "s76", 1, 0)
        A.I("s_cmp_ge_u32", "s73", 43)
        A.I("s_cselect_b32", "s76", 1, "s76")
        A.I("s_cmp_eq_u32", "s76", 1)
        A.I("s_cselect_b32", sr(66 + p), "0x7f000000", sr(66 + p))
        A.I("s_cselect_b32", sr(70 + p), "0x7f000000", sr(70 + p))
        A.I("s_min_u32", "s63", "s63", 63)
        A.I("s_lshl_b32", sr(76 + 1 + p) if p < 2 else "s74", "s63", 9)
    SOFF = ["s77", "s78", "s74"]
    for so in SOFF: A.I("s_add_u32", so, so, hex(STAT))
    A.I("v_lshlrev_b32", "v8", 4, "v5")
    def pollstat():
        for p in range(3):
            A.I("buffer_load_dwordx4", vr(ST_ + 4 * p, 4), "v8", "s[24:27]", SOFF[p], mods="offen sc1", tag="st")
    def small(reg, first=False):
        A.I("v_mfma_f32_4x4x4_16b_bf16", vr(CQ, 4), vr(ONES, 2), vr(reg, 2), "0" if first else vr(CQ, 4))
    def xread(p, ks, tag=True):
        A.I("ds_read_b128", vr(XF + 4 * (ks % NXF), 4), vr(XA + ks % 4), mods=f"offset:{XBASE[p] + (ks // 4) * 4096}", tag=f"X{p}_{ks}")
    def epi_ops(p, pk=False):
        ops = []
        a = AC[p]
        for k in range(8):
            r = a + 2 * k
            for q in (r, r + 1):
                ops.append(("v_max_f32", [vr(q), 0, vr(q)], ""))
                if not pk: ops.append(("v_mul_f32", [vr(q), vr(q), vr(q)], ""))
            if pk: ops.append(("v_pk_mul_f32", [vr(r, 2), vr(r, 2), vr(r, 2)], ""))
            ops.append(("v_cvt_pk_bf16_f32", [vr(a + k), vr(r), vr(r + 1)], ""))
            if k % 4 == 3:
                ops.append(("buffer_store_dwordx4", [vr(a + k - 3, 4), "v2", "s[24:27]", sr(66 + p)], f"offen offset:{(k // 4) * 1024} sc1"))
        return ops
    def bfrag(p):
        A.I("v_cvt_pk_bf16_f32", vr(BX), f"-{vr(ST_ + 4 * p)}", f"-{vr(ST_ + 4 * p)}")
        A.I("v_cvt_pk_bf16_f32", vr(BX + 1), f"-{vr(ST_ + 4 * p)}", vr(ST_ + 4 * p + 2))
    def extra(p):
        A.I("v_mfma_f32_32x32x16_bf16", vr(AC[p], 16), vr(AX, 4), vr(BX, 4), vr(AC[p], 16))
    def flag(p):
        A.wait_vm(f"hf{p}")
        A.I("s_mov_b64", "exec", 1)
        A.I("buffer_store_dword", TAG, "v10", "s[24:27]", sr(70 + p), mods="offen sc1")
        A.I("s_mov_b64", "exec", -1)
        stampn(A, f"m_fl{p}")
    for s in range(8):
        A.wait_vm(min([f"x0_{s}", f"w{s}"], key=lambda t: A._after(A.vmq, t)), lgkm=0)
        stampn(A, f"m_s{s}a")
        A.I("s_barrier")
        if s == 0: A.I("s_setprio", int(os.environ.get("MP1", 3)))
        for kk in range(4):
            ks = 4 * s + kk
            o = (s % 3) * 16384 + kk * 4096
            A.I("ds_read_b64_tr_b16", vr(W1 + 4 * ks, 2), vr(WA), mods=f"offset:{o}")
            A.I("ds_read_b64_tr_b16", vr(W1 + 4 * ks + 2, 2), vr(WA), mods=f"offset:{o + 1024}")
            xread(0, ks)
        for kk in range(4):
            ks = 4 * s + kk
            if s >= 1 and s + 2 < 8: wdma(s + 2, kk)
            if kk == 0 and s >= 1: xdma(1, s - 1)
            if s == 0 and kk == 0:
                A.I("s_lshl_b32", "s63", "s73", 6)
                A.I("s_min_u32", "s63", "s63", 2752 - 64)
                A.I("v_lshl_add_u32", "v13", "v5", 1, "s63")
                A.I("global_load_ushort", vr(B1), "v13", "s[10:11]")
            if s == 4 and kk == 1: A.I("global_load_dword", TAG, "v10", "s[18:19]", mods="sc1")
            if s == 6 and kk == 1: pollstat()
            A.wait_l(f"X0_{ks}")
            A.I("v_mfma_f32_32x32x16_bf16", vr(AC[0], 16), vr(W1 + 4 * ks, 4), vr(XF + 4 * (ks % NXF), 4), vr(AC[0], 16) if ks else "0")
            small(W1 + 4 * ks, first=(ks == 0))
            A.I("s_nop", 0)
            A.I("s_nop", 0)
            small(W1 + 4 * ks + 2)
    stampn(A, "m_pa")
    def stat_block():
        A.wait_vm("st")
        get_tag(A, L, "M_tag", TAG, "v10", "s[18:19]", cnt="s76")
        A.I("s_mov_b32", "s76", SPIN_LIMIT)
        A.label(L("M_st"))
        A.I("v_xor_b32", "v228", vr(ST_ + 3), TAG)
        A.I("v_xor_b32", "v229", vr(ST_ + 7), TAG)
        A.I("v_xor_b32", "v230", vr(ST_ + 11), TAG)
        A.I("v_or3_b32", "v228", "v228", "v229", "v230")
        A.I("v_cmp_ne_u32", "vcc", 0, "v228")
        A.I("s_cbranch_vccz", L("M_st_ok"))
        A.I("s_sub_u32", "s76", "s76", 1)
        A.I("s_cbranch_scc1", L("M_st_ok"))
        A.I("s_sleep", 2)
        pollstat()
        for _ in range(3): A.vmq.pop()
        A.wait(vm=0)
        A.I("s_branch", L("M_st"))
        A.label(L("M_st_ok"))
        A.I("v_cmp_gt_u32", "vcc", 32, "v1")
        for p in range(3): A.I("v_cndmask_b32", vr(ST_ + 4 * p + 2), 0, vr(ST_ + 4 * p + 2), "vcc")
        A.I("v_cvt_pk_bf16_f32", vr(CQ + 1), 0, vr(CQ))
        A.I("v_sub_f32", vr(CQ), vr(CQ), vr(CQ + 1))
        A.I("v_cvt_pk_bf16_f32", vr(CQ + 2), 0, vr(CQ))
        A.I("v_sub_f32", vr(CQ), vr(CQ), vr(CQ + 2))
        A.I("v_cvt_pk_bf16_f32", vr(AX), vr(CQ + 1), vr(CQ + 2))
        A.I("v_cvt_pk_bf16_f32", vr(AX + 1), vr(CQ), 0)
        A.I("v_lshl_or_b32", vr(AX + 1), vr(B1), 16, vr(AX + 1))
        bfrag(0)
        extra(0)
        early_setup()
    EPS = int(os.environ.get('EPS', 4)); FL0 = int(os.environ.get('FL0', 14)); SB = int(os.environ.get('SB', 2))
    for p in (1, 2):
        A.wait_vm("x1_6" if p == 1 else "x2_7", lgkm=0)
        A.I("s_barrier")
        stampn(A, f"m_p{p}")
        for ks in range(NXF - 1): xread(p, ks)
        side = {}
        if p == 1:
            side[0] = [lambda: xdma(1, 7), lambda: xdma(2, 0)]
            for n in range(1, 8): side.setdefault(n, []).append(lambda n=n: xdma(2, n))
            for n in range(4): side.setdefault(8 + n, []).append(lambda n=n: w2half(n // 2, n % 2))
            side.setdefault(SB, []).append(stat_block)
            estart = SB + 3
            if FL0 < 0: side.setdefault(32 + FL0, []).append(lambda: flag(0))
        else:
            for n in range(8): side.setdefault(n, []).append(lambda n=n: w2half(2 + n // 2, n % 2))
            side.setdefault(6, []).append(lambda: (A.wait_vm("d1"), w2read(0), w2read(1)))
            side.setdefault(10, []).append(lambda: A.wait_l("S1"))
            for n in range(4): side.setdefault(10 + n, []).append(lambda n=n: w2half(6 + n // 2, n % 2))
            if FL0 >= 0: side.setdefault(FL0, []).append(lambda: flag(0))
            side.setdefault(18, []).append(late_setup)
            side.setdefault(int(os.environ.get("PA", 20)), []).append(poll11)
            estart = 2
        pend = epi_ops(p - 1)
        for ks in range(32):
            if p == 1 and ks == 22:
                A.wait_vm("x1_7")
                A.I("s_barrier")
            A.wait_l(f"X{p}_{ks}")
            A.I("v_mfma_f32_32x32x16_bf16", vr(AC[p], 16), vr(W1 + 4 * ks, 4), vr(XF + 4 * (ks % NXF), 4), vr(AC[p], 16) if ks else "0")
            stampn(A, f"m_p{p}k{ks}")
            if ks + NXF - 1 < 32: xread(p, ks + NXF - 1)
            for f in side.get(ks, []): f()
            if ks >= estart:
                for _ in range(EPS):
                    if pend:
                        mn, ops, mods = pend.pop(0); A.I(mn, *ops, mods=mods, tag=f"hf{p - 1}")
            if ks == 30: bfrag(p)
        extra(p)
    stampn(A, "m_g1")
    A.I("s_mov_b32", "s38", "s72")
    A.I("s_mov_b32", "s74", 0)
    eo = epi_ops(2, pk=True)
    if "efirst" in OPTS:
        st0 = [o for o in eo if o[0].startswith("buffer")]
        for mn, ops, mods in eo:
            if not mn.startswith("buffer"): A.I(mn, *ops, mods=mods)
        eo = st0
    A.wait_vm("pw")
    A.I("s_mov_b64", "exec", "0x7ff")
    A.I("v_cmp_ne_u32", "vcc", PF, TAG)
    A.I("s_mov_b64", "exec", -1)
    A.I("s_cbranch_vccnz", L("M_h_no"))
    NH0 = int(os.environ.get("NH0", 6))
    for j in range(NH0): issueH(j)
    fastq = len(A.vmq)
    A.I("s_mov_b32", "s74", 1)
    A.label(L("M_h_no"))
    for k in (2, 3, 4, 5): w2read(k)
    w2read(6); w2read(7)
    for mn, ops, mods in eo: A.I(mn, *ops, mods=mods, tag="hf2")
    A.I("s_mov_b64", "exec", 1)
    A.I("buffer_store_dword", TAG, "v10", "s[24:27]", "s71", mods="offen sc1")
    A.I("s_mov_b64", "exec", -1)
    A.I("s_barrier")
    A.I("s_branch", L("M_join"))
    saveq = list(A.vmq)
    A.label(L("M_idle"))
    nextu[0] = 0
    for k in range(6): w2dma(k)
    A.I("global_load_dword", TAG, "v10", "s[18:19]", mods="sc1")
    A.wait(vm=0)
    early_setup()
    late_setup()
    get_tag(A, L, "M_tagi", TAG, "v10", "s[18:19]", cnt="s76")
    for k in range(6): w2read(k)
    A.wait(lgkm=0)
    w2dma(6); w2dma(7)
    A.wait(vm=0)
    w2read(6); w2read(7)
    A.I("s_mov_b32", "s38", "0x7f000000")
    A.I("s_mov_b32", "s74", 0)
    A.label(L("M_join"))
    A.vmq = saveq
    stampn(A, "m_f2pub")
    for k in (8, 9): w2dma(k)
    A.I("s_cmp_eq_u32", "s74", 1)
    A.I("s_cbranch_scc1", L("M_h_have"))
    A.wait(vm=0)
    A.I("s_mov_b64", "exec", 1)
    A.I("buffer_store_dword", TAG, "v10", "s[24:27]", "s38", mods="offen sc1"); A.vmq.pop()
    A.I("s_mov_b32", "s38", "0x7f000000")
    A.I("s_mov_b64", "exec", "0x7ff")
    spin_check(A, L, "M_p2", PF, TAG, pollw, first=True, cnt="s76"); A.vmq.pop()
    A.I("s_mov_b64", "exec", -1)
    npad = len(A.vmq) - fastq
    keep = list(A.vmq)
    for j in range(NH0): issueH(j)
    A.I("s_mov_b64", "exec", 1)
    for _ in range(npad): A.I("global_load_dword", "v13", "v10", "s[18:19]")
    A.I("s_mov_b64", "exec", -1)
    A.vmq = keep
    A.label(L("M_h_have"))
    stampn(A, "m_f2")
    A.I("s_setprio", int(os.environ.get("MP2", 1)))
    for j in range(NH0, NH): issueH(j)
    w2dma(10); w2dma(11)
    A.I("s_mov_b32", "s65", "s66")
    A.I("v_and_b32", "v8", 7, "v1")
    A.I("v_lshlrev_b32", "v8", 4, "v8")
    A.I("v_lshrrev_b32", "v7", 3, "v1")
    A.I("v_lshl_add_u32", "v7", "v7", 12, "v8")
    A.I("s_lshl_b32", "s67", "s52", 18)
    A.I("s_lshl_b32", "s68", "s22", 16)
    A.I("s_add_u32", "s67", "s67", "s68")
    A.I("s_lshl_b32", "s68", "s51", 7)
    A.I("s_add_u32", "s67", "s67", "s68")
    A.I("s_add_u32", "s67", "s67", hex(ST))
    A.I("s_add_u32", "s68", "s67", 8 * 4096)
    A.I("s_mov_b32", "s75", 0)
    def sload():
        A.I("buffer_load_dwordx4", "v[248:251]", "v7", "s[24:27]", "s67", mods="offen sc1")
        A.I("buffer_load_dwordx4", "v[104:107]", "v7", "s[24:27]", "s68", mods="offen sc1")
    for j in range(44):
        ps, k = j // 22, j % 22
        if k == 21:
            A.I("s_cmp_ge_u32", "s22", 2)
            A.I("s_cbranch_scc1", L(f"M_skip{ps}"))
        A.wait_vm(f"h{j}")
        stampn(A, f"m_j{j}")
        if k >= 12: A.wait_l(f"S{k}_{ps}")
        if j in (8, 9, 10, 11): A.wait_l(f"S{k}")
        for e in range(2):
            acc = vr(ACC + 32 * ps + 16 * e, 16)
            A.I("v_mfma_f32_32x32x16_bf16", acc, vr(HR(j), 4), vr(wreg(k, e), 4), acc if k else "0")
        if k == 21: A.label(L(f"M_skip{ps}"))
        if j == 0: A.wait(lgkm=0)
        if j < 6: w2dma(12 + j)
        if j == NH0:
            A.I("s_mov_b64", "exec", 1)
            A.I("buffer_store_dword", TAG, "v10", "s[24:27]", "s38", mods="offen sc1")
            A.I("s_mov_b64", "exec", -1)
            stampn(A, "m_fl2")
        if j in (6, 7, 8, 9):
            A.wait_vm(f"d{j + 2}")
            w2read(j + 2)
        if j in (8, 9, 10, 11): w2dma(10 + j)
        if j == 7: poll11()
        if j + NH == 22:
            A.I("s_mov_b64", "exec", "0x7ff")
            spin_check(A, L, "M_p2b", PF, TAG, pollw, wait_tag="pw", cnt="s76")
            A.I("s_mov_b64", "exec", -1)
            A.I("v_and_b32", "v13", 7, "v1")
            A.I("v_lshlrev_b32", "v13", F3SH, "v13")
            PO[0] = "v13"
            A.I("s_lshl_b32", "s65", "s52", F3SH + 5)
            A.I("s_lshl_b32", "s71", "s22", F3SH + 3)
            A.I("s_add_u32", "s65", "s65", "s71")
            A.I("s_add_u32", "s65", "s65", hex(F3))
            stampn(A, "m_f2b")
        if j + NH < 44: issueH(j + NH)
        if 10 <= k < 20:
            if ps == 0: A.wait_vm(f"d{k + 2}")
            w2read(k + 2, f"_{ps}")
        if j == 33: pollw()
        if j in (34, 35, 36, 37):
            for qq in (2 * (j - 34), 2 * (j - 34) + 1):
                so, im = xo(qq >> 2, (qq >> 1) & 1, qq & 1)
                A.I("buffer_load_dword", vr(XR + qq), "v9", "s[40:43]", so, mods=f"offen offset:{im}")
        if j == 34:
            A.I("s_lshl_b32", "s74", "s70", 4)
            A.I("s_add_u32", "s74", "s74", hex(STAT + 4))
            A.I("v_lshlrev_b32", "v8", 6, "v4")
        if j in (34, 35, 36, 37):
            for qq in (2 * (j - 34), 2 * (j - 34) + 1):
                A.I("buffer_load_dword", vr(96 + qq), "v8", "s[24:27]", "s74", mods=f"offen offset:{(qq >> 2) * 128 + (qq & 3) * 16} sc1")
        if j == 37:
            A.I("global_load_ushort", "v12", "v6", "s[14:15]")
            A.I("global_load_ushort", "v3", "v6", "s[14:15]", mods="offset:64", tag="xb")
        if j == 40 and "kx3" not in OPTS:
            A.wait_vm("pw")
            A.I("v_cmp_ne_u32", "vcc", PF, TAG)
            A.I("s_cbranch_vccnz", L("M_s_no"))
            sload(); A.vmq.pop(); A.vmq.pop()
            A.I("s_mov_b32", "s75", 1)
            A.label(L("M_s_no"))
    stampn(A, "m_g2")
    A.I("s_setprio", 3)
    if "kx3" not in OPTS:
        A.I("s_cmp_eq_u32", "s75", 1)
        A.I("s_cbranch_scc1", L("M_s_np"))
        pollw(); A.vmq.pop()
        A.label(L("M_s_np"))
    A.I("v_add_u32", "v252", "s62", "v2")
    A.I("v_add_u32", "v253", "s39", "v2")
    OWN = 16
    A.I("s_nop", 7)
    for wd in range(4):
        src = [ACC + 32 * (wd >> 1) + 16 * e + 8 * (wd & 1) + 4 * q for e in range(2) for q in range(2)]
        A.I("s_cmp_eq_u32", "s22", wd)
        A.I("s_cbranch_scc1", L(f"own{wd}"))
        for q, r in enumerate(src):
            if q < 2: A.I("ds_write_b128", "v252", vr(r, 4), mods=f"offset:{WB0 + wd * 2048 + q * 1024}")
            elif q == 2: A.I("ds_write_b128", "v253", vr(r, 4), mods=f"offset:{wd * 1024}")
            else: A.I("ds_write_b128", "v252", vr(r, 4), mods=f"offset:{XB + 4096 + wd * 1024}")
        A.I("s_branch", L(f"nxt{wd}"))
        A.label(L(f"own{wd}"))
        if wd == 0: A.I("s_nop", 3)
        for q, r in enumerate(src):
            for i in range(0, 4, 2):
                A.I("v_pk_mov_b32", vr(OWN + 4 * q + i, 2), vr(r + i, 2), vr(r + i, 2), mods="op_sel:[0,1]")
        A.label(L(f"nxt{wd}"))
    A.I("s_lshl_b32", "s71", "s22", 5)
    A.I("v_add_u32", "v63", "s71", "v252")
    XU = 32
    A.wait(vm=0 if "kx3" in OPTS else 1)
    for q in range(8):
        A.I("v_lshlrev_b32", vr(XU + 2 * q), 16, vr(XR + q))
        A.I("v_and_b32", vr(XU + 2 * q + 1), "s64", vr(XR + q))
    A.I("v_lshlrev_b32", "v124", 16, "v12")
    A.I("v_lshlrev_b32", "v126", 16, "v3")
    A.I("v_lshrrev_b32", "v56", 4, "v5")
    A.I("v_mul_u32_u24", "v56", 8224, "v56")
    A.I("v_bfe_u32", "v57", "v5", 3, 1)
    A.I("v_mul_u32_u24", "v57", 1040, "v57")
    A.I("v_add_u32", "v56", "v56", "v57")
    A.I("v_and_b32", "v57", 7, "v5")
    A.I("v_lshl_add_u32", "v56", "v57", 7, "v56")
    A.I("v_lshl_add_u32", "v56", "v4", 3, "v56")
    A.I("s_and_b32", "s71", "s70", 63)
    A.I("s_lshl_b32", "s71", "s71", 1)
    A.I("v_add_u32", "v56", "s71", "v56")
    for sl in range(3):
        A.I("s_add_u32", "s71", "s22", 1 + sl)
        A.I("s_and_b32", "s71", "s71", 3)
        A.I("s_lshl_b32", "s72", "s71", 13)
        A.I("s_lshl_b32", "s73", "s22", 11)
        A.I("s_add_u32", "s73", "s72", "s73")
        A.I("v_add_u32", vr(120 + sl), "s73", "v2")
        A.I("s_add_u32", "s72", "s72", "s61")
        A.I("v_add_u32", vr(116 + sl), "s72", "v2")
        A.I("s_lshl_b32", "s71", "s71", 12)
        A.I("s_add_u32", "s71", "s71", "s61")
        A.I("s_add_u32", "s71", "s71", 65536)
        A.I("v_add_u32", vr(58 + sl), "s71", "v2")
    for p in range(4): A.I("v_pk_mul_f32", vr(96 + 2 * p, 2), vr(96 + 2 * p, 2), vr(96 + 2 * p, 2))
    A.I("s_mov_b32", "s72", "0xbfb8aa3b")
    A.I("s_mov_b32", "s73", "0xbfb8aa3b")
    A.wait(lgkm=0)
    A.I("s_barrier")
    stampn(A, "m_red")
    RD = 160
    for sl in range(3):
        for q in range(4):
            if q < 2: A.I("ds_read_b128", vr(RD + 16 * sl + 4 * q, 4), vr(120 + sl), mods=f"offset:{WB0 + q * 1024}")
            elif q == 2: A.I("ds_read_b128", vr(RD + 16 * sl + 4 * q, 4), vr(58 + sl))
            else: A.I("ds_read_b128", vr(RD + 16 * sl + 4 * q, 4), vr(116 + sl), mods=f"offset:{XB + 4096}", tag=f"R{sl}")
    SV = 80
    def s_stage():
        A.I("s_cmp_eq_u32", "s75", 1)
        A.I("s_cbranch_scc1", L("M_s_have"))
        if "kx3" not in OPTS and "nof3" not in OPTS: spin_check(A, L, "M_p3", PF, TAG, pollw)
        sload()
        A.label(L("M_s_have"))
        stampn(A, "m_f3")
    for sl in range(3):
        A.wait_l(f"R{sl}")
        for p in range(8):
            A.I("v_pk_add_f32", vr(OWN + 2 * p, 2), vr(OWN + 2 * p, 2), vr(RD + 16 * sl + 2 * p, 2))
    T_ = 128; SU = 144
    s_stage()
    for p in range(8):
        A.I("v_pk_fma_f32", vr(OWN + 2 * p, 2), vr(OWN + 2 * p, 2), vr(96 + 2 * (p & 3), 2), "v[124:125]" if p < 4 else "v[126:127]", mods="op_sel_hi:[1,1,0]")
    for p in range(8): A.I("v_pk_mul_f32", vr(T_ + 2 * p, 2), vr(OWN + 2 * p, 2), "s[72:73]")
    for r in range(16): A.I("v_exp_f32", vr(T_ + r), vr(T_ + r))
    for p in range(8): A.I("v_pk_add_f32", vr(T_ + 2 * p, 2), vr(T_ + 2 * p, 2), "1.0", mods="op_sel_hi:[1,0]")
    A.wait(vm=0)
    A.I("ds_write_b128", "v63", "v[248:251]", mods=f"offset:{XB}")
    A.I("ds_write_b128", "v63", "v[104:107]", mods=f"offset:{XB + 1040}")
    for r in range(8): A.I("v_rcp_f32", vr(T_ + r), vr(T_ + r))
    A.wait(lgkm=0)
    A.I("s_barrier")
    for e in range(2):
        for gp in range(2):
            A.I("ds_read_b64", vr(SV + 4 * e + 2 * gp, 2), "v56", mods=f"offset:{XB + 2 * 8224 * e + 16 * gp}")
    for r in range(8, 16): A.I("v_rcp_f32", vr(T_ + r), vr(T_ + r))
    for p in range(8): A.I("v_pk_mul_f32", vr(T_ + 2 * p, 2), vr(T_ + 2 * p, 2), vr(OWN + 2 * p, 2))
    A.wait(lgkm=0)
    for k in range(8):
        A.I("v_lshlrev_b32", vr(SU + 2 * k), 16, vr(SV + k))
        A.I("v_and_b32", vr(SU + 2 * k + 1), "s64", vr(SV + k))
    for p in range(8): A.I("v_pk_mul_f32", vr(T_ + 2 * p, 2), vr(T_ + 2 * p, 2), vr(SU + 2 * p, 2))
    A.I("s_mov_b32", "vcc_lo", "0x55555555")
    A.I("s_mov_b32", "vcc_hi", "0x55555555")
    QP = "quad_perm:[1,0,3,2] row_mask:0xf bank_mask:0xf"
    for p in range(8): A.I("v_cndmask_b32_dpp", vr(SU + 2 * p), vr(T_ + 2 * p + 1), vr(T_ + 2 * p), "vcc", mods=QP)
    A.I("s_not_b64", "vcc", "vcc")
    for p in range(8): A.I("v_cndmask_b32_dpp", vr(SU + 2 * p + 1), vr(T_ + 2 * p), vr(T_ + 2 * p + 1), "vcc", mods=QP)
    for p in range(8):
        A.I("v_pk_add_f32", vr(SU + 2 * p, 2), vr(SU + 2 * p, 2), vr(XU + 2 * p, 2))
        A.I("v_cvt_pk_bf16_f32", vr(64 + p), vr(SU + 2 * p), vr(SU + 2 * p + 1))
        so, im = xo(p >> 2, (p >> 1) & 1, p & 1)
        A.I("buffer_store_dword", vr(64 + p), "v9", "s[44:47]", so, mods=f"offen offset:{im}" + os.environ.get("OUTMOD", ""))
    A.unpk = False
    A.label(L("M_exit"))
    stamp_flush(A, 0, "s[20:21]", 7)
    A.I("s_endpgm")
```

```python
import os
from asmlib import *
from layout1 import *
from k_prep import srd
from t7_k import spin_check, code_prefetch2, get_tag, swarm

XB = 49152

def gen_csb(A, L, TAG):
    A.I("s_lshl_b32", "s71", "s49", 2)
    A.I("s_add_u32", "s71", "s71", "s22")
    A.I("global_load_dword", TAG, "v10", "s[18:19]", mods="sc1")
    A.I("s_cmp_ge_u32", "s71", 45)
    A.I("s_cbranch_scc1", L("M_csb_skip"))
    A.I("s_min_u32", "s72", "s71", 42)
    A.I("s_lshl_b32", "s72", "s72", 6)
    A.I("v_lshrrev_b32", "v16", 2, "v1")
    A.I("v_mul_u32_u24", "v16", 2752, "v16")
    A.I("v_and_b32", "v17", 3, "v1")
    A.I("v_lshl_add_u32", "v16", "v17", 4, "v16")
    A.I("s_mov_b32", "s73", "s72")
    for i in range(32):
        A.I("buffer_load_dwordx4", vr(128 + 4 * i - (0 if i < 28 else 0), 4) if i < 28 else vr(32 + 4 * (i - 28), 4), "v16", "s[28:31]", "s73", mods="offen", tag=f"c{i}")
        A.I("s_add_u32", "s73", "s73", 16 * 2752)
    A.I("v_lshl_add_u32", "v18", "v5", 1, "s72")
    A.I("global_load_ushort", "v19", "v18", "s[10:11]")
    A.I("s_mov_b32", "s74", "0x00003f80")
    A.I("s_mov_b32", "s75", "0x3f800000")
    for c in range(8): A.I("v_mov_b32", vr(20 + c), 0)
    for i in range(32):
        A.wait_vm(f"c{i}")
        b = 128 + 4 * i if i < 28 else 32 + 4 * (i - 28)
        for d in range(4):
            A.I("v_dot2_f32_bf16", vr(20 + 2 * d), vr(b + d), "s74", vr(20 + 2 * d))
            A.I("v_dot2_f32_bf16", vr(21 + 2 * d), vr(b + d), "s75", vr(21 + 2 * d))
    D = "row_mask:0xf bank_mask:0xf"
    for m in ("row_ror:4", "row_ror:8"):
        for c in range(8): A.I("v_add_f32_dpp", vr(20 + c), vr(20 + c), vr(20 + c), mods=f"{m} {D}")
    for sw in ("v_permlane16_swap_b32", "v_permlane32_swap_b32"):
        for c in range(8): A.I("v_mov_b32", vr(48 + c), vr(20 + c))
        for c in range(8): A.I(sw, vr(20 + c), vr(48 + c))
        for c in range(8): A.I("v_add_f32", vr(20 + c), vr(20 + c), vr(48 + c))
    A.I("v_lshlrev_b32", "v17", 5, "v17")
    A.I("v_add_u32", "v17", "s61", "v17")
    A.I("ds_write_b128", "v17", "v[20:23]")
    A.I("ds_write_b128", "v17", "v[24:27]", mods="offset:16")
    A.I("v_lshl_add_u32", "v17", "v5", 2, "s61")
    A.wait(lgkm=0)
    A.I("ds_read_b32", "v20", "v17")
    A.wait(vm=0, lgkm=0)
    get_tag(A, L, "M_tag15a", TAG, "v10", "s[18:19]")
    A.I("v_cvt_pk_bf16_f32", "v21", 0, "v20")
    A.I("v_sub_f32", "v20", "v20", "v21")
    A.I("v_cvt_pk_bf16_f32", "v22", 0, "v20")
    A.I("v_sub_f32", "v20", "v20", "v22")
    A.I("v_cvt_pk_bf16_f32", "v24", "v21", "v22")
    A.I("v_cvt_pk_bf16_f32", "v25", "v20", 0)
    A.I("v_lshl_or_b32", "v25", "v19", 16, "v25")
    A.I("v_mov_b32", "v26", TAG)
    A.I("v_mov_b32", "v27", TAG)
    A.I("s_lshl_b32", "s72", "s71", 9)
    A.I("s_add_u32", "s72", "s72", hex(CSB))
    A.I("v_lshlrev_b32", "v17", 4, "v5")
    A.I("s_mov_b64", "exec", "0xffffffff")
    A.I("buffer_store_dwordx4", "v[24:27]", "v17", "s[24:27]", "s72", mods="offen sc1")
    A.I("s_mov_b64", "exec", -1)
    stampn(A, "m_csb")
    A.label(L("M_csb_skip"))
    A.wait(vm=0)
    get_tag(A, L, "M_tag15", TAG, "v10", "s[18:19]")

def gen_M(A, L, msize):
    G1 = "g1only" in OPTS
    A.label(L("M"))
    if "nom" in OPTS: A.I("s_endpgm")
    A.I("s_setprio", int(os.environ.get("MP0", 1)))
    A.I("s_load_dwordx2", "s[4:5]", "s[0:1]", 0)
    A.I("s_load_dwordx8", "s[8:15]", "s[0:1]", 80)
    A.I("s_load_dwordx4", "s[16:19]", "s[0:1]", 112)
    A.I("s_load_dwordx2", "s[20:21]", "s[0:1]", 128)
    if 'nocp' not in OPTS: code_prefetch2(A, msize)
    A.I("v_and_b32", "v1", 63, "v0")
    A.I("v_lshrrev_b32", "v2", 6, "v0")
    A.I("v_readfirstlane_b32", "s22", "v2")
    A.I("s_and_b32", "s3", "s2", 255)
    A.I("s_and_b32", "s23", "s3", 7)
    A.I("s_lshr_b32", "s48", "s3", 3)
    A.I("s_lshr_b32", "s49", "s23", 1)
    A.I("s_lshl_b32", "s49", "s49", 2)
    A.I("s_lshr_b32", "s76", "s48", 3)
    A.I("s_add_u32", "s49", "s49", "s76")
    A.I("s_and_b32", "s50", "s23", 1)
    A.I("s_lshl_b32", "s50", "s50", 3)
    A.I("s_and_b32", "s52", "s48", 7)
    A.I("s_add_u32", "s50", "s50", "s52")
    A.I("s_lshl_b32", "s76", "s76", 1)
    if "rot1" not in OPTS: A.I("s_mov_b32", "s76", 0)
    A.I("s_lshl_b32", "s51", "s23", 2)
    A.I("s_lshr_b32", "s52", "s48", 3)
    A.I("s_add_u32", "s51", "s51", "s52")
    A.I("s_and_b32", "s52", "s48", 7)
    A.I("s_lshl_b32", "s53", "s49", 2)
    A.I("s_add_u32", "s53", "s53", "s22")
    A.I("v_lshlrev_b32", "v2", 4, "v1")
    A.I("v_lshrrev_b32", "v4", 5, "v1")
    A.I("v_and_b32", "v5", 31, "v1")
    A.I("v_lshrrev_b32", "v9", 3, "v1")
    A.I("v_lshrrev_b32", "v10", 4, "v1")
    A.I("v_and_b32", "v11", 7, "v1")
    A.I("v_xor_b32", "v10", "v10", "v11")
    A.I("v_lshlrev_b32", "v9", 10, "v9")
    A.I("v_lshl_add_u32", "v12", "v10", 4, "v9")
    A.I("v_xor_b32", "v13", 64, "v12")
    A.I("v_bfe_u32", "v10", "v1", 4, 1)
    A.I("v_lshlrev_b32", "v10", 2, "v10")
    A.I("v_xor_b32", "v10", "v10", "v11")
    A.I("v_lshl_add_u32", "v15", "v10", 4, "v9")
    A.I("s_mov_b32", "s54", 43691)
    for n in range(3):
        A.I("v_add_u32", "v9", 64 * n, "v1")
        A.I("v_mul_u32_u24", "v10", "s54", "v9")
        A.I("v_lshrrev_b32", "v10", 19, "v10")
        A.I("v_mul_u32_u24", "v11", 12, "v10")
        A.I("v_sub_u32", "v9", "v9", "v11")
        A.I("v_mul_u32_u24", "v10", 2752, "v10")
        A.I("v_lshl_add_u32", vr(6 + n), "v9", 4, "v10")
    A.I("v_lshlrev_b32", "v14", 7, "v5")
    A.I("s_mul_i32", "s55", "s50", 192)
    A.I("s_mul_i32", "s56", "s22", 16 * 2752)
    A.I("s_add_u32", "s56", "s56", "s55")
    A.I("s_mul_i32", "s57", "s22", 3072)
    A.I("s_lshl_b32", "s67", "s53", 15)
    A.I("s_lshl_b32", "s61", "s22", 12)
    A.I("s_add_u32", "s61", "s61", XB)
    A.I("s_lshl_b32", "s62", "s49", 17)
    A.I("s_lshl_b32", "s63", "s52", 14)
    A.I("s_add_u32", "s62", "s62", "s63")
    A.I("s_lshl_b32", "s63", "s22", 12)
    A.I("s_add_u32", "s62", "s62", "s63")
    stampn(A, "m_pre")
    A.wait(lgkm=0)
    stampn(A, "m_arg")
    srd(A, 40, 4, 2048 * 1024)
    srd(A, 28, 8, 512 * 2752)
    A.I("s_mov_b32", "exec_hi", 0)
    if "xt" in OPTS: A.I("buffer_load_dword", "v3", "v14", "s[40:43]", "s62", mods="offen")
    A.I("s_mov_b64", "exec", -1)
    def xdma1(s, b):
        A.I("s_add_u32", "m0", "s61", (s % 2) * 16384 + b * 1024)
        if b == 0:
            A.I("s_add_u32", "s77", "s76", s)
            A.I("s_and_b32", "s77", "s77", 7)
            A.I("s_lshl_b32", "s77", "s77", 7)
            A.I("s_add_u32", "s77", "s77", "s67")
        A.I("s_add_u32", "s63", "s77", b * 8192)
        A.I("buffer_load_dwordx4", "v12" if b % 2 == 0 else "v13", "s[40:43]", "s63", mods="offen lds", tag=f"x{s}")
    def wdma1(s, n):
        if n == 0:
            A.I("s_add_u32", "s78", "s76", s)
            A.I("s_and_b32", "s78", "s78", 7)
            A.I("s_mul_i32", "s78", "s78", 64 * 2752)
            A.I("s_add_u32", "s78", "s78", "s56")
        A.I("s_add_u32", "m0", "s57", (s % 4) * 12288 + n * 1024)
        A.I("buffer_load_dwordx4", vr(6 + n), "s[28:31]", "s78", mods="offen lds", tag=f"w{s}")
    A.I("s_cmp_eq_u32", "s50", 15)
    A.I("s_cbranch_scc1", L("M_now1"))
    for b in range(4): xdma1(0, b)
    PRO = int(os.environ.get("PRO", 3))
    if PRO < 4:
        srd(A, 36, 10, 2752)
        A.I("s_mov_b32", "m0", 36864)
        A.I("s_mov_b64", "exec", "0xfff")
        A.I("buffer_load_dwordx4", "v2", "s[36:39]", "s55", mods="offen lds")
        A.I("s_mov_b64", "exec", -1)
    for n in range(3): wdma1(0, n)
    if PRO >= 1:
        for b in range(4): xdma1(1, b)
    for s in (1, 2, 3)[:max(PRO - 1, 0)]:
        for n in range(3): wdma1(s, n)
    if PRO == 4:
        srd(A, 36, 10, 2752)
        A.I("v_lshlrev_b32", "v234", 1, "v5")
        for t in range(3):
            A.I("buffer_load_ushort", vr(231 + t), "v234", "s[36:39]", "s55", mods=f"offen offset:{64 * t}")
    A.label(L("M_now1"))
    if "swarm" in OPTS:
        swarm(A, "s[12:13]", "s3", "s22")
    stampn(A, "m_iss")
    srd(A, 24, 20, WS_SIZE)
    srd(A, 44, 16, 2048 * 1024)
    srd(A, 32, 12, 1376 * 1024)
    if "otouch" in OPTS:
        A.I("s_lshl_b32", "s63", "s3", 13)
        A.I("s_mov_b64", "exec", 1)
        A.I("buffer_load_dword", "v235", "v2", "s[44:47]", "s63", mods="offen")
        A.I("global_load_dword", "v234", "v2", "s[14:15]")
        A.I("s_mov_b64", "exec", -1)
    A.I("s_mov_b32", "s64", "0xffff0000")
    A.I("s_mov_b32", "s69", "0x3f803f80")
    A.I("v_mov_b32", "v10", 0)
    A.I("s_mul_i32", "s58", "s22", 22)
    A.I("s_cmp_eq_u32", "s22", 3)
    A.I("s_cselect_b32", "s59", 1, 0)
    A.I("s_sub_u32", "s58", "s58", "s59")
    A.I("s_lshl_b32", "s59", "s58", 14)
    A.I("s_lshl_b32", "s60", "s52", 7)
    A.I("s_add_u32", "s59", "s59", "s60")
    A.I("s_cmp_lt_u32", "s22", 2)
    A.I("s_cselect_b32", "s48", 22, 21)
    A.I("s_mul_i32", "s79", "s52", 2)
    A.I("s_and_b32", "s63", "s51", 3)
    A.I("s_mul_i32", "s63", "s63", 5)
    A.I("s_add_u32", "s79", "s79", "s63")
    A.I("s_cmp_ge_u32", "s79", 21)
    A.I("s_cselect_b32", "s63", 21, 0)
    A.I("s_sub_u32", "s79", "s79", "s63")
    if "norot2" in OPTS: A.I("s_mov_b32", "s79", 0)
    A.I("v_and_b32", "v9", 1, "v1")
    A.I("v_lshl_add_u32", "v9", "v4", 2, "v9")
    A.I("v_lshlrev_b32", "v9", 10, "v9")
    A.I("v_lshrrev_b32", "v11", 1, "v5")
    A.I("v_lshl_add_u32", "v9", "v11", 2, "v9")
    XA = 244; WA = 248; TA_ = 252
    A.I("v_bfe_u32", "v14", "v1", 1, 3)
    A.I("v_xor_b32", "v14", "v14", "v4")
    A.I("s_lshl_b32", "s63", "s22", 1)
    A.I("v_xor_b32", "v14", "s63", "v14")
    A.I("v_lshlrev_b32", "v16", 7, "v5")
    A.I("v_add_u32", "v16", "s61", "v16")
    for k in range(4):
        if k: A.I("v_xor_b32", "v11", 2 * k, "v14")
        A.I("v_lshl_add_u32", vr(XA + k), "v14" if k == 0 else "v11", 4, "v16")
    A.I("v_bfe_u32", "v16", "v1", 2, 2)
    A.I("v_bfe_u32", "v17", "v1", 4, 1)
    A.I("v_and_b32", "v18", 3, "v1")
    A.I("v_lshlrev_b32", "v18", 3, "v18")
    A.I("v_lshl_add_u32", "v17", "v17", 5, "v18")
    A.I("v_lshl_add_u32", "v14", "v4", 3, "v16")
    A.I("v_mul_u32_u24", "v14", 192, "v14")
    A.I("v_add_u32", "v14", "v14", "v17")
    for k in range(4):
        A.I("s_xor_b32", "s63", "s22", k)
        A.I("s_mul_i32", "s63", "s63", 3072)
        A.I("v_add_u32", vr(WA + k), "s63", "v14")
    A.I("v_lshl_add_u32", "v14", "v4", 2, "v16")
    A.I("v_lshl_add_u32", "v14", "v14", 7, "v17")
    A.I("v_bfe_u32", "v16", "v1", 3, 1)
    A.I("v_lshl_add_u32", "v14", "v16", 6, "v14")
    A.I("v_xor_b32", "v16", 64, "v14")
    A.I("v_add_u32", vr(TA_), "s57", "v14")
    A.I("v_add_u32", vr(TA_ + 1), "s57", "v16")
    A.I("v_add_u32", vr(TA_ + 2), "s61", "v14")
    A.I("v_add_u32", vr(TA_ + 3), "s61", "v16")
    TAG = "v14"; PF = "v11"
    def pollw():
        A.I("buffer_load_dword", PF, "v13", "s[24:27]", "s65", mods="offen sc1", tag="pw")
    Wb = lambda sl: [(sl * 12288 + i * 1024, 0) for i in range(3)]
    blocks = Wb(0) + [(i * 1024, 1) for i in (1, 2, 3)] + Wb(1) + [(16384 + i * 1024, 1) for i in range(4)] + Wb(2) + Wb(3) + [(0, 1)]
    KB = {k: k for k in range(8)}
    KB.update({8: 0, 9: 1, 10: 2, 11: 8, 12: 9, 13: 3, 14: 4, 15: 5, 16: 6, 17: 7, 18: 0, 19: 1, 20: 2, 21: 8})
    lastk = [None]
    def w2dma(k, hf):
        off, isx = blocks[2 * KB[k] + hf]
        if hf == 0 or lastk[0] != k:
            A.I("s_add_u32", "s23", "s79", k)
            A.I("s_cmp_ge_u32", "s23", "s48")
            A.I("s_cselect_b32", "s63", "s48", 0)
            A.I("s_sub_u32", "s23", "s23", "s63")
            A.I("s_lshl_b32", "s23", "s23", 14)
            A.I("s_add_u32", "s23", "s23", "s59")
        lastk[0] = k
        if k == 21 and hf == 0:
            A.I("s_cmp_ge_u32", "s22", 2)
            A.I("s_cselect_b32", "s23", "0x7f000000", "s23")
        A.I("s_add_u32", "s63", "s23", hf * 8192)
        A.I("s_add_u32", "m0", "s61" if isx else "s57", off)
        A.I("buffer_load_dwordx4", "v15", "s[32:35]", "s63", mods="offen lds", tag=f"d{k}")
    WR = 16
    NWR = 12
    DEEP = "nodeep" not in OPTS
    def wreg(k, e):
        if DEEP and k >= 12: return WR + 8 * ({18: 0, 19: 1, 20: 9, 21: 3}.get(k, k % 3)) + 4 * e
        return WR + 8 * (k % NWR) + 4 * e
    def w2read(k):
        for e in range(2):
            for hf in range(2):
                off, isx = blocks[2 * KB[k] + hf]
                A.I("ds_read_b64_tr_b16", vr(wreg(k, e) + 2 * hf, 2), vr(TA_ + 2 * isx + e), mods=f"offset:{off}", tag=f"S{k}")
    A.I("s_cmp_eq_u32", "s50", 15)
    A.I("s_cbranch_scc1", L("M_g15"))
    ACC1 = 128; WB = 208; NW = 5; CP = 228; B1 = 231; ST_ = 232 + 4
    XFb = lambda s: 176 if s % 2 == 0 else 192
    CQ = 100
    A.I("v_mov_b32", "v98", "s69")
    A.I("v_mov_b32", "v99", "s69")
    def small(t, reg, first=False):
        A.I("v_mfma_f32_4x4x4_16b_bf16", vr(CQ + 4 * t, 4), "v[98:99]", vr(reg, 2), "0" if first else vr(CQ + 4 * t, 4))
    A.I("s_mul_i32", "s68", "s53", 86)
    A.I("s_mul_i32", "s63", "s50", 6)
    A.I("s_add_u32", "s68", "s68", "s63")
    A.I("s_lshl_b32", "s68", "s68", 10)
    A.I("s_add_u32", "s68", "s68", hex(HF))
    A.I("s_add_u32", "s66", "s68", 4096)
    A.I("s_cmp_eq_u32", "s50", 14)
    A.I("s_cselect_b32", "s66", "0x7f000000", "s66")
    A.I("s_cselect_b32", "s73", "0x7f000000", "s68")
    A.I("s_lshl_b32", "s74", "s53", 9)
    A.I("s_add_u32", "s74", "s74", hex(STAT))
    AX = 64
    for r in (66, 67, 70, 71, 74, 75, 78, 79): A.I("v_mov_b32", vr(r), 0)
    def pollstat():
        A.I("buffer_load_dwordx4", vr(ST_, 4), "v3", "s[24:27]", "s74", mods="offen sc1", tag="st")
    def rdW(s, idx, buf):
        kk, t = idx
        o = (s % 4) * 12288 + t * 64
        r = WB + 4 * buf
        A.I("ds_read_b64_tr_b16", vr(r, 2), vr(WA + kk), mods=f"offset:{o}")
        A.I("ds_read_b64_tr_b16", vr(r + 2, 2), vr(WA + kk), mods=f"offset:{o + 768}", tag=f"W{s}_{kk}_{t}")
    def bar(s):
        A.wait_vm(f"x{s}" if A._after(A.vmq, f"x{s}") < A._after(A.vmq, f"w{s}") else f"w{s}")
        stampn(A, f"m_s{s}a")
        A.I("s_barrier")
        stampn(A, f"m_s{s}b")
    def xread(s, kk):
        A.I("ds_read_b128", vr(XFb(s) + 4 * kk, 4), vr(XA + kk), mods=f"offset:{(s % 2) * 16384}")
    def epi_ops(t, pk=False):
        ops = []
        a = ACC1 + 16 * t
        for k in range(8):
            r = a + 2 * k
            for q in (r, r + 1):
                ops.append(("v_max_f32", [vr(q), 0, vr(q)], ""))
                if not pk:
                    ops.append(("v_mul_f32", [vr(q), vr(q), vr(q)], ""))
            if pk:
                ops.append(("v_pk_mul_f32", [vr(r, 2), vr(r, 2), vr(r, 2)], ""))
            ops.append(("v_cvt_pk_bf16_f32", [vr(a + k), vr(r), vr(r + 1)], ""))
            if k % 4 == 3:
                off = (2 * t + k // 4) * 1024
                ops.append(("buffer_store_dwordx4", [vr(a + k - 3, 4), "v2", "s[24:27]", ("s68", "s73", "s66")[t]], f"offen offset:{off % 4096} sc1"))
        return ops
    pend_e = []
    seq = []
    for s in range(8):
        order = [(kk, t) for kk in range(4) for t in range(3)] if s < 7 else [(kk, t) for t in range(3) for kk in range(4)]
        seq += [(s, o) for o in order]
    bar(0)
    A.I("s_setprio", int(os.environ.get("MP1", 3)))
    for kk in range(4): xread(0, kk)
    A.I("v_lshlrev_b32", "v3", 1, "v5")
    if PRO < 4:
        for t in range(3): A.I("ds_read_u16", vr(B1 + t), "v3", mods=f"offset:{36864 + 64 * t}")
    A.I("v_lshlrev_b32", "v3", 4, "v5")
    for m in range(NW - 1): rdW(seq[m][0], seq[m][1], m)
    NEARLY = int(os.environ.get('NEARLY', 16))
    STATAT = tuple(int(x) for x in os.environ.get('STATAT', '5,6').split(','))
    ER = 'noer' not in OPTS
    BN = 7; WPOS = (7, 9, 10); XPOS = (2, 3, 5, 6)
    XP0 = (6, 8, 9, 11)
    early = {(5, 7): 0, (5, 9): 1, (5, 10): 2, (6, 2): 3, (6, 3): 4, (6, 5): 5, (6, 7): 6, (6, 9): 7, (6, 10): 8, (7, 2): 9, (7, 3): 10, (7, 4): 11, (7, 5): 12, (7, 6): 13, (7, 7): 14, (7, 8): 15}
    for m, (s, (kk, t)) in enumerate(seq):
        n = m % 12
        if n == 0: stampn(A, f"m_s{s}")
        if G1 and m == 84: A.I("s_branch", L("M_exit"))
        A.wait_l(f"W{s}_{kk}_{t}")
        acc = vr(ACC1 + 16 * t, 16)
        if "nomfma" not in OPTS: A.I("v_mfma_f32_32x32x16_bf16", acc, vr(WB + 4 * (m % NW), 4), vr(XFb(s) + 4 * kk, 4), acc if (s or kk) else "0")
        stampn(A, f"m_s{s}n{n}")
        docs = kk == 0 and s < 7 and "nocs" not in OPTS
        if docs: small(t, WB + 4 * (m % NW), first=(s == 0))
        if n == BN and s < 7: bar(s + 1)
        if s < 7 and BN <= n < BN + 4: xread(s + 1, n - BN)
        if m + NW - 1 < 96: rdW(seq[m + NW - 1][0], seq[m + NW - 1][1], (m + NW - 1) % NW)
        if docs: small(t, WB + 4 * (m % NW) + 2)
        if "nodma" in OPTS:
            A.vmq += [f"w{s + 3}", f"x{s + 2}"] + [None] * 70
        else:
            if s == 0:
                pend = ([("x", b) for b in range(4)] if PRO < 1 else []) + ([("w1", i) for i in range(3)] if PRO < 2 else []) + ([("w2", i) for i in range(3)] if PRO < 3 else [])
                per = (len(pend) + 5) // 6
                for typ, i in pend[n * per:(n + 1) * per] if n < 6 else []:
                    if typ == "x": xdma1(1, i)
                    else: wdma1(int(typ[1]), i)
            if n in WPOS and s + 3 < 8 and not (PRO == 4 and s == 0) and "now" not in OPTS: wdma1(s + 3, WPOS.index(n))
            xp = XP0 if (s == 0 and PRO < 3) else XPOS
            if n in xp and s + 2 < 8 and "nox" not in OPTS: xdma1(s + 2, xp.index(n))
            if "now" in OPTS: A.vmq.insert(0, f"w{s + 3}")
            if "nox" in OPTS: A.vmq.insert(0, f"x{s + 2}")
        if (s, n) == STATAT:
            A.I("global_load_dword", TAG, "v10", "s[18:19]", mods="sc1")
            pollstat()
        if (s, n) in early and early[(s, n)] < NEARLY:
            b = early[(s, n)]
            w2dma(b // 2, b % 2)
        if s == 6 and n == BN:
            for t2 in range(3):
                o = 3 * 12288 + t2 * 64
                A.I("ds_read_b64_tr_b16", vr(112 + 4 * t2, 2), vr(WA), mods=f"offset:{o}")
                A.I("ds_read_b64_tr_b16", vr(114 + 4 * t2, 2), vr(WA), mods=f"offset:{o + 768}", tag=f"c7_{t2}")
        if s == 6 and n == 10:
            A.wait_l("c7_2")
            for hf in range(2):
                for t2 in range(3): small(t2, 112 + 4 * t2 + 2 * hf)
        if s == 6 and n == 11:
            A.I("v_lshl_add_u32", "v240", "v1", 2, "s61")
            A.I("v_lshlrev_b32", "v241", 2, "v1")
            for t2 in range(3): A.I("ds_write_b32", "v240", vr(CQ + 4 * t2), mods=f"offset:{256 * t2}", tag="cw")
        if s == 7 and n == 0:
            A.wait_l("cw")
            A.I("s_barrier")
            for t2 in range(3):
                for ww in range(4):
                    A.I("ds_read_b32", vr(112 + 4 * t2 + ww), "v241", mods=f"offset:{XB + 4096 * ww + 256 * t2}", tag="cr")
        if s == 7 and n == 1:
            A.wait_vm("st")
            get_tag(A, L, "M_tag", TAG, "v10", "s[18:19]")
            spin_check(A, L, "M_st", vr(ST_ + 3), TAG, pollstat, wait_tag="st")
            A.I("v_cmp_gt_u32", "vcc", 32, "v1")
            A.I("v_cndmask_b32", vr(ST_ + 2), 0, vr(ST_ + 2), "vcc")
            A.I("v_cvt_pk_bf16_f32", "v76", f"-{vr(ST_)}", f"-{vr(ST_)}")
            A.I("v_cvt_pk_bf16_f32", "v77", f"-{vr(ST_)}", vr(ST_ + 2))
        if s == 7 and n in (2, 3, 4):
            t2 = n - 2
            if n == 2: A.wait_l("cr")
            c = 112 + 4 * t2; a = AX + 4 * t2
            A.I("v_add_f32", vr(c), vr(c), vr(c + 1))
            A.I("v_add_f32", vr(c + 2), vr(c + 2), vr(c + 3))
            A.I("v_add_f32", vr(c), vr(c), vr(c + 2))
            A.I("v_cvt_pk_bf16_f32", vr(c + 1), 0, vr(c))
            A.I("v_sub_f32", vr(c), vr(c), vr(c + 1))
            A.I("v_cvt_pk_bf16_f32", vr(c + 2), 0, vr(c))
            A.I("v_sub_f32", vr(c), vr(c), vr(c + 2))
            A.I("v_cvt_pk_bf16_f32", vr(a), vr(c + 1), vr(c + 2))
            A.I("v_cvt_pk_bf16_f32", vr(a + 1), vr(c), 0)
            A.I("v_lshl_or_b32", vr(a + 1), vr(B1 + t2), 16, vr(a + 1))
        if s == 7 and n in (3, 7, 11):
            t2 = n // 4
            acc2 = vr(ACC1 + 16 * t2, 16)
            A.I("v_mfma_f32_32x32x16_bf16", acc2, vr(AX + 4 * t2, 4), "v[76:79]", acc2)
        if ER:
            if (s, n) == (6, 11):
                A.wait_vm("d0"); w2read(0)
            if (s, n) == (7, 2):
                A.wait_vm("d2"); w2read(1); w2read(2)
            if (s, n) == (7, 9):
                A.wait_l("S2"); w2dma(8, 0); w2dma(8, 1)
            if (s, n) == (7, 10): w2dma(9, 0); w2dma(9, 1)
            if (s, n) == (7, 11): w2dma(10, 0); w2dma(10, 1)
        if s == 7 and n >= 5:
            if n == 5: pend_e = epi_ops(0)
            if n == 9: pend_e = pend_e + epi_ops(1)
            for _ in range(11):
                if pend_e:
                    mn, ops, mods = pend_e.pop(0); A.I(mn, *ops, mods=mods, tag="hf")
    stampn(A, "m_g1")
    if ER:
        A.wait_vm("d4")
        w2read(3); w2read(4)
    elif NEARLY >= 6:
        A.wait_vm("d2")
        for k in (0, 1, 2): w2read(k)
    for mn, ops, mods in pend_e + epi_ops(2, pk='noepk' not in OPTS): A.I(mn, *ops, mods=mods, tag="hf")
    A.unpk = "mnp2" in OPTS
    stampn(A, "m_epi")
    for b in range(NEARLY, 16): w2dma(b // 2, b % 2)
    if ER:
        A.wait(lgkm=0)
        for k in (13, 14):
            w2dma(k, 0); w2dma(k, 1)
    elif NEARLY == 16:
        A.wait(lgkm=0)
        for k in (8, 9, 10):
            w2dma(k, 0); w2dma(k, 1)
    stampn(A, "m_e2")
    A.wait_vm("hf")
    stampn(A, "m_e3")
    A.I("s_barrier")
    A.I("s_cmp_lg_u32", "s22", 0)
    A.I("s_cbranch_scc1", L("M_nf2"))
    A.I("s_lshl_b32", "s71", "s49", F2SH + 4)
    A.I("s_lshl_b32", "s72", "s50", F2SH)
    A.I("s_add_u32", "s71", "s71", "s72")
    A.I("s_add_u32", "s71", "s71", hex(F2))
    A.I("s_mov_b64", "exec", 1)
    A.I("buffer_store_dword", TAG, "v10", "s[24:27]", "s71", mods="offen sc1")
    A.vmq.pop()
    A.I("s_mov_b64", "exec", -1)
    A.label(L("M_nf2"))
    if "touch" in OPTS:
        A.I("v_min_u32", "v240", 47, "v1")
        A.I("v_lshlrev_b32", "v240", 7, "v240")
        A.I("buffer_load_dword", "v241", "v240", "s[24:27]", "s68", mods="offen sc1")
    if ER:
        for k in (5, 6, 7, 8, 9, 10): w2read(k)
    elif NEARLY == 16:
        for k in (3, 4, 5, 6, 7): w2read(k)
    if NEARLY < 16:
        if NEARLY < 6:
            A.wait_vm("d2")
            for k in (0, 1, 2): w2read(k)
        A.wait_vm("d7", lgkm=0)
        for k in (3, 4, 5, 6, 7): w2read(k)
        for k in (8, 9, 10):
            w2dma(k, 0); w2dma(k, 1)
    A.I("s_branch", L("M_join"))
    A.label(L("M_g15"))
    lastk[0] = None
    if G1: A.I("s_branch", L("M_exit"))
    for b in range(16): w2dma(b // 2, b % 2)
    A.I("global_load_dword", TAG, "v10", "s[18:19]", mods="sc1")
    A.wait(vm=0)
    get_tag(A, L, "M_tag15", TAG, "v10", "s[18:19]")
    if "agg" in OPTS:
        A.I("v_lshlrev_b32", "v13", F1SH, "v1")
        A.I("s_lshl_b32", "s65", "s22", F1SH + 6)
        A.I("s_add_u32", "s65", "s65", hex(F1))
        spin_check(A, L, "M_agg", PF, TAG, pollw, first=True, sleep=1)
        A.I("s_barrier")
        A.I("s_cmp_lg_u32", "s22", 0)
        A.I("s_cbranch_scc1", L("M_agg2"))
        A.I("s_lshl_b32", "s65", "s49", 7)
        A.I("s_add_u32", "s65", "s65", hex(FA))
        A.I("s_mov_b64", "exec", 1)
        A.I("buffer_store_dword", TAG, "v10", "s[24:27]", "s65", mods="offen sc1")
        A.I("s_mov_b64", "exec", -1)
        A.label(L("M_agg2"))
        stampn(A, "m_agg")
    for k in range(8): w2read(k)
    A.wait(lgkm=0)
    for k in (8, 9, 10):
        w2dma(k, 0); w2dma(k, 1)
    if ER:
        for k in (13, 14):
            w2dma(k, 0); w2dma(k, 1)
        A.wait(vm=4)
        for k in (8, 9, 10): w2read(k)
    A.label(L("M_join"))
    lastk[0] = None
    stampn(A, "m_f2pub")
    for k in (11, 12):
        w2dma(k, 0); w2dma(k, 1)
    A.wait(lgkm=0)
    for k in ((15, 16, 17, 18, 19, 20) if ER else (13, 14, 15, 16, 17)):
        w2dma(k, 0); w2dma(k, 1)
    if not ER:
        A.wait(vm=14)
        for k in (8, 9, 10): w2read(k)
    A.I("v_min_u32", "v13", 14, "v1")
    A.I("v_lshlrev_b32", "v13", F2SH, "v13")
    A.I("s_lshr_b32", "s65", "s51", 1)
    A.I("s_lshl_b32", "s65", "s65", F2SH + 4)
    A.I("s_add_u32", "s65", "s65", hex(F2))
    A.I("s_lshl_b32", "s54", "s51", 16)
    A.I("s_lshl_b32", "s55", "s22", 14)
    A.I("s_add_u32", "s54", "s54", "s55")
    A.I("s_add_u32", "s54", "s54", "s60")
    A.I("s_add_u32", "s55", "s54", 8192)
    A.I("s_mul_i32", "s56", "s51", 172)
    A.I("s_add_u32", "s56", "s56", "s58")
    A.I("s_lshl_b32", "s56", "s56", 10)
    A.I("s_add_u32", "s56", "s56", hex(HF))
    A.I("s_add_u32", "s62", "s56", 86 * 1024)
    XR = 240
    def xo(e, gp, ip): return ("s54" if gp == 0 else "s55", ip * 2048 + e * 64)
    A.I("v_lshl_add_u32", "v6", "v5", 1, "s60")
    if not ER:
        A.wait(lgkm=0)
        for k in (18, 19, 20):
            w2dma(k, 0); w2dma(k, 1)
    stampn(A, "m_w3")
    A.wait_vm("d11")
    w2read(11)
    A.wait(lgkm=0)
    w2dma(21, 0); w2dma(21, 1)
    for qq in range(8):
        so, im = xo(qq >> 2, (qq >> 1) & 1, qq & 1)
        A.I("buffer_load_dword", vr(XR + qq), "v9", "s[40:43]", so, mods=f"offen offset:{im}")
    A.I("global_load_ushort", "v12", "v6", "s[14:15]")
    A.I("global_load_ushort", "v3", "v6", "s[14:15]", mods="offset:64")
    stampn(A, "m_w4")
    if "wpoll" in OPTS:
        A.I("s_mul_i32", "s71", "s58", 43691)
        A.I("s_lshr_b32", "s71", "s71", 18)
        A.I("s_and_b32", "s72", "s22", 1)
        A.I("s_add_u32", "s72", "s72", 3)
        A.I("v_min_u32", "v13", "s72", "v1")
        A.I("v_add_u32", "v13", "s71", "v13")
        A.I("v_lshlrev_b32", "v13", F2SH, "v13")
        A.I("s_mov_b64", "exec", "0x1f")
        spin_check(A, L, "M_p2", PF, TAG, pollw, first=True, sleep=int(os.environ.get("F2SLEEP", 2)))
        A.I("s_mov_b64", "exec", -1)
    else:
        A.I("s_cmp_lg_u32", "s22", 0)
        A.I("s_cbranch_scc1", L("M_p2w"))
        A.I("s_mov_b64", "exec", "0x7fff")
        if "nof2" not in OPTS: spin_check(A, L, "M_p2", PF, TAG, pollw, first=True)
        A.I("s_mov_b64", "exec", -1)
        A.label(L("M_p2w"))
        A.I("s_barrier")
    stampn(A, "m_f2")
    A.I("s_setprio", int(os.environ.get("MP2", 1)))
    ACC = 128; NH = 8
    HR0 = lambda k: (192 + 8 * (k % NH)) if (k % NH) < 6 else (112 + 8 * (k % NH - 6))
    hmap = {k: HR0(k) for k in range(22)}
    sched = {k: [k + NH] for k in range(14)}
    if DEEP:
        sched = {0: [8], 1: [9], 2: [10], 3: [11, 12], 4: [13, 14], 5: [15, 16], 6: [17, 18], 7: [19, 20], 8: [21]}
        for st, ks in sched.items():
            hmap[ks[0]] = HR0(st)
            if len(ks) > 1: hmap[ks[1]] = WR + 8 * st
        hmap[21] = WR + 8 * 8
    HR = lambda k: hmap[k]
    def issueH(k):
        A.I("s_add_u32", "s23", "s79", k)
        A.I("s_cmp_ge_u32", "s23", "s48")
        A.I("s_cselect_b32", "s63", "s48", 0)
        A.I("s_sub_u32", "s23", "s23", "s63")
        A.I("s_lshl_b32", "s23", "s23", 10)
        A.I("s_add_u32", "s63", "s23", "s56")
        A.I("s_add_u32", "s23", "s23", "s62")
        A.I("buffer_load_dwordx4", vr(HR(k), 4), "v2", "s[24:27]", "s63", mods="offen sc1")
        A.I("buffer_load_dwordx4", vr(HR(k) + 4, 4), "v2", "s[24:27]", "s23", mods="offen sc1", tag=f"h{k}")
    for k in range(NH): issueH(k)
    A.I("v_and_b32", "v13", 7, "v1")
    A.I("v_lshlrev_b32", "v8", 4, "v13")
    A.I("v_lshlrev_b32", "v13", F3SH, "v13")
    A.I("s_lshl_b32", "s65", "s52", F3SH + 5)
    A.I("s_lshl_b32", "s71", "s22", F3SH + 3)
    A.I("s_add_u32", "s65", "s65", "s71")
    A.I("s_add_u32", "s65", "s65", hex(F3))
    A.I("v_lshrrev_b32", "v7", 3, "v1")
    A.I("v_lshl_add_u32", "v7", "v7", 12, "v8")
    A.I("s_lshl_b32", "s67", "s52", 18)
    A.I("s_lshl_b32", "s68", "s22", 16)
    A.I("s_add_u32", "s67", "s67", "s68")
    A.I("s_lshl_b32", "s68", "s51", 7)
    A.I("s_add_u32", "s67", "s67", "s68")
    A.I("s_add_u32", "s67", "s67", hex(ST))
    A.I("s_add_u32", "s68", "s67", 8 * 4096)
    A.I("s_mov_b32", "s75", 0)
    def sload():
        A.I("buffer_load_dwordx4", "v[248:251]", "v7", "s[24:27]", "s67", mods="offen sc1")
        A.I("buffer_load_dwordx4", "v[104:107]", "v7", "s[24:27]", "s68", mods="offen sc1")
    OWN = 208; XU = 32; KT = 18
    def mm(k, tj, e):
        acc = vr(ACC + 32 * tj + 16 * e, 16)
        A.I("v_mfma_f32_32x32x16_bf16", acc, vr(HR(k) + 4 * tj, 4), vr(wreg(k, e), 4), acc if k else "0")
    def addr_setup():
        A.I("v_add_u32", "v252", "s57", "v2")
        A.I("v_add_u32", "v253", "s61", "v2")
        A.I("s_lshl_b32", "s71", "s22", 5)
        A.I("v_add_u32", "v63", "s71", "v253")
        A.I("v_lshrrev_b32", "v56", 4, "v5")
        A.I("v_mul_u32_u24", "v56", 4128, "v56")
        A.I("v_bfe_u32", "v57", "v5", 3, 1)
        A.I("v_mul_u32_u24", "v57", 1040, "v57")
        A.I("v_add_u32", "v56", "v56", "v57")
        A.I("v_and_b32", "v57", 7, "v5")
        A.I("v_lshl_add_u32", "v56", "v57", 7, "v56")
        A.I("v_lshl_add_u32", "v56", "v4", 3, "v56")
        A.I("v_add_u32", "v56", "s71", "v56")
        for sl in range(3):
            A.I("s_add_u32", "s71", "s22", 1 + sl)
            A.I("s_and_b32", "s71", "s71", 3)
            A.I("s_mul_i32", "s72", "s71", 3072)
            A.I("s_mul_i32", "s73", "s22", 12288)
            A.I("s_add_u32", "s72", "s72", "s73")
            A.I("v_add_u32", vr(224 + sl), "s72", "v2")
            A.I("s_lshl_b32", "s71", "s71", 12)
            A.I("s_lshl_b32", "s72", "s22", 10)
            A.I("s_add_u32", "s71", "s71", "s72")
            A.I("s_add_u32", "s71", "s71", XB + 16384)
            A.I("v_add_u32", vr(58 + sl), "s71", "v2")
    for k in range(KT):
        A.wait_vm(f"h{k}")
        stampn(A, f"m_k{k}")
        if k >= 12: A.wait_l(f"S{k}")
        for tj in range(2):
            for e in range(2): mm(k, tj, e)
        for kk in sched.get(k, []): issueH(kk)
        if DEEP:
            if 10 <= k < KT: w2read(k + 2)
        elif k < 10: w2read(k + 12)
        if k == 13: pollw()
        if k == 12:
            A.I("s_lshl_b32", "s74", "s51", 10)
            A.I("s_lshl_b32", "s71", "s22", 8)
            A.I("s_add_u32", "s74", "s74", "s71")
            A.I("s_add_u32", "s74", "s74", hex(STAT + 4))
            A.I("v_and_b32", "v8", 15, "v1")
            A.I("v_lshlrev_b32", "v8", 4, "v8")
            A.I("buffer_load_dword", "v108", "v8", "s[24:27]", "s74", mods="offen sc1", tag="rr")
            A.I("v_lshlrev_b32", "v8", 4, "v4")
        if k == 17:
            A.wait_vm("rr")
            for qq in range(8):
                A.I("ds_bpermute_b32", vr(96 + qq), "v8", "v108", mods=f"offset:{(qq >> 2) * 32 + (qq & 3) * 4}")
    if DEEP:
        w2read(20); w2read(21)
    A.wait_vm("h21")
    A.wait(lgkm=0)
    unp = [(mn, ops) for q in range(8) for mn, ops in (("v_lshlrev_b32", [vr(XU + 2 * q), 16, vr(XR + q)]), ("v_and_b32", [vr(XU + 2 * q + 1), "s64", vr(XR + q)]))]
    unp += [("v_lshlrev_b32", ["v124", 16, "v12"]), ("v_lshlrev_b32", ["v126", 16, "v3"])] + [("v_mul_f32", [vr(96 + q), vr(96 + q), vr(96 + q)]) for q in range(8)]
    for n, k in enumerate(range(KT, 22)):
        for e in range(2): mm(k, 0, e)
        if n == 0: addr_setup()
        if n == 1 and "kx3" not in OPTS:
            A.wait_vm("pw")
            A.I("v_cmp_ne_u32", "vcc", PF, TAG)
            A.I("s_cbranch_vccnz", L("M_s_no"))
            sload(); A.vmq.pop(); A.vmq.pop()
            A.I("s_mov_b32", "s75", 1)
            A.I("s_branch", L("M_s_np"))
            A.label(L("M_s_no"))
            pollw(); A.vmq.pop()
            A.label(L("M_s_np"))
    A.I("s_setprio", 3)
    def srcs(wd): return [ACC + 32 * (wd >> 1) + 16 * e + 8 * (wd & 1) + 4 * q for e in range(2) for q in range(2)]
    def wr(wd, q, r):
        if q < 3: A.I("ds_write_b128", "v252", vr(r, 4), mods=f"offset:{wd * 12288 + q * 1024}")
        else: A.I("ds_write_b128", "v253", vr(r, 4), mods=f"offset:{16384 + wd * 1024}")
    hist0 = list(A.hist)
    for wd in range(4):
        mms = [(KT + 2 * wd + (n >> 1), 1, n & 1) for n in range(4)] if wd < 2 else []
        if wd == 0:
            mm(*mms.pop(0)); mm(*mms.pop(0))
        if wd == 2:
            stampn(A, "m_g2")
            for mn, ops in unp: A.I(mn, *ops)
        A.I("s_cmp_eq_u32", "s22", wd)
        A.I("s_cbranch_scc1", L(f"own{wd}"))
        m2 = list(mms)
        h0 = list(A.hist)
        for q, r in enumerate(srcs(wd)):
            wr(wd, q, r)
            if m2: mm(*m2.pop(0))
        A.I("s_branch", L(f"nxt{wd}"))
        A.label(L(f"own{wd}"))
        A.hist = h0
        m2 = list(mms)
        for q, r in enumerate(srcs(wd)):
            for i in range(4): A.I("v_mov_b32", vr(OWN + 4 * q + i), vr(r + i))
            if m2: mm(*m2.pop(0))
        A.label(L(f"nxt{wd}"))
    A.I("v_mov_b32", "v57", "s75")
    A.I("v_mov_b32", "v62", "s61")
    A.I("v_mov_b32", "v61", XB + 2304)
    A.I("s_cmp_eq_u32", "s75", 1)
    A.I("s_cbranch_scc0", L("M_s_skip"))
    A.wait(vm=0)
    A.I("ds_write_b128", "v63", "v[248:251]")
    A.I("ds_write_b128", "v63", "v[104:107]", mods="offset:1040")
    A.label(L("M_s_skip"))
    A.I("ds_write_b32", "v62", "v57", mods="offset:2304")
    A.I("s_mov_b32", "s72", "0xbfb8aa3b")
    A.I("s_mov_b32", "s73", "0xbfb8aa3b")
    stampn(A, "m_t2")
    A.wait(lgkm=0)
    stampn(A, "m_t3")
    A.I("s_barrier")
    stampn(A, "m_red")
    RD = 160
    A.I("ds_read2st64_b32", "v[112:113]", "v61", mods="offset0:0 offset1:16")
    A.I("ds_read2st64_b32", "v[114:115]", "v61", mods="offset0:32 offset1:48")
    for sl in range(3):
        for q in range(4):
            if q < 3: A.I("ds_read_b128", vr(RD + 16 * sl + 4 * q, 4), vr(224 + sl), mods=f"offset:{q * 1024}")
            else: A.I("ds_read_b128", vr(RD + 16 * sl + 4 * q, 4), vr(58 + sl), tag=f"R{sl}")
    SV = 112
    def s_stage():
        A.I("s_cmp_eq_u32", "s75", 1)
        A.I("s_cbranch_scc1", L("M_s_have"))
        if "kx3" not in OPTS and "nof3" not in OPTS: spin_check(A, L, "M_p3", PF, TAG, pollw)
        sload()
        A.label(L("M_s_have"))
        stampn(A, "m_f3")
    for sl in range(3):
        A.wait_l(f"R{sl}")
        for p in range(8):
            A.I("v_pk_add_f32", vr(OWN + 2 * p, 2), vr(OWN + 2 * p, 2), vr(RD + 16 * sl + 2 * p, 2))
    T_ = 128; SU = 144
    stampn(A, "m_t4")
    A.I("v_and_b32", "v112", "v112", "v113")
    A.I("v_and_b32", "v114", "v114", "v115")
    A.I("v_and_b32", "v112", "v112", "v114")
    A.I("v_readfirstlane_b32", "s74", "v112")
    A.I("s_cmp_eq_u32", "s74", 1)
    A.I("s_cbranch_scc1", L("M_s_all1"))
    s_stage()
    A.label(L("M_s_all1"))
    for p in range(8):
        A.I("v_pk_fma_f32", vr(OWN + 2 * p, 2), vr(OWN + 2 * p, 2), vr(96 + 2 * (p & 3), 2), "v[124:125]" if p < 4 else "v[126:127]", mods="op_sel_hi:[1,1,0]")
    for p in range(8): A.I("v_pk_mul_f32", vr(T_ + 2 * p, 2), vr(OWN + 2 * p, 2), "s[72:73]")
    A.I("s_cmp_eq_u32", "s74", 1)
    A.I("s_cbranch_scc1", L("M_s_all2"))
    A.wait(vm=0)
    A.I("ds_write_b128", "v63", "v[248:251]")
    A.I("ds_write_b128", "v63", "v[104:107]", mods="offset:1040")
    A.wait(lgkm=0)
    A.I("s_barrier")
    A.label(L("M_s_all2"))
    stampn(A, "m_t7")
    for e in range(2):
        for gp in range(2):
            A.I("ds_read_b64", vr(SV + 4 * e + 2 * gp, 2), "v56", mods=f"offset:{XB + 2 * 4128 * e + 16 * gp}")
    for r in range(16): A.I("v_exp_f32", vr(T_ + r), vr(T_ + r))
    for p in range(8): A.I("v_pk_add_f32", vr(T_ + 2 * p, 2), vr(T_ + 2 * p, 2), "1.0", mods="op_sel_hi:[1,0]")
    for r in range(16): A.I("v_rcp_f32", vr(T_ + r), vr(T_ + r))
    for p in range(8): A.I("v_pk_mul_f32", vr(T_ + 2 * p, 2), vr(T_ + 2 * p, 2), vr(OWN + 2 * p, 2))
    A.wait(lgkm=0)
    for k in range(8):
        A.I("v_lshlrev_b32", vr(SU + 2 * k), 16, vr(SV + k))
        A.I("v_and_b32", vr(SU + 2 * k + 1), "s64", vr(SV + k))
    for p in range(8): A.I("v_pk_mul_f32", vr(T_ + 2 * p, 2), vr(T_ + 2 * p, 2), vr(SU + 2 * p, 2))
    stampn(A, "m_t8")
    A.I("s_mov_b32", "vcc_lo", "0x55555555")
    A.I("s_mov_b32", "vcc_hi", "0x55555555")
    QP = "quad_perm:[1,0,3,2] row_mask:0xf bank_mask:0xf"
    for p in range(8): A.I("v_cndmask_b32_dpp", vr(SU + 2 * p), vr(T_ + 2 * p + 1), vr(T_ + 2 * p), "vcc", mods=QP)
    A.I("s_not_b64", "vcc", "vcc")
    for p in range(8): A.I("v_cndmask_b32_dpp", vr(SU + 2 * p + 1), vr(T_ + 2 * p), vr(T_ + 2 * p + 1), "vcc", mods=QP)
    for p in range(8):
        A.I("v_pk_add_f32", vr(SU + 2 * p, 2), vr(SU + 2 * p, 2), vr(XU + 2 * p, 2))
        A.I("v_cvt_pk_bf16_f32", vr(64 + p), vr(SU + 2 * p), vr(SU + 2 * p + 1))
        so, im = xo(p >> 2, (p >> 1) & 1, p & 1)
        A.I("buffer_store_dword", vr(64 + p), "v9", "s[44:47]", so, mods=f"offen offset:{im}" + os.environ.get("OUTMOD", ""))
    stampn(A, "m_t9")
    A.unpk = False
    A.label(L("M_exit"))
    stamp_flush(A, 0, "s[20:21]", 7)
    A.I("s_endpgm")
```

```python
import re, os

def regs_of(tok):
    tok = tok.strip()
    tok = tok.lstrip('-')
    if tok.startswith('|') and tok.endswith('|'): tok = tok[1:-1]
    if tok.startswith('abs(') and tok.endswith(')'): tok = tok[4:-1]
    m = re.fullmatch(r'([vas])(\d+)', tok)
    if m: return [(m.group(1), int(m.group(2)))]
    m = re.fullmatch(r'([vas])\[(\d+):(\d+)\]', tok)
    if m: return [(m.group(1), i) for i in range(int(m.group(2)), int(m.group(3)) + 1)]
    if tok == 'vcc': return [('s', 'vcc')]
    if tok == 'exec': return [('s', 'exec')]
    if tok == 'm0': return [('s', 'm0')]
    return []

TRANS = ('v_exp_f32', 'v_log_f32', 'v_rcp_f32', 'v_rsq_f32', 'v_sqrt_f32', 'v_sin_f32', 'v_cos_f32')

class Ins:
    __slots__ = ('mn', 'ops', 'mods', 'w', 'r', 'cls', 'passes', 'srcc', 'text', 'states')

def vr(i, n=1): return f"v{i}" if n == 1 else f"v[{i}:{i+n-1}]"
def ar(i, n=1): return f"a{i}" if n == 1 else f"a[{i}:{i+n-1}]"
def sr(i, n=1): return f"s{i}" if n == 1 else f"s[{i}:{i+n-1}]"

class Asm:
    def __init__(self):
        self.lines = []
        self.hist = []
        self.nnop = 0
        self.unpk = False
        self.vmq = []
        self.lq = []
    def raw(self, text):
        self.lines.append(text)
    def comment(self, t): self.lines.append("    ; " + t)
    def label(self, name, flush=True):
        self.lines.append(name + ":")
        if flush:
            pass
    def _classify(self, mn, ops, mods):
        i = Ins(); i.mn = mn; i.ops = ops; i.mods = mods; i.passes = 0; i.srcc = []; i.states = 1
        R = lambda k: regs_of(ops[k]) if k < len(ops) else []
        allr = lambda ks: [x for k in ks for x in R(k)]
        n = len(ops)
        if mn.startswith('v_mfma'):
            i.cls = 'mfma'; i.w = R(0); i.r = allr([1, 2, 3]); i.srcc = R(3)
            i.passes = 8 if '32x32x16' in mn else 4 if '16x16x32' in mn else 2 if '4x4x4' in mn else 16
        elif mn.startswith('v_cmpx'):
            i.cls = 'valu'; i.w = R(0) + [('s', 'exec')]; i.r = allr(range(1, n))
        elif mn.startswith('v_cmp'):
            i.cls = 'valu'; i.w = R(0); i.r = allr(range(1, n))
        elif mn.startswith('v_readfirstlane') or mn.startswith('v_readlane'):
            i.cls = 'valu'; i.w = R(0); i.r = allr(range(1, n))
        elif mn.startswith('v_permlane') and 'swap' in mn:
            i.cls = 'valu'; i.w = allr([0, 1]); i.r = allr([0, 1])
        elif mn.startswith('v_'):
            i.cls = 'valu'; i.w = R(0); i.r = allr(range(1, n))
            if '_co_' in mn: i.w = allr([0, 1]); i.r = allr(range(2, n))
            if mn.startswith(('v_fmac', 'v_dot2c', 'v_pk_fmac')): i.r = i.r + R(0)
            if 'dpp' in mn or 'row_' in mods or 'quad_perm' in mods: i.r = i.r + R(0)
            if mn.startswith('v_cndmask') and n == 3: i.r = i.r + [('s', 'vcc')]
            if 'd16' in mn: i.r = i.r + R(0)
        elif mn.startswith('buffer_load') or mn.startswith('global_load'):
            i.cls = 'vmem'
            if ' lds' in (' ' + mods) or '_lds_' in mn:
                i.w = []; i.r = allr(range(0, n)) + [('s', 'm0')]; i.cls = 'ldsdma'
            else:
                i.w = R(0); i.r = allr(range(1, n))
        elif mn.startswith('buffer_store') or mn.startswith('global_store') or mn.startswith('buffer_atomic') or mn.startswith('global_atomic'):
            i.cls = 'vstore'; i.w = []; i.r = allr(range(0, n))
        elif mn.startswith('ds_read') or mn.startswith('ds_bpermute') or mn.startswith('ds_swizzle'):
            i.cls = 'ds'; i.w = R(0); i.r = allr(range(1, n))
        elif mn.startswith('ds_'):
            i.cls = 'ds'; i.w = []; i.r = allr(range(0, n))
        elif mn == 's_nop':
            i.cls = 'nop'; i.w = []; i.r = []; i.states = int(ops[0]) + 1
        elif mn.startswith('s_'):
            i.cls = 'salu'
            if mn.startswith(('s_cmp', 's_cbranch', 's_branch', 's_waitcnt', 's_barrier', 's_endpgm', 's_setprio', 's_sleep')):
                i.w = []; i.r = allr(range(0, n))
            else:
                i.w = R(0); i.r = allr(range(1, n))
                if 'saveexec' in mn: i.w = i.w + [('s', 'exec')]
        else:
            raise ValueError("unknown mnemonic " + mn)
        return i
    def _need(self, p, c):
        need = 0
        pw = set(p.w); cr = set(c.r); cw = set(c.w)
        isv = lambda s: {x for x in s if x[0] in 'va'}
        iss = lambda s: {x for x in s if x[0] == 's'}
        cdpp = c.cls == 'valu' and ('dpp' in c.mn or 'row_' in c.mods or 'quad_perm' in c.mods)
        if p.cls == 'valu':
            raw_v = isv(pw) & cr
            raw_s = iss(pw) & cr
            if c.cls == 'mfma' and raw_v: need = max(need, 2)
            if c.cls == 'mfma' and ('s', 'exec') in pw: need = max(need, 4)
            if cdpp and raw_v: need = max(need, 2)
            if cdpp and ('s', 'exec') in pw: need = max(need, 5)
            if c.mn.startswith('v_permlane') and raw_v: need = max(need, 2)
            if c.mn.startswith(('v_readfirstlane', 'v_readlane')) and raw_v: need = max(need, 1)
            if c.mn.startswith(('v_readfirstlane', 'v_readlane', 'v_writelane', 'v_permlane')) and ('s', 'exec') in pw: need = max(need, 4)
            if c.cls in ('vmem', 'ldsdma', 'vstore') and raw_s: need = max(need, 5)
            if c.cls == 'valu' and raw_s: need = max(need, 4 if c.mn.startswith(('v_readlane', 'v_writelane')) else 2)
            if c.cls == 'salu' and raw_s: need = max(need, 1)
            if p.mn.startswith(TRANS) and c.cls in ('valu', 'mfma') and raw_v: need = max(need, 1 if c.cls == 'valu' else 2)
            if p.mn.startswith('v_dot') and (isv(pw) & (cr | cw)):
                same = (c.mn == p.mn)
                if same and not (isv(pw) & set(regs_of(c.ops[1]) + regs_of(c.ops[2]))): pass
                else: need = max(need, 3)
            if ('op_sel' in p.mods or 'sdwa' in p.mn or 'dst_sel' in p.mods) and not p.mn.startswith('v_pk') and c.cls == 'valu' and (isv(pw) & (cr | cw)): need = max(need, 1)
        if p.cls == 'mfma':
            P = p.passes
            tbl_ab = {2: 5, 4: 8, 8: 12, 16: 20}[P]
            if c.cls == 'mfma':
                if pw & set(regs_of(c.ops[1]) + regs_of(c.ops[2])): need = max(need, tbl_ab)
                ov = pw & set(c.srcc)
                if ov:
                    if set(c.srcc) == pw and c.passes == P: need = max(need, 2 if P == 2 else 0)
                    else: need = max(need, {2: 4, 4: 6, 8: 10, 16: 18}[P])
                elif pw & cw: need = max(need, tbl_ab)
            elif c.cls in ('valu', 'vmem', 'vstore', 'ds', 'ldsdma'):
                if pw & (cr | cw): need = max(need, tbl_ab)
            if c.cls == 'valu' and set(p.srcc) & cw: need = max(need, {2: 1, 4: 3, 8: 7, 16: 15}[P])
        if p.cls == 'vstore' and ('x4' in p.mn or 'x3' in p.mn):
            data = set(regs_of(p.ops[0])) if p.mn.startswith('buffer') else set(regs_of(p.ops[1]))
            if data & cw: need = max(need, 2 if c.cls in ('valu', 'mfma') else 1)
        if p.cls == 'salu' and ('s', 'm0') in pw and c.cls == 'ldsdma': need = max(need, 1)
        return need
    def _unpack(self, mn, ops, mods):
        base = {"v_pk_mul_f32": "v_mul_f32", "v_pk_add_f32": "v_add_f32", "v_pk_fma_f32": "v_fma_f32"}[mn]
        n = len(ops) - 1
        def lst(key, default):
            m = re.search(key + r":\[([01,]+)\]", mods)
            return [int(x) for x in m.group(1).split(",")] if m else [default] * n
        osl, osh, ngl, ngh = lst("op_sel", 0) if re.search(r"op_sel:\[", mods) else [0] * n, lst("op_sel_hi", 1), lst("neg_lo", 0), lst("neg_hi", 0)
        def half(tok, hi):
            m = re.fullmatch(r"([vs])\[(\d+):(\d+)\]", tok)
            if m: return f"{m.group(1)}{int(m.group(2)) + hi}"
            return tok
        dl, dh = half(ops[0], 0), half(ops[0], 1)
        lo = [("-" if ngl[i] else "") + half(ops[i + 1], osl[i]) for i in range(n)]
        hi = [("-" if ngh[i] else "") + half(ops[i + 1], osh[i]) for i in range(n)]
        assert dl not in [x.lstrip("-") for x in hi], "unpack hazard"
        for d, src in ((dl, lo), (dh, hi)):
            b = base
            if base != "v_fma_f32":
                if any(x.startswith("-") for x in src): b = base + "_e64"
                elif not src[1].startswith("v"): src = [src[1], src[0]]
            self.I(b, d, *src)
    def I(self, mn, *ops, mods="", tag=None):
        ops = [str(o) for o in ops]
        if self.unpk and mn in ("v_pk_mul_f32", "v_pk_add_f32", "v_pk_fma_f32"):
            return self._unpack(mn, ops, mods)
        c = self._classify(mn, ops, mods)
        if c.cls in ('vmem', 'vstore', 'ldsdma'): self.vmq.append(tag)
        if c.cls == 'ds': self.lq.append(tag)
        dist = 0; pad = 0
        for p in reversed(self.hist[-24:]):
            n = self._need(p, c)
            if n > dist: pad = max(pad, n - dist)
            dist += p.states
            if dist >= 20: break
        while pad > 0:
            k = min(pad, 16)
            self._emit(self._classify('s_nop', [str(k - 1)], ""))
            self.nnop += 1
            pad -= k
        self._emit(c)
    def _emit(self, c):
        t = "    " + c.mn + (" " + ", ".join(c.ops) if c.ops else "") + (" " + c.mods if c.mods else "")
        self.lines.append(t)
        self.hist.append(c)
    def wait(self, vm=None, lgkm=None):
        parts = []
        if vm is not None: parts.append(f"vmcnt({vm})")
        if lgkm is not None: parts.append(f"lgkmcnt({lgkm})")
        self.I("s_waitcnt", " ".join(parts))
    def _after(self, q, tag):
        idx = [i for i, t in enumerate(q) if t == tag]
        assert idx, f"tag {tag} not found"
        return len(q) - 1 - idx[-1]
    def wait_vm(self, tag, lgkm=None):
        n = self._after(self.vmq, tag)
        if n >= 63:
            if lgkm is not None: self.wait(lgkm=lgkm)
            return
        self.wait(vm=n, lgkm=lgkm)
    def wait_l(self, tag):
        n = self._after(self.lq, tag)
        self.wait(lgkm=min(n, 15))
    def text(self): return "\n".join(self.lines) + "\n"

def kernel_footer(name, vgpr, accum, sgpr=102):
    return f"""
.section .rodata,"a"
.p2align 6
.amdhsa_kernel {name}
  .amdhsa_next_free_vgpr {vgpr}
  .amdhsa_next_free_sgpr {sgpr}
  .amdhsa_accum_offset {accum}
  .amdhsa_group_segment_fixed_size 0
  .amdhsa_kernarg_size 136
  .amdhsa_ieee_mode 0
  .amdhsa_user_sgpr_count 2
  .amdhsa_user_sgpr_kernarg_segment_ptr 1
  .amdhsa_system_sgpr_workgroup_id_x 1
.end_amdhsa_kernel
.text
"""
def kernel_header(name):
    return f""".text
.globl {name}
.p2align 8
.type {name},@function
{name}:
"""

STAMPS = [False]
STAMP_OFF = 0x1400000
def stamp_at(A, slot, tmp=84):
    if not STAMPS[0]: return
    A.I("s_memtime" if os.environ.get("CYC") else "s_memrealtime", sr(tmp + 2 * slot, 2))
    if slot == 0: A.I("s_memtime", "s[80:81]")
def stamp_flush(A, kidx, wsreg, nslots, tmp=84, V0="v124", V1="v125", V2="v126", V01="v[124:125]"):
    if not STAMPS[0]: return
    A.wait(vm=0, lgkm=0)
    A.I("s_memtime" if os.environ.get("CYC") else "s_memrealtime", sr(tmp + 2 * (nslots - 1), 2))
    A.I("s_memtime", "s[82:83]")
    if os.environ.get("DBGOUT"):
        A.wait(lgkm=0)
        A.I("s_load_dwordx2", "s[98:99]", "s[0:1]", 120)
        A.I("s_and_b32", "s100", "s2", 255)
        A.I("v_readfirstlane_b32", "s101", "v0")
        A.I("s_lshr_b32", "s101", "s101", 6)
        A.I("s_or_b32", "s100", "s100", "s101")
        A.I("s_lshl_b32", "s101", "s101", 8)
        A.I("s_or_b32", "s100", "s100", "s101")
        A.wait(lgkm=0)
        A.I("s_cmp_lg_u32", "s100", 5)
        A.raw("    s_cbranch_scc1 L_dbgskip%d" % len(A.lines))
        lab = "L_dbgskip%d" % (len(A.lines) - 1)
        A.I("s_lshr_b32", "s100", "s2", 8)
        A.I("s_mul_i32", "s100", "s100", 28)
        A.I("s_add_u32", "s100", "s100", 8)
        for k in range(1, nslots):
            A.I("s_sub_u32", "s101", sr(tmp + 2 * k), sr(tmp))
            A.I("v_mov_b32", V0, "s101")
            A.I("v_mov_b32", V2, "s100")
            A.I("global_store_dword", V2, V0, "s[98:99]", mods=f"offset:{4 * (k - 1)}")
        A.raw(lab + ":")
        return
    A.I("s_lshl_b32", "s98", "s2", 8)
    A.I("s_add_u32", "s98", "s98", hex(STAMP_OFF + kidx * 0x40000))
    A.I("v_and_b32", V2, "0x3c0", "v0")
    A.I("v_add_u32", V2, "s98", V2)
    A.I("v_and_b32", V1, 63, "v0")
    A.I("v_cmp_eq_u32", "vcc", 0, V1)
    A.wait(lgkm=0)
    A.I("s_and_saveexec_b64", "s[100:101]", "vcc")
    for k in range(nslots):
        A.I("v_mov_b32", V0, sr(tmp + 2 * k))
        A.I("v_mov_b32", V1, sr(tmp + 2 * k + 1))
        A.I("global_store_dwordx2", V2, V01, wsreg, mods=f"offset:{8 * k}")
    A.I("s_sub_u32", "s82", "s82", "s80")
    A.I("s_getreg_b32", "s83", "hwreg(HW_REG_HW_ID)")
    A.I("v_mov_b32", V0, "s82")
    A.I("v_mov_b32", V1, "s83")
    A.I("global_store_dwordx2", V2, V01, wsreg, mods="offset:56")

import os
STAMPMAP = {}
for kv in os.environ.get("STAMPSET", "").split(","):
    if "=" in kv:
        k, v = kv.split("="); STAMPMAP[k] = int(v)
OPTS = set(os.environ.get("OPTS", "").split(","))
def stampn(A, name):
    if name in STAMPMAP: stamp_at(A, STAMPMAP[name])
```

```python
from asmlib import *
from layout1 import *
from k_prep import srd, DPPM, reduce32, gen_kgen_pair_setup, gen_kgen_pair_np
import k_prep
def gen_kgen_pair(A, P, vidx, pi):
    lim = int(os.environ.get('NPFROM', 8))
    (gen_kgen_pair_np if pi >= lim else k_prep.gen_kgen_pair)(A, P, vidx, pi)
KC = 0
UL = 33280
KDT = UL + 9216
KTS = 5888
ACCX = KDT + 2 * KTS
PSET = [(0, 3, 5, 6), (1, 2, 4, 7)]

def spin_check(A, L, name, vflag, vtag, reissue, cnt="s70", first=False, wait_tag=None, sleep=2):
    if first: reissue()
    A.I("s_mov_b32", cnt, SPIN_LIMIT)
    if wait_tag: A.wait_vm(wait_tag)
    else: A.wait(vm=0)
    A.label(L(name))
    A.I("v_cmp_ne_u32", "vcc", vflag, vtag)
    A.I("s_cbranch_vccz", L(name + "_ok"))
    A.I("s_sub_u32", cnt, cnt, 1)
    A.I("s_cbranch_scc1", L(name + "_ok"))
    A.I("s_sleep", sleep)
    reissue(); A.vmq.pop()
    A.wait(vm=0)
    A.I("s_branch", L(name))
    A.label(L(name + "_ok"))

def get_tag(A, L, name, vtag, vzero, dbg, cnt="s70"):
    A.I("s_mov_b32", cnt, SPIN_LIMIT)
    A.label(L(name))
    A.I("v_cmp_eq_u32", "vcc", 0, vtag)
    A.I("s_cbranch_vccz", L(name + "_ok"))
    A.I("s_sub_u32", cnt, cnt, 1)
    A.I("s_cbranch_scc1", L(name + "_ok"))
    A.I("s_sleep", 2)
    A.I("global_load_dword", vtag, vzero, dbg, mods="sc1"); A.vmq.pop()
    A.wait(vm=0)
    A.I("s_branch", L(name))
    A.label(L(name + "_ok"))

def code_prefetch(A, start_label, nbytes, vtmp, vdst, L):
    A.I("s_getpc_b64", "s[74:75]")
    A.I("v_lshlrev_b32", vtmp, 7, "v0")
    assert nbytes <= 32768
    A.I("v_cmp_gt_u32", "vcc", nbytes - 256, vtmp)
    A.I("v_cndmask_b32", vtmp, 0, vtmp, "vcc")
    A.I("global_load_dword", vdst, vtmp, "s[74:75]")

def code_prefetch2(A, nbytes):
    per = ((nbytes - 256) // 128 + 31) // 32
    A.I("s_getpc_b64", "s[74:75]")
    A.I("s_bfe_u32", "s72", "s2", "0x50003")
    A.I("s_mul_i32", "s72", "s72", per * 128)
    A.I("v_lshlrev_b32", "v3", 7, "v0")
    A.I("v_add_u32", "v3", "s72", "v3")
    A.I("v_min_u32", "v3", nbytes - 256, "v3")
    A.I("v_cmp_gt_u32", "vcc", per, "v0")
    A.I("s_and_saveexec_b64", "s[72:73]", "vcc")
    A.I("global_load_dword", "v3", "v3", "s[74:75]")
    A.I("s_mov_b64", "exec", "s[72:73]")

def swarm(A, base, sid, sw):
    A.I("s_lshl_b32", "s96", sid, 2)
    A.I("s_add_u32", "s96", "s96", sw)
    A.I("s_mul_i32", "s96", "s96", 11 * 128)
    A.I("s_min_u32", "s96", "s96", 1376 * 1024 - 11 * 128)
    A.I("s_add_u32", "s96", "s96", base[:base.index(':')].replace('[', ''))
    A.I("s_addc_u32", "s97", "s" + base[base.index(':') + 1:-1], 0)
    for i in range(11):
        A.I("s_load_dword", "s99", "s[96:97]", 128 * i)

def gen_K(A, L, ksize):
    LNAT = int(os.environ.get("LNAT", 2)); PRIOAT = int(os.environ.get("PRIOAT", 11))
    A.label(L("K"))
    if "nok" in OPTS: A.I("s_endpgm")
    A.I("s_setprio", int(os.environ.get("KP0", 2)))
    A.I("s_memrealtime", "s[76:77]")
    A.I("s_load_dwordx16", "s[4:19]", "s[0:1]", 0)
    A.I("s_load_dwordx2", "s[20:21]", "s[0:1]", 64)
    A.I("s_load_dwordx4", "s[24:27]", "s[0:1]", 120)
    A.I("s_load_dwordx2", "s[22:23]", "s[0:1]", 96)
    A.I("s_load_dwordx2", "s[68:69]", "s[0:1]", 80)
    if 'nocp' not in OPTS: code_prefetch2(A, ksize)
    A.I("s_and_b32", "s3", "s2", 255)
    A.I("v_and_b32", "v1", 63, "v0")
    A.I("v_lshrrev_b32", "v2", 6, "v0")
    A.I("v_readfirstlane_b32", "s28", "v2")
    A.I("s_and_b32", "s29", "s3", 7)
    A.I("s_lshl_b32", "s29", "s29", 5)
    A.I("s_lshr_b32", "s30", "s3", 3)
    A.I("s_add_u32", "s29", "s29", "s30")
    A.I("s_lshr_b32", "s30", "s28", 1)
    A.I("s_and_b32", "s31", "s28", 1)
    A.I("s_lshl_b32", "s32", "s29", 1)
    A.I("s_add_u32", "s32", "s32", "s30")
    A.I("s_lshl_b32", "s33", "s31", 7)
    A.I("s_lshl_b32", "s34", "s32", 8)
    A.I("s_add_u32", "s33", "s33", "s34")
    A.I("v_and_b32", "v2", 7, "v1")
    A.I("v_lshl_add_u32", "v2", "v2", 4, "s33")
    A.I("s_lshl_b32", "s34", "s3", 3)
    A.I("s_lshl_b32", "s35", "s28", 1)
    A.I("s_add_u32", "s34", "s34", "s35")
    A.I("s_lshl_b32", "s34", "s34", 10)
    A.I("v_lshrrev_b32", "v5", 5, "v1")
    A.I("v_and_b32", "v6", 31, "v1")
    A.I("v_lshlrev_b32", "v4", 10, "v5")
    A.I("v_lshl_add_u32", "v4", "v6", 4, "v4")
    A.I("v_add_u32", "v4", "s34", "v4")
    A.I("v_mov_b32", "v122", 0)
    A.I("v_lshlrev_b32", "v7", 4, "v1")
    A.I("s_lshl_b32", "s33", "s29", 2)
    A.I("s_lshl_b32", "s57", "s3", 12)
    A.I("s_lshl_b32", "s58", "s28", 10)
    A.I("s_add_u32", "s57", "s57", "s58")
    A.I("s_add_u32", "s58", "s57", 1 << 20)
    A.wait(lgkm=0)
    P = 48; X = 160
    if "xfirst" in OPTS:
        A.I("global_load_dwordx4", vr(X, 4), "v4", "s[4:5]")
        A.I("global_load_dwordx4", vr(X + 4, 4), "v4", "s[4:5]", mods="offset:512", tag="x")
    if "w1first" in OPTS:
        srd(A, 64, 68, 1376 * 1024)
        A.I("buffer_load_dwordx4", "v[60:63]", "v7", "s[64:67]", "s57", mods="offen")
        A.I("buffer_load_dwordx4", "v[60:63]", "v7", "s[64:67]", "s58", mods="offen")
    A.I("s_mov_b64", "exec", "0xff")
    for k, sb in enumerate((6, 8, 10, 12, 14, 16)):
        A.I("v_mov_b32", "v136", sr(sb))
        A.I("v_mov_b32", "v137", sr(sb + 1))
        if k < 5: A.I("s_lshl_b64", "exec", "exec", 8)
    A.I("s_mov_b32", "exec_lo", -1)
    A.I("s_mov_b32", "exec_hi", "0xffff")
    A.I("v_add_co_u32", "v136", "vcc", "v136", "v2")
    A.I("v_addc_co_u32", "v137", "vcc", 0, "v137", "vcc")
    A.I("global_load_dwordx4", "v[140:143]", "v[136:137]", "off", tag="par")
    A.I("s_mov_b64", "exec", -1)
    A.I("s_load_dword", "s36", "s[20:21]", "s33")
    A.I("s_load_dword", "s52", "s[18:19]", "s33")
    A.I("s_or_b32", "s76", "s76", 1)
    A.I("s_or_b32", "s61", "s3", "s28")
    A.I("s_cmp_lg_u32", "s61", 0)
    A.I("s_cbranch_scc1", L("K_notag"))
    A.I("v_mov_b32", "v123", "s76")
    A.I("s_mov_b64", "exec", 1)
    A.I("global_store_dword", "v122", "v123", "s[24:25]", mods="sc1"); A.vmq.pop()
    A.I("s_mov_b64", "exec", -1)
    A.label(L("K_notag"))
    if "xfirst" not in OPTS:
        A.I("global_load_dwordx4", vr(X, 4), "v4", "s[4:5]")
        A.I("global_load_dwordx4", vr(X + 4, 4), "v4", "s[4:5]", mods="offset:512", tag="x")
    srd(A, 44, 26, WS_SIZE)
    W2AT = int(os.environ.get("W2AT", 3))
    def w2warm():
        srd(A, 64, 22, 1376 * 1024)
        A.I("buffer_load_dwordx4", "v[60:63]", "v7", "s[64:67]", "s57", mods="offen")
        A.I("buffer_load_dwordx4", "v[60:63]", "v7", "s[64:67]", "s58", mods="offen")
    if "swarm" in OPTS:
        swarm(A, "s[68:69]", "s3", "s28")
    else:
        srd(A, 64, 68, 1376 * 1024)
        if "w1part" in OPTS:
            A.I("s_add_u32", "s60", "s57", 516 * 1024)
            A.I("buffer_load_dwordx4", "v[60:63]", "v7", "s[64:67]", "s60", mods="offen")
        elif "now1" not in OPTS and "w1first" not in OPTS:
            A.I("buffer_load_dwordx4", "v[60:63]", "v7", "s[64:67]", "s57", mods="offen")
            A.I("buffer_load_dwordx4", "v[60:63]", "v7", "s[64:67]", "s58", mods="offen")
        if W2AT < 0: w2warm()
    A.I("s_mov_b32", "s56", "0x3f803f80")
    A.I("s_mov_b32", "s59", "0xffff0000")
    A.I("v_and_b32", "v56", 15, "v1")
    A.I("v_cvt_f32_u32", "v56", "v56")
    LNL = ACCX + 4096
    A.I("s_mul_i32", "s60", "s28", 2 * 1088)
    A.I("s_add_u32", "s60", "s60", LNL)
    A.I("v_mul_u32_u24", "v182", 1088, "v5")
    A.I("v_lshl_add_u32", "v182", "v6", 4, "v182")
    A.I("v_add_u32", "v182", "s60", "v182")
    A.I("v_mov_b32", "v168", 0)
    A.I("v_mov_b32", "v169", 0)
    A.I("s_lshl_b32", "s54", "s28", 8)
    A.I("s_add_u32", "s54", "s54", LNL)
    A.I("v_bfe_u32", "v183", "v1", 2, 2)
    A.I("v_mul_u32_u24", "v183", 1088, "v183")
    A.I("v_lshrrev_b32", "v18", 4, "v1")
    A.I("v_lshl_add_u32", "v183", "v18", 5, "v183")
    A.I("v_and_b32", "v18", 3, "v1")
    A.I("v_lshl_add_u32", "v183", "v18", 3, "v183")
    A.I("v_add_u32", "v183", "s54", "v183")
    A.I("s_lshl_b32", "s54", "s3", 13)
    A.I("s_lshl_b32", "s55", "s28", 11)
    A.I("s_add_u32", "s54", "s54", "s55")
    A.I("s_add_u32", "s55", "s54", hex(XNT))
    A.I("s_lshl_b32", "s53", "s28", 10)
    A.I("s_add_u32", "s53", "s53", ACCX)
    A.I("v_add_u32", "v138", "s53", "v7")
    A.I("v_lshl_add_u32", "v139", "v1", 1, "s53")
    A.I("s_mul_i32", "s37", "s30", KTS)
    A.I("s_add_u32", "s37", "s37", KDT + 32)
    A.I("s_mov_b32", "s38", -17024)
    A.I("s_movk_i32", "s39", 127)
    A.I("s_lshl_b32", "s40", "s31", 10)
    A.I("v_lshl_add_u32", "v20", "v1", 3, "s40")
    AD = 200
    for rd in range(2):
        for ii in range(11):
            A.I("v_sub_u32", vr(AD + 11 * rd + ii), 2044 - 512 * rd - (ii - 3), "v20")
        for ii in range(11):
            if rd == 1 and ii >= 8:
                A.I("v_max_i32", vr(24 + ii), 0, vr(AD + 11 * rd + ii))
                A.I("v_cvt_f32_u32", vr(24 + ii), vr(24 + ii))
            else:
                A.I("v_cvt_f32_u32", vr(24 + ii), vr(AD + 11 * rd + ii))
        for ii in range(0, 11, 2):
            A.I("v_cvt_pk_bf16_f32", vr(36 + ii // 2), vr(24 + ii), vr(24 + min(ii + 1, 10)))
        for ii in range(11):
            A.I("v_mad_u32_u16", vr(24 + ii), vr(36 + ii // 2), 1, "s38", mods=("op_sel:[1,0,0,0]" if ii & 1 else ""))
        for ii in range(11):
            A.I("v_med3_i32", vr(24 + ii), vr(24 + ii), vr(AD + 11 * rd + ii), "s39")
        for ii in range(11):
            A.I("v_ashrrev_i32", vr(AD + 11 * rd + ii), 3, vr(24 + ii))
        for ii in range(11):
            A.I("v_add_u32", vr(24 + ii), vr(24 + ii), vr(AD + 11 * rd + ii))
        for ii in range(11):
            A.I("v_lshl_add_u32", vr(AD + 11 * rd + ii), vr(24 + ii), 3, "s37")
    for k in range(4): A.I("v_mov_b32", vr(24 + k), 0)
    A.I("s_mul_i32", "s43", "s30", 4608)
    A.I("s_add_u32", "s43", "s43", UL)
    A.I("v_lshl_add_u32", "v10", "v1", 3, "s43")
    A.I("ds_write_b64", "v10", "v[24:25]")
    A.I("s_mul_i32", "s48", "s30", 16640)
    A.I("v_and_b32", "v121", 1, "v1")
    A.I("v_lshrrev_b32", "v10", 1, "v1")
    A.I("v_mul_u32_u24", "v11", 4160, "v10")
    A.I("v_lshl_add_u32", "v11", "v121", 4, "v11")
    A.I("v_add_u32", "v11", "s48", "v11")
    A.I("s_sub_u32", "s50", "s37", 32)
    A.I("v_lshl_add_u32", "v12", "v121", 4, "s50")
    A.I("s_mov_b64", "exec", "0xff")
    A.I("ds_write_b128", "v11", "v[24:27]", mods="offset:4096")
    A.I("ds_write_b128", "v12", "v[24:27]")
    A.I("s_mov_b64", "exec", -1)
    A.I("v_lshlrev_b32", "v32", 13, "v10")
    A.I("v_lshl_add_u32", "v32", "v121", 4, "v32")
    A.I("v_mul_u32_u24", "v33", 4608, "v121")
    A.I("v_lshl_add_u32", "v33", "v10", 4, "v33")
    A.I("s_lshl_b32", "s49", "s28", 10)
    A.I("s_add_u32", "s49", "s49", UL + 512)
    A.I("v_add_u32", "v33", "s49", "v33")
    if "agg" not in OPTS:
        A.I("s_lshl_b32", "s71", "s28", F1SH + 6)
        A.I("v_lshl_add_u32", "v120", "v1", F1SH, "s71")
        A.I("s_mov_b32", "s41", hex(F1))
    else:
        A.I("v_mov_b32", "v120", 0)
        A.I("s_bfe_u32", "s41", "s3", "0x40001")
        A.I("s_lshl_b32", "s41", "s41", 7)
        A.I("s_add_u32", "s41", "s41", hex(FA))
    A.I("s_lshl_b32", "s42", "s31", 2)
    A.I("s_add_u32", "s42", "s42", "s37")
    A.I("v_and_b32", "v8", 15, "v1")
    A.I("v_lshrrev_b32", "v14", 4, "v1")
    A.I("v_mul_u32_u24", "v34", 144, "v8")
    A.I("v_lshl_add_u32", "v34", "v14", 5, "v34")
    A.I("v_lshl_add_u32", "v34", "v5", 3, "v34")
    A.I("v_add_u32", "v34", "s42", "v34")
    for sg in range(1, 4): A.I("v_add_u32", vr(34 + sg), 1152 * sg, "v34")
    A.I("v_mov_b32", "v39", "s42")
    A.I("s_lshl_b32", "s49", "s31", 11)
    A.I("s_add_u32", "s50", "s49", "s48")
    A.I("v_add_u32", "v40", "s50", "v7")
    A.I("v_and_b32", "v41", 3, "v1")
    A.I("v_mul_u32_u24", "v41", 4160, "v41")
    A.I("v_bfe_u32", "v13", "v1", 2, 2)
    A.I("v_lshlrev_b32", "v13", 3, "v13")
    A.I("v_lshl_add_u32", "v13", "v14", 4, "v13")
    A.I("v_sub_u32", "v41", "v41", "v13")
    A.I("s_add_u32", "s50", "s48", 2 * 2052 - 64 * 63)
    A.I("v_add_u32", "v41", "s50", "v41")
    A.I("v_lshlrev_b32", "v42", 5, "v8")
    A.I("v_lshlrev_b32", "v15", 4, "v14")
    A.I("v_sub_u32", "v42", "v42", "v15")
    A.I("s_add_u32", "s50", "s43", 512 + 16 - 448)
    A.I("v_add_u32", "v42", "s50", "v42")
    A.I("v_lshlrev_b32", "v43", 5, "v8")
    A.I("v_lshl_add_u32", "v43", "v14", 3, "v43")
    A.I("s_add_u32", "s50", "s43", "s49")
    A.I("s_add_u32", "s50", "s50", 512)
    A.I("v_add_u32", "v44", "s50", "v43")
    A.wait_vm("par", lgkm=0)
    stampn(A, "k_x")
    A.I("global_load_dword", "v123", "v122", "s[24:25]", mods="sc1", tag="tag")
    A.I("ds_write_b128", "v138", "v[140:143]")
    A.I("s_lshl_b32", "s53", "s30", 4)
    A.I("s_lshr_b32", "s52", "s52", "s53")
    A.I("v_mov_b32", vr(P + 6), "s52")
    A.wait(lgkm=0)
    for k in range(6): A.I("ds_read_u16", vr(P + k), "v139", mods=f"offset:{128 * k}")
    A.wait(lgkm=0)
    gen_kgen_pair_setup(A, P)
    def ln_block():
        stampn(A, "k_ln")
        A.unpk = "lnnp" in OPTS
        A.wait_vm("x")
        for k in range(8):
            A.I("v_dot2_f32_bf16", "v168", vr(X + k), "s56", "v168")
            A.I("v_dot2_f32_bf16", "v169", vr(X + k), vr(X + k), "v169")
        reduce32(A, [168, 169], [170, 171])
        A.I("v_mul_f32", "v168", "0x3b000000", "v168")
        A.I("v_mul_f32", "v169", "0x3b000000", "v169")
        A.I("v_fma_f32", "v169", "-v168", "v168", "v169")
        A.I("v_max_f32", "v169", 0, "v169")
        A.I("v_cvt_pk_bf16_f32", "v192", 0, "v168")
        A.I("v_cvt_pk_bf16_f32", "v169", 0, "v169")
        A.I("v_add_f32", "v169", "0x3727c5ac", "v169")
        A.I("v_cvt_pk_bf16_f32", "v169", 0, "v169")
        A.I("v_sqrt_f32", "v169", "v169")
        A.I("v_cvt_pk_bf16_f32", "v194", 0, "v169")
        A.I("v_rcp_f32", "v172", "v194")
        for k in range(8):
            t = 174 + 2 * (k % 4)
            A.I("v_lshlrev_b32", vr(t), 16, vr(X + k))
            A.I("v_and_b32", vr(t + 1), "s59", vr(X + k))
            A.I("v_pk_add_f32", vr(t, 2), vr(t, 2), "v[192:193]", mods="op_sel_hi:[1,0] neg_lo:[0,1] neg_hi:[0,1]")
            if "lnmimic" in OPTS:
                A.I("v_cvt_pk_bf16_f32", vr(t), 0, vr(t))
                A.I("v_cvt_pk_bf16_f32", vr(t + 1), 0, vr(t + 1))
            A.I("v_pk_mul_f32", vr(t, 2), vr(t, 2), "v[172:173]", mods="op_sel_hi:[1,0]")
            A.I("v_cvt_pk_bf16_f32", vr(X + k), vr(t), vr(t + 1))
            if k == 3: A.I("ds_write_b128", "v182", vr(X, 4))
        A.I("ds_write_b128", "v182", vr(X + 4, 4), mods="offset:512")
        A.unpk = False
        A.I("v_mov_b32", "v193", "v172")
        A.I("v_lshlrev_b32", "v196", 4, "v5")
        A.I("s_lshl_b32", "s71", "s3", 7)
        A.I("s_lshl_b32", "s72", "s28", 5)
        A.I("s_add_u32", "s71", "s71", "s72")
        A.I("s_add_u32", "s71", "s71", hex(STAT))
        A.wait(lgkm=0)
        A.I("s_barrier")
        A.I("ds_read_b64_tr_b16", "v[184:185]", "v183")
        A.I("ds_read_b64_tr_b16", "v[186:187]", "v183", mods=f"offset:{4*1088}")
        A.I("ds_read_b64_tr_b16", "v[188:189]", "v183", mods="offset:128")
        A.I("ds_read_b64_tr_b16", "v[190:191]", "v183", mods=f"offset:{4*1088+128}")
        A.wait(lgkm=2)
        A.I("buffer_store_dwordx4", "v[184:187]", "v7", "s[44:47]", "s55", mods="offen sc1")
        A.wait(lgkm=0)
        A.I("buffer_store_dwordx4", "v[188:191]", "v7", "s[44:47]", "s55", mods="offen offset:1024 sc1")
        A.wait_vm("tag")
        get_tag(A, L, "K_tag", "v123", "v122", "s[24:25]")
        A.I("v_mov_b32", "v195", "v123")
        A.I("v_readfirstlane_b32", "s51", "v123")
        A.I("s_mov_b32", "exec_lo", 1)
        A.I("s_mov_b32", "exec_hi", 1)
        A.I("buffer_store_dwordx4", "v[192:195]", "v196", "s[44:47]", "s71", mods="offen sc1")
        A.I("s_mov_b64", "exec", -1)
        stampn(A, "k_st")
    def f1_block():
        A.wait(vm=1)
        A.I("s_barrier")
        A.I("s_cmp_lg_u32", "s28", 0)
        A.I("s_cbranch_scc1", L("K_f1done"))
        A.I("s_lshl_b32", "s71", "s3", F1SH)
        A.I("s_add_u32", "s71", "s71", hex(F1))
        A.I("s_mov_b64", "exec", 1)
        A.I("buffer_store_dword", "v123", "v122", "s[44:47]", "s71", mods="offen sc1")
        A.I("s_mov_b64", "exec", -1)
        A.label(L("K_f1done"))
        stampn(A, "k_f1")
        if "kx3" in OPTS: A.I("s_branch", L("K_end"))
    def poll_issue():
        A.I("buffer_load_dword", "v121", "v120", "s[44:47]", "s41", mods="offen sc1")
    def gather(sfx=''):
        spin_check(A, L, "K_p1" + sfx, "v121", "v123", poll_issue, sleep=int(os.environ.get("KSLEEP", 8)))
        A.I("s_lshl_b32", "s62", "s28", 19)
        A.I("s_lshl_b32", "s63", "s29", 5)
        A.I("s_add_u32", "s62", "s62", "s63")
        A.I("s_add_u32", "s62", "s62", hex(XNT))
        A.I("s_add_u32", "s63", "s62", 32 * 8192)
        A.I("buffer_load_dwordx4", "v[8:11]", "v32", "s[44:47]", "s62", mods="offen sc1")
        A.I("buffer_load_dwordx4", "v[12:15]", "v32", "s[44:47]", "s63", mods="offen sc1")
    F1AT = min(LNAT + 1, 8)
    POLLAT = int(os.environ.get('POLLAT', 9))
    for pi in range(8):
        if pi == PRIOAT: A.I("s_setprio", 0)
        if pi == LNAT: ln_block()
        if pi == F1AT: f1_block()
        if pi == POLLAT: poll_issue()
        if pi == W2AT: w2warm()
        stampn(A, f"k_p{pi}")
        if "nokgen" not in OPTS: gen_kgen_pair(A, P, 56, pi)
    if PRIOAT == 8: A.I("s_setprio", 0)
    if LNAT >= 8: ln_block()
    if PRIOAT == 9: A.I("s_setprio", 0)
    stampn(A, "k_kgen")
    if "midhi" in OPTS: A.I("s_setprio", 3)
    if "mid2" in OPTS: A.I("s_setprio", 2)
    KACC = 100
    A.I("ds_write2_b32", "v34", vr(KACC), vr(KACC + 1), mods="offset0:0 offset1:2")
    A.I("ds_write2_b32", "v34", vr(KACC + 2), vr(KACC + 3), mods="offset0:4 offset1:6")
    A.I("s_mov_b32", "exec_lo", "0xff00ff00")
    A.I("s_mov_b32", "exec_hi", "0xff00ff00")
    for s in range(1, 4):
        A.I("ds_write2_b32", vr(34 + s), vr(KACC + 4 * s), vr(KACC + 4 * s + 1), mods="offset0:0 offset1:2")
        A.I("ds_write2_b32", vr(34 + s), vr(KACC + 4 * s + 2), vr(KACC + 4 * s + 3), mods="offset0:4 offset1:6")
    A.I("s_mov_b64", "exec", "0x8000")
    A.I("ds_write_b32", "v39", vr(KACC + 18), mods=f"offset:{8 * 720}")
    A.I("s_mov_b64", "exec", -1)
    if POLLAT <= 7: gather()
    A.wait(lgkm=0)
    A.I("s_barrier")
    if POLLAT > 7 and F1AT < 8: poll_issue()
    stampn(A, "k_b1")
    for rd in range(2):
        for ii in range(11):
            A.I("ds_read_b64", vr(128 + 22 * rd + 2 * ii, 2), vr(AD + 11 * rd + ii), tag=f"e{rd}")
    for rd in range(2):
        A.wait_l(f"e{rd}")
        for ii in range(11):
            r = 128 + 22 * rd + 2 * ii
            A.I("v_add_f32", vr(r), vr(r), vr(r + 1))
        e = lambda ip: vr(128 + 22 * rd + 2 * (ip + 3))
        base = 64 + 16 * rd
        for sg in range(4):
            for dwi in range(4):
                lo = 2 * dwi - sg
                A.I("v_cvt_pk_bf16_f32", vr(base + 4 * sg + dwi), e(lo), e(lo + 1))
            A.I("ds_write_b128", "v40", vr(base + 4 * sg, 4), mods=f"offset:{sg * 4160 + rd * 1024}")
    if F1AT >= 8:
        A.wait(lgkm=0)
        f1_block()
    else:
        if POLLAT > 7: gather()
        A.wait(lgkm=0)
        A.I("s_barrier")
    stampn(A, "k_exp")
    if PRIOAT == 10: A.I("s_setprio", 0)
    KF = 128; UB = 96; CA = 64
    A.I("s_cmp_eq_u32", "s31", 1)
    A.I("s_cbranch_scc1", L("conv1"))
    for hw in range(2):
        if hw == 1: A.label(L("conv1"))
        Ps = PSET[hw]
        steps = [(Q, r) for Q in range(8 - min(Ps)) for r in range(8)]
        first = set()
        NB = 8
        def issueU(n):
            Q, r = steps[n]
            q = 8 * Q - r
            A.I("ds_read_b128", vr(UB + 4 * (n % NB), 4), "v42", mods=f"offset:{64 * (q + 7)}", tag=f"U{n}")
        def issueK(r):
            for si, P_ in enumerate(Ps):
                p = 8 * P_ + r
                reg = KF + 32 * si + 4 * r
                A.I("ds_read_b64", vr(reg, 2), "v41", mods=f"offset:{64 * (63 - p)}")
                A.I("ds_read_b64", vr(reg + 2, 2), "v41", mods=f"offset:{64 * (63 - p) + 8}", tag=f"K{r}")
        def mf(n):
            Q, r = steps[n]
            for si, P_ in enumerate(Ps):
                if P_ + Q > 7: continue
                acc = vr(CA + 4 * (P_ + Q), 4)
                c = acc if (P_ + Q) in first else "0"
                first.add(P_ + Q)
                if "noconv" not in OPTS: A.I("v_mfma_f32_16x16x32_bf16", acc, vr(KF + 32 * si + 4 * r, 4), vr(UB + 4 * (n % NB), 4), c)
        for r in range(8): issueK(r)
        if F1AT >= 8:
            poll_issue()
            gather(f"_{hw}")
        A.wait(vm=0)
        stampn(A, "k_u")
        A.I("ds_write_b128", "v33", "v[8:11]")
        A.I("ds_write_b128", "v33", "v[12:15]", mods="offset:512")
        A.wait(lgkm=0)
        A.I("s_barrier")
        stampn(A, "k_q0")
        A.I("s_setprio", int(os.environ.get("KPRIO", 2)))
        A.I("s_lshl_b32", "s41", "s30", 13)
        A.I("s_add_u32", "s41", "s41", ACCX)
        A.I("v_add_u32", "v45", "s41", "v7")
        A.I("s_lshl_b32", "s42", "s36", 16)
        A.I("s_and_b32", "s43", "s36", "0xffff0000")
        A.I("s_cmp_eq_u32", "s30", 0)
        A.I("s_cselect_b32", "s42", "s42", "s43")
        A.I("s_lshl_b32", "s48", "s32", 12)
        A.I("s_add_u32", "s48", "s48", hex(ST) if hw == 1 else hex(ST + 2048))
        if hw == 0: A.I("v_add_u32", "v44", 2048, "v44")
        else: A.I("v_subrev_u32", "v44", 2048, "v44")
        WST = "wst" in OPTS
        if WST:
            A.I("v_and_b32", "v46", 15, "v1")
            A.I("v_lshlrev_b32", "v46", 5, "v46")
            A.I("v_lshl_add_u32", "v46", "v5", 4, "v46")
            A.I("v_bfe_u32", "v47", "v1", 4, 1)
            A.I("v_lshl_add_u32", "v46", "v47", 9, "v46")
        own = list(range(4, 8)) if hw == 0 else list(range(0, 4))
        oth = list(range(0, 4)) if hw == 0 else list(range(4, 8))
        for k in range(4):
            A.I("ds_read_b64", vr(16 + 2 * k, 2), "v44", mods=f"offset:{512 * k}")
        XP = 8
        def fin_ops(k):
            Aa = own[k]; a = CA + 4 * Aa; x = 48 + 4 * k; t = 24 + 4 * (k & 1)
            ops = [("v_lshlrev_b32", [vr(t), 16, vr(16 + 2 * k)]), ("v_and_b32", [vr(t + 1), "s59", vr(16 + 2 * k)]),
                   ("v_lshlrev_b32", [vr(t + 2), 16, vr(17 + 2 * k)]), ("v_and_b32", [vr(t + 3), "s59", vr(17 + 2 * k)])]
            for i in range(4): ops.append(("v_fmac_f32", [vr(x + i), "s42", vr(t + i)]))
            if not (hw == 1 and Aa == 0):
                for i in range(4): ops.append(("v_add_f32", [vr(x + i), vr(x + i), vr(a + i)]))
            if WST:
                y = 48 + 8 * (k >> 1) + 2 * (k & 1)
                ops.append(("v_cvt_pk_bf16_f32", [vr(y), vr(x), vr(x + 1)]))
                ops.append(("v_cvt_pk_bf16_f32", [vr(y + 1), vr(x + 2), vr(x + 3)]))
                if k & 1:
                    ops.append(("v_permlane16_swap_b32", [vr(y - 2), vr(y)]))
                    ops.append(("v_permlane16_swap_b32", [vr(y - 1), vr(y + 1)]))
                    ops.append(("store4", [k - 1, y - 2]))
                return ops
            ops.append(("v_cvt_pk_bf16_f32", [vr(x), vr(x), vr(x + 1)]))
            ops.append(("v_cvt_pk_bf16_f32", [vr(x + 1), vr(x + 2), vr(x + 3)]))
            ops.append(("store", [k, x]))
            return ops
        def emit(op):
            mn, o = op
            if mn == "store": A.I("buffer_store_dwordx2", vr(o[1], 2), "v43", "s[44:47]", "s48", mods=f"offen offset:{512 * o[0]} sc1")
            elif mn == "store4": A.I("buffer_store_dwordx4", vr(o[1], 4), "v46", "s[44:47]", "s48", mods=f"offen offset:{512 * o[0]} sc1")
            else: A.I(mn, *o)
        def send():
            for Aa in oth: A.I("ds_write_b128", "v45", vr(CA + 4 * Aa, 4), mods=f"offset:{Aa * 1024}", tag="snd")
            A.wait_l("snd")
        def recv():
            for k, Aa in enumerate(own): A.I("ds_read_b128", vr(48 + 4 * k, 4), "v45", mods=f"offset:{Aa * 1024}", tag="rcv")
        for k in range(NB - 1): issueU(k)
        nxt = NB - 1
        pend = []
        for n in range(0, len(steps)):
            if n == 32:
                if hw == 0: send()
                A.I("s_barrier")
                if hw == 1: recv()
            if n == 56:
                A.I("s_barrier")
                recv()
            if hw == 1 and n == 36:
                A.wait_l("rcv")
                pend = fin_ops(0) + fin_ops(1) + fin_ops(2) + fin_ops(3)
            if hw == 0 and n == 59:
                A.wait_l("rcv")
                pend = fin_ops(0) + fin_ops(1) + fin_ops(2)
            A.wait_l(f"U{n}")
            mf(n)
            if nxt < len(steps): issueU(nxt)
            nxt += 1
            for _ in range(3 if hw == 1 else 9):
                if pend: emit(pend.pop(0))
        stampn(A, "k_mf")
        if hw == 1:
            send()
            A.I("s_barrier")
            for op in pend: emit(op)
        else:
            for op in pend + fin_ops(3): emit(op)
        if hw == 0: A.I("s_branch", L("K_pub"))
    A.label(L("K_pub"))
    stampn(A, "k_conv")
    A.wait(vm=0)
    A.I("s_barrier")
    A.I("s_cmp_lg_u32", "s28", 0)
    A.I("s_cbranch_scc1", L("K_end"))
    A.I("s_lshl_b32", "s71", "s29", F3SH)
    A.I("s_add_u32", "s71", "s71", hex(F3))
    A.I("v_mov_b32", "v8", "s51")
    A.I("v_mov_b32", "v9", 0)
    A.I("s_mov_b64", "exec", 1)
    A.I("buffer_store_dword", "v8", "v9", "s[44:47]", "s71", mods="offen sc1")
    A.I("s_mov_b64", "exec", -1)
    A.unpk = False
    A.label(L("K_end"))
    stamp_flush(A, 0, "s[26:27]", 7)
    A.I("s_endpgm")
```
